```python
import torch

def _softmax(x, axis=-1):
    return torch.softmax(x, dim=axis)
def _gelu(x):
    return torch.nn.functional.gelu(x, approximate="tanh")
def _silu(x):
    return torch.nn.functional.silu(x)
def _sigmoid(x):
    return torch.sigmoid(x)
def _layernorm(x, axis=-1, eps=1e-5):
    m = x.mean(dim=axis, keepdim=True)
    v = x.var(dim=axis, keepdim=True, unbiased=False)
    return (x - m) / torch.sqrt(v + eps)
def _scatter_add(tgt, idx, src, axis=0):
    return tgt.clone().index_add_(axis, idx, src)
def _segment_sum(src, seg, n):
    out = torch.zeros((n,) + src.shape[1:], dtype=src.dtype)
    return out.index_add_(0, seg, src)
def _pad(x, pw):
    flat = tuple(v for pair in reversed(pw) for v in pair)
    return torch.nn.functional.pad(x, flat)

kernel_name = 'parallel_sum__sliding_local_dilated__swiglu_ffn__prompt'

def setup_inputs():

    _w = (lambda a: (lambda t: t.to(torch.bfloat16) if t.is_floating_point() else t)(torch.as_tensor(a)))
    def _A_setup():
        B, S, D = 1, 2048, 576
        return {
            "x": _w((lambda *s: torch.randn(*s, dtype=torch.bfloat16) * 0.05)(B, S, D)),
            "wqkv": _w((lambda *s: torch.randn(*s, dtype=torch.bfloat16) * 0.1)(D, 3 * D)),
            "wo": _w((lambda *s: torch.randn(*s, dtype=torch.bfloat16) * 0.05)(D, D)),
        }
    _A_in = _A_setup()

    def _B_setup():
        B, S, D, F = 1, 2048, 576, 4608
        return {
            "x": _w((lambda *s: torch.randn(*s, dtype=torch.bfloat16) * 0.05)(B, S, D)),
            "w_gate": _w((lambda *s: torch.randn(*s, dtype=torch.bfloat16) * 0.05)(D, F)),
            "w_up": _w((lambda *s: torch.randn(*s, dtype=torch.bfloat16) * 0.05)(D, F)),
            "w_down": _w((lambda *s: torch.randn(*s, dtype=torch.bfloat16) * 0.05)(F, D)),
        }
    _B_in = _B_setup()

    return {
        "A_x": _A_in["x"],
        "A_wqkv": _A_in["wqkv"],
        "A_wo": _A_in["wo"],
        "B_x": _B_in["x"],
        "B_w_gate": _B_in["w_gate"],
        "B_w_up": _B_in["w_up"],
        "B_w_down": _B_in["w_down"],
    }

def reference(A_x, A_wqkv, A_wo, B_x, B_w_gate, B_w_up, B_w_down):
    def _A_ref(x, wqkv, wo):
        B, S, D = x.shape
        H = 32; Dh = D // H
        W, dil = 8, 2
        qkv = (lambda x, *d: x.permute(*d))((x @ wqkv).reshape(B, S, 3, H, Dh), 2, 0, 3, 1, 4)
        q, k, v = qkv[0], qkv[1], qkv[2]
        scale = Dh ** -0.5
        pos = torch.arange(S)
        off = torch.arange(W) * dil
        idx = pos[:, None] - off[None, :]
        mask = idx >= 0
        idx_c = torch.where(mask, idx, 0).reshape(-1)
        kg = k[:, :, idx_c, :].reshape(B, H, S, W, Dh)
        vg = v[:, :, idx_c, :].reshape(B, H, S, W, Dh)
        logits = torch.einsum("bhsd,bhswd->bhsw", q, kg) * scale
        logits = torch.where(mask[None, None, :, :], logits, -1e9)
        attn = _softmax(logits, axis=-1)
        o = torch.einsum("bhsw,bhswd->bhsd", attn, vg)
        return (lambda x, *d: x.permute(*d))(o, 0, 2, 1, 3).reshape(B, S, D) @ wo

    def _B_ref(x, w_gate, w_up, w_down):
        g = _silu(x @ w_gate)
        u = x @ w_up
        return (g * u) @ w_down

    x = A_x
    xn = _layernorm(x, axis=-1)
    return x + _A_ref(xn, A_wqkv, A_wo) + _B_ref(xn, B_w_gate, B_w_up, B_w_down)
```

```python
import re

_REG = re.compile(r'^(v|a|s)(\d+)$')
_RNG = re.compile(r'^(v|a|s)\[(\d+):(\d+)\]$')


def regs_of(op):
    op = op.strip()
    neg = op.lstrip('-')
    if neg.startswith('abs(') or neg.startswith('|'):
        neg = neg.strip('|').replace('abs(', '').rstrip(')')
    m = _REG.match(neg)
    if m:
        return [neg]
    m = _RNG.match(neg)
    if m:
        return [f"{m.group(1)}{i}" for i in range(int(m.group(2)), int(m.group(3)) + 1)]
    if neg in ('vcc', 'exec', 'm0', 'scc'):
        return [neg]
    if neg in ('vcc_lo', 'vcc_hi'):
        return ['vcc']
    if neg in ('exec_lo', 'exec_hi'):
        return ['exec']
    return []


def vr(base, n=1):
    return f"v{base}" if n == 1 else f"v[{base}:{base + n - 1}]"


def ar(base, n=1):
    return f"a{base}" if n == 1 else f"a[{base}:{base + n - 1}]"


def sr(base, n=1):
    return f"s{base}" if n == 1 else f"s[{base}:{base + n - 1}]"


TRANS = ('v_exp_f32', 'v_log_f32', 'v_rcp_f32', 'v_rsq_f32', 'v_sqrt_f32', 'v_sin_f32', 'v_cos_f32')


class Inst:
    __slots__ = ('op', 'ops', 'mods', 'kind', 'reads', 'writes', 'cost', 'flag', 'tag')

    def __init__(self, op, ops, mods='', flag=None, tag=None):
        self.op = op
        self.ops = list(ops)
        self.mods = mods
        self.flag = flag
        self.tag = tag
        R, W = [], []
        o = self.ops
        if op.startswith('v_mfma'):
            self.kind = 'mfma'
            W += regs_of(o[0])
            for x in o[1:]:
                R += regs_of(x)
            self.cost = 8
        elif op.startswith('ds_read') or op.startswith('ds_bpermute') or op.startswith('ds_swizzle'):
            self.kind = 'ldsr'
            W += regs_of(o[0])
            for x in o[1:]:
                R += regs_of(x)
            self.cost = 4
        elif op.startswith('ds_write'):
            self.kind = 'ldsw'
            for x in o:
                R += regs_of(x)
            self.cost = 4
        elif op.startswith('buffer_load'):
            if ' lds' in (' ' + mods):
                self.kind = 'dma'
                for x in o:
                    R += regs_of(x)
                R.append('m0')
                self.cost = 8
            else:
                self.kind = 'vmr'
                W += regs_of(o[0])
                for x in o[1:]:
                    R += regs_of(x)
                self.cost = 4
        elif op.startswith('buffer_store') or op.startswith('buffer_atomic'):
            self.kind = 'vmw'
            for x in o:
                R += regs_of(x)
            self.cost = 8
        elif op.startswith('v_'):
            self.kind = 'trans' if op in TRANS else 'valu'
            if op.startswith('v_permlane'):
                for x in o:
                    R += regs_of(x)
                    W += regs_of(x)
            elif op.startswith('v_cmp'):
                W += regs_of(o[0])
                for x in o[1:]:
                    R += regs_of(x)
            elif op in ('v_add_co_u32', 'v_addc_co_u32', 'v_sub_co_u32'):
                W += regs_of(o[0]) + regs_of(o[1])
                for x in o[2:]:
                    R += regs_of(x)
            else:
                W += regs_of(o[0])
                for x in o[1:]:
                    R += regs_of(x)
                if op in ('v_fmac_f32', 'v_dot2c_f32_bf16'):
                    R += regs_of(o[0])
            self.cost = 8 if self.kind == 'trans' else 4
        elif op.startswith('s_'):
            self.kind = 'salu'
            if op in ('s_barrier', 's_nop', 's_endpgm', 's_setprio', 's_waitcnt', 's_branch') or op.startswith('s_cbranch'):
                self.kind = 'ctl'
            elif op.startswith('s_cmp'):
                for x in o:
                    R += regs_of(x)
            elif op.startswith('s_load') or op.startswith('s_mem'):
                self.kind = 'smem'
                W += regs_of(o[0])
                for x in o[1:]:
                    R += regs_of(x)
            else:
                W += regs_of(o[0])
                for x in o[1:]:
                    R += regs_of(x)
            self.cost = 4
        else:
            raise ValueError(op)
        self.reads = R
        self.writes = W

    def text(self):
        t = self.op
        if self.ops:
            t += ' ' + ', '.join(self.ops)
        if self.mods:
            t += ' ' + self.mods
        return t


def I(op, *ops, mods='', flag=None, tag=None):
    return Inst(op, [str(x) for x in ops], mods, flag, tag)


class Prog:
    def __init__(self):
        self.lines = []
        self.n = 0
        self.lds_q = []
        self.vm_q = []
        self.last_valu_w = {}
        self.last_trans_w = {}
        self.last_mfma_w = {}
        self.last_mfma_c = {}
        self.last_valu_sw = {}
        self.last_m0 = -100
        self.last_store_data = {}
        self.last_dot_w = {}
        self.stats = {}
        self.smem_pending = False

    def raw(self, text):
        self.lines.append(text)

    def label(self, name):
        self.lines.append(name + ':')

    def comment(self, text):
        self.lines.append('; ' + text)

    def _put(self, text, slots=1):
        self.lines.append('  ' + text)
        self.n += slots

    def nop(self, k):
        while k > 0:
            c = min(k, 16)
            self._put(f's_nop {c - 1}', c)
            k -= c

    def wait_lgkm(self, n):
        n = min(n, 15)
        if len(self.lds_q) > n:
            self._put(f's_waitcnt lgkmcnt({n})')
            self.lds_q = self.lds_q[len(self.lds_q) - n:] if n else []

    def wait_vm(self, n):
        n = min(n, 63)
        if len(self.vm_q) > n:
            self._put(f's_waitcnt vmcnt({n})')
            self.vm_q = self.vm_q[len(self.vm_q) - n:] if n else []

    def wait_lds_flagged(self):
        idx = -1
        for i, e in enumerate(self.lds_q):
            if e['flag']:
                idx = i
        if idx >= 0:
            self.wait_lgkm(len(self.lds_q) - 1 - idx)

    def wait_vm_tag(self, tag):
        idx = -1
        for i, e in enumerate(self.vm_q):
            if e['tag'] == tag:
                idx = i
        if idx >= 0:
            self.wait_vm(len(self.vm_q) - 1 - idx)

    def barrier(self):
        self._put('s_barrier')

    def emit(self, ins):
        if isinstance(ins, (list, tuple)):
            for x in ins:
                self.emit(x)
            return
        R, W = ins.reads, ins.writes
        touched = set(R) | set(W)
        idx = -1
        for i, e in enumerate(self.lds_q):
            if e['writes'] & touched:
                idx = i
        if idx >= 0:
            self.wait_lgkm(len(self.lds_q) - 1 - idx)
        idx = -1
        for i, e in enumerate(self.vm_q):
            if e['writes'] & touched:
                idx = i
        if idx >= 0:
            self.wait_vm(len(self.vm_q) - 1 - idx)
        need = 0
        k = ins.kind

        def req(slot, ws):
            nonlocal need
            have = self.n - slot - 1
            if ws - have > need:
                need = ws - have
        if k == 'mfma':
            D = tuple(regs_of(ins.ops[0]))
            C = tuple(regs_of(ins.ops[3]))
            AB = regs_of(ins.ops[1]) + regs_of(ins.ops[2])
            for r in R:
                if r in self.last_valu_w:
                    req(self.last_valu_w[r], 2)
                if r in self.last_dot_w:
                    req(self.last_dot_w[r][0], 3)
            for r in AB:
                if r in self.last_mfma_w:
                    req(self.last_mfma_w[r][0], 8)
            for r in C:
                if r in self.last_mfma_w:
                    s, d = self.last_mfma_w[r]
                    if d != C:
                        req(s, 6)
            for r in D:
                if r in self.last_mfma_w and r not in C:
                    s, d = self.last_mfma_w[r]
                    req(s, 6)
        else:
            isv = k in ('valu', 'trans')
            if isv or k in ('ldsr', 'ldsw', 'vmr', 'vmw', 'dma'):
                for r in touched:
                    if r in self.last_mfma_w:
                        req(self.last_mfma_w[r][0], 8)
            if isv or k in ('ldsr', 'ldsw', 'vmr', 'vmw', 'dma'):
                for r in touched:
                    if r in self.last_dot_w:
                        s_, opc = self.last_dot_w[r]
                        if opc == ins.op and isv:
                            ab = regs_of(ins.ops[1]) + regs_of(ins.ops[2])
                            if r in ab:
                                req(s_, 3)
                        else:
                            req(s_, 3)
            if isv:
                for r in W:
                    if r in self.last_mfma_c:
                        req(self.last_mfma_c[r], 3)
                    if r in self.last_store_data:
                        req(self.last_store_data[r], 2)
                if k == 'valu':
                    for r in R:
                        if r in self.last_trans_w:
                            req(self.last_trans_w[r], 1)
                for r in R:
                    if r in self.last_valu_sw:
                        req(self.last_valu_sw[r], 4 if ins.op in ('v_readlane_b32', 'v_writelane_b32') else 2)
                if ins.op.startswith('v_permlane') or 'dpp' in ins.mods or 'row_' in ins.mods or 'quad_perm' in ins.mods:
                    for r in R:
                        if r in self.last_valu_w:
                            req(self.last_valu_w[r], 2)
                if ins.op.startswith('v_readfirstlane') or ins.op.startswith('v_readlane'):
                    for r in R:
                        if r in self.last_valu_w:
                            req(self.last_valu_w[r], 1)
            if k in ('vmr', 'vmw', 'dma'):
                for r in R:
                    if r in self.last_valu_sw:
                        req(self.last_valu_sw[r], 5)
            if k == 'dma':
                req(self.last_m0, 1)
            if k in ('ldsr', 'vmr'):
                for r in W:
                    if r in self.last_store_data:
                        req(self.last_store_data[r], 1)
            if k == 'salu':
                for r in R:
                    if r in self.last_valu_sw:
                        req(self.last_valu_sw[r], 4)
        if need > 0:
            self.nop(need)
            self.stats['nops'] = self.stats.get('nops', 0) + need
        slot = self.n
        self._put(ins.text())
        self.stats[k] = self.stats.get(k, 0) + 1
        if k == 'mfma':
            D = tuple(regs_of(ins.ops[0]))
            for r in D:
                self.last_mfma_w[r] = (slot, D)
                self.last_valu_w.pop(r, None)
            for r in regs_of(ins.ops[3]):
                self.last_mfma_c[r] = slot
        elif k in ('valu', 'trans'):
            for r in W:
                self.last_dot_w.pop(r, None)
                if ins.op.startswith('v_dot'):
                    self.last_dot_w[r] = (slot, ins.op)
                if r[0] in 'va':
                    self.last_valu_w[r] = slot
                    self.last_mfma_w.pop(r, None)
                    if k == 'trans':
                        self.last_trans_w[r] = slot
                    else:
                        self.last_trans_w.pop(r, None)
                else:
                    self.last_valu_sw[r] = slot
        elif k == 'salu':
            for r in W:
                self.last_valu_sw.pop(r, None)
                if r == 'm0':
                    self.last_m0 = slot
        elif k in ('ldsr', 'ldsw'):
            self.lds_q.append(dict(writes=set(W), flag=ins.flag))
            for r in W:
                self.last_mfma_w.pop(r, None); self.last_valu_w.pop(r, None); self.last_trans_w.pop(r, None)
        elif k in ('vmr', 'vmw', 'dma'):
            self.vm_q.append(dict(writes=set(W), tag=ins.tag))
            for r in W:
                self.last_mfma_w.pop(r, None); self.last_valu_w.pop(r, None); self.last_trans_w.pop(r, None)
            if k == 'vmw' and ('x4' in ins.op or 'x3' in ins.op):
                for r in regs_of(ins.ops[0]):
                    self.last_store_data[r] = slot

    def e(self, op, *ops, **kw):
        self.emit(I(op, *ops, **kw))

    def text(self):
        return '\n'.join(self.lines) + '\n'
```

```python
import sys, math
from asmlib import *

KN = "parallel_sum__sliding_local_dilated__swiglu_ffn__prompt"

XF_OFF = 0
XF_SIZE = 128 * 18 * 1024
P_OFF = 4 << 20
P_TILE = 144 * 1024

SLOT = 24576
RING = 0
HB = 3 * SLOT
SB = HB + 16384
SPITCH = 272
XB = HB + 4 * 16384
XPITCH = 144
LDS_TOTAL = XB + 128 * XPITCH

LOG2E = 1.4426950408889634


def f2h(x):
    import struct
    return "0x%08x" % struct.unpack('<I', struct.pack('<f', x))[0]


def header_comments(launches):
    L = []
    L.append(";   0 A_x, 8 A_wqkv, 16 A_wo, 24 B_x, 32 B_w_gate, 40 B_w_up, 48 B_w_down, 56 d_out, 64 d_debug, 72 d_ws")
    L.append("; Generated by a hand-written python generator (work/gen.py).")
    for (k, g, b, lds) in launches:
        L.append(f"; @launch kernel={k} grid=({g},1,1) block=({b},1,1) lds={lds}")
    L.append('.amdgcn_target "amdgcn-amd-amdhsa--gfx950"')
    L.append(".text")
    return "\n".join(L) + "\n"


def kernel_begin(P, name):
    P.raw(f".globl {name}")
    P.raw(".p2align 8")
    P.raw(f".type {name},@function")
    P.raw(f"{name}:")


def descriptor(name, vgpr, accum, sgpr=102):
    return "\n".join([
        ".p2align 6", f".amdhsa_kernel {name}",
        f"  .amdhsa_next_free_vgpr {vgpr}", f"  .amdhsa_next_free_sgpr {sgpr}", f"  .amdhsa_accum_offset {accum}",
        "  .amdhsa_group_segment_fixed_size 0", "  .amdhsa_kernarg_size 80", "  .amdhsa_user_sgpr_count 2",
        "  .amdhsa_user_sgpr_kernarg_segment_ptr 1", "  .amdhsa_system_sgpr_workgroup_id_x 1", ".end_amdhsa_kernel"]) + "\n"


def srd(P, d, lo, hi, size):
    P.e('s_mov_b32', sr(d), lo)
    P.e('s_and_b32', sr(d + 1), hi, '0xffff')
    P.e('s_mov_b32', sr(d + 2), str(size))
    P.e('s_mov_b32', sr(d + 3), '0x20000')


def gen_k0():
    P = Prog()
    name = "k0_ln_kernel"
    kernel_begin(P, name)
    P.e('s_cmp_ge_u32', 's2', '128')
    P.raw("  s_cbranch_scc1 K0_end")
    P.e('s_load_dwordx2', 's[4:5]', 's[0:1]', '0')
    P.e('s_load_dwordx2', 's[6:7]', 's[0:1]', '72')
    P.e('v_and_b32', 'v1', '63', 'v0')
    P.e('v_lshrrev_b32', 'v2', '6', 'v0')
    P.e('v_and_b32', 'v3', '15', 'v1')
    P.e('v_lshrrev_b32', 'v4', '4', 'v1')
    P.e('v_readfirstlane_b32', 's20', 'v2')
    P.raw("  s_waitcnt lgkmcnt(0)")
    srd(P, 8, 's4', 's5', 2048 * 1152)
    srd(P, 12, 's6', 's7', XF_OFF + XF_SIZE)
    P.e('s_lshl_b32', 's21', 's2', '4')
    P.e('v_add_u32', 'v5', 's21', 'v3')
    P.e('s_movk_i32', 's22', '1152')
    P.e('v_mul_lo_u32', 'v5', 'v5', 's22')
    P.e('v_lshlrev_b32', 'v6', '4', 'v4')
    P.e('v_add_u32', 'v5', 'v5', 'v6')
    P.e('s_mul_i32', 's23', 's20', '576')
    X = 16
    for t in range(9):
        P.e('buffer_load_dwordx4', vr(X + 4 * t, 4), 'v5', 's[8:11]', 's23', mods=f'offen offset:{64 * t}')
    P.e('v_mov_b32', 'v7', '0x3f803f80')
    P.e('v_mov_b32', 'v8', '0'); P.e('v_mov_b32', 'v9', '0'); P.e('v_mov_b32', 'v10', '0'); P.e('v_mov_b32', 'v11', '0')
    for j in range(36):
        P.e('v_dot2c_f32_bf16', 'v8' if j % 2 == 0 else 'v10', vr(X + j), 'v7')
        P.e('v_dot2c_f32_bf16', 'v9' if j % 2 == 0 else 'v11', vr(X + j), vr(X + j))
    P.e('v_add_f32', 'v8', 'v8', 'v10')
    P.e('v_add_f32', 'v9', 'v9', 'v11')
    for sw in ('v_permlane32_swap_b32', 'v_permlane16_swap_b32'):
        P.e('v_mov_b32', 'v10', 'v8'); P.e('v_mov_b32', 'v11', 'v9')
        P.e('v_mov_b32', 'v12', 'v8'); P.e('v_mov_b32', 'v13', 'v9')
        P.e(sw, 'v10', 'v12'); P.e(sw, 'v11', 'v13')
        P.e('v_add_f32', 'v8', 'v10', 'v12'); P.e('v_add_f32', 'v9', 'v11', 'v13')
    P.e('v_lshlrev_b32', 'v10', '3', 'v0')
    P.e('ds_write_b64', 'v10', 'v[8:9]')
    P.e('v_xor_b32', 'v11', '512', 'v10')
    P.wait_lgkm(0)
    P.barrier()
    P.e('ds_read_b64', 'v[12:13]', 'v11')
    P.e('v_add_f32', 'v8', 'v8', 'v12')
    P.e('v_add_f32', 'v9', 'v9', 'v13')
    P.e('v_mul_f32', 'v8', f2h(1.0 / 576), 'v8')
    P.e('v_mul_f32', 'v9', f2h(1.0 / 576), 'v9')
    P.e('v_fma_f32', 'v9', '-v8', 'v8', 'v9')
    P.e('v_max_f32', 'v9', '0', 'v9')
    P.e('v_add_f32', 'v9', f2h(1e-5), 'v9')
    P.e('v_rsq_f32', 'v9', 'v9')
    P.e('v_mul_f32', 'v8', 'v8', 'v9')
    P.e('v_sub_f32', 'v8', '0', 'v8')
    P.e('s_mov_b32', 's24', '0xffff0000')
    for j in range(36):
        a, b = 10 + 2 * (j % 2), 11 + 2 * (j % 2)
        P.e('v_lshlrev_b32', vr(a), '16', vr(X + j))
        P.e('v_and_b32', vr(b), 's24', vr(X + j))
        P.e('v_fma_f32', vr(a), vr(a), 'v9', 'v8')
        P.e('v_fma_f32', vr(b), vr(b), 'v9', 'v8')
        P.e('v_cvt_pk_bf16_f32', vr(X + j), vr(a), vr(b))
    P.e('v_lshlrev_b32', 'v6', '4', 'v1')
    P.e('s_mul_i32', 's25', 's2', str(18 * 1024))
    P.e('s_mul_i32', 's26', 's20', str(9 * 1024))
    P.e('s_add_u32', 's25', 's25', 's26')
    for t in range(9):
        if t % 4 == 0 and t:
            P.e('s_add_u32', 's25', 's25', '4096')
        P.e('buffer_store_dwordx4', vr(X + 4 * t, 4), 'v6', 's[12:15]', 's25', mods=f'offen offset:{1024 * (t % 4)}')
    P.label("K0_end")
    P.raw("  s_endpgm")
    return P.text(), descriptor(name, 64, 64, 32), (name, 128, 128, 1024)


def gen_k2():
    P = Prog()
    name = "k2_reduce_kernel"
    kernel_begin(P, name)
    P.e('s_cmp_ge_u32', 's2', '576')
    P.raw("  s_cbranch_scc1 K2_end")
    P.e('s_load_dwordx2', 's[4:5]', 's[0:1]', '0')
    P.e('s_load_dwordx2', 's[6:7]', 's[0:1]', '72')
    P.e('s_load_dwordx2', 's[16:17]', 's[0:1]', '56')
    P.e('v_and_b32', 'v1', '63', 'v0')
    P.e('v_lshrrev_b32', 'v2', '6', 'v0')
    P.e('v_and_b32', 'v3', '15', 'v1')
    P.e('v_lshrrev_b32', 'v4', '4', 'v1')
    P.e('v_readfirstlane_b32', 's20', 'v2')
    P.raw("  s_waitcnt lgkmcnt(0)")
    srd(P, 8, 's4', 's5', 2048 * 1152)
    P.e('s_add_u32', 's6', 's6', str(P_OFF)); P.e('s_addc_u32', 's7', 's7', '0')
    srd(P, 12, 's6', 's7', 256 * P_TILE)
    srd(P, 24, 's16', 's17', 2048 * 1152)
    P.e('s_lshl_b32', 's21', 's2', '2'); P.e('s_add_u32', 's21', 's21', 's20')
    P.e('s_mul_hi_u32', 's22', 's21', str((2 ** 32 + 143) // 144))
    P.e('s_mul_i32', 's23', 's22', '144'); P.e('s_sub_u32', 's23', 's21', 's23')
    P.e('s_lshl_b32', 's28', 's21', '10')
    P.e('v_lshlrev_b32', 'v5', '4', 'v1')
    D = 16
    for s in range(16):
        P.e('buffer_load_dwordx4', vr(D + 4 * s, 4), 'v5', 's[12:15]', 's28', mods='offen')
        if s < 15:
            P.e('s_add_u32', 's28', 's28', str(16 * P_TILE))
    P.e('s_and_b32', 's29', 's23', '3')
    P.e('s_cmp_ge_u32', 's23', '128')
    P.e('s_cselect_b32', 's30', '1', '0')
    P.e('s_lshr_b32', 's31', 's23', '3'); P.e('s_and_b32', 's31', 's31', '3')
    P.e('s_sub_u32', 's32', 's23', '128'); P.e('s_lshr_b32', 's32', 's32', '2')
    P.e('s_cmp_eq_u32', 's30', '1'); P.e('s_cselect_b32', 's31', 's32', 's31')
    P.e('s_and_b32', 's33', 's31', '1')
    P.e('s_lshr_b32', 's34', 's31', '1')
    P.e('s_lshr_b32', 's35', 's23', '5'); P.e('s_lshl_b32', 's35', 's35', '7')
    P.e('s_lshl_b32', 's36', 's34', '6'); P.e('s_add_u32', 's35', 's35', 's36')
    P.e('s_lshr_b32', 's36', 's23', '2'); P.e('s_and_b32', 's36', 's36', '1'); P.e('s_lshl_b32', 's36', 's36', '5')
    P.e('s_add_u32', 's35', 's35', 's36')
    P.e('s_lshl_b32', 's36', 's34', '5'); P.e('s_add_u32', 's36', 's36', '512')
    P.e('s_cmp_eq_u32', 's30', '1'); P.e('s_cselect_b32', 's35', 's36', 's35')
    P.e('s_lshl_b32', 's37', 's22', '7'); P.e('s_lshl_b32', 's38', 's33', '6'); P.e('s_add_u32', 's37', 's37', 's38')
    P.e('s_lshl_b32', 's38', 's29', '4'); P.e('s_add_u32', 's37', 's37', 's38')
    P.e('v_add_u32', 'v6', 's37', 'v3')
    P.e('s_movk_i32', 's39', '1152')
    P.e('v_mul_lo_u32', 'v6', 'v6', 's39')
    P.e('s_lshl_b32', 's40', 's35', '1')
    P.e('v_add_u32', 'v6', 's40', 'v6')
    P.e('v_lshlrev_b32', 'v7', '3', 'v4')
    P.e('v_add_u32', 'v7', 'v6', 'v7')
    P.e('buffer_load_dwordx2', 'v[8:9]', 'v7', 's[8:11]', '0', mods='offen')
    P.e('buffer_load_dwordx2', 'v[10:11]', 'v7', 's[8:11]', '0', mods='offen offset:32')
    P.e('v_and_b32', 'v12', '1', 'v4'); P.e('v_lshlrev_b32', 'v12', '5', 'v12')
    P.e('v_lshrrev_b32', 'v13', '1', 'v4'); P.e('v_lshlrev_b32', 'v13', '4', 'v13')
    P.e('v_add3_u32', 'v6', 'v6', 'v12', 'v13')
    P.e('s_mov_b32', 's41', '0xffff0000')
    ACC = 80
    for s in range(16):
        for j in range(4):
            d = vr(D + 4 * s + j)
            if s == 0:
                P.e('v_lshlrev_b32', vr(ACC + 2 * j), '16', d)
                P.e('v_and_b32', vr(ACC + 2 * j + 1), 's41', d)
            else:
                t0, t1 = 88 + 2 * (j % 2), 89 + 2 * (j % 2)
                P.e('v_lshlrev_b32', vr(t0), '16', d)
                P.e('v_and_b32', vr(t1), 's41', d)
                P.e('v_add_f32', vr(ACC + 2 * j), vr(ACC + 2 * j), vr(t0))
                P.e('v_add_f32', vr(ACC + 2 * j + 1), vr(ACC + 2 * j + 1), vr(t1))
    for j in range(4):
        d = vr(8 + j)
        t0, t1 = 88 + 2 * (j % 2), 89 + 2 * (j % 2)
        P.e('v_lshlrev_b32', vr(t0), '16', d)
        P.e('v_and_b32', vr(t1), 's41', d)
        P.e('v_add_f32', vr(ACC + 2 * j), vr(ACC + 2 * j), vr(t0))
        P.e('v_add_f32', vr(ACC + 2 * j + 1), vr(ACC + 2 * j + 1), vr(t1))
    for j in range(4):
        P.e('v_cvt_pk_bf16_f32', vr(92 + j), vr(ACC + 2 * j), vr(ACC + 2 * j + 1))
    P.e('v_permlane16_swap_b32', 'v92', 'v94')
    P.e('v_permlane16_swap_b32', 'v93', 'v95')
    P.e('buffer_store_dwordx4', 'v[92:95]', 'v6', 's[24:27]', '0', mods='offen')
    P.label("K2_end")
    P.raw("  s_endpgm")
    return P.text(), descriptor(name, 96, 96, 48), (name, 576, 256, 0)


class K1:
    V_LANE, V_C16, V_G, V_T0, V_T1, V_T2, V_T3, V_T4 = 1, 2, 3, 4, 5, 6, 7, 8
    ACC0, ACC1 = 16, 80
    FR = 144
    NFR = 6
    XV = 168
    TQ = 200
    TG = 204
    TH = 208
    TP = 210
    TPH = 214
    DQ = 216
    DG = 219
    DH = 222
    DP = 225
    DPH = 228
    HW = 231
    HWX = 233
    HR = 234
    XR = 236
    SW = 237
    AB = 241
    OW = 242
    PV = 243
    MG = 244
    HAL = 248
    HALX = 8

    S_W, S_S, S_I = 20, 21, 22
    S_RG2, S_CH = 23, 24
    S_LDSW = 25
    S_XF = 26
    S_FB = 28
    S_T0, S_T1, S_T2, S_T3 = 34, 35, 36, 37
    S_SOFF = 38
    S_NLOG2E = 39
    S_AC = 40
    S_PERM0, S_PERM1 = 41, 42
    S_NEG = 43
    S_QC = 44
    S_PO = 45
    SRD_XF, SRD_QKV, SRD_GU, SRD_WD, SRD_WO, SRD_P = 48, 52, 56, 60, 64, 68

    def __init__(self, opts):
        self.P = Prog()
        self.o = opts

    def xreg(self, t, mb):
        j = 4 * t + mb
        return ar(4 * j, 4) if j < 64 else vr(self.XV + 4 * (j - 64), 4)

    def hreg(self, k, mb):
        return ar(16 * k + 4 * mb, 4)

    def halo_x(self, t):
        return vr(self.ACC1 + 4 * t, 4) if t < 16 else vr(self.HALX + 4 * (t - 16), 4)

    def prologue(self):
        P = self.P
        e = P.e
        e('s_cmp_ge_u32', 's2', '256')
        P.raw("  s_cbranch_scc1 K1_end")
        e('s_load_dwordx4', 's[4:7]', 's[0:1]', '8')
        e('s_load_dwordx4', 's[8:11]', 's[0:1]', '32')
        e('s_load_dwordx2', 's[12:13]', 's[0:1]', '48')
        e('s_load_dwordx2', 's[14:15]', 's[0:1]', '72')
        L, C16, G = vr(self.V_LANE), vr(self.V_C16), vr(self.V_G)
        e('v_and_b32', L, '63', 'v0')
        e('v_lshrrev_b32', 'v4', '6', 'v0')
        e('v_and_b32', C16, '15', L)
        e('v_lshrrev_b32', G, '4', L)
        e('v_readfirstlane_b32', sr(self.S_W), 'v4')
        e('s_and_b32', sr(self.S_S), 's2', '7'); e('s_lshl_b32', sr(self.S_S), sr(self.S_S), '1')
        e('s_bfe_u32', sr(self.S_T0), 's2', '0x10003'); e('s_add_u32', sr(self.S_S), sr(self.S_S), sr(self.S_T0))
        e('s_lshr_b32', sr(self.S_I), 's2', '4')
        e('s_and_b32', sr(self.S_RG2), sr(self.S_W), '1'); e('s_lshr_b32', sr(self.S_CH), sr(self.S_W), '1')
        e('s_mul_i32', sr(self.S_LDSW), sr(self.S_W), '6144')
        P.raw("  s_waitcnt lgkmcnt(0)")
        e('s_add_u32', sr(self.S_T0), 's14', str(XF_OFF)); e('s_addc_u32', sr(self.S_T1), 's15', '0')
        srd(P, self.SRD_XF, sr(self.S_T0), sr(self.S_T1), XF_SIZE)
        srd(P, self.SRD_QKV, 's4', 's5', 576 * 3456)
        srd(P, self.SRD_WO, 's6', 's7', 576 * 1152)
        e('s_cmp_ge_u32', sr(self.S_W), '2')
        e('s_cselect_b32', sr(self.S_T0), 's10', 's8'); e('s_cselect_b32', sr(self.S_T1), 's11', 's9')
        srd(P, self.SRD_GU, sr(self.S_T0), sr(self.S_T1), 576 * 9216)
        srd(P, self.SRD_WD, 's12', 's13', 4608 * 1152)
        e('s_lshl_b32', sr(self.S_T2), sr(self.S_S), '4'); e('s_add_u32', sr(self.S_T2), sr(self.S_T2), sr(self.S_I))
        e('s_mul_i32', sr(self.S_T2), sr(self.S_T2), str(P_TILE)); e('s_add_u32', sr(self.S_T2), sr(self.S_T2), str(P_OFF))
        e('s_add_u32', sr(self.S_T0), 's14', sr(self.S_T2)); e('s_addc_u32', sr(self.S_T1), 's15', '0')
        srd(P, self.SRD_P, sr(self.S_T0), sr(self.S_T1), P_TILE)
        e('v_lshlrev_b32', vr(self.PV), '4', L)
        e('s_lshl_b32', sr(self.S_T0), sr(self.S_I), '3'); e('s_lshl_b32', sr(self.S_T1), sr(self.S_RG2), '2')
        e('s_add_u32', sr(self.S_T0), sr(self.S_T0), sr(self.S_T1))
        e('s_mul_i32', sr(self.S_XF), sr(self.S_T0), '18432')
        e('s_lshl_b32', sr(self.S_T0), sr(self.S_I), '3'); e('s_sub_u32', sr(self.S_T0), sr(self.S_T0), '1')
        e('s_mul_i32', sr(self.S_T0), sr(self.S_T0), '18432')
        e('s_cmp_eq_u32', sr(self.S_I), '0'); e('s_cselect_b32', sr(self.S_XF + 1), '0x7f000000', sr(self.S_T0))
        e('s_mul_i32', sr(self.S_T0), sr(self.S_S), '288')
        e('s_and_b32', sr(self.S_T1), sr(self.S_S), '1')
        e('s_lshl_b32', sr(self.S_T2), sr(self.S_T1), '5'); e('s_add_u32', sr(self.S_T2), sr(self.S_T2), sr(self.S_T0))
        for j in range(4):
            if self.o.get('rot', 1):
                e('s_add_u32', sr(self.S_T3), sr(self.S_I), str(j)); e('s_and_b32', sr(self.S_T3), sr(self.S_T3), '3')
            else:
                e('s_mov_b32', sr(self.S_T3), str(j))
            e('s_lshl_b32', sr(self.S_T3), sr(self.S_T3), '6'); e('s_add_u32', sr(self.S_FB + j), sr(self.S_T2), sr(self.S_T3))
        e('s_cmp_eq_u32', sr(self.S_T1), '1'); e('s_cselect_b32', sr(self.S_T3), '0', '256')
        e('s_add_u32', sr(self.S_FB + 4), sr(self.S_T0), sr(self.S_T3))
        e('s_mul_i32', sr(self.S_QC), sr(self.S_S), '72')
        e('s_mov_b32', sr(self.S_NLOG2E), f2h(-LOG2E))
        e('s_mov_b32', sr(self.S_AC), f2h(LOG2E / math.sqrt(18.0)))
        e('s_mov_b32', sr(self.S_PERM0), '0x05040100'); e('s_mov_b32', sr(self.S_PERM1), '0x07060302')
        e('s_mov_b32', sr(self.S_NEG), f2h(-1e30))

    def addr_setup_dma(self):
        P = self.P; e = P.e
        L, C16, G = vr(self.V_LANE), vr(self.V_C16), vr(self.V_G)
        a, b, c, d = 'v144', 'v145', 'v146', 'v147'
        W = sr(self.S_W)
        T0, T1 = sr(self.S_T0), sr(self.S_T1)
        e('s_lshr_b32', T0, W, '1'); e('s_lshl_b32', T0, T0, '2')
        e('v_or_b32', a, T0, G)
        e('v_lshrrev_b32', b, '1', C16)
        e('v_xor_b32', a, a, b)
        e('v_lshlrev_b32', a, '1', a)
        e('v_and_b32', b, '1', C16)
        e('v_or_b32', a, a, b)
        e('s_lshl_b32', T1, W, '2')
        e('v_add_u32', b, T1, G)
        e('v_mul_u32_u24', c, '1152', b)
        e('v_lshl_add_u32', vr(self.DP), a, '4', c)
        for j in (1, 2):
            e('v_add_u32', vr(self.DP + j), str(j * (16 * 1152 - 1024)), vr(self.DP))
        e('v_mul_u32_u24', c, '13', a); e('v_lshrrev_b32', c, '6', c); e('v_min_u32', c, '2', c)
        e('v_mul_u32_u24', d, '5', c); e('v_sub_u32', d, a, d); e('v_lshlrev_b32', d, '4', d)
        e('v_add_u32', c, '1', c); e('v_cmp_eq_u32', 'vcc', '3', c); e('v_cndmask_b32', c, c, '0', 'vcc') if False else None
        e('v_mov_b32', 'v148', '0')
        e('v_cndmask_b32', c, c, 'v148', 'vcc')
        e('v_mul_u32_u24', c, '1152', c)
        e('v_add_u32', d, d, c)
        e('v_add_u32', d, sr(self.S_QC), d)
        e('v_mul_u32_u24', c, '3456', b)
        e('v_add_u32', vr(self.DQ), c, d)
        for j in (1, 2):
            e('v_add_u32', vr(self.DQ + j), str(j * (16 * 3456 - 1024)), vr(self.DQ))
        e('v_lshrrev_b32', b, '3', L)
        e('v_bfe_u32', a, b, '1', '1')
        e('s_and_b32', T0, W, '1'); e('s_lshl_b32', T1, T0, '1')
        e('v_or_b32', a, T1, a)
        e('v_bfe_u32', c, L, '1', '2')
        e('v_xor_b32', a, a, c); e('v_lshlrev_b32', a, '1', a)
        e('v_and_b32', c, '1', L); e('v_or_b32', a, a, c)
        e('s_lshl_b32', T1, T0, '3')
        e('v_add_u32', c, T1, b)
        e('v_mul_u32_u24', c, '9216', c)
        e('v_lshl_add_u32', vr(self.DG), a, '4', c)
        for j in (1, 2):
            e('v_add_u32', vr(self.DG + j), str(j * (16 * 9216 - 1024)), vr(self.DG))
        e('s_lshl_b32', T1, W, '3')
        e('v_add_u32', c, T1, b)
        e('v_mul_u32_u24', c, '1152', c)
        e('v_lshl_add_u32', vr(self.DPH), a, '4', c)
        for j in (1, 2):
            e('v_add_u32', vr(self.DPH + j), str(j * (32 * 1152 - 1024)), vr(self.DPH))
        e('v_lshrrev_b32', b, '2', L)
        e('v_lshrrev_b32', a, '3', b); e('v_lshlrev_b32', a, '1', a)
        e('v_and_b32', c, '3', L); e('v_xor_b32', a, a, c)
        e('s_lshl_b32', T1, T0, '4')
        e('v_add_u32', c, T1, b)
        e('v_mul_u32_u24', c, '9216', c)
        e('v_lshl_add_u32', vr(self.DH), a, '4', c)
        for j in (1, 2):
            e('v_add_u32', vr(self.DH + j), str(j * (32 * 9216 - 1024)), vr(self.DH))

    def addr_setup_rest(self):
        P = self.P; e = P.e
        L, C16, G = vr(self.V_LANE), vr(self.V_C16), vr(self.V_G)
        a, b, c, d, r, cc8 = 'v144', 'v145', 'v146', 'v147', 'v148', 'v149'
        W, CH, RG2 = sr(self.S_W), sr(self.S_CH), sr(self.S_RG2)
        T0, T1, T2, T3 = sr(self.S_T0), sr(self.S_T1), sr(self.S_T2), sr(self.S_T3)
        e('v_lshrrev_b32', r, '2', C16)
        e('v_and_b32', cc8, '3', C16); e('v_lshlrev_b32', cc8, '3', cc8)
        g1, g2 = 'v150', 'v151'
        e('v_and_b32', g1, '1', G)
        e('v_lshrrev_b32', g2, '1', G)
        e('v_mul_u32_u24', a, '12288', g1)
        e('v_lshl_add_u32', a, g2, '10', a)
        e('v_lshl_add_u32', a, r, '8', a)
        e('v_add_u32', a, a, cc8)
        e('v_lshl_or_b32', b, g1, '2', r)
        e('s_mov_b32', T0, '0x10525210'); e('s_mov_b32', T1, '0x63747463')
        e('s_lshl_b32', T2, W, '4')
        e('s_lshr_b64', sr(self.S_T0, 2), sr(self.S_T0, 2), T2)
        for u in range(4):
            e('s_bfe_u32', T2, T0, hex((4 << 16) | (4 * u)))
            e('v_xor_b32', c, T2, b); e('v_lshl_add_u32', vr(self.TQ + u), c, '5', a)
            e('s_lshl_b32', T3, RG2, '6'); e('s_add_u32', T3, T3, '16')
            e('v_add_u32', c, T3, C16); e('v_mul_u32_u24', c, str(SPITCH), c)
            e('v_lshl_add_u32', c, G, '3', c)
            e('s_lshl_b32', T2, T2, '5'); e('s_add_u32', T2, T2, str(SB))
            e('v_add_u32', vr(self.SW + u), T2, c)
        for u in range(4):
            e('s_lshl_b32', T2, CH, '2'); e('s_add_u32', T2, T2, str(u))
            e('v_xor_b32', c, T2, b); e('v_lshl_add_u32', vr(self.TP + u), c, '5', a)
        e('v_mul_u32_u24', a, '6144', g1)
        e('v_lshl_add_u32', a, g2, '10', a)
        e('v_lshl_add_u32', a, r, '7', a)
        e('v_add_u32', a, a, cc8)
        e('v_lshrrev_b32', b, '1', r); e('v_lshl_or_b32', b, g1, '1', b)
        for bb in range(2):
            e('s_lshl_b32', T2, CH, '1'); e('s_add_u32', T2, T2, str(bb))
            e('v_xor_b32', c, T2, b); e('v_lshl_add_u32', vr(self.TG + bb), c, '5', a)
            e('v_add_u32', vr(self.TG + 2 + bb), '12288', vr(self.TG + bb))
        e('v_mul_u32_u24', a, '6144', G)
        e('v_lshl_add_u32', a, r, '7', a)
        e('v_add_u32', a, a, cc8)
        for bb in range(2):
            e('s_lshl_b32', T2, CH, '1'); e('s_add_u32', T2, T2, str(bb))
            e('v_xor_b32', c, T2, b); e('v_lshl_add_u32', vr(self.TPH + bb), c, '5', a)
        e('v_mul_u32_u24', a, '6144', g2)
        e('v_lshl_add_u32', c, g1, '3', r); e('v_lshl_add_u32', a, c, '6', a)
        e('v_add_u32', a, a, cc8)
        e('v_xor_b32', c, CH, g1); e('v_lshl_add_u32', vr(self.TH), c, '5', a)
        e('v_add_u32', vr(self.TH + 1), '12288', vr(self.TH))
        e('s_lshl_b32', T2, RG2, '6'); e('v_add_u32', a, T2, C16)
        e('s_lshl_b32', T3, CH, '2'); e('v_add_u32', b, T3, g2)
        e('v_and_b32', c, '7', C16); e('v_xor_b32', b, b, c)
        e('v_lshlrev_b32', b, '4', b); e('v_lshl_add_u32', b, g1, '3', b)
        e('v_lshl_add_u32', b, a, '7', b)
        e('v_add_u32', vr(self.HW), str(HB), b)
        e('v_xor_b32', vr(self.HW + 1), '32', vr(self.HW))
        e('v_xor_b32', b, G, c); e('v_lshlrev_b32', b, '4', b); e('v_lshl_add_u32', b, a, '7', b)
        e('v_add_u32', vr(self.HR), str(HB), b)
        e('v_xor_b32', vr(self.HR + 1), '64', vr(self.HR))
        e('v_mul_u32_u24', b, str(XPITCH), a)
        e('v_add_u32', b, str(XB), b)
        e('v_lshl_add_u32', vr(self.XR), G, '4', b)
        e('s_lshl_b32', T3, CH, '5')
        e('v_lshl_add_u32', c, G, '3', b); e('v_add_u32', vr(self.HWX), T3, c)
        e('v_and_b32', a, '31', L); e('v_lshrrev_b32', b, '5', L)
        e('s_lshl_b32', T2, W, '5')
        e('v_add_u32', a, T2, a)
        e('s_lshl_b32', T3, sr(self.S_I), '7'); e('v_add_u32', vr(self.MG), T3, a)
        e('v_add_u32', c, '2', a); e('v_mul_u32_u24', c, str(SPITCH), c)
        e('v_lshl_add_u32', c, b, '5', c); e('v_add_u32', vr(self.AB), str(SB), c)
        e('v_mul_u32_u24', c, str(XPITCH), a); e('v_lshl_add_u32', c, b, '5', c)
        e('v_add_u32', vr(self.OW), str(XB + 64), c)
        e('v_mov_b32', 'v152', '0'); e('v_mov_b32', 'v153', '0')
        e('v_and_b32', c, '127', 'v0'); e('v_mul_u32_u24', c, str(XPITCH), c); e('v_add_u32', c, str(XB + 136), c)
        e('ds_write_b64', c, 'v[152:153]', flag='bar')

    def build(self):
        self.stages = []
        self.ksteps = []
        strips = []

        def add_stage(dml):
            self.stages.append(dml)
            return len(self.stages) - 1

        def strip_generic(name, nk, ks_per_stage, nfrag, dma_fn, tr_fn, mf_fn):
            st = dict(name=name, ks=[])
            for t in range(nk):
                tl = t % ks_per_stage
                if tl == 0:
                    n_in = min(ks_per_stage, nk - t)
                    dml = []
                    for tt in range(n_in):
                        dml += dma_fn(t + tt, tt)
                    sid = add_stage(dml)
                frs = [tr_fn(t, tl, u) for u in range(nfrag)]
                st['ks'].append(dict(t=t, stage=sid, frags=frs, mf=[mf_fn(t, u) for u in range(nfrag)], last_in_stage=(tl == ks_per_stage - 1 or t == nk - 1)))
            strips.append(st)
            return st

        A0, A1 = self.ACC0, self.ACC1
        acc = lambda buf, u, mb: vr(buf + 16 * u + 4 * mb, 4)

        def dq(t, tt):
            return [(self.SRD_QKV, None, (32 * t + 16 * e) * 3456, self.DQ, 16 * 3456, 2 * tt + e) for e in range(2)]

        def trq(t, tl, u):
            return (self.TQ + u, tl * 2048, 6144)

        def mfq(t, u):
            L = [(acc(A0, u, mb), self.xreg(t, mb)) for mb in range(4)]
            if u < 2:
                L.append((vr(self.HAL + 4 * u, 4), self.halo_x(t)))
            return L
        strip_generic('QKV', 18, 3, 4, dq, trq, mfq)

        def ffn(j, buf):
            def dg(t, tt):
                return [(self.SRD_GU, ('fb2', j), (32 * t + 16 * e) * 9216, self.DG, 16 * 9216, 2 * tt + e) for e in range(2)]

            def trg(t, tl, u):
                return (self.TG + u, tl * 2048, 512)

            def mfg(t, u):
                return [(acc(buf, u, mb), self.xreg(t, mb)) for mb in range(4)]
            return strip_generic(f'F{j}', 18, 3, 4, dg, trg, mfg)
        ffn(0, A1); ffn(1, A0); ffn(2, A1); ffn(3, A0)

        def dh(t, tt):
            return [(self.SRD_GU, ('fb2', 4), (32 * t) * 9216, self.DH, 32 * 9216, tt)]

        def trh(t, tl, u):
            return (self.TH + u, tl * 1024, 256)

        def mfh(t, u):
            return [(acc(A1, u, mb), self.xreg(t, mb)) for mb in range(4)]
        strip_generic('F4h', 18, 6, 2, dh, trh, mfh)

        self.kmap = [('F', 0, 0), ('F', 0, 1), ('F', 1, 0), ('F', 1, 1), ('F', 2, 0), ('F', 2, 1), ('O', 0, 0), ('O', 0, 1), ('F', 3, 0), ('F', 3, 1), ('X', 4, 0)]

        def p2rows(k):
            kind, j, tt = self.kmap[k]
            if kind == 'O':
                return self.SRD_WO, ('wo',), 32 * tt
            return self.SRD_WD, ('fbr', j), 32 * tt

        def p2full(Y, buf):
            def dp(t, tt):
                s_, b_, r0 = p2rows(t)
                return [(s_, b_, (r0 + 16 * e) * 1152 + 256 * Y, self.DP, 16 * 1152, 2 * tt + e) for e in range(2)]

            def trp(t, tl, u):
                return (self.TP + u, tl * 2048, 6144)

            def mfp(t, u):
                return [(acc(buf, u, mb), self.hreg(t, mb)) for mb in range(4)]
            return strip_generic(f'P{Y}', 11, 3, 4, dp, trp, mfp)
        p2full(0, A0); p2full(1, A1); p2full(2, A0); p2full(3, A1)

        def dph(t, tt):
            s_, b_, r0 = p2rows(t)
            return [(s_, b_, r0 * 1152 + 1024, self.DPH, 32 * 1152, tt)]

        def trph(t, tl, u):
            return (self.TPH + u, tl * 1024, 512)

        def mfph(t, u):
            return [(acc(A0, u, mb), self.hreg(t, mb)) for mb in range(4)]
        strip_generic('P4h', 11, 6, 2, dph, trph, mfph)
        self.strips = strips

    def dma_items(self, sid):
        slot = sid % 3
        items = []
        prev = None
        for (srd_, base, goff, vbase, qdelta, q) in self.stages[sid]:
            share = False
            if prev is not None:
                psrd, pbase, pgoff, pq, pj = prev
                j = pj + 1
                if psrd == srd_ and pbase == base and j <= 2 and q == pq + 1 and goff == pgoff + qdelta:
                    share = True
            if not share:
                j = 0
                it = [I('s_add_u32', 'm0', sr(self.S_LDSW), str(slot * SLOT + q * 1024))]
                items.append(it)
                so = sr(self.S_SOFF)
                if base is None:
                    it = [I('s_mov_b32', so, str(goff))]
                elif base[0] == 'fb2':
                    it = [I('s_lshl_b32', so, sr(self.S_FB + base[1]), '1'), I('s_add_u32', so, so, str(goff))]
                elif base[0] == 'fbr':
                    it = [I('s_mul_i32', so, sr(self.S_FB + base[1]), '1152'), I('s_add_u32', so, so, str(goff))]
                elif base[0] == 'wo':
                    it = [I('s_mul_i32', so, sr(self.S_S), str(36 * 1152)), I('s_add_u32', so, so, str(goff))]
                for x in it:
                    items.append([x])
            items.append([I('buffer_load_dwordx4', vr(vbase + j), sr(srd_, 4), sr(self.S_SOFF),
                            mods=f'offen offset:{1024 * j} lds' if j else 'offen lds', tag=('st', sid))])
            prev = (srd_, base, goff, q, j)
        return items

    def task_qkv_epi(self):
        T = []
        A0 = self.ACC0
        for u in range(4):
            for mb in range(4):
                a = A0 + 16 * u + 4 * mb
                T.append(I('v_cvt_pk_bf16_f32', vr(a), vr(a), vr(a + 1)))
                T.append(I('v_cvt_pk_bf16_f32', vr(a + 1), vr(a + 2), vr(a + 3)))
                T.append(I('ds_write_b64', vr(self.SW + u), vr(a, 2), mods=f'offset:{mb * 16 * SPITCH}', flag='bar'))
        for u in range(2):
            a = self.HAL + 4 * u
            T.append(I('v_cvt_pk_bf16_f32', vr(a), vr(a), vr(a + 1)))
            T.append(I('v_cvt_pk_bf16_f32', vr(a + 1), vr(a + 2), vr(a + 3)))
            T.append(I('s_lshl_b32', sr(self.S_T2), sr(self.S_RG2), '6'))
            T.append(I('s_add_u32', sr(self.S_T2), sr(self.S_T2), '16'))
            T.append(I('s_mul_i32', sr(self.S_T2), sr(self.S_T2), str(SPITCH)))
            T.append(I('v_subrev_u32', vr(a + 2), sr(self.S_T2), vr(self.SW + u)))
            T.append(I('ds_write_b64', vr(a + 2), vr(a, 2), flag='bar'))
        return T

    def task_attn(self):
        T = []
        B = self.ACC0
        Q = B
        K0_, K1_ = B + 12, B + 24
        S = B + 36
        O = B + 44
        AB = vr(self.AB)

        def rd(dst, off):
            return [I('ds_read_b128', vr(dst, 4), AB, mods=f'offset:{off}'),
                    I('ds_read_b128', vr(dst + 4, 4), AB, mods=f'offset:{off + 16}'),
                    I('ds_read_b64', vr(dst + 8, 2), AB, mods=f'offset:{off + 32}')]
        rowoff = lambda w: (14 - 2 * w) * SPITCH
        T += rd(Q, rowoff(0) + 160)
        T += rd(K0_, rowoff(0) + 0)
        T += rd(K1_, rowoff(1) + 0)
        T.append(I('v_cmp_gt_u32', 'vcc', '32', vr(self.V_LANE)))
        T.append(I('v_mov_b32', vr(S), '0'))
        T.append(I('v_cndmask_b32', vr(Q + 9), vr(Q + 9), vr(S), 'vcc'))
        T.append(I('v_cndmask_b32', vr(Q + 0), vr(S), vr(Q + 0), 'vcc'))
        for w in range(8):
            kb = K0_ if w % 2 == 0 else K1_
            T.append(I('v_dot2_f32_bf16', vr(S + w), vr(Q), vr(kb), '0'))
            for j in range(1, 10):
                T.append(I('v_dot2_f32_bf16', vr(S + w), vr(Q + j), vr(kb + j), vr(S + w)))
            if w + 2 < 8:
                T += rd(kb, rowoff(w + 2))
            elif w == 6:
                T += rd(kb, rowoff(0) + 80)
            elif w == 7:
                T += rd(kb, rowoff(1) + 80)
        NEG = vr(Q + 10)
        T.append(I('v_mov_b32', NEG, sr(self.S_NEG)))
        for w in range(1, 8):
            T.append(I('v_cmp_le_u32', 'vcc', str(2 * w), vr(self.MG)))
            T.append(I('v_cndmask_b32', vr(S + w), NEG, vr(S + w), 'vcc'))
        MX = vr(Q + 11)
        T.append(I('v_max3_f32', MX, vr(S), vr(S + 1), vr(S + 2)))
        T.append(I('v_max3_f32', MX, MX, vr(S + 3), vr(S + 4)))
        T.append(I('v_max3_f32', MX, MX, vr(S + 5), vr(S + 6)))
        T.append(I('v_max_f32', MX, MX, vr(S + 7)))
        T.append(I('v_mul_f32', MX, sr(self.S_AC), MX))
        for w in range(8):
            T.append(I('v_fma_f32', vr(S + w), vr(S + w), sr(self.S_AC), '-' + MX))
        for w in range(8):
            T.append(I('v_exp_f32', vr(S + w), vr(S + w)))
        SUM = vr(Q + 10)
        T.append(I('v_add_f32', SUM, vr(S), vr(S + 1)))
        for w in range(2, 8):
            T.append(I('v_add_f32', SUM, SUM, vr(S + w)))
        T.append(I('v_rcp_f32', SUM, SUM))
        for w in range(8):
            T.append(I('v_mul_f32', vr(S + w), vr(S + w), SUM))
        for pp in range(4):
            T.append(I('v_cvt_pk_bf16_f32', vr(Q + pp), vr(S + 2 * pp), vr(S + 2 * pp + 1)))
        t0, t1 = Q + 4, Q + 5
        t2, t3 = Q + 6, Q + 7
        for pp in range(4):
            for j in range(10):
                a, b = (t0, t1) if j % 2 == 0 else (t2, t3)
                T.append(I('v_perm_b32', vr(a), vr(K1_ + j), vr(K0_ + j), sr(self.S_PERM0)))
                T.append(I('v_perm_b32', vr(b), vr(K1_ + j), vr(K0_ + j), sr(self.S_PERM1)))
                if pp == 0:
                    T.append(I('v_dot2_f32_bf16', vr(O + 2 * j), vr(a), vr(Q + pp), '0'))
                    T.append(I('v_dot2_f32_bf16', vr(O + 2 * j + 1), vr(b), vr(Q + pp), '0'))
                else:
                    T.append(I('v_dot2_f32_bf16', vr(O + 2 * j), vr(a), vr(Q + pp), vr(O + 2 * j)))
                    T.append(I('v_dot2_f32_bf16', vr(O + 2 * j + 1), vr(b), vr(Q + pp), vr(O + 2 * j + 1)))
            if pp < 3:
                T += rd(K0_, rowoff(2 * pp + 2) + 80)
                T += rd(K1_, rowoff(2 * pp + 3) + 80)
        OP = K0_
        for j in range(10):
            T.append(I('v_cvt_pk_bf16_f32', vr(OP + j), vr(O + 2 * j), vr(O + 2 * j + 1)))
        OW = vr(self.OW)
        for j in range(1, 9, 2):
            T.append(I('ds_write2_b32', OW, vr(OP + j), vr(OP + j + 1), mods=f'offset0:{j} offset1:{j + 1}', flag='bar'))
        T.append(I('v_cmp_gt_u32', 'vcc', '32', vr(self.V_LANE)))
        T.append(I('v_cndmask_b32', vr(OP), vr(OP + 9), vr(OP), 'vcc'))
        T.append(I('v_add_u32', vr(t0), '36', OW))
        T.append(I('v_cndmask_b32', vr(t0), vr(t0), OW, 'vcc'))
        T.append(I('ds_write_b32', vr(t0), vr(OP), flag='bar'))
        return T

    def task_silu(self, buf, j):
        T = []
        NL = sr(self.S_NLOG2E)
        chains = []
        for bb in range(2):
            for mb in range(4):
                g = buf + 16 * bb + 4 * mb
                u = buf + 16 * (2 + bb) + 4 * mb
                c = []
                for r in range(4):
                    c.append(I('v_mul_f32', vr(u + r), vr(g + r), vr(u + r)))
                for r in range(4):
                    c.append(I('v_mul_f32', vr(g + r), NL, vr(g + r)))
                for r in range(4):
                    c.append(I('v_exp_f32', vr(g + r), vr(g + r)))
                for r in range(4):
                    c.append(I('v_add_f32', vr(g + r), '1.0', vr(g + r)))
                for r in range(4):
                    c.append(I('v_rcp_f32', vr(g + r), vr(g + r)))
                for r in range(4):
                    c.append(I('v_mul_f32', vr(u + r), vr(g + r), vr(u + r)))
                c.append(I('v_cvt_pk_bf16_f32', vr(g), vr(u), vr(u + 1)))
                c.append(I('v_cvt_pk_bf16_f32', vr(g + 1), vr(u + 2), vr(u + 3)))
                if j < 4:
                    c.append(I('ds_write_b64', vr(self.HW + bb), vr(g, 2), mods=f'offset:{j * 16384 + mb * 2048}', flag='bar'))
                chains.append(c)
        for c in chains:
            T += c
        return T

    def task_silu_h(self, buf):
        T = []
        NL = sr(self.S_NLOG2E)
        for mb in range(4):
            g = buf + 4 * mb
            u = buf + 16 + 4 * mb
            for r in range(4):
                T.append(I('v_mul_f32', vr(u + r), vr(g + r), vr(u + r)))
            for r in range(4):
                T.append(I('v_mul_f32', vr(g + r), NL, vr(g + r)))
            for r in range(4):
                T.append(I('v_exp_f32', vr(g + r), vr(g + r)))
            for r in range(4):
                T.append(I('v_add_f32', vr(g + r), '1.0', vr(g + r)))
            for r in range(4):
                T.append(I('v_rcp_f32', vr(g + r), vr(g + r)))
            for r in range(4):
                T.append(I('v_mul_f32', vr(u + r), vr(g + r), vr(u + r)))
            T.append(I('v_cvt_pk_bf16_f32', vr(g), vr(u), vr(u + 1)))
            T.append(I('v_cvt_pk_bf16_f32', vr(g + 1), vr(u + 2), vr(u + 3)))
            T.append(I('ds_write_b64', vr(self.HWX), vr(g, 2), mods=f'offset:{mb * 16 * XPITCH}', flag='bar'))
        return T

    def task_hload(self, k):
        kind, j, tt = self.kmap[k]
        T = []
        for mb in range(4):
            d = self.hreg(k, mb)
            if kind == 'F':
                T.append(I('ds_read_b128', d, vr(self.HR + tt), mods=f'offset:{j * 16384 + mb * 2048}'))
            elif kind == 'X':
                T.append(I('ds_read_b128', d, vr(self.XR), mods=f'offset:{mb * 16 * XPITCH}'))
            elif tt == 0:
                T.append(I('ds_read_b128', d, vr(self.XR), mods=f'offset:{mb * 16 * XPITCH + 64}'))
        if kind == 'O' and tt == 1:
            for mb in range(4):
                for r in range(4):
                    T.append(I('v_accvgpr_write_b32', ar(16 * k + 4 * mb + r), '0'))
            grp = [I('s_mov_b64', 'exec', '0xffff')]
            for mb in range(4):
                grp.append(I('ds_read_b128', self.hreg(k, mb), vr(self.XR), mods=f'offset:{mb * 16 * XPITCH + 128}'))
            grp.append(I('s_mov_b64', 'exec', '-1'))
            T.append(grp)
        return T

    def task_out(self, buf, Y, half=False):
        T = []
        npair = 1 if half else 2
        for pair in range(npair):
            for mb in range(4):
                a = buf + 16 * (2 * pair) + 4 * mb
                b = buf + 16 * (2 * pair + 1) + 4 * mb
                T.append(I('v_cvt_pk_bf16_f32', vr(a), vr(a), vr(a + 1)))
                T.append(I('v_cvt_pk_bf16_f32', vr(a + 1), vr(a + 2), vr(a + 3)))
                T.append(I('v_cvt_pk_bf16_f32', vr(a + 2), vr(b), vr(b + 1)))
                T.append(I('v_cvt_pk_bf16_f32', vr(a + 3), vr(b + 2), vr(b + 3)))
                if half:
                    cidx_const = 128 + mb
                else:
                    cidx_const = Y * 32 + pair * 4 + mb
                if mb == 0:
                    T.append(I('s_lshl_b32', sr(self.S_PO), sr(self.S_W), '12' if half else '13'))
                    T.append(I('s_add_u32', sr(self.S_PO), sr(self.S_PO), str((cidx_const) * 1024)))
                T.append(I('buffer_store_dwordx4', vr(a, 4), vr(self.PV), sr(self.SRD_P, 4), sr(self.S_PO),
                           mods=f'offen offset:{1024 * mb}' if mb else 'offen'))
        return T

    def emit_all(self):
        P = self.P
        e = P.e
        self.prologue()
        self.build()
        self.addr_setup_dma()
        for sid in (0, 1):
            for it in self.dma_items(sid):
                P.emit(it)
        for t0 in range(0, 18, 4):
            n = min(4, 18 - t0)
            for mb in range(5):
                if mb < 4:
                    e('s_add_u32', sr(self.S_T0), sr(self.S_XF), str((mb * 18 + t0) * 1024))
                else:
                    e('s_add_u32', sr(self.S_T0), sr(self.S_XF + 1), str(t0 * 1024))
                for k in range(n):
                    dst = self.xreg(t0 + k, mb) if mb < 4 else self.halo_x(t0 + k)
                    e('buffer_load_dwordx4', dst, vr(self.PV), sr(self.SRD_XF, 4), sr(self.S_T0), mods=f'offen offset:{1024 * k}' if k else 'offen')
        self.addr_setup_rest()

        frags = []
        KS = []
        for st in self.strips:
            for ks in st['ks']:
                ks['strip'] = st['name']
                KS.append(ks)
                for u in range(len(ks['frags'])):
                    frags.append((ks, u))
        NQ = len(frags)
        DIST = self.NFR - 1
        fr = lambda q: self.FR + 4 * (q % self.NFR)

        def frag_reads(q):
            ks, u = frags[q]
            areg, off, hd = ks['frags'][u]
            slot = ks['stage'] % 3
            return [I('ds_read_b64_tr_b16', vr(fr(q) + 2 * h, 2), vr(areg), mods=f'offset:{slot * SLOT + off + h * hd}', flag='bar') for h in range(2)]

        gaps = []
        qi = 0
        for ks in KS:
            for u in range(len(ks['frags'])):
                mfs = ks['mf'][u]
                for mi, (accr, breg) in enumerate(mfs):
                    first = ks['t'] == 0
                    gaps.append(dict(q=qi, ks=ks, u=u, mi=mi, n=len(mfs),
                                     inst=I('v_mfma_f32_16x16x32_bf16', accr, vr(fr(qi), 4), breg, '0' if first else accr)))
                qi += 1
        NG = len(gaps)
        strip_first = {}
        strip_last = {}
        frag_first = {}
        for gi, g in enumerate(gaps):
            strip_first.setdefault(g['ks']['strip'], gi)
            strip_last[g['ks']['strip']] = gi
            frag_first.setdefault(g['q'], gi)
        fstage = [frags[q][0]['stage'] for q in range(NQ)]
        NST = len(self.stages)
        first_frag_of_stage = {}
        for q in range(NQ):
            first_frag_of_stage.setdefault(fstage[q], q)
        read_pos = {}
        bar_pos = {}
        LAG = self.o.get('barlag', 2)
        for q in range(NQ):
            s = fstage[q]
            p = q - DIST
            if s > 0:
                lastq_prev = first_frag_of_stage[s] - 1
                bp = read_pos[lastq_prev] + LAG
                bar_pos[s - 1] = bp
                p = max(p, bp)
            p = min(p, q - 1) if q > 0 else p
            read_pos[q] = p
        reads_at = {}
        for q in range(NQ):
            reads_at.setdefault(read_pos[q], []).append(q)
        bars_at = {}
        for s, p in bar_pos.items():
            bars_at.setdefault(p, []).append(s)
        for q in range(NQ):
            assert read_pos[q] < q or q == 0 or read_pos[q] < 0, (q, read_pos[q])
            assert read_pos[q] >= q - self.NFR + 1, (q, read_pos[q])

        bar_gap = {s: frag_first[p] if p >= 0 else -1 for s, p in bar_pos.items()}
        self.bar_gap = bar_gap

        dma_win = {}
        for sid in range(2, NST):
            s = sid - 2
            lo = bar_gap[s - 1] if s >= 1 else 0
            hi = bar_gap[s] if s in bar_gap else NG - 1
            dma_win[sid] = (lo, hi)
        dma_at = {}
        for sid, (lo, hi) in dma_win.items():
            items = self.dma_items(sid)
            n = len(items)
            span = max(1, hi - lo - 2)
            for k, it in enumerate(items):
                gi = lo + 1 + (k * span) // n
                dma_at.setdefault(gi, []).append(it)

        LAT = 10
        sf, sl = strip_first, strip_last
        strip = lambda name: [st for st in self.strips if st['name'] == name][0]
        stage_of = lambda name, k: strip(name)['ks'][k]['stage']
        ks_first = {}
        for gi, g in enumerate(gaps):
            ks_first.setdefault((g['ks']['strip'], g['ks']['t']), gi)

        def next_bar(gi):
            return min(b for b in bar_gap.values() if b > gi)
        tasks = []
        bq = bar_gap[stage_of('F0', 3)]
        tasks.append([sf['F0'] + LAT, bq - 1, self.task_qkv_epi()])
        tasks.append([bq + 1, sl['F0'], self.task_attn()])
        tasks.append([sf['F1'] + LAT, sl['F1'], self.task_silu(self.ACC1, 0)])
        tasks.append([sf['F2'] + LAT, sl['F2'], self.task_silu(self.ACC0, 1)])
        tasks.append([sf['F3'] + LAT, sl['F3'], self.task_silu(self.ACC1, 2)])
        tasks.append([sf['F4h'] + LAT, sl['F4h'], self.task_silu(self.ACC0, 3)])
        b_f4h = bar_gap[stage_of('P0', 3)]
        tasks.append([sf['P0'] + LAT, b_f4h - 1, self.task_silu_h(self.ACC1)])
        bF2 = next_bar(sl['F3'])
        bF3 = next_bar(sl['F4h'])
        for k in range(8):
            st_ = ks_first[('F4h', k + 1)] + 1
            if k in (4, 5):
                st_ = max(st_, bF2 + 1)
            tasks.append([st_, st_ + 10, self.task_hload(k)])
        for k in (8, 9):
            st_ = max(bF3 + 1, ks_first[('F4h', 17)])
            tasks.append([st_, st_ + 12, self.task_hload(k)])
        tasks.append([b_f4h + 1, b_f4h + 10, self.task_hload(10)])
        assert b_f4h + 10 < ks_first[('P0', 10)], (b_f4h, ks_first[('P0', 10)])
        tasks.append([sf['P1'] + LAT, sl['P1'], self.task_out(self.ACC0, 0)])
        tasks.append([sf['P2'] + LAT, sl['P2'], self.task_out(self.ACC1, 1)])
        tasks.append([sf['P3'] + LAT, sl['P3'], self.task_out(self.ACC0, 2)])
        tasks.append([sf['P4h'] + LAT, sl['P4h'], self.task_out(self.ACC1, 3)])
        for t_ in tasks:
            t_.append(0)

        P.wait_lds_flagged()
        P.wait_vm_tag(('st', 0))
        P.barrier()
        for p in sorted(k for k in reads_at if k < 0):
            for q in reads_at[p]:
                P.emit(frag_reads(q))

        cost = lambda x: (sum(y.cost for y in x) if isinstance(x, list) else x.cost)
        SLACK = self.o.get('slack', 6)
        pend = []
        for gi, g in enumerate(gaps):
            if g['mi'] == 0:
                p = g['q']
                for s in bars_at.get(p, []):
                    P.wait_lds_flagged()
                    P.wait_vm_tag(('st', s + 1))
                    P.barrier()
                assert not pend
                pend = []
                for q in reads_at.get(p, []):
                    pend += frag_reads(q)
            P.emit(g['inst'])
            cap = 8
            left = g['n'] - g['mi']
            if pend:
                if len(pend) <= 2 and g['n'] >= 4:
                    nr = 1 if g['mi'] in (0, 2) else 0
                    if left == 1: nr = len(pend)
                else:
                    nr = -(-len(pend) // left)
                for _ in range(min(nr, len(pend))):
                    P.emit(pend.pop(0)); cap -= 4
            for it in dma_at.get(gi, []):
                P.emit(it); cap -= cost(it)
            for t_ in tasks:
                st_, en_, lst, idx = t_
                if gi < st_ or idx >= len(lst):
                    continue
                if gi >= en_:
                    target = len(lst); force = True
                else:
                    target = len(lst) * (gi - st_ + 1) / (en_ - st_ + 1); force = False
                while idx < len(lst) and idx < target and (force or cap >= cost(lst[idx]) or idx < target - SLACK):
                    P.emit(lst[idx]); cap -= cost(lst[idx]); idx += 1
                t_[3] = idx
        for t_ in tasks:
            assert t_[3] == len(t_[2])
        P.emit(self.task_out(self.ACC0, 4, half=True))
        P.label("K1_end")
        P.raw("  s_endpgm")


def gen_k1(opts):
    k = K1(opts)
    name = "k1_main_kernel"
    kernel_begin(k.P, name)
    k.emit_all()
    print("K1 stats", k.P.stats, file=sys.stderr)
    return k.P.text(), descriptor(name, 512, 256, 80), (name, 256, 256, LDS_TOTAL)


def main():
    out = sys.argv[1]
    opts = {}
    for a in sys.argv[2:]:
        kk, v = a.split('='); opts[kk] = int(v)
    parts = [gen_k0(), gen_k1(opts), gen_k2()]
    txt = header_comments([p[2] for p in parts])
    for p in parts:
        txt += p[0]
    txt += '.section .rodata,"a"\n'
    for p in parts:
        txt += p[1]
    open(out, 'w').write(txt)


if __name__ == "__main__":
    main()
```

```python
import re

_REG = re.compile(r'^(v|a|s)(\d+)$')
_RNG = re.compile(r'^(v|a|s)\[(\d+):(\d+)\]$')


def regs_of(op):
    op = op.strip()
    neg = op.lstrip('-')
    if neg.startswith('abs(') or neg.startswith('|'):
        neg = neg.strip('|').replace('abs(', '').rstrip(')')
    m = _REG.match(neg)
    if m:
        return [neg]
    m = _RNG.match(neg)
    if m:
        return [f"{m.group(1)}{i}" for i in range(int(m.group(2)), int(m.group(3)) + 1)]
    if neg in ('vcc', 'exec', 'm0', 'scc'):
        return [neg]
    if neg in ('vcc_lo', 'vcc_hi'):
        return ['vcc']
    if neg in ('exec_lo', 'exec_hi'):
        return ['exec']
    return []


def vr(base, n=1):
    return f"v{base}" if n == 1 else f"v[{base}:{base + n - 1}]"


def ar(base, n=1):
    return f"a{base}" if n == 1 else f"a[{base}:{base + n - 1}]"


def sr(base, n=1):
    return f"s{base}" if n == 1 else f"s[{base}:{base + n - 1}]"


TRANS = ('v_exp_f32', 'v_log_f32', 'v_rcp_f32', 'v_rsq_f32', 'v_sqrt_f32', 'v_sin_f32', 'v_cos_f32')


class Inst:
    __slots__ = ('op', 'ops', 'mods', 'kind', 'reads', 'writes', 'cost', 'flag', 'tag')

    def __init__(self, op, ops, mods='', flag=None, tag=None):
        self.op = op
        self.ops = list(ops)
        self.mods = mods
        self.flag = flag
        self.tag = tag
        R, W = [], []
        o = self.ops
        if op.startswith('v_mfma'):
            self.kind = 'mfma'
            W += regs_of(o[0])
            for x in o[1:]:
                R += regs_of(x)
            self.cost = 8
        elif op.startswith('ds_read') or op.startswith('ds_bpermute') or op.startswith('ds_swizzle'):
            self.kind = 'ldsr'
            W += regs_of(o[0])
            for x in o[1:]:
                R += regs_of(x)
            self.cost = 4
        elif op.startswith('ds_write'):
            self.kind = 'ldsw'
            for x in o:
                R += regs_of(x)
            self.cost = 8
        elif op.startswith('buffer_load'):
            if ' lds' in (' ' + mods):
                self.kind = 'dma'
                for x in o:
                    R += regs_of(x)
                R.append('m0')
                self.cost = 4
            else:
                self.kind = 'vmr'
                W += regs_of(o[0])
                for x in o[1:]:
                    R += regs_of(x)
                self.cost = 4
        elif op.startswith('buffer_store') or op.startswith('buffer_atomic'):
            self.kind = 'vmw'
            for x in o:
                R += regs_of(x)
            self.cost = 8
        elif op.startswith('v_'):
            self.kind = 'trans' if op in TRANS else 'valu'
            if op.startswith('v_permlane'):
                for x in o:
                    R += regs_of(x)
                    W += regs_of(x)
            elif op.startswith('v_cmp'):
                W += regs_of(o[0])
                for x in o[1:]:
                    R += regs_of(x)
            elif op in ('v_add_co_u32', 'v_addc_co_u32', 'v_sub_co_u32'):
                W += regs_of(o[0]) + regs_of(o[1])
                for x in o[2:]:
                    R += regs_of(x)
            else:
                W += regs_of(o[0])
                for x in o[1:]:
                    R += regs_of(x)
                if op in ('v_fmac_f32', 'v_dot2c_f32_bf16'):
                    R += regs_of(o[0])
            self.cost = 8 if self.kind == 'trans' else 4
        elif op.startswith('s_'):
            self.kind = 'salu'
            if op in ('s_barrier', 's_nop', 's_endpgm', 's_setprio', 's_waitcnt', 's_branch') or op.startswith('s_cbranch'):
                self.kind = 'ctl'
            elif op.startswith('s_cmp'):
                for x in o:
                    R += regs_of(x)
            elif op.startswith('s_load') or op.startswith('s_mem'):
                self.kind = 'smem'
                W += regs_of(o[0])
                for x in o[1:]:
                    R += regs_of(x)
            else:
                W += regs_of(o[0])
                for x in o[1:]:
                    R += regs_of(x)
            self.cost = 0
        else:
            raise ValueError(op)
        self.reads = R
        self.writes = W

    def text(self):
        t = self.op
        if self.ops:
            t += ' ' + ', '.join(self.ops)
        if self.mods:
            t += ' ' + self.mods
        return t


def I(op, *ops, mods='', flag=None, tag=None):
    return Inst(op, [str(x) for x in ops], mods, flag, tag)


class Prog:
    def __init__(self):
        self.lines = []
        self.n = 0
        self.lds_q = []
        self.vm_q = []
        self.last_valu_w = {}
        self.last_trans_w = {}
        self.last_mfma_w = {}
        self.last_mfma_c = {}
        self.last_valu_sw = {}
        self.last_m0 = -100
        self.last_store_data = {}
        self.last_dot_w = {}
        self.stats = {}
        self.smem_pending = False
        self.regtag = {}

    def raw(self, text):
        self.lines.append(text)

    def label(self, name):
        self.lines.append(name + ':')

    def comment(self, text):
        self.lines.append('; ' + text)

    def _put(self, text, slots=1):
        self.lines.append('  ' + text)
        self.n += slots

    def nop(self, k):
        while k > 0:
            c = min(k, 16)
            self._put(f's_nop {c - 1}', c)
            k -= c

    def wait_lgkm(self, n):
        n = min(n, 15)
        if len(self.lds_q) > n:
            self._put(f's_waitcnt lgkmcnt({n})')
            self.lds_q = self.lds_q[len(self.lds_q) - n:] if n else []

    def wait_vm(self, n):
        n = min(n, 63)
        if len(self.vm_q) > n:
            self._put(f's_waitcnt vmcnt({n})')
            self.vm_q = self.vm_q[len(self.vm_q) - n:] if n else []

    def wait_lds_flagged(self):
        idx = -1
        for i, e in enumerate(self.lds_q):
            if e['flag']:
                idx = i
        if idx >= 0:
            self.wait_lgkm(len(self.lds_q) - 1 - idx)

    def wait_vm_tag(self, tag):
        idx = -1
        for i, e in enumerate(self.vm_q):
            if e['tag'] == tag:
                idx = i
        if idx >= 0:
            self.wait_vm(len(self.vm_q) - 1 - idx)

    def barrier(self):
        self._put('s_barrier')

    def emit(self, ins):
        if isinstance(ins, (list, tuple)):
            for x in ins:
                self.emit(x)
            return
        R, W = ins.reads, ins.writes
        touched = set(R) | set(W)
        idx = -1
        for i, e in enumerate(self.lds_q):
            if e['writes'] & touched:
                idx = i
        if idx >= 0:
            self.wait_lgkm(len(self.lds_q) - 1 - idx)
        idx = -1
        for i, e in enumerate(self.vm_q):
            if e['writes'] & touched:
                idx = i
        if idx >= 0:
            self.wait_vm(len(self.vm_q) - 1 - idx)
        need = 0
        k = ins.kind

        def req(slot, ws):
            nonlocal need
            have = self.n - slot - 1
            if ws - have > need:
                need = ws - have
        if k == 'mfma':
            D = tuple(regs_of(ins.ops[0]))
            C = tuple(regs_of(ins.ops[3]))
            AB = regs_of(ins.ops[1]) + regs_of(ins.ops[2])
            for r in R:
                if r in self.last_valu_w:
                    req(self.last_valu_w[r], 2)
                if r in self.last_dot_w:
                    req(self.last_dot_w[r][0], 3)
            for r in AB:
                if r in self.last_mfma_w:
                    req(self.last_mfma_w[r][0], 8)
            for r in C:
                if r in self.last_mfma_w:
                    s, d = self.last_mfma_w[r]
                    if d != C:
                        req(s, 6)
            for r in D:
                if r in self.last_mfma_w and r not in C:
                    s, d = self.last_mfma_w[r]
                    req(s, 6)
        else:
            isv = k in ('valu', 'trans')
            if isv or k in ('ldsr', 'ldsw', 'vmr', 'vmw', 'dma'):
                for r in touched:
                    if r in self.last_mfma_w:
                        req(self.last_mfma_w[r][0], 8)
            if isv or k in ('ldsr', 'ldsw', 'vmr', 'vmw', 'dma'):
                for r in touched:
                    if r in self.last_dot_w:
                        s_, opc = self.last_dot_w[r]
                        if opc == ins.op and isv:
                            ab = regs_of(ins.ops[1]) + regs_of(ins.ops[2])
                            if r in ab:
                                req(s_, 3)
                        else:
                            req(s_, 3)
            if isv:
                for r in W:
                    if r in self.last_mfma_c:
                        req(self.last_mfma_c[r], 3)
                    if r in self.last_store_data:
                        req(self.last_store_data[r], 2)
                if k == 'valu':
                    for r in R:
                        if r in self.last_trans_w:
                            req(self.last_trans_w[r], 1)
                for r in R:
                    if r in self.last_valu_sw:
                        req(self.last_valu_sw[r], 4 if ins.op in ('v_readlane_b32', 'v_writelane_b32') else 2)
                if ins.op.startswith('v_permlane') or 'dpp' in ins.mods or 'row_' in ins.mods or 'quad_perm' in ins.mods:
                    for r in R:
                        if r in self.last_valu_w:
                            req(self.last_valu_w[r], 2)
                if ins.op.startswith('v_readfirstlane') or ins.op.startswith('v_readlane'):
                    for r in R:
                        if r in self.last_valu_w:
                            req(self.last_valu_w[r], 1)
            if k in ('vmr', 'vmw', 'dma'):
                for r in R:
                    if r in self.last_valu_sw:
                        req(self.last_valu_sw[r], 5)
            if k == 'dma':
                req(self.last_m0, 1)
            if k in ('ldsr', 'vmr'):
                for r in W:
                    if r in self.last_store_data:
                        req(self.last_store_data[r], 1)
            if k == 'salu':
                for r in R:
                    if r in self.last_valu_sw:
                        req(self.last_valu_sw[r], 4)
        if need > 0:
            self.nop(need)
            self.stats['nops'] = self.stats.get('nops', 0) + need
        slot = self.n
        self._put(ins.text())
        self.stats[k] = self.stats.get(k, 0) + 1
        if k == 'mfma':
            D = tuple(regs_of(ins.ops[0]))
            for r in D:
                self.last_mfma_w[r] = (slot, D)
                self.last_valu_w.pop(r, None)
            for r in regs_of(ins.ops[3]):
                self.last_mfma_c[r] = slot
        elif k in ('valu', 'trans'):
            for r in W:
                self.last_dot_w.pop(r, None)
                if ins.op.startswith('v_dot'):
                    self.last_dot_w[r] = (slot, ins.op)
                if r[0] in 'va' and r != 'vcc':
                    self.last_valu_w[r] = slot
                    self.last_mfma_w.pop(r, None)
                    if k == 'trans':
                        self.last_trans_w[r] = slot
                    else:
                        self.last_trans_w.pop(r, None)
                else:
                    self.last_valu_sw[r] = slot
        elif k == 'salu':
            for r in W:
                self.last_valu_sw.pop(r, None)
                if r == 'm0':
                    self.last_m0 = slot
        elif k in ('ldsr', 'ldsw'):
            self.lds_q.append(dict(writes=set(W), flag=ins.flag))
            for r in W:
                self.regtag[r] = ins.tag
            for r in W:
                self.last_mfma_w.pop(r, None); self.last_valu_w.pop(r, None); self.last_trans_w.pop(r, None)
        elif k in ('vmr', 'vmw', 'dma'):
            self.vm_q.append(dict(writes=set(W), tag=ins.tag))
            for r in W:
                self.last_mfma_w.pop(r, None); self.last_valu_w.pop(r, None); self.last_trans_w.pop(r, None)
            if k == 'vmw' and ('x4' in ins.op or 'x3' in ins.op):
                for r in regs_of(ins.ops[0]):
                    self.last_store_data[r] = slot

    def e(self, op, *ops, **kw):
        self.emit(I(op, *ops, **kw))

    def text(self):
        return '\n'.join(self.lines) + '\n'
```

```python
import sys, math
from asmlib import *

KN = "parallel_sum__sliding_local_dilated__swiglu_ffn__prompt"

XF_OFF = 0
XF_SIZE = 128 * 18 * 1024
PQ_OFF = 5 << 19
PQ_SIZE = 16 * 147456
P_OFF = 6 << 20
P_TILE = 144 * 1024

SLOT = 24576
RING = 0
HB = 3 * SLOT
SB = HB + 16384
SPITCH = 272
XB = HB + 4 * 16384
XPITCH = 144
LDS_TOTAL = XB + 128 * XPITCH

LOG2E = 1.4426950408889634


def f2h(x):
    import struct
    return "0x%08x" % struct.unpack('<I', struct.pack('<f', x))[0]


def header_comments(launches):
    L = []
    L.append(";   0 A_x, 8 A_wqkv, 16 A_wo, 24 B_x, 32 B_w_gate, 40 B_w_up, 48 B_w_down, 56 d_out, 64 d_debug, 72 d_ws")
    L.append("; Generated by a hand-written python generator (work/gen.py).")
    for (k, g, b, lds) in launches:
        L.append(f"; @launch kernel={k} grid=({g},1,1) block=({b},1,1) lds={lds}")
    L.append('.amdgcn_target "amdgcn-amd-amdhsa--gfx950"')
    L.append(".text")
    return "\n".join(L) + "\n"


def kernel_begin(P, name):
    P.raw(f".globl {name}")
    P.raw(".p2align 8")
    P.raw(f".type {name},@function")
    P.raw(f"{name}:")


def descriptor(name, vgpr, accum, sgpr=102):
    return "\n".join([
        ".p2align 6", f".amdhsa_kernel {name}",
        f"  .amdhsa_next_free_vgpr {vgpr}", f"  .amdhsa_next_free_sgpr {sgpr}", f"  .amdhsa_accum_offset {accum}",
        "  .amdhsa_group_segment_fixed_size 0", "  .amdhsa_kernarg_size 80", "  .amdhsa_user_sgpr_count 2",
        "  .amdhsa_user_sgpr_kernarg_segment_ptr 1", "  .amdhsa_system_sgpr_workgroup_id_x 1", ".end_amdhsa_kernel"]) + "\n"


def tl_start(P, opts):
    if opts.get('tl', 0):
        P.raw("  s_memrealtime s[96:97]")


def tl_end(P, opts, kidx, wsreg_lo=None):
    if not opts.get('tl', 0):
        return
    P.raw("  s_waitcnt vmcnt(0)")
    P.raw("  s_memrealtime s[98:99]")
    P.raw("  s_load_dwordx2 s[94:95], s[0:1], 72")
    P.raw("  s_waitcnt lgkmcnt(0)")
    P.raw(f"  s_add_u32 s94, s94, {(80 << 20) + kidx * 65536}")
    P.raw("  s_addc_u32 s95, s95, 0")
    P.raw("  s_mov_b32 s88, s94")
    P.raw("  s_and_b32 s89, s95, 0xffff")
    P.raw("  s_mov_b32 s90, 65536")
    P.raw("  s_mov_b32 s91, 0x20000")
    P.raw("  s_lshl_b32 s92, s2, 3")
    P.raw("  v_mov_b32 v2, s96")
    P.raw("  v_mov_b32 v3, s98")
    P.raw("  v_mov_b32 v4, 0")
    P.raw("  v_cmp_eq_u32 vcc, 0, v0")
    P.raw("  s_and_saveexec_b64 s[86:87], vcc")
    P.raw("  buffer_store_dwordx2 v[2:3], v4, s[88:91], s92 offen")
    P.raw("  s_mov_b64 exec, s[86:87]")


def srd(P, d, lo, hi, size):
    P.e('s_mov_b32', sr(d), lo)
    P.e('s_and_b32', sr(d + 1), hi, '0xffff')
    P.e('s_mov_b32', sr(d + 2), str(size))
    P.e('s_mov_b32', sr(d + 3), '0x20000')


def gen_k0(opts):
    P = Prog()
    name = "k0_ln_kernel"
    kernel_begin(P, name)
    NPK = 288
    P.e('s_cmp_ge_u32', 's2', str(128 + NPK))
    P.raw("  s_cbranch_scc1 K0_end")
    tl_start(P, opts)
    P.e('s_cmp_ge_u32', 's2', '128')
    P.raw("  s_cbranch_scc1 K0_pack")
    P.e('s_load_dwordx2', 's[4:5]', 's[0:1]', '0')
    P.e('s_load_dwordx2', 's[6:7]', 's[0:1]', '72')
    P.e('v_and_b32', 'v1', '63', 'v0')
    P.e('v_lshrrev_b32', 'v2', '6', 'v0')
    P.e('v_and_b32', 'v3', '15', 'v1')
    P.e('v_lshrrev_b32', 'v4', '4', 'v1')
    P.e('v_readfirstlane_b32', 's20', 'v2')
    P.raw("  s_waitcnt lgkmcnt(0)")
    srd(P, 8, 's4', 's5', 2048 * 1152)
    srd(P, 12, 's6', 's7', XF_OFF + XF_SIZE)
    P.e('s_lshl_b32', 's21', 's2', '4')
    P.e('v_add_u32', 'v5', 's21', 'v3')
    P.e('s_movk_i32', 's22', '1152')
    P.e('v_mul_lo_u32', 'v5', 'v5', 's22')
    P.e('v_lshlrev_b32', 'v6', '4', 'v4')
    P.e('v_add_u32', 'v5', 'v5', 'v6')
    P.e('s_mul_i32', 's23', 's20', '576')
    X = 16
    for t in range(9):
        P.e('buffer_load_dwordx4', vr(X + 4 * t, 4), 'v5', 's[8:11]', 's23', mods=f'offen offset:{64 * t}')
    P.e('v_mov_b32', 'v7', '0x3f803f80')
    P.e('v_mov_b32', 'v8', '0'); P.e('v_mov_b32', 'v9', '0'); P.e('v_mov_b32', 'v10', '0'); P.e('v_mov_b32', 'v11', '0')
    for j in range(36):
        P.e('v_dot2c_f32_bf16', 'v8' if j % 2 == 0 else 'v10', vr(X + j), 'v7')
        P.e('v_dot2c_f32_bf16', 'v9' if j % 2 == 0 else 'v11', vr(X + j), vr(X + j))
    P.e('v_add_f32', 'v8', 'v8', 'v10')
    P.e('v_add_f32', 'v9', 'v9', 'v11')
    for sw in ('v_permlane32_swap_b32', 'v_permlane16_swap_b32'):
        P.e('v_mov_b32', 'v10', 'v8'); P.e('v_mov_b32', 'v11', 'v9')
        P.e('v_mov_b32', 'v12', 'v8'); P.e('v_mov_b32', 'v13', 'v9')
        P.e(sw, 'v10', 'v12'); P.e(sw, 'v11', 'v13')
        P.e('v_add_f32', 'v8', 'v10', 'v12'); P.e('v_add_f32', 'v9', 'v11', 'v13')
    P.e('v_lshlrev_b32', 'v10', '3', 'v0')
    P.e('ds_write_b64', 'v10', 'v[8:9]')
    P.e('v_xor_b32', 'v11', '512', 'v10')
    P.wait_lgkm(0)
    P.barrier()
    P.e('ds_read_b64', 'v[12:13]', 'v11')
    P.e('v_add_f32', 'v8', 'v8', 'v12')
    P.e('v_add_f32', 'v9', 'v9', 'v13')
    P.e('v_mul_f32', 'v8', f2h(1.0 / 576), 'v8')
    P.e('v_mul_f32', 'v9', f2h(1.0 / 576), 'v9')
    P.e('v_fma_f32', 'v9', '-v8', 'v8', 'v9')
    P.e('v_max_f32', 'v9', '0', 'v9')
    P.e('v_add_f32', 'v9', f2h(1e-5), 'v9')
    P.e('v_rsq_f32', 'v9', 'v9')
    P.e('v_mul_f32', 'v8', 'v8', 'v9')
    P.e('v_sub_f32', 'v8', '0', 'v8')
    P.e('s_mov_b32', 's24', '0xffff0000')
    for j in range(36):
        a, b = 10 + 2 * (j % 2), 11 + 2 * (j % 2)
        P.e('v_lshlrev_b32', vr(a), '16', vr(X + j))
        P.e('v_and_b32', vr(b), 's24', vr(X + j))
        P.e('v_fma_f32', vr(a), vr(a), 'v9', 'v8')
        P.e('v_fma_f32', vr(b), vr(b), 'v9', 'v8')
        P.e('v_cvt_pk_bf16_f32', vr(X + j), vr(a), vr(b))
    P.e('v_lshlrev_b32', 'v6', '4', 'v1')
    P.e('s_mul_i32', 's25', 's2', str(18 * 1024))
    P.e('s_mul_i32', 's26', 's20', str(9 * 1024))
    P.e('s_add_u32', 's25', 's25', 's26')
    for t in range(9):
        if t % 4 == 0 and t:
            P.e('s_add_u32', 's25', 's25', '4096')
        P.e('buffer_store_dwordx4', vr(X + 4 * t, 4), 'v6', 's[12:15]', 's25', mods=f'offen offset:{1024 * (t % 4)}')
    tl_end(P, opts, 0)
    P.raw("  s_endpgm")
    P.label("K0_pack")
    P.vm_q = []; P.lds_q = []
    e = P.e
    e('s_load_dwordx2', 's[4:5]', 's[0:1]', '8')
    e('s_load_dwordx2', 's[6:7]', 's[0:1]', '72')
    e('v_and_b32', 'v1', '63', 'v0'); e('v_lshrrev_b32', 'v2', '6', 'v0')
    e('v_readfirstlane_b32', 's20', 'v2')
    e('s_sub_u32', 's21', 's2', '128'); e('s_lshl_b32', 's21', 's21', '1'); e('s_add_u32', 's21', 's21', 's20')
    P.raw("  s_waitcnt lgkmcnt(0)")
    srd(P, 12, 's4', 's5', 576 * 3456)
    e('s_add_u32', 's6', 's6', str(PQ_OFF)); e('s_addc_u32', 's7', 's7', '0')
    srd(P, 16, 's6', 's7', PQ_SIZE)
    e('v_and_b32', 'v3', '15', 'v1')
    e('v_lshrrev_b32', 'v4', '4', 'v1')
    e('v_lshlrev_b32', 'v9', '4', 'v1')
    for k in range(4):
        e('s_lshl_b32', 's22', 's21', '2'); e('s_add_u32', 's22', 's22', str(k))
        e('s_mul_hi_u32', 's23', 's22', str((2 ** 32 + 143) // 144))
        e('s_mul_i32', 's24', 's23', '144'); e('s_sub_u32', 's24', 's22', 's24')
        e('s_mul_hi_u32', 's25', 's24', str((2 ** 32 + 5) // 6))
        e('s_mul_i32', 's26', 's25', '6'); e('s_sub_u32', 's26', 's24', 's26')
        e('s_lshr_b32', 's27', 's25', '2')
        e('s_and_b32', 's28', 's25', '3')
        e('s_mul_i32', 's29', 's27', '96'); e('s_lshl_b32', 's30', 's26', '4'); e('s_add_u32', 's29', 's29', 's30')
        e('s_lshl_b32', 's30', 's28', '2'); e('s_add_u32', 's29', 's29', 's30')
        e('v_add_u32', 'v5', 's29', 'v4')
        e('s_lshr_b32', 's30', 's28', '1'); e('s_lshl_b32', 's30', 's30', '2')
        e('v_or_b32', 'v6', 's30', 'v4'); e('v_lshrrev_b32', 'v7', '1', 'v3'); e('v_xor_b32', 'v6', 'v6', 'v7')
        e('v_lshlrev_b32', 'v6', '1', 'v6'); e('v_and_b32', 'v7', '1', 'v3'); e('v_or_b32', 'v6', 'v6', 'v7')
        e('v_mul_u32_u24', 'v7', '13', 'v6'); e('v_lshrrev_b32', 'v7', '6', 'v7'); e('v_min_u32', 'v7', '2', 'v7')
        e('v_mul_u32_u24', 'v8', '5', 'v7'); e('v_sub_u32', 'v8', 'v6', 'v8'); e('v_lshlrev_b32', 'v8', '4', 'v8')
        e('v_add_u32', 'v7', '1', 'v7'); e('v_cmp_eq_u32', 'vcc', '3', 'v7'); e('v_mov_b32', 'v10', '0')
        e('v_cndmask_b32', 'v7', 'v7', 'v10', 'vcc')
        e('v_mul_u32_u24', 'v7', '1152', 'v7'); e('v_add_u32', 'v8', 'v8', 'v7')
        e('s_mul_i32', 's30', 's23', '72'); e('v_add_u32', 'v8', 's30', 'v8')
        e('v_mul_u32_u24', 'v5', '3456', 'v5'); e('v_add_u32', 'v5', 'v5', 'v8')
        e('buffer_load_dwordx4', vr(16 + 4 * k, 4), 'v5', 's[12:15]', '0', mods='offen')
    e('s_lshl_b32', 's22', 's21', '12')
    for k in range(4):
        e('buffer_store_dwordx4', vr(16 + 4 * k, 4), 'v9', 's[16:19]', 's22', mods=f'offen offset:{1024 * k}')
    P.label("K0_end")
    P.raw("  s_endpgm")
    return P.text(), descriptor(name, 64, 64, 102), (name, 128 + NPK, 128, 1024)


def gen_k2(opts):
    P = Prog()
    name = "k2_reduce_kernel"
    kernel_begin(P, name)
    P.e('s_cmp_ge_u32', 's2', '576')
    P.raw("  s_cbranch_scc1 K2_end")
    tl_start(P, opts)
    P.e('s_load_dwordx2', 's[4:5]', 's[0:1]', '0')
    P.e('s_load_dwordx2', 's[6:7]', 's[0:1]', '72')
    P.e('s_load_dwordx2', 's[16:17]', 's[0:1]', '56')
    P.e('v_and_b32', 'v1', '63', 'v0')
    P.e('v_lshrrev_b32', 'v2', '6', 'v0')
    P.e('v_and_b32', 'v3', '15', 'v1')
    P.e('v_lshrrev_b32', 'v4', '4', 'v1')
    P.e('v_readfirstlane_b32', 's20', 'v2')
    P.raw("  s_waitcnt lgkmcnt(0)")
    srd(P, 8, 's4', 's5', 2048 * 1152)
    P.e('s_add_u32', 's6', 's6', str(P_OFF)); P.e('s_addc_u32', 's7', 's7', '0')
    srd(P, 12, 's6', 's7', 256 * P_TILE)
    srd(P, 24, 's16', 's17', 2048 * 1152)
    P.e('s_lshl_b32', 's21', 's2', '2'); P.e('s_add_u32', 's21', 's21', 's20')
    P.e('s_mul_hi_u32', 's22', 's21', str((2 ** 32 + 143) // 144))
    P.e('s_mul_i32', 's23', 's22', '144'); P.e('s_sub_u32', 's23', 's21', 's23')
    P.e('s_lshl_b32', 's28', 's21', '10')
    P.e('v_lshlrev_b32', 'v5', '4', 'v1')
    D = 16
    for s in range(16):
        P.e('buffer_load_dwordx4', vr(D + 4 * s, 4), 'v5', 's[12:15]', 's28', mods='offen' + ['', ' nt', ' sc1'][opts.get('ldflag', 0)])
        if s < 15:
            P.e('s_add_u32', 's28', 's28', str(16 * P_TILE))
    P.e('s_and_b32', 's29', 's23', '3')
    P.e('s_cmp_ge_u32', 's23', '128')
    P.e('s_cselect_b32', 's30', '1', '0')
    P.e('s_lshr_b32', 's31', 's23', '3'); P.e('s_and_b32', 's31', 's31', '3')
    P.e('s_sub_u32', 's32', 's23', '128'); P.e('s_lshr_b32', 's32', 's32', '2')
    P.e('s_cmp_eq_u32', 's30', '1'); P.e('s_cselect_b32', 's31', 's32', 's31')
    P.e('s_and_b32', 's33', 's31', '1')
    P.e('s_lshr_b32', 's34', 's31', '1')
    P.e('s_lshr_b32', 's35', 's23', '5'); P.e('s_lshl_b32', 's35', 's35', '7')
    P.e('s_lshl_b32', 's36', 's34', '6'); P.e('s_add_u32', 's35', 's35', 's36')
    P.e('s_lshr_b32', 's36', 's23', '2'); P.e('s_and_b32', 's36', 's36', '1'); P.e('s_lshl_b32', 's36', 's36', '5')
    P.e('s_add_u32', 's35', 's35', 's36')
    P.e('s_lshl_b32', 's36', 's34', '5'); P.e('s_add_u32', 's36', 's36', '512')
    P.e('s_cmp_eq_u32', 's30', '1'); P.e('s_cselect_b32', 's35', 's36', 's35')
    P.e('s_lshl_b32', 's37', 's22', '7'); P.e('s_lshl_b32', 's38', 's33', '6'); P.e('s_add_u32', 's37', 's37', 's38')
    P.e('s_lshl_b32', 's38', 's29', '4'); P.e('s_add_u32', 's37', 's37', 's38')
    P.e('v_add_u32', 'v6', 's37', 'v3')
    P.e('s_movk_i32', 's39', '1152')
    P.e('v_mul_lo_u32', 'v6', 'v6', 's39')
    P.e('s_lshl_b32', 's40', 's35', '1')
    P.e('v_add_u32', 'v6', 's40', 'v6')
    P.e('v_lshlrev_b32', 'v7', '3', 'v4')
    P.e('v_add_u32', 'v7', 'v6', 'v7')
    P.e('buffer_load_dwordx2', 'v[8:9]', 'v7', 's[8:11]', '0', mods='offen')
    P.e('buffer_load_dwordx2', 'v[10:11]', 'v7', 's[8:11]', '0', mods='offen offset:32')
    P.e('v_and_b32', 'v12', '1', 'v4'); P.e('v_lshlrev_b32', 'v12', '5', 'v12')
    P.e('v_lshrrev_b32', 'v13', '1', 'v4'); P.e('v_lshlrev_b32', 'v13', '4', 'v13')
    P.e('v_add3_u32', 'v6', 'v6', 'v12', 'v13')
    P.e('s_mov_b32', 's41', '0xffff0000')
    ACC = 80
    for s in range(16):
        for j in range(4):
            d = vr(D + 4 * s + j)
            if s == 0:
                P.e('v_lshlrev_b32', vr(ACC + 2 * j), '16', d)
                P.e('v_and_b32', vr(ACC + 2 * j + 1), 's41', d)
            else:
                t0, t1 = 88 + 2 * (j % 2), 89 + 2 * (j % 2)
                P.e('v_lshlrev_b32', vr(t0), '16', d)
                P.e('v_and_b32', vr(t1), 's41', d)
                P.e('v_add_f32', vr(ACC + 2 * j), vr(ACC + 2 * j), vr(t0))
                P.e('v_add_f32', vr(ACC + 2 * j + 1), vr(ACC + 2 * j + 1), vr(t1))
    for j in range(4):
        d = vr(8 + j)
        t0, t1 = 88 + 2 * (j % 2), 89 + 2 * (j % 2)
        P.e('v_lshlrev_b32', vr(t0), '16', d)
        P.e('v_and_b32', vr(t1), 's41', d)
        P.e('v_add_f32', vr(ACC + 2 * j), vr(ACC + 2 * j), vr(t0))
        P.e('v_add_f32', vr(ACC + 2 * j + 1), vr(ACC + 2 * j + 1), vr(t1))
    for j in range(4):
        P.e('v_cvt_pk_bf16_f32', vr(92 + j), vr(ACC + 2 * j), vr(ACC + 2 * j + 1))
    P.e('v_permlane16_swap_b32', 'v92', 'v94')
    P.e('v_permlane16_swap_b32', 'v93', 'v95')
    P.e('buffer_store_dwordx4', 'v[92:95]', 'v6', 's[24:27]', '0', mods='offen')
    tl_end(P, opts, 2)
    P.label("K2_end")
    P.raw("  s_endpgm")
    return P.text(), descriptor(name, 96, 96, 102), (name, 576, 256, 0)


class K1:
    V_LANE, V_C16, V_G, V_T0, V_T1, V_T2, V_T3, V_T4 = 1, 2, 3, 4, 5, 6, 7, 8
    ACC0, ACC1 = 16, 80
    FR = 144
    NFR = 6
    XV = 168
    TQ = 200
    TG = 204
    TH = 208
    TP = 210
    TPH = 214
    DQ = 216
    DG = 219
    DH = 222
    DP = 225
    DPH = 228
    HW = 231
    HWX = 233
    HR = 234
    XR = 236
    SW = 237
    AB = 241
    OW = 242
    PV = 243
    MG = 244
    XA = 245
    TD = 168
    HAL = 248
    HALX = 8

    S_W, S_S, S_I = 20, 21, 22
    S_RG2, S_CH = 23, 24
    S_LDSW = 25
    S_XF = 26
    S_FB = 28
    S_T0, S_T1, S_T2, S_T3 = 34, 35, 36, 37
    S_SOFF = 38
    S_NLOG2E = 39
    S_AC = 40
    S_PERM0, S_PERM1 = 41, 42
    S_NEG = 43
    S_QC = 44
    S_PO = 45
    SRD_XF, SRD_QKV, SRD_GU, SRD_WD, SRD_WO, SRD_P = 48, 52, 56, 60, 64, 68
    S_FB2 = 4
    S_FBR = 9
    S_WOR = 16
    S_XL, S_XH, S_SOFF2 = 17, 18, 19

    def __init__(self, opts):
        self.P = Prog()
        self.o = opts

    def xreg(self, t, mb):
        j = 4 * t + mb
        return ar(4 * j, 4) if j < 64 else vr(self.XV + 4 * (j - 64), 4)

    def hreg(self, k, mb):
        return ar(16 * k + 4 * mb, 4)

    def halo_x(self, t):
        return vr(self.ACC1 + 4 * t, 4) if t < 16 else vr(self.HALX + 4 * (t - 16), 4)

    def prologue(self):
        P = self.P
        e = P.e
        e('s_cmp_ge_u32', 's2', '256')
        P.raw("  s_cbranch_scc1 K1_end")
        tl_start(P, self.o)
        if self.o.get('prof', 0):
            P.raw("  s_memtime s[46:47]")
            P.raw("  s_memrealtime s[98:99]")
        e('s_load_dwordx4', 's[4:7]', 's[0:1]', '8')
        e('s_load_dwordx4', 's[8:11]', 's[0:1]', '32')
        e('s_load_dwordx2', 's[12:13]', 's[0:1]', '48')
        e('s_load_dwordx2', 's[14:15]', 's[0:1]', '72')
        L, C16, G = vr(self.V_LANE), vr(self.V_C16), vr(self.V_G)
        e('v_and_b32', L, '63', 'v0')
        e('v_lshrrev_b32', 'v4', '6', 'v0')
        e('v_and_b32', C16, '15', L)
        e('v_lshrrev_b32', G, '4', L)
        e('v_readfirstlane_b32', sr(self.S_W), 'v4')
        if self.o.get('map', 1) == 0:
            e('s_and_b32', sr(self.S_S), 's2', '7'); e('s_lshl_b32', sr(self.S_S), sr(self.S_S), '1')
            e('s_bfe_u32', sr(self.S_T0), 's2', '0x10003'); e('s_add_u32', sr(self.S_S), sr(self.S_S), sr(self.S_T0))
            e('s_lshr_b32', sr(self.S_I), 's2', '4')
        else:
            e('s_and_b32', sr(self.S_S), 's2', '3'); e('s_lshl_b32', sr(self.S_S), sr(self.S_S), '2')
            e('s_bfe_u32', sr(self.S_T0), 's2', '0x20003'); e('s_add_u32', sr(self.S_S), sr(self.S_S), sr(self.S_T0))
            e('s_bfe_u32', sr(self.S_I), 's2', '0x10002'); e('s_lshl_b32', sr(self.S_I), sr(self.S_I), '3')
            e('s_lshr_b32', sr(self.S_T0), 's2', '5'); e('s_add_u32', sr(self.S_I), sr(self.S_I), sr(self.S_T0))
        e('s_and_b32', sr(self.S_RG2), sr(self.S_W), '1'); e('s_lshr_b32', sr(self.S_CH), sr(self.S_W), '1')
        e('s_mul_i32', sr(self.S_LDSW), sr(self.S_W), '6144')
        P.raw("  s_waitcnt lgkmcnt(0)")
        e('s_add_u32', sr(self.S_T0), 's14', str(XF_OFF)); e('s_addc_u32', sr(self.S_T1), 's15', '0')
        srd(P, self.SRD_XF, sr(self.S_T0), sr(self.S_T1), XF_SIZE)
        e('s_mul_i32', sr(self.S_T2), sr(self.S_S), '147456'); e('s_add_u32', sr(self.S_T2), sr(self.S_T2), str(PQ_OFF))
        e('s_add_u32', sr(self.S_T0), 's14', sr(self.S_T2)); e('s_addc_u32', sr(self.S_T1), 's15', '0')
        srd(P, self.SRD_QKV, sr(self.S_T0), sr(self.S_T1), 147456)
        srd(P, self.SRD_WO, 's6', 's7', 576 * 1152)
        e('s_cmp_ge_u32', sr(self.S_W), '2')
        e('s_cselect_b32', sr(self.S_T0), 's10', 's8'); e('s_cselect_b32', sr(self.S_T1), 's11', 's9')
        srd(P, self.SRD_GU, sr(self.S_T0), sr(self.S_T1), 576 * 9216)
        srd(P, self.SRD_WD, 's12', 's13', 4608 * 1152)
        e('s_lshl_b32', sr(self.S_T2), sr(self.S_S), '4'); e('s_add_u32', sr(self.S_T2), sr(self.S_T2), sr(self.S_I))
        e('s_mul_i32', sr(self.S_T2), sr(self.S_T2), str(P_TILE)); e('s_add_u32', sr(self.S_T2), sr(self.S_T2), str(P_OFF))
        e('s_add_u32', sr(self.S_T0), 's14', sr(self.S_T2)); e('s_addc_u32', sr(self.S_T1), 's15', '0')
        srd(P, self.SRD_P, sr(self.S_T0), sr(self.S_T1), P_TILE)
        e('v_lshlrev_b32', vr(self.PV), '4', L)
        e('s_lshl_b32', sr(self.S_T0), sr(self.S_I), '3'); e('s_lshl_b32', sr(self.S_T1), sr(self.S_W), '1')
        e('s_add_u32', sr(self.S_T0), sr(self.S_T0), sr(self.S_T1))
        e('s_mul_i32', sr(self.S_XF), sr(self.S_T0), '18432')
        e('s_lshr_b32', sr(self.S_T0), sr(self.S_W), '1'); e('s_mul_i32', sr(self.S_XL), sr(self.S_T0), '36864')
        e('s_and_b32', sr(self.S_T0), sr(self.S_W), '1'); e('s_mul_i32', sr(self.S_T0), sr(self.S_T0), '6144')
        e('s_add_u32', sr(self.S_XL), sr(self.S_XL), sr(self.S_T0))
        e('s_min_u32', sr(self.S_T1), sr(self.S_W), '2'); e('s_lshl_b32', sr(self.S_XH), sr(self.S_T1), '10')
        e('s_lshl_b32', sr(self.S_T0), sr(self.S_I), '3'); e('s_sub_u32', sr(self.S_T0), sr(self.S_T0), '1')
        e('s_mul_i32', sr(self.S_T0), sr(self.S_T0), '18432'); e('s_add_u32', sr(self.S_T0), sr(self.S_T0), sr(self.S_XH))
        e('s_cmp_eq_u32', sr(self.S_I), '0'); e('s_cselect_b32', sr(self.S_XF + 1), '0x7f000000', sr(self.S_T0))
        e('s_mul_i32', sr(self.S_T0), sr(self.S_RG2), '36864'); e('s_add_u32', sr(self.S_T0), sr(self.S_T0), str(HB))
        e('v_add_u32', vr(self.XA), sr(self.S_T0), vr(self.PV))
        e('v_add_u32', vr(self.XA + 1), str(HB + 73728), vr(self.PV))
        e('s_mul_i32', sr(self.S_T0), sr(self.S_S), '288')
        e('s_and_b32', sr(self.S_T1), sr(self.S_S), '1')
        e('s_lshl_b32', sr(self.S_T2), sr(self.S_T1), '5'); e('s_add_u32', sr(self.S_T2), sr(self.S_T2), sr(self.S_T0))
        for j in range(4):
            if self.o.get('rot', 1):
                e('s_add_u32', sr(self.S_T3), sr(self.S_I), str(j)); e('s_and_b32', sr(self.S_T3), sr(self.S_T3), '3')
            else:
                e('s_mov_b32', sr(self.S_T3), str(j))
            e('s_lshl_b32', sr(self.S_T3), sr(self.S_T3), '6'); e('s_add_u32', sr(self.S_FB + j), sr(self.S_T2), sr(self.S_T3))
        e('s_cmp_eq_u32', sr(self.S_T1), '1'); e('s_cselect_b32', sr(self.S_T3), '0', '256')
        e('s_add_u32', sr(self.S_FB + 4), sr(self.S_T0), sr(self.S_T3))
        for j in range(5):
            e('s_lshl_b32', sr(self.S_FB2 + j), sr(self.S_FB + j), '1')
            e('s_mul_i32', sr(self.S_FBR + j), sr(self.S_FB + j), '1152')
        e('s_mul_i32', sr(self.S_WOR), sr(self.S_S), str(36 * 1152))
        e('s_mul_i32', sr(self.S_QC), sr(self.S_S), '72')
        e('s_mov_b32', sr(self.S_NLOG2E), f2h(-LOG2E))
        e('s_mov_b32', sr(self.S_AC), f2h(LOG2E / math.sqrt(18.0)))
        e('s_mov_b32', sr(self.S_PERM0), '0x05040100'); e('s_mov_b32', sr(self.S_PERM1), '0x07060302')
        e('s_mov_b32', sr(self.S_NEG), f2h(-1e30))

    def addr_setup_dma(self):
        P = self.P; e = P.e
        L, C16, G = vr(self.V_LANE), vr(self.V_C16), vr(self.V_G)
        a, b, c, d = 'v144', 'v145', 'v146', 'v147'
        W = sr(self.S_W)
        T0, T1 = sr(self.S_T0), sr(self.S_T1)
        e('s_lshr_b32', T0, W, '1'); e('s_lshl_b32', T0, T0, '2')
        e('v_or_b32', a, T0, G)
        e('v_lshrrev_b32', b, '1', C16)
        e('v_xor_b32', a, a, b)
        e('v_lshlrev_b32', a, '1', a)
        e('v_and_b32', b, '1', C16)
        e('v_or_b32', a, a, b)
        e('s_lshl_b32', T1, W, '2')
        e('v_add_u32', b, T1, G)
        e('v_mul_u32_u24', c, '1152', b)
        e('v_lshl_add_u32', vr(self.DP), a, '4', c)
        for j in (1, 2):
            e('v_add_u32', vr(self.DP + j), str(j * (16 * 1152 - 1024)), vr(self.DP))
        e('v_mul_u32_u24', c, '13', a); e('v_lshrrev_b32', c, '6', c); e('v_min_u32', c, '2', c)
        e('v_mul_u32_u24', d, '5', c); e('v_sub_u32', d, a, d); e('v_lshlrev_b32', d, '4', d)
        e('v_add_u32', c, '1', c); e('v_cmp_eq_u32', 'vcc', '3', c); e('v_cndmask_b32', c, c, '0', 'vcc') if False else None
        e('v_mov_b32', 'v148', '0')
        e('v_cndmask_b32', c, c, 'v148', 'vcc')
        e('v_mul_u32_u24', c, '1152', c)
        e('v_add_u32', d, d, c)
        e('v_add_u32', d, sr(self.S_QC), d)
        e('v_mul_u32_u24', c, '3456', b)
        e('v_add_u32', vr(self.DQ), c, d)
        for j in (1, 2):
            e('v_add_u32', vr(self.DQ + j), str(j * (16 * 3456 - 1024)), vr(self.DQ))
        e('v_lshrrev_b32', b, '3', L)
        e('v_bfe_u32', a, b, '1', '1')
        e('s_and_b32', T0, W, '1'); e('s_lshl_b32', T1, T0, '1')
        e('v_or_b32', a, T1, a)
        e('v_bfe_u32', c, L, '1', '2')
        e('v_xor_b32', a, a, c); e('v_lshlrev_b32', a, '1', a)
        e('v_and_b32', c, '1', L); e('v_or_b32', a, a, c)
        e('s_lshl_b32', T1, T0, '3')
        e('v_add_u32', c, T1, b)
        e('v_mul_u32_u24', c, '9216', c)
        e('v_lshl_add_u32', vr(self.DG), a, '4', c)
        for j in (1, 2):
            e('v_add_u32', vr(self.DG + j), str(j * (16 * 9216 - 1024)), vr(self.DG))
        e('s_lshl_b32', T1, W, '3')
        e('v_add_u32', c, T1, b)
        e('v_mul_u32_u24', c, '1152', c)
        e('v_lshl_add_u32', vr(self.DPH), a, '4', c)
        for j in (1, 2):
            e('v_add_u32', vr(self.DPH + j), str(j * (32 * 1152 - 1024)), vr(self.DPH))
        e('v_lshrrev_b32', b, '2', L)
        e('v_lshrrev_b32', a, '3', b); e('v_lshlrev_b32', a, '1', a)
        e('v_and_b32', c, '3', L); e('v_xor_b32', a, a, c)
        e('s_lshl_b32', T1, T0, '4')
        e('v_add_u32', c, T1, b)
        e('v_mul_u32_u24', c, '9216', c)
        e('v_lshl_add_u32', vr(self.DH), a, '4', c)
        for j in (1, 2):
            e('v_add_u32', vr(self.DH + j), str(j * (32 * 9216 - 1024)), vr(self.DH))

    def addr_setup_rest(self):
        P = self.P; e = P.e
        L, C16, G = vr(self.V_LANE), vr(self.V_C16), vr(self.V_G)
        a, b, c, d, r, cc8 = 'v144', 'v145', 'v146', 'v147', 'v148', 'v149'
        W, CH, RG2 = sr(self.S_W), sr(self.S_CH), sr(self.S_RG2)
        T0, T1, T2, T3 = sr(self.S_T0), sr(self.S_T1), sr(self.S_T2), sr(self.S_T3)
        e('v_lshrrev_b32', r, '2', C16)
        e('v_and_b32', cc8, '3', C16); e('v_lshlrev_b32', cc8, '3', cc8)
        g1, g2 = 'v150', 'v151'
        e('v_and_b32', g1, '1', G)
        e('v_lshrrev_b32', g2, '1', G)
        e('v_mul_u32_u24', a, '12288', g1)
        e('v_lshl_add_u32', a, g2, '10', a)
        e('v_lshl_add_u32', a, r, '8', a)
        e('v_add_u32', a, a, cc8)
        e('v_lshl_or_b32', b, g1, '2', r)
        e('s_mov_b32', T0, '0x10525210'); e('s_mov_b32', T1, '0x63747463')
        e('s_lshl_b32', T2, W, '4')
        e('s_lshr_b64', sr(self.S_T0, 2), sr(self.S_T0, 2), T2)
        for u in range(4):
            e('s_bfe_u32', T2, T0, hex((4 << 16) | (4 * u)))
            e('v_xor_b32', c, T2, b); e('v_lshl_add_u32', vr(self.TQ + u), c, '5', a)
            e('s_lshl_b32', T3, RG2, '6'); e('s_add_u32', T3, T3, '16')
            e('v_add_u32', c, T3, C16); e('v_mul_u32_u24', c, str(SPITCH), c)
            e('v_lshl_add_u32', c, G, '3', c)
            e('s_lshl_b32', T2, T2, '5'); e('s_add_u32', T2, T2, str(SB))
            e('v_add_u32', vr(self.SW + u), T2, c)
        for u in range(4):
            e('s_lshl_b32', T2, CH, '2'); e('s_add_u32', T2, T2, str(u))
            e('v_xor_b32', c, T2, b); e('v_lshl_add_u32', vr(self.TP + u), c, '5', a)
        e('v_mul_u32_u24', a, '6144', g1)
        e('v_lshl_add_u32', a, g2, '10', a)
        e('v_lshl_add_u32', a, r, '7', a)
        e('v_add_u32', a, a, cc8)
        e('v_lshrrev_b32', b, '1', r); e('v_lshl_or_b32', b, g1, '1', b)
        for bb in range(2):
            e('s_lshl_b32', T2, CH, '1'); e('s_add_u32', T2, T2, str(bb))
            e('v_xor_b32', c, T2, b); e('v_lshl_add_u32', vr(self.TG + bb), c, '5', a)
            e('v_add_u32', vr(self.TG + 2 + bb), '12288', vr(self.TG + bb))
        e('v_mul_u32_u24', a, '6144', G)
        e('v_lshl_add_u32', a, r, '7', a)
        e('v_add_u32', a, a, cc8)
        for bb in range(2):
            e('s_lshl_b32', T2, CH, '1'); e('s_add_u32', T2, T2, str(bb))
            e('v_xor_b32', c, T2, b); e('v_lshl_add_u32', vr(self.TPH + bb), c, '5', a)
        e('v_mul_u32_u24', a, '6144', g2)
        e('v_lshl_add_u32', c, g1, '3', r); e('v_lshl_add_u32', a, c, '6', a)
        e('v_add_u32', a, a, cc8)
        e('v_xor_b32', c, CH, g1); e('v_lshl_add_u32', vr(self.TH), c, '5', a)
        e('v_add_u32', vr(self.TH + 1), '12288', vr(self.TH))
        e('s_lshl_b32', T2, RG2, '6'); e('v_add_u32', a, T2, C16)
        e('s_lshl_b32', T3, CH, '2'); e('v_add_u32', b, T3, g2)
        e('v_and_b32', c, '7', C16); e('v_xor_b32', b, b, c)
        e('v_lshlrev_b32', b, '4', b); e('v_lshl_add_u32', b, g1, '3', b)
        e('v_lshl_add_u32', b, a, '7', b)
        e('v_add_u32', vr(self.HW), str(HB), b)
        e('v_xor_b32', vr(self.HW + 1), '32', vr(self.HW))
        e('v_xor_b32', b, G, c); e('v_lshlrev_b32', b, '4', b); e('v_lshl_add_u32', b, a, '7', b)
        e('v_add_u32', vr(self.HR), str(HB), b)
        e('v_xor_b32', vr(self.HR + 1), '64', vr(self.HR))
        e('v_mul_u32_u24', b, str(XPITCH), a)
        e('v_add_u32', b, str(XB), b)
        e('v_lshl_add_u32', vr(self.XR), G, '4', b)
        e('s_lshl_b32', T3, CH, '5')
        e('v_lshl_add_u32', c, G, '3', b); e('v_add_u32', vr(self.HWX), T3, c)
        e('v_and_b32', a, '31', L); e('v_lshrrev_b32', b, '5', L)
        e('s_lshl_b32', T2, W, '5')
        e('v_add_u32', a, T2, a)
        e('s_lshl_b32', T3, sr(self.S_I), '7'); e('v_add_u32', vr(self.MG), T3, a)
        e('v_add_u32', c, '2', a); e('v_mul_u32_u24', c, str(SPITCH), c)
        e('v_lshl_add_u32', c, b, '5', c); e('v_add_u32', vr(self.AB), str(SB), c)
        e('v_mul_u32_u24', c, str(XPITCH), a); e('v_lshl_add_u32', c, b, '5', c)
        e('v_add_u32', vr(self.OW), str(XB + 64), c)

    def build(self):
        self.stages = []
        self.ksteps = []
        strips = []

        def add_stage(dml):
            self.stages.append(dml)
            return len(self.stages) - 1

        def strip_generic(name, nk, ks_per_stage, nfrag, dma_fn, tr_fn, mf_fn):
            st = dict(name=name, ks=[])
            for t in range(nk):
                tl = t % ks_per_stage
                if tl == 0:
                    n_in = min(ks_per_stage, nk - t)
                    dml = []
                    for tt in range(n_in):
                        dml += dma_fn(t + tt, tt)
                    sid = add_stage(dml)
                frs = [tr_fn(t, tl, u) for u in range(nfrag)]
                st['ks'].append(dict(t=t, stage=sid, frags=frs, mf=[mf_fn(t, u) for u in range(nfrag)], last_in_stage=(tl == ks_per_stage - 1 or t == nk - 1)))
            strips.append(st)
            return st

        A0, A1 = self.ACC0, self.ACC1
        acc = lambda buf, u, mb: vr(buf + 16 * u + 4 * mb, 4)

        def dq(t, tt):
            r = t // 3
            return [(self.SRD_QKV, ('pq',), (r * 24 + 2 * tt + e) * 1024, self.PV, 1024, 2 * tt + e) for e in range(2)]

        def trq(t, tl, u):
            return (self.TQ + u, tl * 2048, 6144)

        def mfq(t, u):
            L = [(acc(A0, u, mb), self.xreg(t, mb)) for mb in range(4)]
            if u < 2:
                L.append((vr(self.HAL + 4 * u, 4), self.halo_x(t)))
            return L
        strip_generic('QKV', 18, 3, 4, dq, trq, mfq)

        def ffn(j, buf):
            def dg(t, tt):
                return [(self.SRD_GU, ('fb2', j), (32 * t + 16 * e) * 9216, self.DG, 16 * 9216, 2 * tt + e) for e in range(2)]

            def trg(t, tl, u):
                return (self.TG + u, tl * 2048, 512)

            def mfg(t, u):
                return [(acc(buf, u, mb), self.xreg(t, mb)) for mb in range(4)]
            return strip_generic(f'F{j}', 18, 3, 4, dg, trg, mfg)
        ffn(0, A1); ffn(1, A0); ffn(2, A1); ffn(3, A0)

        def dh(t, tt):
            return [(self.SRD_GU, ('fb2', 4), (32 * t) * 9216, self.DH, 32 * 9216, tt)]

        def trh(t, tl, u):
            return (self.TH + u, tl * 1024, 256)

        def mfh(t, u):
            return [(acc(A1, u, mb), self.xreg(t, mb)) for mb in range(4)]
        strip_generic('F4h', 18, 6, 2, dh, trh, mfh)

        self.kmap = [('F', 0, 0), ('F', 0, 1), ('F', 1, 0), ('F', 1, 1), ('F', 2, 0), ('F', 2, 1), ('O', 0, 0), ('O', 0, 1), ('F', 3, 0), ('F', 3, 1), ('X', 4, 0)]

        def p2rows(k):
            kind, j, tt = self.kmap[k]
            if kind == 'O':
                return self.SRD_WO, ('wo',), 32 * tt
            return self.SRD_WD, ('fbr', j), 32 * tt

        def p2full(Y, buf):
            def dp(t, tt):
                s_, b_, r0 = p2rows(t)
                return [(s_, b_, (r0 + 16 * e) * 1152 + 256 * Y, self.DP, 16 * 1152, 2 * tt + e) for e in range(2)]

            def trp(t, tl, u):
                return (self.TP + u, tl * 2048, 6144)

            def mfp(t, u):
                return [(acc(buf, u, mb), self.hreg(t, mb)) for mb in range(4)]
            return strip_generic(f'P{Y}', 11, 3, 4, dp, trp, mfp)
        p2full(0, A0); p2full(1, A1); p2full(2, A0); p2full(3, A1)

        def dph(t, tt):
            s_, b_, r0 = p2rows(t)
            return [(s_, b_, r0 * 1152 + 1024, self.DPH, 32 * 1152, tt)]

        def trph(t, tl, u):
            return (self.TPH + u, tl * 1024, 512)

        def mfph(t, u):
            return [(acc(A0, u, mb), self.hreg(t, mb)) for mb in range(4)]
        strip_generic('P4h', 11, 6, 2, dph, trph, mfph)
        self.strips = strips
        first_deep = [st for st in strips if st['name'] == 'P1'][0]['ks'][0]['stage'] + 1
        self.first_deep = first_deep
        self.slot = {}
        nst = len(self.stages)
        for sid in range(nst):
            if sid < first_deep or not self.o.get('deep', 1):
                self.slot[sid] = sid % 3
        if self.o.get('deep', 1):
            order = [3, 4, 5, first_deep % 3, (first_deep + 1) % 3, (first_deep + 2) % 3]
            for k, sid in enumerate(range(first_deep, nst)):
                self.slot[sid] = order[k % 6]

    def slot_base(self, sid):
        sl = self.slot[sid]
        return sl * SLOT if sl < 3 else HB + (sl - 3) * SLOT

    def dma_items(self, sid):
        sbase = self.slot_base(sid)
        items = []
        prev = None
        for (srd_, base, goff, vbase, qdelta, q) in self.stages[sid]:
            share = False
            lin = base is not None and base[0] == 'pq'
            if prev is not None:
                psrd, pbase, pgoff, pq, pj = prev
                j = pj + 1
                if psrd == srd_ and pbase == base and j <= (3 if lin else 2) and q == pq + 1 and goff == pgoff + qdelta:
                    share = True
            pre = []
            if not share:
                j = 0
                pre.append(I('s_add_u32', 'm0', sr(self.S_LDSW), str(sbase + q * 1024)))
                so = sr(self.S_SOFF)
                if lin:
                    pre.append(I('s_add_u32', so, sr(self.S_LDSW), str(goff)))
                elif base[0] == 'fb2':
                    pre.append(I('s_add_u32', so, sr(self.S_FB2 + base[1]), str(goff)))
                elif base[0] == 'fbr':
                    pre.append(I('s_add_u32', so, sr(self.S_FBR + base[1]), str(goff)))
                elif base[0] == 'wo':
                    pre.append(I('s_add_u32', so, sr(self.S_WOR), str(goff)))
            if pre:
                cur = pre
            items.append((cur, I('buffer_load_dwordx4', vr(vbase if lin else vbase + j), sr(srd_, 4), sr(self.S_SOFF),
                                 mods=f'offen offset:{1024 * j} lds' if j else 'offen lds', tag=('st', sid))))
            prev = (srd_, base, goff, q, j)
        return items

    def task_qkv_epi(self):
        T = []
        A0 = self.ACC0
        T.append(I('v_mov_b32', 'v4', '0')); T.append(I('v_mov_b32', 'v5', '0'))
        T.append(I('v_and_b32', 'v6', '127', 'v0')); T.append(I('v_mul_u32_u24', 'v6', str(XPITCH), 'v6'))
        T.append(I('v_add_u32', 'v6', str(XB + 136), 'v6'))
        T.append(I('ds_write_b64', 'v6', 'v[4:5]', flag='bar'))
        for u in range(4):
            for mb in range(4):
                a = A0 + 16 * u + 4 * mb
                T.append(I('v_cvt_pk_bf16_f32', vr(a), vr(a), vr(a + 1)))
                T.append(I('v_cvt_pk_bf16_f32', vr(a + 1), vr(a + 2), vr(a + 3)))
                T.append(I('ds_write_b64', vr(self.SW + u), vr(a, 2), mods=f'offset:{mb * 16 * SPITCH}', flag='bar'))
        for u in range(2):
            a = self.HAL + 4 * u
            T.append(I('v_cvt_pk_bf16_f32', vr(a), vr(a), vr(a + 1)))
            T.append(I('v_cvt_pk_bf16_f32', vr(a + 1), vr(a + 2), vr(a + 3)))
            T.append(I('s_lshl_b32', sr(self.S_T2), sr(self.S_RG2), '6'))
            T.append(I('s_add_u32', sr(self.S_T2), sr(self.S_T2), '16'))
            T.append(I('s_mul_i32', sr(self.S_T2), sr(self.S_T2), str(SPITCH)))
            T.append(I('v_subrev_u32', vr(a + 2), sr(self.S_T2), vr(self.SW + u)))
            T.append(I('ds_write_b64', vr(a + 2), vr(a, 2), flag='bar'))
        return T

    def task_attn(self):
        T = []
        B = self.ACC0
        Q = B
        K0_, K1_ = B + 12, B + 24
        S = B + 36
        O = B + 44
        TP = 4
        AB = vr(self.AB)

        def rd(dst, off):
            return [I('ds_read_b128', vr(dst, 4), AB, mods=f'offset:{off}'),
                    I('ds_read_b128', vr(dst + 4, 4), AB, mods=f'offset:{off + 16}'),
                    I('ds_read_b64', vr(dst + 8, 2), AB, mods=f'offset:{off + 32}')]
        rowoff = lambda w: (14 - 2 * w) * SPITCH
        T += rd(Q, rowoff(0) + 160)
        T += rd(K0_, rowoff(0) + 0)
        T += rd(K1_, rowoff(1) + 0)
        T.append(I('v_cmp_gt_u32', 'vcc', '32', vr(self.V_LANE)))
        T.append(I('v_mov_b32', vr(S), '0'))
        T.append([I('v_cmp_gt_u32', 'vcc', '32', vr(self.V_LANE)),
                  I('v_cndmask_b32', vr(Q + 9), vr(Q + 9), vr(S), 'vcc'),
                  I('v_cndmask_b32', vr(Q + 0), vr(S), vr(Q + 0), 'vcc')])
        for w in range(0, 8, 2):
            burst = []
            for ww, kb in ((w, K0_), (w + 1, K1_)):
                burst.append(I('v_dot2_f32_bf16', vr(S + ww), vr(Q), vr(kb), '0'))
            for j in range(1, 10):
                for ww, kb in ((w, K0_), (w + 1, K1_)):
                    burst.append(I('v_dot2_f32_bf16', vr(S + ww), vr(Q + j), vr(kb + j), vr(S + ww)))
            T.append(burst)
            if w + 2 < 8:
                T += rd(K0_, rowoff(w + 2)); T += rd(K1_, rowoff(w + 3))
            else:
                T += rd(K0_, rowoff(0) + 80); T += rd(K1_, rowoff(1) + 80)
        NEG = vr(Q + 10)
        T.append(I('v_mov_b32', NEG, sr(self.S_NEG)))
        for w in range(1, 8):
            T.append([I('v_cmp_le_u32', 'vcc', str(2 * w), vr(self.MG)), I('s_nop', '1'),
                      I('v_cndmask_b32', vr(S + w), NEG, vr(S + w), 'vcc')])
        MX = vr(Q + 11)
        T.append(I('v_max3_f32', MX, vr(S), vr(S + 1), vr(S + 2)))
        T.append(I('v_max3_f32', MX, MX, vr(S + 3), vr(S + 4)))
        T.append(I('v_max3_f32', MX, MX, vr(S + 5), vr(S + 6)))
        T.append(I('v_max_f32', MX, MX, vr(S + 7)))
        T.append(I('v_mul_f32', MX, sr(self.S_AC), MX))
        for w in range(8):
            T.append(I('v_fma_f32', vr(S + w), vr(S + w), sr(self.S_AC), '-' + MX))
        for w in range(8):
            T.append(I('v_exp_f32', vr(S + w), vr(S + w)))
        SUM = vr(Q + 10)
        T.append(I('v_add_f32', SUM, vr(S), vr(S + 1)))
        for w in range(2, 8):
            T.append(I('v_add_f32', SUM, SUM, vr(S + w)))
        T.append(I('v_rcp_f32', SUM, SUM))
        for w in range(8):
            T.append(I('v_mul_f32', vr(S + w), vr(S + w), SUM))
        for pp in range(4):
            T.append(I('v_cvt_pk_bf16_f32', vr(Q + pp), vr(S + 2 * pp), vr(S + 2 * pp + 1)))
        for pp in range(4):
            for half in range(2):
                burst = []
                for jj in range(5):
                    j = half * 5 + jj
                    a, b = TP + 2 * jj, TP + 2 * jj + 1
                    T.append(I('v_perm_b32', vr(a), vr(K1_ + j), vr(K0_ + j), sr(self.S_PERM0)))
                    T.append(I('v_perm_b32', vr(b), vr(K1_ + j), vr(K0_ + j), sr(self.S_PERM1)))
                    burst.append(I('v_dot2_f32_bf16', vr(O + 2 * j), vr(a), vr(Q + pp), '0' if pp == 0 else vr(O + 2 * j)))
                    burst.append(I('v_dot2_f32_bf16', vr(O + 2 * j + 1), vr(b), vr(Q + pp), '0' if pp == 0 else vr(O + 2 * j + 1)))
                T.append(burst)
            if pp < 3:
                T += rd(K0_, rowoff(2 * pp + 2) + 80)
                T += rd(K1_, rowoff(2 * pp + 3) + 80)
        OP = K0_
        for j in range(10):
            T.append(I('v_cvt_pk_bf16_f32', vr(OP + j), vr(O + 2 * j), vr(O + 2 * j + 1)))
        OW = vr(self.OW)
        for j in range(1, 9, 2):
            T.append(I('ds_write2_b32', OW, vr(OP + j), vr(OP + j + 1), mods=f'offset0:{j} offset1:{j + 1}', flag='bar'))
        t0 = TP
        T.append(I('v_add_u32', vr(t0), '36', OW))
        T.append([I('v_cmp_gt_u32', 'vcc', '32', vr(self.V_LANE)), I('s_nop', '1'),
                  I('v_cndmask_b32', vr(OP), vr(OP + 9), vr(OP), 'vcc'),
                  I('v_cndmask_b32', vr(t0), vr(t0), OW, 'vcc')])
        T.append(I('ds_write_b32', vr(t0), vr(OP), flag='bar'))
        return T

    def task_silu(self, buf, j):
        T = []
        NL = sr(self.S_NLOG2E)
        chains = []
        for bb in range(2):
            for mb in range(4):
                g = buf + 16 * bb + 4 * mb
                u = buf + 16 * (2 + bb) + 4 * mb
                c = []
                for r in range(4):
                    c.append(I('v_mul_f32', vr(u + r), vr(g + r), vr(u + r)))
                for r in range(4):
                    c.append(I('v_mul_f32', vr(g + r), NL, vr(g + r)))
                for r in range(4):
                    c.append(I('v_exp_f32', vr(g + r), vr(g + r)))
                for r in range(4):
                    c.append(I('v_add_f32', vr(g + r), '1.0', vr(g + r)))
                for r in range(4):
                    c.append(I('v_rcp_f32', vr(g + r), vr(g + r)))
                for r in range(4):
                    c.append(I('v_mul_f32', vr(u + r), vr(g + r), vr(u + r)))
                c.append(I('v_cvt_pk_bf16_f32', vr(g), vr(u), vr(u + 1)))
                c.append(I('v_cvt_pk_bf16_f32', vr(g + 1), vr(u + 2), vr(u + 3)))
                if j < 4:
                    c.append(I('ds_write_b64', vr(self.HW + bb), vr(g, 2), mods=f'offset:{j * 16384 + mb * 2048}', flag='bar'))
                chains.append(c)
        Ta, Tb = [], []
        for k, c in enumerate(chains):
            (Ta if k % 2 == 0 else Tb).extend(c)
        return Ta, Tb

    def task_silu_h(self, buf):
        TT = ([], [])
        NL = sr(self.S_NLOG2E)
        for mb in range(4):
            T = TT[mb % 2]
            g = buf + 4 * mb
            u = buf + 16 + 4 * mb
            for r in range(4):
                T.append(I('v_mul_f32', vr(u + r), vr(g + r), vr(u + r)))
            for r in range(4):
                T.append(I('v_mul_f32', vr(g + r), NL, vr(g + r)))
            for r in range(4):
                T.append(I('v_exp_f32', vr(g + r), vr(g + r)))
            for r in range(4):
                T.append(I('v_add_f32', vr(g + r), '1.0', vr(g + r)))
            for r in range(4):
                T.append(I('v_rcp_f32', vr(g + r), vr(g + r)))
            for r in range(4):
                T.append(I('v_mul_f32', vr(u + r), vr(g + r), vr(u + r)))
            T.append(I('v_cvt_pk_bf16_f32', vr(g), vr(u), vr(u + 1)))
            T.append(I('v_cvt_pk_bf16_f32', vr(g + 1), vr(u + 2), vr(u + 3)))
            T.append(I('ds_write_b64', vr(self.HWX), vr(g, 2), mods=f'offset:{mb * 16 * XPITCH}', flag='bar'))
        return TT

    def task_hload(self, k):
        kind, j, tt = self.kmap[k]
        T = []
        for mb in range(4):
            d = self.hreg(k, mb)
            if kind == 'F':
                T.append(I('ds_read_b128', d, vr(self.HR + tt), mods=f'offset:{j * 16384 + mb * 2048}', tag=('h', k, mb)))
            elif kind == 'X':
                T.append(I('ds_read_b128', d, vr(self.XR), mods=f'offset:{mb * 16 * XPITCH}', tag=('h', k, mb)))
            elif tt == 0:
                T.append(I('ds_read_b128', d, vr(self.XR), mods=f'offset:{mb * 16 * XPITCH + 64}', tag=('h', k, mb)))
        if kind == 'O' and tt == 1:
            for mb in range(4):
                for r in range(4):
                    T.append(I('v_accvgpr_write_b32', ar(16 * k + 4 * mb + r), '0'))
            grp = [I('s_mov_b64', 'exec', '0xffff')]
            for mb in range(4):
                grp.append(I('ds_read_b128', self.hreg(k, mb), vr(self.XR), mods=f'offset:{mb * 16 * XPITCH + 128}', tag=('h', k, mb)))
            grp.append(I('s_mov_b64', 'exec', '-1'))
            T.append(grp)
        return T

    def task_out(self, buf, Y, half=False):
        T = []
        npair = 1 if half else 2
        for pair in range(npair):
            for mb in range(4):
                a = buf + 16 * (2 * pair) + 4 * mb
                b = buf + 16 * (2 * pair + 1) + 4 * mb
                T.append(I('v_cvt_pk_bf16_f32', vr(a), vr(a), vr(a + 1)))
                T.append(I('v_cvt_pk_bf16_f32', vr(a + 1), vr(a + 2), vr(a + 3)))
                T.append(I('v_cvt_pk_bf16_f32', vr(a + 2), vr(b), vr(b + 1)))
                T.append(I('v_cvt_pk_bf16_f32', vr(a + 3), vr(b + 2), vr(b + 3)))
                if half:
                    cidx_const = 128 + mb
                else:
                    cidx_const = Y * 32 + pair * 4 + mb
                if mb == 0:
                    T.append(I('s_lshl_b32', sr(self.S_PO), sr(self.S_W), '12' if half else '13'))
                    T.append(I('s_add_u32', sr(self.S_PO), sr(self.S_PO), str((cidx_const) * 1024)))
                fl = ['', ' nt', ' sc1', ' sc0 sc1', ' sc1 nt'][self.o.get('stflag', 0)]
                T.append(I('buffer_store_dwordx4', vr(a, 4), vr(self.PV), sr(self.SRD_P, 4), sr(self.S_PO),
                           mods=(f'offen offset:{1024 * mb}' if mb else 'offen') + fl))
        return T

    def check_b(self, g):
        ins = g['inst']
        b = ins.ops[2]
        want = g['btag']
        got = self.P.regtag.get(regs_of(b)[0])
        assert got == want, (g['ks']['strip'], g['ks']['t'], b, want, got)

    def emit_setup(self, it):
        pre, ins = it
        if self.o.get('nodma', 0) and ins.tag[0] == 'st' and ins.tag[1] >= 2:
            return
        if self.cur_setup is not pre:
            self.P.emit(pre)
            self.cur_setup = pre

    def emit_dma(self, it):
        pre, ins = it
        if self.o.get('nodma', 0) and ins.tag[0] == 'st' and ins.tag[1] >= 2:
            return
        if self.cur_setup is not pre:
            self.P.emit(pre)
            self.cur_setup = pre
        self.P.emit(ins)

    XSLOT = 27 * 1024

    def xf_dma(self, r):
        items = []
        tag = ('st', r)
        for mm in range(2):
            pre = [I('s_add_u32', 'm0', sr(self.S_XL), str(HB + (r % 3) * 12288 + mm * 3072)),
                   I('s_add_u32', sr(self.S_SOFF2), sr(self.S_XF), str((mm * 18 + 3 * r) * 1024))]
            for k in range(3):
                items.append((pre, I('buffer_load_dwordx4', vr(self.PV), sr(self.SRD_XF, 4), sr(self.S_SOFF2),
                                     mods=(f'offen offset:{1024 * k} lds' if k else 'offen lds'), tag=tag)))
        pre = [I('s_add_u32', 'm0', sr(self.S_XH), str(HB + 73728 + (r % 3) * 3072)),
               I('s_add_u32', sr(self.S_SOFF2), sr(self.S_XF + 1), str(3 * r * 1024))]
        items.append((pre, I('buffer_load_dwordx4', vr(self.PV), sr(self.SRD_XF, 4), sr(self.S_SOFF2), mods='offen lds', tag=tag)))
        return items

    def xf_reads(self, t):
        T = []
        r, tt = divmod(t, 3)
        for mb in range(4):
            T.append(I('ds_read_b128', self.xreg(t, mb), vr(self.XA), mods=f'offset:{(r % 3) * 12288 + (mb * 3 + tt) * 1024}', flag='bar', tag=('x', t, mb)))
        T.append(I('ds_read_b128', self.halo_x(t), vr(self.XA + 1), mods=f'offset:{(r % 3) * 3072 + tt * 1024}', flag='bar', tag=('x', t, 4)))
        return T

    def stage_dma(self, sid):
        a = self.dma_items(sid)
        if sid < 6:
            b = self.xf_dma(sid)
            out = []
            out = b[:3] + a[:3] + b[3:] + a[3:]
            return out
        return a

    def emit_all(self):
        P = self.P
        e = P.e
        o = self.o
        self.prologue()
        self.build()
        self.cur_setup = None
        pst = []

        def pstamp():
            if o.get('prof', 0) == 3:
                r = 72 + 2 * len(pst)
                P.raw(f"  s_memtime s[{r}:{r + 1}]")
                pst.append(r)
        pstamp()
        for it in self.xf_dma(0):
            self.emit_dma(it)
        pstamp()
        self.addr_setup_dma()
        for it in self.dma_items(0):
            self.emit_dma(it)
        for it in self.stage_dma(1):
            self.emit_dma(it)
        pstamp()
        self.addr_setup_rest()
        pstamp()

        frags = []
        KS = []
        for st in self.strips:
            for ks in st['ks']:
                ks['strip'] = st['name']
                KS.append(ks)
                for u in range(len(ks['frags'])):
                    frags.append((ks, u))
        NQ = len(frags)
        NFR = self.NFR
        DIST = NFR - 1
        fr = lambda q: self.FR + 4 * (q % NFR)

        def frag_reads(q):
            ks, u = frags[q]
            areg, off, hd = ks['frags'][u]
            slot = self.slot[ks['stage']]
            if slot >= 3:
                areg = self.TD + (areg - self.TP)
                slot -= 3
            return [I('ds_read_b64_tr_b16', vr(fr(q) + 2 * h, 2), vr(areg), mods=f'offset:{slot * SLOT + off + h * hd}', flag='bar') for h in range(2)]

        gaps = []
        qi = 0
        for ks in KS:
            for u in range(len(ks['frags'])):
                mfs = ks['mf'][u]
                for mi, (accr, breg) in enumerate(mfs):
                    first = ks['t'] == 0
                    btag = ('h', ks['t'], mi) if ks['strip'][0] == 'P' else ('x', ks['t'], mi)
                    gaps.append(dict(q=qi, ks=ks, u=u, mi=mi, n=len(mfs), btag=btag,
                                     inst=I('v_mfma_f32_16x16x32_bf16', accr, vr(fr(qi), 4), breg, '0' if first else accr)))
                qi += 1
        NG = len(gaps)
        sf, sl, frag_first, ks_first = {}, {}, {}, {}
        for gi, g in enumerate(gaps):
            sf.setdefault(g['ks']['strip'], gi)
            sl[g['ks']['strip']] = gi
            frag_first.setdefault(g['q'], gi)
            ks_first.setdefault((g['ks']['strip'], g['ks']['t']), gi)
        fstage = [frags[q][0]['stage'] for q in range(NQ)]
        NST = len(self.stages)
        first_frag_of_stage = {}
        for q in range(NQ):
            first_frag_of_stage.setdefault(fstage[q], q)
        stage_of0 = lambda name, k: [st for st in self.strips if st['name'] == name][0]['ks'][k]['stage']
        read_pos, bar_pos = {}, {}
        LAG = o.get('barlag', 2)
        for q in range(NQ):
            s = fstage[q]
            p = q - DIST
            if s > 0:
                lastq_prev = first_frag_of_stage[s] - 1
                bp = read_pos[lastq_prev] + LAG
                bar_pos[s - 1] = bp
                p = max(p, bp)
            read_pos[q] = p
            assert p < q or q == 0, (q, p)
            assert p >= q - NFR + 1
        bars_at = {}
        for s, p in bar_pos.items():
            bars_at.setdefault(p, []).append(s)
        bar_gap = {s: frag_first[p] for s, p in bar_pos.items()}
        rq = []
        for q in range(NQ):
            if read_pos[q] < 0:
                continue
            for h, ins in enumerate(frag_reads(q)):
                rq.append((frag_first[read_pos[q]], frag_first[q] - o.get('minlead', 7), ins, frag_first[read_pos[q]] + 2 * h))

        self.hfree_bar = None
        dq = []
        b_hfree = bar_gap[stage_of0('P0', 9)]
        prev_user = {}
        last_issue = 0
        for sid in range(NST):
            sl_ = self.slot[sid]
            pu = prev_user.get(sl_)
            prev_user[sl_] = sid
            if sid < 2:
                continue
            if pu is not None:
                lo = bar_gap[pu]
            elif sl_ >= 3:
                lo = b_hfree
            else:
                lo = 0
            hi = bar_gap[sid - 1]
            items = self.stage_dma(sid)
            n = len(items)
            lo = max(lo, last_issue)
            nb = min(b for b in list(bar_gap.values()) + [NG] if b > lo)
            span = max(n, int((nb - lo - 2) * (o.get('dmaspan', 60) if sid >= 8 else 95) / 100))
            step = max(o.get('dmastep', 5) if sid >= 8 else 4, span // n) if sl_ < 3 or sid < self.first_deep else o.get('dmastep', 5)
            if sid >= self.first_deep:
                step = o.get('dmastep', 5)
            for k, it in enumerate(items):
                gi_ = lo + 1 + k * step
                assert gi_ < hi, (sid, gi_, hi)
                dq.append((gi_, it))
            last_issue = lo + 1 + (n - 1) * step
        dq.sort(key=lambda x: x[0])

        LAT = 10
        strip = lambda name: [st for st in self.strips if st['name'] == name][0]
        stage_of = lambda name, k: strip(name)['ks'][k]['stage']

        def next_bar(gi):
            return min(b for b in bar_gap.values() if b > gi)
        tasks = []

        def add(st_, en_, lst):
            if isinstance(lst, tuple):
                for l in lst:
                    tasks.append([st_, en_, l, 0])
            else:
                tasks.append([st_, en_, lst, 0])
        rq2 = []
        for t in range(3, 18):
            r = t // 3
            dl = ks_first[('QKV', t)] - 8
            for ins in self.xf_reads(t):
                rq2.append((bar_gap[r - 1] + 1, dl, ins))
        bq = bar_gap[stage_of('F0', 0)] if o.get('qkvbar', 1) == 0 else bar_gap[stage_of('F0', 3)]
        add(sf['F0'] + LAT, bq - 1, self.task_qkv_epi())
        add(bq + 1, sl['F0'], self.task_attn())
        add(sf['F1'] + LAT, sl['F1'], self.task_silu(self.ACC1, 0))
        add(sf['F2'] + LAT, sl['F2'], self.task_silu(self.ACC0, 1))
        add(sf['F3'] + LAT, sl['F3'], self.task_silu(self.ACC1, 2))
        add(sf['F4h'] + LAT, sl['F4h'], self.task_silu(self.ACC0, 3))
        b_f4h = bar_gap[stage_of('P0', 3)]
        add(sf['P0'] + LAT, b_f4h - 1, self.task_silu_h(self.ACC1))
        bF2 = next_bar(sl['F3'])
        bF3 = next_bar(sl['F4h'])
        for k in range(11):
            if k < 8:
                st_ = ks_first[('F4h', k + 1)] + 1
                if k in (4, 5):
                    st_ = max(st_, bF2 + 1)
            elif k < 10:
                st_ = max(bF3 + 1, ks_first[('F4h', k + 1)] + 1)
            else:
                st_ = b_f4h + 1
            dl = ks_first[('P0', k)] - 8
            assert st_ < dl, (k, st_, dl)
            for ins in self.task_hload(k):
                rq2.append((st_, dl, ins))
        rq2.sort(key=lambda x: x[1])
        if o.get('deep', 1):
            add(sf['P0'] + 2, sf['P0'] + 30, [I('v_add_u32', vr(self.TD + k), str(HB), vr(self.TP + k)) for k in range(6)])
        add(sf['P1'] + LAT, sl['P1'], self.task_out(self.ACC0, 0))
        add(sf['P2'] + LAT, sl['P2'], self.task_out(self.ACC1, 1))
        add(sf['P3'] + LAT, sl['P3'], self.task_out(self.ACC0, 2))
        add(sf['P4h'] + LAT, sl['P4h'], self.task_out(self.ACC1, 3))

        if o.get('notask', 0):
            tasks = []
        PROF = o.get('prof', 0)
        names = ['QKV', 'F0', 'F1', 'F2', 'F3', 'F4h', 'P0', 'P1', 'P2', 'P3', 'P4h']
        pfrom = names[o.get('pfrom', 0)]
        stamps = list(pst)

        def stamp():
            if PROF:
                r = 72 + 2 * len(stamps)
                P.raw(f"  s_memtime s[{r}:{r + 1}]")
                stamps.append(r)

        P.wait_lds_flagged()
        P.wait_vm_tag(('st', 0))
        if PROF == 3:
            stamp()
        P.barrier()
        if PROF == 3:
            stamp()
        P.emit(self.xf_reads(0))
        for q in range(NQ):
            if read_pos[q] < 0:
                P.emit(frag_reads(q))
        P.emit(self.xf_reads(1))
        P.emit(self.xf_reads(2))
        stamp()

        def icost(x):
            if isinstance(x, list):
                if x[0].op.startswith('v_dot'):
                    return 100
                return sum(y.cost for y in x)
            return x.cost

        def kind(x):
            return x[-1].kind if isinstance(x, list) else x.kind
        SLACK = o.get('slack', 5)
        LEAD = o.get('lead', 4)
        ri = 0
        di = 0
        last_ds_gap = -10
        for gi, g in enumerate(gaps):
            if PROF == 1 and gi in sf.values() and gi > 0:
                stamp()
            if g['mi'] == 0:
                p = g['q']
                if PROF in (2, 3) and len(stamps) < 12 and gi >= sf[pfrom] and bars_at.get(p):
                    stamp()
                for s in bars_at.get(p, []):
                    p4 = PROF == 4 and gi >= sf[pfrom] and len(stamps) < 11
                    if p4: stamp()
                    if not o.get('nolgkm', 0):
                        P.wait_lds_flagged()
                    if p4: stamp()
                    P.wait_vm_tag(('st', s + 1))
                    if p4: stamp()
                    if not o.get('nobar', 0):
                        P.barrier()
                    if p4: stamp()
            self.check_b(g)
            if not o.get('nomfma', 0):
                P.emit(g['inst'])
            cap = 8
            ds = False
            while ri < len(rq) and rq[ri][3] <= gi:
                urgent = rq[ri][1] <= gi
                if ds and not urgent:
                    break
                P.emit(rq[ri][2]); ri += 1
                cap -= 4; ds = True
            while True:
                el = [x for x in rq2 if x[0] <= gi]
                if not el:
                    break
                x = el[0]
                isds = kind(x[2]) in ('ldsr',) or isinstance(x[2], list)
                urgent = x[1] - 2 * len([y for y in el if y[1] == x[1]]) <= gi
                if urgent or (isds and not ds and cap >= 4) or (not isds and cap >= 4):
                    P.emit(x[2]); rq2.remove(x); cap -= 4
                    if isds:
                        ds = True
                    if not urgent:
                        break
                else:
                    break
            if di < len(dq) and dq[di][0] <= gi and (cap == 8 or dq[di][0] <= gi - 3):
                self.emit_dma(dq[di][1]); di += 1; cap = 0
                if di < len(dq) and o.get('hoist', 1):
                    self.emit_setup(dq[di][1])
            progress = True
            while progress:
                progress = False
                for t_ in tasks:
                    st_, en_, lst, idx = t_
                    if gi < st_ or idx >= len(lst):
                        continue
                    force = gi >= en_
                    target = len(lst) if force else len(lst) * (gi - st_ + 1) / (en_ - st_ + 1)
                    x = lst[idx]
                    c = icost(x); k = kind(x)
                    behind = idx < target - SLACK
                    if not force and idx >= target + LEAD:
                        continue
                    if k in ('ldsr', 'ldsw'):
                        fit = (not ds) and cap >= c
                    elif c >= 100:
                        fit = cap == 8 and idx < target
                    else:
                        fit = cap >= c
                    if fit or force or (behind and cap > 0):
                        P.emit(x); cap -= c; t_[3] = idx + 1
                        if k in ('ldsr', 'ldsw'):
                            ds = True
                        progress = True
        assert ri == len(rq) and di == len(dq) and not rq2, (ri, len(rq), di, len(dq), len(rq2))
        for t_ in tasks:
            assert t_[3] == len(t_[2])
        while PROF >= 2 and len(stamps) < 12:
            stamp()
        stamp()
        P.emit(self.task_out(self.ACC0, 4, half=True))
        if PROF:
            P.wait_vm(0)
            stamp()
            P.raw("  s_memrealtime s[100:101]")
            P.raw("  s_waitcnt lgkmcnt(0)")
            e('s_add_u32', 's4', 's14', str(64 << 20)); e('s_addc_u32', 's5', 's15', '0')
            srd(P, 8, 's4', 's5', 1 << 20)
            e('s_lshl_b32', 's6', 's2', '2'); e('s_add_u32', 's6', 's6', sr(self.S_W)); e('s_lshl_b32', 's6', 's6', '7')
            e('v_mov_b32', 'v4', '0')
            allst = [46] + stamps + [100, 98]
            for k, r in enumerate(allst):
                e('v_mov_b32', 'v5', sr(r))
                e('buffer_store_dword', 'v5', 'v4', 's[8:11]', 's6', mods=f'offen offset:{4 * k}')
        tl_end(P, self.o, 1)
        P.label("K1_end")
        P.raw("  s_endpgm")


def gen_k1(opts):
    k = K1(opts)
    name = "k1_main_kernel"
    kernel_begin(k.P, name)
    k.emit_all()
    print("K1 stats", k.P.stats, file=sys.stderr)
    return k.P.text(), descriptor(name, 512, 256, 102), (name, 256, 256, LDS_TOTAL)


def main():
    out = sys.argv[1]
    opts = {}
    for a in sys.argv[2:]:
        kk, v = a.split('='); opts[kk] = int(v)
    parts = [gen_k0(opts), gen_k1(opts), gen_k2(opts)]
    txt = header_comments([p[2] for p in parts])
    for p in parts:
        txt += p[0]
    txt += '.section .rodata,"a"\n'
    for p in parts:
        txt += p[1]
    open(out, 'w').write(txt)


if __name__ == "__main__":
    main()
```

```python
import sys, math
from asmlib import *

KN = "parallel_sum__sliding_local_dilated__swiglu_ffn__prompt"

XF_OFF = 0
XF_SIZE = 128 * 18 * 1024
PQ_OFF = 5 << 19
PQ_SIZE = 16 * 147456
P_OFF = 6 << 20
P_TILE = 144 * 1024

SLOT = 24576
RING = 0
HB = 3 * SLOT
SB = HB + 16384
SPITCH = 272
XB = HB + 4 * 16384
XPITCH = 144
LDS_TOTAL = XB + 128 * XPITCH

LOG2E = 1.4426950408889634


def f2h(x):
    import struct
    return "0x%08x" % struct.unpack('<I', struct.pack('<f', x))[0]


def header_comments(launches):
    L = []
    L.append(";   0 A_x, 8 A_wqkv, 16 A_wo, 24 B_x, 32 B_w_gate, 40 B_w_up, 48 B_w_down, 56 d_out, 64 d_debug, 72 d_ws")
    L.append("; Generated by a hand-written python generator (work/gen.py).")
    for (k, g, b, lds) in launches:
        L.append(f"; @launch kernel={k} grid=({g},1,1) block=({b},1,1) lds={lds}")
    L.append('.amdgcn_target "amdgcn-amd-amdhsa--gfx950"')
    L.append(".text")
    return "\n".join(L) + "\n"


def kernel_begin(P, name):
    P.raw(f".globl {name}")
    P.raw(".p2align 8")
    P.raw(f".type {name},@function")
    P.raw(f"{name}:")


def descriptor(name, vgpr, accum, sgpr=102):
    return "\n".join([
        ".p2align 6", f".amdhsa_kernel {name}",
        f"  .amdhsa_next_free_vgpr {vgpr}", f"  .amdhsa_next_free_sgpr {sgpr}", f"  .amdhsa_accum_offset {accum}",
        "  .amdhsa_group_segment_fixed_size 0", "  .amdhsa_kernarg_size 80", "  .amdhsa_user_sgpr_count 2",
        "  .amdhsa_user_sgpr_kernarg_segment_ptr 1", "  .amdhsa_system_sgpr_workgroup_id_x 1", ".end_amdhsa_kernel"]) + "\n"


def tl_start(P, opts):
    if opts.get('tl', 0):
        P.raw("  s_memrealtime s[96:97]")


def tl_end(P, opts, kidx, wsreg_lo=None):
    if not opts.get('tl', 0):
        return
    P.raw("  s_waitcnt vmcnt(0)")
    P.raw("  s_memrealtime s[98:99]")
    P.raw("  s_load_dwordx2 s[94:95], s[0:1], 72")
    P.raw("  s_waitcnt lgkmcnt(0)")
    P.raw(f"  s_add_u32 s94, s94, {(80 << 20) + kidx * 65536}")
    P.raw("  s_addc_u32 s95, s95, 0")
    P.raw("  s_mov_b32 s88, s94")
    P.raw("  s_and_b32 s89, s95, 0xffff")
    P.raw("  s_mov_b32 s90, 65536")
    P.raw("  s_mov_b32 s91, 0x20000")
    P.raw("  s_lshl_b32 s92, s2, 3")
    P.raw("  v_mov_b32 v2, s96")
    P.raw("  v_mov_b32 v3, s98")
    P.raw("  v_mov_b32 v4, 0")
    P.raw("  v_cmp_eq_u32 vcc, 0, v0")
    P.raw("  s_and_saveexec_b64 s[86:87], vcc")
    P.raw("  buffer_store_dwordx2 v[2:3], v4, s[88:91], s92 offen")
    P.raw("  s_mov_b64 exec, s[86:87]")


def srd(P, d, lo, hi, size):
    P.e('s_mov_b32', sr(d), lo)
    P.e('s_and_b32', sr(d + 1), hi, '0xffff')
    P.e('s_mov_b32', sr(d + 2), str(size))
    P.e('s_mov_b32', sr(d + 3), '0x20000')


def gen_k0(opts):
    P = Prog()
    name = "k0_ln_kernel"
    kernel_begin(P, name)
    NPK = 288
    NCP = 8 if opts.get('codepf', 1) else 0
    P.e('s_cmp_ge_u32', 's2', str(128 + NPK + NCP))
    P.raw("  s_cbranch_scc1 K0_end")
    tl_start(P, opts)
    if NCP:
        P.e('s_cmp_ge_u32', 's2', str(128 + NPK))
        P.raw("  s_cbranch_scc1 K0_code")
    P.e('s_cmp_ge_u32', 's2', '128')
    P.raw("  s_cbranch_scc1 K0_pack")
    P.e('s_load_dwordx2', 's[4:5]', 's[0:1]', '0')
    P.e('s_load_dwordx2', 's[6:7]', 's[0:1]', '72')
    P.e('v_and_b32', 'v1', '63', 'v0')
    P.e('v_lshrrev_b32', 'v2', '6', 'v0')
    P.e('v_and_b32', 'v3', '15', 'v1')
    P.e('v_lshrrev_b32', 'v4', '4', 'v1')
    P.e('v_readfirstlane_b32', 's20', 'v2')
    P.raw("  s_waitcnt lgkmcnt(0)")
    srd(P, 8, 's4', 's5', 2048 * 1152)
    srd(P, 12, 's6', 's7', XF_OFF + XF_SIZE)
    P.e('s_lshl_b32', 's21', 's2', '4')
    P.e('v_add_u32', 'v5', 's21', 'v3')
    P.e('s_movk_i32', 's22', '1152')
    P.e('v_mul_lo_u32', 'v5', 'v5', 's22')
    P.e('v_lshlrev_b32', 'v6', '4', 'v4')
    P.e('v_add_u32', 'v5', 'v5', 'v6')
    P.e('s_mul_i32', 's23', 's20', '576')
    X = 16
    for t in range(9):
        P.e('buffer_load_dwordx4', vr(X + 4 * t, 4), 'v5', 's[8:11]', 's23', mods=f'offen offset:{64 * t}')
    P.e('v_mov_b32', 'v7', '0x3f803f80')
    P.e('v_mov_b32', 'v8', '0'); P.e('v_mov_b32', 'v9', '0'); P.e('v_mov_b32', 'v10', '0'); P.e('v_mov_b32', 'v11', '0')
    for j in range(36):
        P.e('v_dot2c_f32_bf16', 'v8' if j % 2 == 0 else 'v10', vr(X + j), 'v7')
        P.e('v_dot2c_f32_bf16', 'v9' if j % 2 == 0 else 'v11', vr(X + j), vr(X + j))
    P.e('v_add_f32', 'v8', 'v8', 'v10')
    P.e('v_add_f32', 'v9', 'v9', 'v11')
    for sw in ('v_permlane32_swap_b32', 'v_permlane16_swap_b32'):
        P.e('v_mov_b32', 'v10', 'v8'); P.e('v_mov_b32', 'v11', 'v9')
        P.e('v_mov_b32', 'v12', 'v8'); P.e('v_mov_b32', 'v13', 'v9')
        P.e(sw, 'v10', 'v12'); P.e(sw, 'v11', 'v13')
        P.e('v_add_f32', 'v8', 'v10', 'v12'); P.e('v_add_f32', 'v9', 'v11', 'v13')
    P.e('v_lshlrev_b32', 'v10', '3', 'v0')
    P.e('ds_write_b64', 'v10', 'v[8:9]')
    P.e('v_xor_b32', 'v11', '512', 'v10')
    P.wait_lgkm(0)
    P.barrier()
    P.e('ds_read_b64', 'v[12:13]', 'v11')
    P.e('v_add_f32', 'v8', 'v8', 'v12')
    P.e('v_add_f32', 'v9', 'v9', 'v13')
    P.e('v_mul_f32', 'v8', f2h(1.0 / 576), 'v8')
    P.e('v_mul_f32', 'v9', f2h(1.0 / 576), 'v9')
    P.e('v_fma_f32', 'v9', '-v8', 'v8', 'v9')
    P.e('v_max_f32', 'v9', '0', 'v9')
    P.e('v_add_f32', 'v9', f2h(1e-5), 'v9')
    P.e('v_rsq_f32', 'v9', 'v9')
    P.e('v_mul_f32', 'v8', 'v8', 'v9')
    P.e('v_sub_f32', 'v8', '0', 'v8')
    P.e('s_mov_b32', 's24', '0xffff0000')
    for j in range(36):
        a, b = 10 + 2 * (j % 2), 11 + 2 * (j % 2)
        P.e('v_lshlrev_b32', vr(a), '16', vr(X + j))
        P.e('v_and_b32', vr(b), 's24', vr(X + j))
        P.e('v_fma_f32', vr(a), vr(a), 'v9', 'v8')
        P.e('v_fma_f32', vr(b), vr(b), 'v9', 'v8')
        P.e('v_cvt_pk_bf16_f32', vr(X + j), vr(a), vr(b))
    P.e('v_lshlrev_b32', 'v6', '4', 'v1')
    P.e('s_mul_i32', 's25', 's2', str(18 * 1024))
    P.e('s_mul_i32', 's26', 's20', str(9 * 1024))
    P.e('s_add_u32', 's25', 's25', 's26')
    for t in range(9):
        if t % 4 == 0 and t:
            P.e('s_add_u32', 's25', 's25', '4096')
        P.e('buffer_store_dwordx4', vr(X + 4 * t, 4), 'v6', 's[12:15]', 's25', mods=f'offen offset:{1024 * (t % 4)}')
    tl_end(P, opts, 0)
    P.raw("  s_endpgm")
    P.label("K0_pack")
    P.vm_q = []; P.lds_q = []
    e = P.e
    e('s_load_dwordx2', 's[4:5]', 's[0:1]', '8')
    e('s_load_dwordx2', 's[6:7]', 's[0:1]', '72')
    e('v_and_b32', 'v1', '63', 'v0'); e('v_lshrrev_b32', 'v2', '6', 'v0')
    e('v_readfirstlane_b32', 's20', 'v2')
    e('s_sub_u32', 's21', 's2', '128'); e('s_lshl_b32', 's21', 's21', '1'); e('s_add_u32', 's21', 's21', 's20')
    P.raw("  s_waitcnt lgkmcnt(0)")
    srd(P, 12, 's4', 's5', 576 * 3456)
    e('s_add_u32', 's6', 's6', str(PQ_OFF)); e('s_addc_u32', 's7', 's7', '0')
    srd(P, 16, 's6', 's7', PQ_SIZE)
    e('v_and_b32', 'v3', '15', 'v1')
    e('v_lshrrev_b32', 'v4', '4', 'v1')
    e('v_lshlrev_b32', 'v9', '4', 'v1')
    for k in range(4):
        e('s_lshl_b32', 's22', 's21', '2'); e('s_add_u32', 's22', 's22', str(k))
        e('s_mul_hi_u32', 's23', 's22', str((2 ** 32 + 143) // 144))
        e('s_mul_i32', 's24', 's23', '144'); e('s_sub_u32', 's24', 's22', 's24')
        e('s_mul_hi_u32', 's25', 's24', str((2 ** 32 + 5) // 6))
        e('s_mul_i32', 's26', 's25', '6'); e('s_sub_u32', 's26', 's24', 's26')
        e('s_lshr_b32', 's27', 's25', '2')
        e('s_and_b32', 's28', 's25', '3')
        e('s_mul_i32', 's29', 's27', '96'); e('s_lshl_b32', 's30', 's26', '4'); e('s_add_u32', 's29', 's29', 's30')
        e('s_lshl_b32', 's30', 's28', '2'); e('s_add_u32', 's29', 's29', 's30')
        e('v_add_u32', 'v5', 's29', 'v4')
        e('s_lshr_b32', 's30', 's28', '1'); e('s_lshl_b32', 's30', 's30', '2')
        e('v_or_b32', 'v6', 's30', 'v4'); e('v_lshrrev_b32', 'v7', '1', 'v3'); e('v_xor_b32', 'v6', 'v6', 'v7')
        e('v_lshlrev_b32', 'v6', '1', 'v6'); e('v_and_b32', 'v7', '1', 'v3'); e('v_or_b32', 'v6', 'v6', 'v7')
        e('v_mul_u32_u24', 'v7', '13', 'v6'); e('v_lshrrev_b32', 'v7', '6', 'v7'); e('v_min_u32', 'v7', '2', 'v7')
        e('v_mul_u32_u24', 'v8', '5', 'v7'); e('v_sub_u32', 'v8', 'v6', 'v8'); e('v_lshlrev_b32', 'v8', '4', 'v8')
        e('v_add_u32', 'v7', '1', 'v7'); e('v_cmp_eq_u32', 'vcc', '3', 'v7'); e('v_mov_b32', 'v10', '0')
        e('v_cndmask_b32', 'v7', 'v7', 'v10', 'vcc')
        e('v_mul_u32_u24', 'v7', '1152', 'v7'); e('v_add_u32', 'v8', 'v8', 'v7')
        e('s_mul_i32', 's30', 's23', '72'); e('v_add_u32', 'v8', 's30', 'v8')
        e('v_mul_u32_u24', 'v5', '3456', 'v5'); e('v_add_u32', 'v5', 'v5', 'v8')
        e('buffer_load_dwordx4', vr(16 + 4 * k, 4), 'v5', 's[12:15]', '0', mods='offen')
    e('s_lshl_b32', 's22', 's21', '12')
    for k in range(4):
        e('buffer_store_dwordx4', vr(16 + 4 * k, 4), 'v9', 's[16:19]', 's22', mods=f'offen offset:{1024 * k}')
    if NCP:
        P.raw("  s_endpgm")
        P.label("K0_code")
        P.raw("  s_getpc_b64 s[4:5]")
        P.raw("K0_pc:")
        P.raw("  s_add_u32 s4, s4, k1_main_kernel-K0_pc")
        P.raw("  s_addc_u32 s5, s5, 0")
        P.raw("  s_mov_b32 s8, s4")
        P.raw("  s_and_b32 s9, s5, 0xffff")
        P.raw("  s_mov_b32 s10, K2_end-k1_main_kernel")
        P.raw("  s_mov_b32 s11, 0x20000")
        P.raw("  v_lshlrev_b32 v1, 4, v0")
        P.raw("  s_mov_b32 s12, 0")
        P.raw("K0_cl:")
        P.raw("  buffer_load_dwordx4 v[4:7], v1, s[8:11], s12 offen")
        P.raw("  s_add_u32 s12, s12, 2048")
        P.raw("  s_cmp_lt_u32 s12, s10")
        P.raw("  s_cbranch_scc1 K0_cl")
    P.label("K0_end")
    P.raw("  s_endpgm")
    return P.text(), descriptor(name, 64, 64, 102), (name, 128 + NPK + NCP, 128, 1024)


def gen_k2(opts):
    P = Prog()
    name = "k2_reduce_kernel"
    kernel_begin(P, name)
    P.e('s_cmp_ge_u32', 's2', '576')
    P.raw("  s_cbranch_scc1 K2_end")
    tl_start(P, opts)
    P.e('s_load_dwordx2', 's[4:5]', 's[0:1]', '0')
    P.e('s_load_dwordx2', 's[6:7]', 's[0:1]', '72')
    P.e('s_load_dwordx2', 's[16:17]', 's[0:1]', '56')
    P.e('v_and_b32', 'v1', '63', 'v0')
    P.e('v_lshrrev_b32', 'v2', '6', 'v0')
    P.e('v_and_b32', 'v3', '15', 'v1')
    P.e('v_lshrrev_b32', 'v4', '4', 'v1')
    P.e('v_readfirstlane_b32', 's20', 'v2')
    P.raw("  s_waitcnt lgkmcnt(0)")
    srd(P, 8, 's4', 's5', 2048 * 1152)
    P.e('s_add_u32', 's6', 's6', str(P_OFF)); P.e('s_addc_u32', 's7', 's7', '0')
    srd(P, 12, 's6', 's7', 256 * P_TILE)
    srd(P, 24, 's16', 's17', 2048 * 1152)
    P.e('s_lshl_b32', 's21', 's2', '2'); P.e('s_add_u32', 's21', 's21', 's20')
    P.e('s_mul_hi_u32', 's22', 's21', str((2 ** 32 + 143) // 144))
    P.e('s_mul_i32', 's23', 's22', '144'); P.e('s_sub_u32', 's23', 's21', 's23')
    P.e('s_lshl_b32', 's28', 's21', '10')
    P.e('v_lshlrev_b32', 'v5', '4', 'v1')
    D = 16
    for s in range(16):
        P.e('buffer_load_dwordx4', vr(D + 4 * s, 4), 'v5', 's[12:15]', 's28', mods='offen' + ['', ' nt', ' sc1'][opts.get('ldflag', 0)])
        if s < 15:
            P.e('s_add_u32', 's28', 's28', str(16 * P_TILE))
    P.e('s_and_b32', 's29', 's23', '3')
    P.e('s_cmp_ge_u32', 's23', '128')
    P.e('s_cselect_b32', 's30', '1', '0')
    P.e('s_lshr_b32', 's31', 's23', '3'); P.e('s_and_b32', 's31', 's31', '3')
    P.e('s_sub_u32', 's32', 's23', '128'); P.e('s_lshr_b32', 's32', 's32', '2')
    P.e('s_cmp_eq_u32', 's30', '1'); P.e('s_cselect_b32', 's31', 's32', 's31')
    P.e('s_and_b32', 's33', 's31', '1')
    P.e('s_lshr_b32', 's34', 's31', '1')
    P.e('s_lshr_b32', 's35', 's23', '5'); P.e('s_lshl_b32', 's35', 's35', '7')
    P.e('s_lshl_b32', 's36', 's34', '6'); P.e('s_add_u32', 's35', 's35', 's36')
    P.e('s_lshr_b32', 's36', 's23', '2'); P.e('s_and_b32', 's36', 's36', '1'); P.e('s_lshl_b32', 's36', 's36', '5')
    P.e('s_add_u32', 's35', 's35', 's36')
    P.e('s_lshl_b32', 's36', 's34', '5'); P.e('s_add_u32', 's36', 's36', '512')
    P.e('s_cmp_eq_u32', 's30', '1'); P.e('s_cselect_b32', 's35', 's36', 's35')
    P.e('s_lshl_b32', 's37', 's22', '7'); P.e('s_lshl_b32', 's38', 's33', '6'); P.e('s_add_u32', 's37', 's37', 's38')
    P.e('s_lshl_b32', 's38', 's29', '4'); P.e('s_add_u32', 's37', 's37', 's38')
    P.e('v_add_u32', 'v6', 's37', 'v3')
    P.e('s_movk_i32', 's39', '1152')
    P.e('v_mul_lo_u32', 'v6', 'v6', 's39')
    P.e('s_lshl_b32', 's40', 's35', '1')
    P.e('v_add_u32', 'v6', 's40', 'v6')
    P.e('v_lshlrev_b32', 'v7', '3', 'v4')
    P.e('v_add_u32', 'v7', 'v6', 'v7')
    P.e('buffer_load_dwordx2', 'v[8:9]', 'v7', 's[8:11]', '0', mods='offen')
    P.e('buffer_load_dwordx2', 'v[10:11]', 'v7', 's[8:11]', '0', mods='offen offset:32')
    P.e('v_and_b32', 'v12', '1', 'v4'); P.e('v_lshlrev_b32', 'v12', '5', 'v12')
    P.e('v_lshrrev_b32', 'v13', '1', 'v4'); P.e('v_lshlrev_b32', 'v13', '4', 'v13')
    P.e('v_add3_u32', 'v6', 'v6', 'v12', 'v13')
    P.e('s_mov_b32', 's41', '0xffff0000')
    ACC = 80
    for s in range(16):
        for j in range(4):
            d = vr(D + 4 * s + j)
            if s == 0:
                P.e('v_lshlrev_b32', vr(ACC + 2 * j), '16', d)
                P.e('v_and_b32', vr(ACC + 2 * j + 1), 's41', d)
            else:
                t0, t1 = 88 + 2 * (j % 2), 89 + 2 * (j % 2)
                P.e('v_lshlrev_b32', vr(t0), '16', d)
                P.e('v_and_b32', vr(t1), 's41', d)
                P.e('v_add_f32', vr(ACC + 2 * j), vr(ACC + 2 * j), vr(t0))
                P.e('v_add_f32', vr(ACC + 2 * j + 1), vr(ACC + 2 * j + 1), vr(t1))
    for j in range(4):
        d = vr(8 + j)
        t0, t1 = 88 + 2 * (j % 2), 89 + 2 * (j % 2)
        P.e('v_lshlrev_b32', vr(t0), '16', d)
        P.e('v_and_b32', vr(t1), 's41', d)
        P.e('v_add_f32', vr(ACC + 2 * j), vr(ACC + 2 * j), vr(t0))
        P.e('v_add_f32', vr(ACC + 2 * j + 1), vr(ACC + 2 * j + 1), vr(t1))
    for j in range(4):
        P.e('v_cvt_pk_bf16_f32', vr(92 + j), vr(ACC + 2 * j), vr(ACC + 2 * j + 1))
    P.e('v_permlane16_swap_b32', 'v92', 'v94')
    P.e('v_permlane16_swap_b32', 'v93', 'v95')
    P.e('buffer_store_dwordx4', 'v[92:95]', 'v6', 's[24:27]', '0', mods='offen')
    tl_end(P, opts, 2)
    P.label("K2_end")
    P.raw("  s_endpgm")
    return P.text(), descriptor(name, 96, 96, 102), (name, 576, 256, 0)


class K1:
    V_LANE, V_C16, V_G, V_T0, V_T1, V_T2, V_T3, V_T4 = 1, 2, 3, 4, 5, 6, 7, 8
    ACC0, ACC1 = 16, 80
    FR = 144
    NFR = 6
    XV = 168
    TQ = 200
    TG = 204
    TH = 208
    TP = 210
    TPH = 214
    DQ = 216
    DG = 219
    DH = 222
    DP = 225
    DPH = 228
    HW = 231
    HWX = 233
    HR = 234
    XR = 236
    SW = 237
    AB = 241
    OW = 242
    PV = 243
    MG = 244
    XA = 245
    TD = 168
    HAL = 248
    HALX = 8

    S_W, S_S, S_I = 20, 21, 22
    S_RG2, S_CH = 23, 24
    S_LDSW = 25
    S_XF = 26
    S_FB = 28
    S_T0, S_T1, S_T2, S_T3 = 34, 35, 36, 37
    S_SOFF = 38
    S_NLOG2E = 39
    S_AC = 40
    S_PERM0, S_PERM1 = 41, 42
    S_NEG = 43
    S_QC = 44
    S_PO = 45
    SRD_XF, SRD_QKV, SRD_GU, SRD_WD, SRD_WO, SRD_P = 48, 52, 56, 60, 64, 68
    S_FB2 = 4
    S_FBR = 9
    S_WOR = 16
    S_XL, S_XH, S_SOFF2 = 17, 18, 19

    def __init__(self, opts):
        self.P = Prog()
        self.o = opts

    def xreg(self, t, mb):
        j = 4 * t + mb
        return ar(4 * j, 4) if j < 64 else vr(self.XV + 4 * (j - 64), 4)

    def hreg(self, k, mb):
        return ar(16 * k + 4 * mb, 4)

    def halo_x(self, t):
        return vr(self.ACC1 + 4 * t, 4) if t < 16 else vr(self.HALX + 4 * (t - 16), 4)

    def prologue(self):
        P = self.P
        e = P.e
        e('s_cmp_ge_u32', 's2', '256')
        P.raw("  s_cbranch_scc1 K1_end")
        tl_start(P, self.o)
        if self.o.get('prof', 0):
            P.raw("  s_memtime s[46:47]")
            P.raw("  s_memrealtime s[98:99]")
        e('s_load_dwordx4', 's[4:7]', 's[0:1]', '8')
        e('s_load_dwordx4', 's[8:11]', 's[0:1]', '32')
        e('s_load_dwordx2', 's[12:13]', 's[0:1]', '48')
        e('s_load_dwordx2', 's[14:15]', 's[0:1]', '72')
        L, C16, G = vr(self.V_LANE), vr(self.V_C16), vr(self.V_G)
        e('v_and_b32', L, '63', 'v0')
        e('v_lshrrev_b32', 'v4', '6', 'v0')
        e('v_and_b32', C16, '15', L)
        e('v_lshrrev_b32', G, '4', L)
        e('v_readfirstlane_b32', sr(self.S_W), 'v4')
        if self.o.get('map', 1) == 0:
            e('s_and_b32', sr(self.S_S), 's2', '7'); e('s_lshl_b32', sr(self.S_S), sr(self.S_S), '1')
            e('s_bfe_u32', sr(self.S_T0), 's2', '0x10003'); e('s_add_u32', sr(self.S_S), sr(self.S_S), sr(self.S_T0))
            e('s_lshr_b32', sr(self.S_I), 's2', '4')
        else:
            e('s_and_b32', sr(self.S_S), 's2', '3'); e('s_lshl_b32', sr(self.S_S), sr(self.S_S), '2')
            e('s_bfe_u32', sr(self.S_T0), 's2', '0x20003'); e('s_add_u32', sr(self.S_S), sr(self.S_S), sr(self.S_T0))
            e('s_bfe_u32', sr(self.S_I), 's2', '0x10002'); e('s_lshl_b32', sr(self.S_I), sr(self.S_I), '3')
            e('s_lshr_b32', sr(self.S_T0), 's2', '5'); e('s_add_u32', sr(self.S_I), sr(self.S_I), sr(self.S_T0))
        e('s_and_b32', sr(self.S_RG2), sr(self.S_W), '1'); e('s_lshr_b32', sr(self.S_CH), sr(self.S_W), '1')
        e('s_mul_i32', sr(self.S_LDSW), sr(self.S_W), '6144')
        P.raw("  s_waitcnt lgkmcnt(0)")
        e('s_add_u32', sr(self.S_T0), 's14', str(XF_OFF)); e('s_addc_u32', sr(self.S_T1), 's15', '0')
        srd(P, self.SRD_XF, sr(self.S_T0), sr(self.S_T1), XF_SIZE)
        e('s_mul_i32', sr(self.S_T2), sr(self.S_S), '147456'); e('s_add_u32', sr(self.S_T2), sr(self.S_T2), str(PQ_OFF))
        e('s_add_u32', sr(self.S_T0), 's14', sr(self.S_T2)); e('s_addc_u32', sr(self.S_T1), 's15', '0')
        srd(P, self.SRD_QKV, sr(self.S_T0), sr(self.S_T1), 147456)
        srd(P, self.SRD_WO, 's6', 's7', 576 * 1152)
        e('s_cmp_ge_u32', sr(self.S_W), '2')
        e('s_cselect_b32', sr(self.S_T0), 's10', 's8'); e('s_cselect_b32', sr(self.S_T1), 's11', 's9')
        srd(P, self.SRD_GU, sr(self.S_T0), sr(self.S_T1), 576 * 9216)
        srd(P, self.SRD_WD, 's12', 's13', 4608 * 1152)
        e('s_lshl_b32', sr(self.S_T2), sr(self.S_S), '4'); e('s_add_u32', sr(self.S_T2), sr(self.S_T2), sr(self.S_I))
        e('s_mul_i32', sr(self.S_T2), sr(self.S_T2), str(P_TILE)); e('s_add_u32', sr(self.S_T2), sr(self.S_T2), str(P_OFF))
        e('s_add_u32', sr(self.S_T0), 's14', sr(self.S_T2)); e('s_addc_u32', sr(self.S_T1), 's15', '0')
        srd(P, self.SRD_P, sr(self.S_T0), sr(self.S_T1), P_TILE)
        e('v_lshlrev_b32', vr(self.PV), '4', L)
        e('s_lshl_b32', sr(self.S_T0), sr(self.S_I), '3'); e('s_lshl_b32', sr(self.S_T1), sr(self.S_W), '1')
        e('s_add_u32', sr(self.S_T0), sr(self.S_T0), sr(self.S_T1))
        e('s_mul_i32', sr(self.S_XF), sr(self.S_T0), '18432')
        e('s_lshr_b32', sr(self.S_T0), sr(self.S_W), '1'); e('s_mul_i32', sr(self.S_XL), sr(self.S_T0), '36864')
        e('s_and_b32', sr(self.S_T0), sr(self.S_W), '1'); e('s_mul_i32', sr(self.S_T0), sr(self.S_T0), '6144')
        e('s_add_u32', sr(self.S_XL), sr(self.S_XL), sr(self.S_T0))
        e('s_min_u32', sr(self.S_T1), sr(self.S_W), '2'); e('s_lshl_b32', sr(self.S_XH), sr(self.S_T1), '10')
        e('s_lshl_b32', sr(self.S_T0), sr(self.S_I), '3'); e('s_sub_u32', sr(self.S_T0), sr(self.S_T0), '1')
        e('s_mul_i32', sr(self.S_T0), sr(self.S_T0), '18432'); e('s_add_u32', sr(self.S_T0), sr(self.S_T0), sr(self.S_XH))
        e('s_cmp_eq_u32', sr(self.S_I), '0'); e('s_cselect_b32', sr(self.S_XF + 1), '0x7f000000', sr(self.S_T0))
        e('s_mul_i32', sr(self.S_T0), sr(self.S_RG2), '36864'); e('s_add_u32', sr(self.S_T0), sr(self.S_T0), str(HB))
        e('v_add_u32', vr(self.XA), sr(self.S_T0), vr(self.PV))
        e('v_add_u32', vr(self.XA + 1), str(HB + 73728), vr(self.PV))
        e('s_mul_i32', sr(self.S_T0), sr(self.S_S), '288')
        e('s_and_b32', sr(self.S_T1), sr(self.S_S), '1')
        e('s_lshl_b32', sr(self.S_T2), sr(self.S_T1), '5'); e('s_add_u32', sr(self.S_T2), sr(self.S_T2), sr(self.S_T0))
        for j in range(4):
            if self.o.get('rot', 1):
                e('s_add_u32', sr(self.S_T3), sr(self.S_I), str(j)); e('s_and_b32', sr(self.S_T3), sr(self.S_T3), '3')
            else:
                e('s_mov_b32', sr(self.S_T3), str(j))
            e('s_lshl_b32', sr(self.S_T3), sr(self.S_T3), '6'); e('s_add_u32', sr(self.S_FB + j), sr(self.S_T2), sr(self.S_T3))
        e('s_cmp_eq_u32', sr(self.S_T1), '1'); e('s_cselect_b32', sr(self.S_T3), '0', '256')
        e('s_add_u32', sr(self.S_FB + 4), sr(self.S_T0), sr(self.S_T3))
        for j in range(5):
            e('s_lshl_b32', sr(self.S_FB2 + j), sr(self.S_FB + j), '1')
            e('s_mul_i32', sr(self.S_FBR + j), sr(self.S_FB + j), '1152')
        e('s_mul_i32', sr(self.S_WOR), sr(self.S_S), str(36 * 1152))
        e('s_mul_i32', sr(self.S_QC), sr(self.S_S), '72')
        e('s_mov_b32', sr(self.S_NLOG2E), f2h(-LOG2E))
        e('s_mov_b32', sr(self.S_AC), f2h(LOG2E / math.sqrt(18.0)))
        e('s_mov_b32', sr(self.S_PERM0), '0x05040100'); e('s_mov_b32', sr(self.S_PERM1), '0x07060302')
        e('s_mov_b32', sr(self.S_NEG), f2h(-1e30))

    def addr_setup_dma(self):
        P = self.P; e = P.e
        L, C16, G = vr(self.V_LANE), vr(self.V_C16), vr(self.V_G)
        a, b, c, d = 'v144', 'v145', 'v146', 'v147'
        W = sr(self.S_W)
        T0, T1 = sr(self.S_T0), sr(self.S_T1)
        e('s_lshr_b32', T0, W, '1'); e('s_lshl_b32', T0, T0, '2')
        e('v_or_b32', a, T0, G)
        e('v_lshrrev_b32', b, '1', C16)
        e('v_xor_b32', a, a, b)
        e('v_lshlrev_b32', a, '1', a)
        e('v_and_b32', b, '1', C16)
        e('v_or_b32', a, a, b)
        e('s_lshl_b32', T1, W, '2')
        e('v_add_u32', b, T1, G)
        e('v_mul_u32_u24', c, '1152', b)
        e('v_lshl_add_u32', vr(self.DP), a, '4', c)
        for j in (1, 2):
            e('v_add_u32', vr(self.DP + j), str(j * (16 * 1152 - 1024)), vr(self.DP))
        e('v_mul_u32_u24', c, '13', a); e('v_lshrrev_b32', c, '6', c); e('v_min_u32', c, '2', c)
        e('v_mul_u32_u24', d, '5', c); e('v_sub_u32', d, a, d); e('v_lshlrev_b32', d, '4', d)
        e('v_add_u32', c, '1', c); e('v_cmp_eq_u32', 'vcc', '3', c); e('v_cndmask_b32', c, c, '0', 'vcc') if False else None
        e('v_mov_b32', 'v148', '0')
        e('v_cndmask_b32', c, c, 'v148', 'vcc')
        e('v_mul_u32_u24', c, '1152', c)
        e('v_add_u32', d, d, c)
        e('v_add_u32', d, sr(self.S_QC), d)
        e('v_mul_u32_u24', c, '3456', b)
        e('v_add_u32', vr(self.DQ), c, d)
        for j in (1, 2):
            e('v_add_u32', vr(self.DQ + j), str(j * (16 * 3456 - 1024)), vr(self.DQ))
        e('v_lshrrev_b32', b, '3', L)
        e('v_bfe_u32', a, b, '1', '1')
        e('s_and_b32', T0, W, '1'); e('s_lshl_b32', T1, T0, '1')
        e('v_or_b32', a, T1, a)
        e('v_bfe_u32', c, L, '1', '2')
        e('v_xor_b32', a, a, c); e('v_lshlrev_b32', a, '1', a)
        e('v_and_b32', c, '1', L); e('v_or_b32', a, a, c)
        e('s_lshl_b32', T1, T0, '3')
        e('v_add_u32', c, T1, b)
        e('v_mul_u32_u24', c, '9216', c)
        e('v_lshl_add_u32', vr(self.DG), a, '4', c)
        for j in (1, 2):
            e('v_add_u32', vr(self.DG + j), str(j * (16 * 9216 - 1024)), vr(self.DG))
        e('s_lshl_b32', T1, W, '3')
        e('v_add_u32', c, T1, b)
        e('v_mul_u32_u24', c, '1152', c)
        e('v_lshl_add_u32', vr(self.DPH), a, '4', c)
        for j in (1, 2):
            e('v_add_u32', vr(self.DPH + j), str(j * (32 * 1152 - 1024)), vr(self.DPH))
        e('v_lshrrev_b32', b, '2', L)
        e('v_lshrrev_b32', a, '3', b); e('v_lshlrev_b32', a, '1', a)
        e('v_and_b32', c, '3', L); e('v_xor_b32', a, a, c)
        e('s_lshl_b32', T1, T0, '4')
        e('v_add_u32', c, T1, b)
        e('v_mul_u32_u24', c, '9216', c)
        e('v_lshl_add_u32', vr(self.DH), a, '4', c)
        for j in (1, 2):
            e('v_add_u32', vr(self.DH + j), str(j * (32 * 9216 - 1024)), vr(self.DH))

    def addr_setup_rest(self):
        P = self.P; e = P.e
        L, C16, G = vr(self.V_LANE), vr(self.V_C16), vr(self.V_G)
        a, b, c, d, r, cc8 = 'v144', 'v145', 'v146', 'v147', 'v148', 'v149'
        W, CH, RG2 = sr(self.S_W), sr(self.S_CH), sr(self.S_RG2)
        T0, T1, T2, T3 = sr(self.S_T0), sr(self.S_T1), sr(self.S_T2), sr(self.S_T3)
        e('v_lshrrev_b32', r, '2', C16)
        e('v_and_b32', cc8, '3', C16); e('v_lshlrev_b32', cc8, '3', cc8)
        g1, g2 = 'v150', 'v151'
        e('v_and_b32', g1, '1', G)
        e('v_lshrrev_b32', g2, '1', G)
        e('v_mul_u32_u24', a, '12288', g1)
        e('v_lshl_add_u32', a, g2, '10', a)
        e('v_lshl_add_u32', a, r, '8', a)
        e('v_add_u32', a, a, cc8)
        e('v_lshl_or_b32', b, g1, '2', r)
        e('s_mov_b32', T0, '0x10525210'); e('s_mov_b32', T1, '0x63747463')
        e('s_lshl_b32', T2, W, '4')
        e('s_lshr_b64', sr(self.S_T0, 2), sr(self.S_T0, 2), T2)
        for u in range(4):
            e('s_bfe_u32', T2, T0, hex((4 << 16) | (4 * u)))
            e('v_xor_b32', c, T2, b); e('v_lshl_add_u32', vr(self.TQ + u), c, '5', a)
            e('s_lshl_b32', T3, RG2, '6'); e('s_add_u32', T3, T3, '16')
            e('v_add_u32', c, T3, C16); e('v_mul_u32_u24', c, str(SPITCH), c)
            e('v_lshl_add_u32', c, G, '3', c)
            e('s_lshl_b32', T2, T2, '5'); e('s_add_u32', T2, T2, str(SB))
            e('v_add_u32', vr(self.SW + u), T2, c)
        for u in range(4):
            e('s_lshl_b32', T2, CH, '2'); e('s_add_u32', T2, T2, str(u))
            e('v_xor_b32', c, T2, b); e('v_lshl_add_u32', vr(self.TP + u), c, '5', a)
        e('v_mul_u32_u24', a, '6144', g1)
        e('v_lshl_add_u32', a, g2, '10', a)
        e('v_lshl_add_u32', a, r, '7', a)
        e('v_add_u32', a, a, cc8)
        e('v_lshrrev_b32', b, '1', r); e('v_lshl_or_b32', b, g1, '1', b)
        for bb in range(2):
            e('s_lshl_b32', T2, CH, '1'); e('s_add_u32', T2, T2, str(bb))
            e('v_xor_b32', c, T2, b); e('v_lshl_add_u32', vr(self.TG + bb), c, '5', a)
            e('v_add_u32', vr(self.TG + 2 + bb), '12288', vr(self.TG + bb))
        e('v_mul_u32_u24', a, '6144', G)
        e('v_lshl_add_u32', a, r, '7', a)
        e('v_add_u32', a, a, cc8)
        for bb in range(2):
            e('s_lshl_b32', T2, CH, '1'); e('s_add_u32', T2, T2, str(bb))
            e('v_xor_b32', c, T2, b); e('v_lshl_add_u32', vr(self.TPH + bb), c, '5', a)
        e('v_mul_u32_u24', a, '6144', g2)
        e('v_lshl_add_u32', c, g1, '3', r); e('v_lshl_add_u32', a, c, '6', a)
        e('v_add_u32', a, a, cc8)
        e('v_xor_b32', c, CH, g1); e('v_lshl_add_u32', vr(self.TH), c, '5', a)
        e('v_add_u32', vr(self.TH + 1), '12288', vr(self.TH))
        e('s_lshl_b32', T2, RG2, '6'); e('v_add_u32', a, T2, C16)
        e('s_lshl_b32', T3, CH, '2'); e('v_add_u32', b, T3, g2)
        e('v_and_b32', c, '7', C16); e('v_xor_b32', b, b, c)
        e('v_lshlrev_b32', b, '4', b); e('v_lshl_add_u32', b, g1, '3', b)
        e('v_lshl_add_u32', b, a, '7', b)
        e('v_add_u32', vr(self.HW), str(HB), b)
        e('v_xor_b32', vr(self.HW + 1), '32', vr(self.HW))
        e('v_xor_b32', b, G, c); e('v_lshlrev_b32', b, '4', b); e('v_lshl_add_u32', b, a, '7', b)
        e('v_add_u32', vr(self.HR), str(HB), b)
        e('v_xor_b32', vr(self.HR + 1), '64', vr(self.HR))
        e('v_mul_u32_u24', b, str(XPITCH), a)
        e('v_add_u32', b, str(XB), b)
        e('v_lshl_add_u32', vr(self.XR), G, '4', b)
        e('s_lshl_b32', T3, CH, '5')
        e('v_lshl_add_u32', c, G, '3', b); e('v_add_u32', vr(self.HWX), T3, c)
        e('v_and_b32', a, '31', L); e('v_lshrrev_b32', b, '5', L)
        e('s_lshl_b32', T2, W, '5')
        e('v_add_u32', a, T2, a)
        e('s_lshl_b32', T3, sr(self.S_I), '7'); e('v_add_u32', vr(self.MG), T3, a)
        e('v_add_u32', c, '2', a); e('v_mul_u32_u24', c, str(SPITCH), c)
        e('v_lshl_add_u32', c, b, '5', c); e('v_add_u32', vr(self.AB), str(SB), c)
        e('v_mul_u32_u24', c, str(XPITCH), a); e('v_lshl_add_u32', c, b, '5', c)
        e('v_add_u32', vr(self.OW), str(XB + 64), c)

    def build(self):
        self.stages = []
        self.ksteps = []
        strips = []

        def add_stage(dml):
            self.stages.append(dml)
            return len(self.stages) - 1

        def strip_generic(name, nk, ks_per_stage, nfrag, dma_fn, tr_fn, mf_fn):
            st = dict(name=name, ks=[])
            for t in range(nk):
                tl = t % ks_per_stage
                if tl == 0:
                    n_in = min(ks_per_stage, nk - t)
                    dml = []
                    for tt in range(n_in):
                        dml += dma_fn(t + tt, tt)
                    sid = add_stage(dml)
                frs = [tr_fn(t, tl, u) for u in range(nfrag)]
                st['ks'].append(dict(t=t, stage=sid, frags=frs, mf=[mf_fn(t, u) for u in range(nfrag)], last_in_stage=(tl == ks_per_stage - 1 or t == nk - 1)))
            strips.append(st)
            return st

        A0, A1 = self.ACC0, self.ACC1
        acc = lambda buf, u, mb: vr(buf + 16 * u + 4 * mb, 4)

        def dq(t, tt):
            r = t // 3
            return [(self.SRD_QKV, ('pq',), (r * 24 + 2 * tt + e) * 1024, self.PV, 1024, 2 * tt + e) for e in range(2)]

        def trq(t, tl, u):
            return (self.TQ + u, tl * 2048, 6144)

        def mfq(t, u):
            L = [(acc(A0, u, mb), self.xreg(t, mb)) for mb in range(4)]
            if u < 2:
                L.append((vr(self.HAL + 4 * u, 4), self.halo_x(t)))
            return L
        strip_generic('QKV', 18, 3, 4, dq, trq, mfq)

        def ffn(j, buf):
            def dg(t, tt):
                return [(self.SRD_GU, ('fb2', j), (32 * t + 16 * e) * 9216, self.DG, 16 * 9216, 2 * tt + e) for e in range(2)]

            def trg(t, tl, u):
                return (self.TG + u, tl * 2048, 512)

            def mfg(t, u):
                return [(acc(buf, u, mb), self.xreg(t, mb)) for mb in range(4)]
            return strip_generic(f'F{j}', 18, 3, 4, dg, trg, mfg)
        ffn(0, A1); ffn(1, A0); ffn(2, A1); ffn(3, A0)

        def dh(t, tt):
            return [(self.SRD_GU, ('fb2', 4), (32 * t) * 9216, self.DH, 32 * 9216, tt)]

        def trh(t, tl, u):
            return (self.TH + u, tl * 1024, 256)

        def mfh(t, u):
            return [(acc(A1, u, mb), self.xreg(t, mb)) for mb in range(4)]
        strip_generic('F4h', 18, 6, 2, dh, trh, mfh)

        self.kmap = [('F', 0, 0), ('F', 0, 1), ('F', 1, 0), ('F', 1, 1), ('F', 2, 0), ('F', 2, 1), ('O', 0, 0), ('O', 0, 1), ('F', 3, 0), ('F', 3, 1), ('X', 4, 0)]

        def p2rows(k):
            kind, j, tt = self.kmap[k]
            if kind == 'O':
                return self.SRD_WO, ('wo',), 32 * tt
            return self.SRD_WD, ('fbr', j), 32 * tt

        def p2full(Y, buf):
            def dp(t, tt):
                s_, b_, r0 = p2rows(t)
                return [(s_, b_, (r0 + 16 * e) * 1152 + 256 * Y, self.DP, 16 * 1152, 2 * tt + e) for e in range(2)]

            def trp(t, tl, u):
                return (self.TP + u, tl * 2048, 6144)

            def mfp(t, u):
                return [(acc(buf, u, mb), self.hreg(t, mb)) for mb in range(4)]
            return strip_generic(f'P{Y}', 11, 3, 4, dp, trp, mfp)
        p2full(0, A0); p2full(1, A1); p2full(2, A0); p2full(3, A1)

        def dph(t, tt):
            s_, b_, r0 = p2rows(t)
            return [(s_, b_, r0 * 1152 + 1024, self.DPH, 32 * 1152, tt)]

        def trph(t, tl, u):
            return (self.TPH + u, tl * 1024, 512)

        def mfph(t, u):
            return [(acc(A0, u, mb), self.hreg(t, mb)) for mb in range(4)]
        strip_generic('P4h', 11, 6, 2, dph, trph, mfph)
        self.strips = strips
        first_deep = [st for st in strips if st['name'] == 'P1'][0]['ks'][0]['stage'] + 1
        self.first_deep = first_deep
        self.slot = {}
        nst = len(self.stages)
        for sid in range(nst):
            if sid < first_deep or not self.o.get('deep', 1):
                self.slot[sid] = sid % 3
        if self.o.get('deep', 1):
            order = [3, 4, 5, first_deep % 3, (first_deep + 1) % 3, (first_deep + 2) % 3]
            for k, sid in enumerate(range(first_deep, nst)):
                self.slot[sid] = order[k % 6]

    def slot_base(self, sid):
        sl = self.slot[sid]
        return sl * SLOT if sl < 3 else HB + (sl - 3) * SLOT

    def dma_items(self, sid):
        sbase = self.slot_base(sid)
        items = []
        prev = None
        for (srd_, base, goff, vbase, qdelta, q) in self.stages[sid]:
            share = False
            lin = base is not None and base[0] == 'pq'
            if prev is not None:
                psrd, pbase, pgoff, pq, pj = prev
                j = pj + 1
                if psrd == srd_ and pbase == base and j <= (3 if lin else 2) and q == pq + 1 and goff == pgoff + qdelta:
                    share = True
            pre = []
            if not share:
                j = 0
                pre.append(I('s_add_u32', 'm0', sr(self.S_LDSW), str(sbase + q * 1024)))
                so = sr(self.S_SOFF)
                if lin:
                    pre.append(I('s_add_u32', so, sr(self.S_LDSW), str(goff)))
                elif base[0] == 'fb2':
                    pre.append(I('s_add_u32', so, sr(self.S_FB2 + base[1]), str(goff)))
                elif base[0] == 'fbr':
                    pre.append(I('s_add_u32', so, sr(self.S_FBR + base[1]), str(goff)))
                elif base[0] == 'wo':
                    pre.append(I('s_add_u32', so, sr(self.S_WOR), str(goff)))
            if pre:
                cur = pre
            items.append((cur, I('buffer_load_dwordx4', vr(vbase if lin else vbase + j), sr(srd_, 4), sr(self.S_SOFF),
                                 mods=f'offen offset:{1024 * j} lds' if j else 'offen lds', tag=('st', sid))))
            prev = (srd_, base, goff, q, j)
        return items

    def task_qkv_epi(self):
        T = []
        A0 = self.ACC0
        T.append(I('v_mov_b32', 'v4', '0')); T.append(I('v_mov_b32', 'v5', '0'))
        T.append(I('v_and_b32', 'v6', '127', 'v0')); T.append(I('v_mul_u32_u24', 'v6', str(XPITCH), 'v6'))
        T.append(I('v_add_u32', 'v6', str(XB + 136), 'v6'))
        T.append(I('ds_write_b64', 'v6', 'v[4:5]', flag='bar'))
        for u in range(4):
            for mb in range(4):
                a = A0 + 16 * u + 4 * mb
                T.append(I('v_cvt_pk_bf16_f32', vr(a), vr(a), vr(a + 1)))
                T.append(I('v_cvt_pk_bf16_f32', vr(a + 1), vr(a + 2), vr(a + 3)))
                T.append(I('ds_write_b64', vr(self.SW + u), vr(a, 2), mods=f'offset:{mb * 16 * SPITCH}', flag='bar'))
        for u in range(2):
            a = self.HAL + 4 * u
            T.append(I('v_cvt_pk_bf16_f32', vr(a), vr(a), vr(a + 1)))
            T.append(I('v_cvt_pk_bf16_f32', vr(a + 1), vr(a + 2), vr(a + 3)))
            T.append(I('s_lshl_b32', sr(self.S_T2), sr(self.S_RG2), '6'))
            T.append(I('s_add_u32', sr(self.S_T2), sr(self.S_T2), '16'))
            T.append(I('s_mul_i32', sr(self.S_T2), sr(self.S_T2), str(SPITCH)))
            T.append(I('v_subrev_u32', vr(a + 2), sr(self.S_T2), vr(self.SW + u)))
            T.append(I('ds_write_b64', vr(a + 2), vr(a, 2), flag='bar'))
        return T

    def task_attn(self):
        T = []
        B = self.ACC0
        Q = B
        K0_, K1_ = B + 12, B + 24
        S = B + 36
        O = B + 44
        TP = 4
        AB = vr(self.AB)

        def rd(dst, off):
            return [I('ds_read_b128', vr(dst, 4), AB, mods=f'offset:{off}'),
                    I('ds_read_b128', vr(dst + 4, 4), AB, mods=f'offset:{off + 16}'),
                    I('ds_read_b64', vr(dst + 8, 2), AB, mods=f'offset:{off + 32}')]
        rowoff = lambda w: (14 - 2 * w) * SPITCH
        T += rd(Q, rowoff(0) + 160)
        T += rd(K0_, rowoff(0) + 0)
        T += rd(K1_, rowoff(1) + 0)
        T.append(I('v_cmp_gt_u32', 'vcc', '32', vr(self.V_LANE)))
        T.append(I('v_mov_b32', vr(S), '0'))
        T.append([I('v_cmp_gt_u32', 'vcc', '32', vr(self.V_LANE)),
                  I('v_cndmask_b32', vr(Q + 9), vr(Q + 9), vr(S), 'vcc'),
                  I('v_cndmask_b32', vr(Q + 0), vr(S), vr(Q + 0), 'vcc')])
        for w in range(0, 8, 2):
            burst = []
            for ww, kb in ((w, K0_), (w + 1, K1_)):
                burst.append(I('v_dot2_f32_bf16', vr(S + ww), vr(Q), vr(kb), '0'))
            for j in range(1, 10):
                for ww, kb in ((w, K0_), (w + 1, K1_)):
                    burst.append(I('v_dot2_f32_bf16', vr(S + ww), vr(Q + j), vr(kb + j), vr(S + ww)))
            T.append(burst)
            if w + 2 < 8:
                T += rd(K0_, rowoff(w + 2)); T += rd(K1_, rowoff(w + 3))
            else:
                T += rd(K0_, rowoff(0) + 80); T += rd(K1_, rowoff(1) + 80)
        NEG = vr(Q + 10)
        T.append(I('v_mov_b32', NEG, sr(self.S_NEG)))
        for w in range(1, 8):
            T.append([I('v_cmp_le_u32', 'vcc', str(2 * w), vr(self.MG)), I('s_nop', '1'),
                      I('v_cndmask_b32', vr(S + w), NEG, vr(S + w), 'vcc')])
        MX = vr(Q + 11)
        T.append(I('v_max3_f32', MX, vr(S), vr(S + 1), vr(S + 2)))
        T.append(I('v_max3_f32', MX, MX, vr(S + 3), vr(S + 4)))
        T.append(I('v_max3_f32', MX, MX, vr(S + 5), vr(S + 6)))
        T.append(I('v_max_f32', MX, MX, vr(S + 7)))
        T.append(I('v_mul_f32', MX, sr(self.S_AC), MX))
        for w in range(8):
            T.append(I('v_fma_f32', vr(S + w), vr(S + w), sr(self.S_AC), '-' + MX))
        for w in range(8):
            T.append(I('v_exp_f32', vr(S + w), vr(S + w)))
        SUM = vr(Q + 10)
        T.append(I('v_add_f32', SUM, vr(S), vr(S + 1)))
        for w in range(2, 8):
            T.append(I('v_add_f32', SUM, SUM, vr(S + w)))
        T.append(I('v_rcp_f32', SUM, SUM))
        for w in range(8):
            T.append(I('v_mul_f32', vr(S + w), vr(S + w), SUM))
        for pp in range(4):
            T.append(I('v_cvt_pk_bf16_f32', vr(Q + pp), vr(S + 2 * pp), vr(S + 2 * pp + 1)))
        for pp in range(4):
            for half in range(2):
                burst = []
                for jj in range(5):
                    j = half * 5 + jj
                    a, b = TP + 2 * jj, TP + 2 * jj + 1
                    T.append(I('v_perm_b32', vr(a), vr(K1_ + j), vr(K0_ + j), sr(self.S_PERM0)))
                    T.append(I('v_perm_b32', vr(b), vr(K1_ + j), vr(K0_ + j), sr(self.S_PERM1)))
                    burst.append(I('v_dot2_f32_bf16', vr(O + 2 * j), vr(a), vr(Q + pp), '0' if pp == 0 else vr(O + 2 * j)))
                    burst.append(I('v_dot2_f32_bf16', vr(O + 2 * j + 1), vr(b), vr(Q + pp), '0' if pp == 0 else vr(O + 2 * j + 1)))
                T.append(burst)
            if pp < 3:
                T += rd(K0_, rowoff(2 * pp + 2) + 80)
                T += rd(K1_, rowoff(2 * pp + 3) + 80)
        OP = K0_
        for j in range(10):
            T.append(I('v_cvt_pk_bf16_f32', vr(OP + j), vr(O + 2 * j), vr(O + 2 * j + 1)))
        OW = vr(self.OW)
        for j in range(1, 9, 2):
            T.append(I('ds_write2_b32', OW, vr(OP + j), vr(OP + j + 1), mods=f'offset0:{j} offset1:{j + 1}', flag='bar'))
        t0 = TP
        T.append(I('v_add_u32', vr(t0), '36', OW))
        T.append([I('v_cmp_gt_u32', 'vcc', '32', vr(self.V_LANE)), I('s_nop', '1'),
                  I('v_cndmask_b32', vr(OP), vr(OP + 9), vr(OP), 'vcc'),
                  I('v_cndmask_b32', vr(t0), vr(t0), OW, 'vcc')])
        T.append(I('ds_write_b32', vr(t0), vr(OP), flag='bar'))
        return T

    def task_silu(self, buf, j):
        T = []
        NL = sr(self.S_NLOG2E)
        chains = []
        for bb in range(2):
            for mb in range(4):
                g = buf + 16 * bb + 4 * mb
                u = buf + 16 * (2 + bb) + 4 * mb
                c = []
                for r in range(4):
                    c.append(I('v_mul_f32', vr(u + r), vr(g + r), vr(u + r)))
                for r in range(4):
                    c.append(I('v_mul_f32', vr(g + r), NL, vr(g + r)))
                for r in range(4):
                    c.append(I('v_exp_f32', vr(g + r), vr(g + r)))
                for r in range(4):
                    c.append(I('v_add_f32', vr(g + r), '1.0', vr(g + r)))
                for r in range(4):
                    c.append(I('v_rcp_f32', vr(g + r), vr(g + r)))
                for r in range(4):
                    c.append(I('v_mul_f32', vr(u + r), vr(g + r), vr(u + r)))
                c.append(I('v_cvt_pk_bf16_f32', vr(g), vr(u), vr(u + 1)))
                c.append(I('v_cvt_pk_bf16_f32', vr(g + 1), vr(u + 2), vr(u + 3)))
                if j < 4:
                    c.append(I('ds_write_b64', vr(self.HW + bb), vr(g, 2), mods=f'offset:{j * 16384 + mb * 2048}', flag='bar'))
                chains.append(c)
        Ta, Tb = [], []
        for k, c in enumerate(chains):
            (Ta if k % 2 == 0 else Tb).extend(c)
        return Ta, Tb

    def task_silu_h(self, buf):
        TT = ([], [])
        NL = sr(self.S_NLOG2E)
        for mb in range(4):
            T = TT[mb % 2]
            g = buf + 4 * mb
            u = buf + 16 + 4 * mb
            for r in range(4):
                T.append(I('v_mul_f32', vr(u + r), vr(g + r), vr(u + r)))
            for r in range(4):
                T.append(I('v_mul_f32', vr(g + r), NL, vr(g + r)))
            for r in range(4):
                T.append(I('v_exp_f32', vr(g + r), vr(g + r)))
            for r in range(4):
                T.append(I('v_add_f32', vr(g + r), '1.0', vr(g + r)))
            for r in range(4):
                T.append(I('v_rcp_f32', vr(g + r), vr(g + r)))
            for r in range(4):
                T.append(I('v_mul_f32', vr(u + r), vr(g + r), vr(u + r)))
            T.append(I('v_cvt_pk_bf16_f32', vr(g), vr(u), vr(u + 1)))
            T.append(I('v_cvt_pk_bf16_f32', vr(g + 1), vr(u + 2), vr(u + 3)))
            T.append(I('ds_write_b64', vr(self.HWX), vr(g, 2), mods=f'offset:{mb * 16 * XPITCH}', flag='bar'))
        return TT

    def task_hload(self, k):
        kind, j, tt = self.kmap[k]
        T = []
        for mb in range(4):
            d = self.hreg(k, mb)
            if kind == 'F':
                T.append(I('ds_read_b128', d, vr(self.HR + tt), mods=f'offset:{j * 16384 + mb * 2048}', tag=('h', k, mb)))
            elif kind == 'X':
                T.append(I('ds_read_b128', d, vr(self.XR), mods=f'offset:{mb * 16 * XPITCH}', tag=('h', k, mb)))
            elif tt == 0:
                T.append(I('ds_read_b128', d, vr(self.XR), mods=f'offset:{mb * 16 * XPITCH + 64}', tag=('h', k, mb)))
        if kind == 'O' and tt == 1:
            for mb in range(4):
                for r in range(4):
                    T.append(I('v_accvgpr_write_b32', ar(16 * k + 4 * mb + r), '0'))
            grp = [I('s_mov_b64', 'exec', '0xffff')]
            for mb in range(4):
                grp.append(I('ds_read_b128', self.hreg(k, mb), vr(self.XR), mods=f'offset:{mb * 16 * XPITCH + 128}', tag=('h', k, mb)))
            grp.append(I('s_mov_b64', 'exec', '-1'))
            T.append(grp)
        return T

    def task_out(self, buf, Y, half=False):
        T = []
        npair = 1 if half else 2
        for pair in range(npair):
            for mb in range(4):
                a = buf + 16 * (2 * pair) + 4 * mb
                b = buf + 16 * (2 * pair + 1) + 4 * mb
                T.append(I('v_cvt_pk_bf16_f32', vr(a), vr(a), vr(a + 1)))
                T.append(I('v_cvt_pk_bf16_f32', vr(a + 1), vr(a + 2), vr(a + 3)))
                T.append(I('v_cvt_pk_bf16_f32', vr(a + 2), vr(b), vr(b + 1)))
                T.append(I('v_cvt_pk_bf16_f32', vr(a + 3), vr(b + 2), vr(b + 3)))
                if half:
                    cidx_const = 128 + mb
                else:
                    cidx_const = Y * 32 + pair * 4 + mb
                if mb == 0:
                    T.append(I('s_lshl_b32', sr(self.S_PO), sr(self.S_W), '12' if half else '13'))
                    T.append(I('s_add_u32', sr(self.S_PO), sr(self.S_PO), str((cidx_const) * 1024)))
                fl = ['', ' nt', ' sc1', ' sc0 sc1', ' sc1 nt'][self.o.get('stflag', 0)]
                T.append(I('buffer_store_dwordx4', vr(a, 4), vr(self.PV), sr(self.SRD_P, 4), sr(self.S_PO),
                           mods=(f'offen offset:{1024 * mb}' if mb else 'offen') + fl))
        return T

    def check_b(self, g):
        ins = g['inst']
        b = ins.ops[2]
        want = g['btag']
        got = self.P.regtag.get(regs_of(b)[0])
        assert got == want, (g['ks']['strip'], g['ks']['t'], b, want, got)

    def emit_setup(self, it):
        pre, ins = it
        if self.o.get('nodma', 0) and ins.tag[0] == 'st' and ins.tag[1] >= 2:
            return
        if self.cur_setup is not pre:
            self.P.emit(pre)
            self.cur_setup = pre

    def emit_dma(self, it):
        pre, ins = it
        if self.o.get('nodma', 0) and ins.tag[0] == 'st' and ins.tag[1] >= 2:
            return
        if self.cur_setup is not pre:
            self.P.emit(pre)
            self.cur_setup = pre
        self.P.emit(ins)

    XSLOT = 27 * 1024

    def xf_dma(self, r):
        items = []
        tag = ('st', r)
        for mm in range(2):
            pre = [I('s_add_u32', 'm0', sr(self.S_XL), str(HB + (r % 3) * 12288 + mm * 3072)),
                   I('s_add_u32', sr(self.S_SOFF2), sr(self.S_XF), str((mm * 18 + 3 * r) * 1024))]
            for k in range(3):
                items.append((pre, I('buffer_load_dwordx4', vr(self.PV), sr(self.SRD_XF, 4), sr(self.S_SOFF2),
                                     mods=(f'offen offset:{1024 * k} lds' if k else 'offen lds'), tag=tag)))
        pre = [I('s_add_u32', 'm0', sr(self.S_XH), str(HB + 73728 + (r % 3) * 3072)),
               I('s_add_u32', sr(self.S_SOFF2), sr(self.S_XF + 1), str(3 * r * 1024))]
        items.append((pre, I('buffer_load_dwordx4', vr(self.PV), sr(self.SRD_XF, 4), sr(self.S_SOFF2), mods='offen lds', tag=tag)))
        return items

    def xf_reads(self, t):
        T = []
        r, tt = divmod(t, 3)
        for mb in range(4):
            T.append(I('ds_read_b128', self.xreg(t, mb), vr(self.XA), mods=f'offset:{(r % 3) * 12288 + (mb * 3 + tt) * 1024}', flag='bar', tag=('x', t, mb)))
        T.append(I('ds_read_b128', self.halo_x(t), vr(self.XA + 1), mods=f'offset:{(r % 3) * 3072 + tt * 1024}', flag='bar', tag=('x', t, 4)))
        return T

    def stage_dma(self, sid):
        a = self.dma_items(sid)
        if sid < 6:
            b = self.xf_dma(sid)
            out = []
            out = b[:3] + a[:3] + b[3:] + a[3:]
            return out
        return a

    def emit_all(self):
        P = self.P
        e = P.e
        o = self.o
        self.prologue()
        self.build()
        self.cur_setup = None
        pst = []

        def pstamp():
            if o.get('prof', 0) == 3:
                r = 72 + 2 * len(pst)
                P.raw(f"  s_memtime s[{r}:{r + 1}]")
                pst.append(r)
        pstamp()
        for it in self.xf_dma(0):
            self.emit_dma(it)
        pstamp()
        self.addr_setup_dma()
        for it in self.dma_items(0):
            self.emit_dma(it)
        for it in self.stage_dma(1):
            self.emit_dma(it)
        pstamp()
        self.addr_setup_rest()
        pstamp()

        frags = []
        KS = []
        for st in self.strips:
            for ks in st['ks']:
                ks['strip'] = st['name']
                KS.append(ks)
                for u in range(len(ks['frags'])):
                    frags.append((ks, u))
        NQ = len(frags)
        NFR = self.NFR
        DIST = NFR - 1
        fr = lambda q: self.FR + 4 * (q % NFR)

        def frag_reads(q):
            ks, u = frags[q]
            areg, off, hd = ks['frags'][u]
            slot = self.slot[ks['stage']]
            if slot >= 3:
                areg = self.TD + (areg - self.TP)
                slot -= 3
            return [I('ds_read_b64_tr_b16', vr(fr(q) + 2 * h, 2), vr(areg), mods=f'offset:{slot * SLOT + off + h * hd}', flag='bar') for h in range(2)]

        gaps = []
        qi = 0
        for ks in KS:
            for u in range(len(ks['frags'])):
                mfs = ks['mf'][u]
                for mi, (accr, breg) in enumerate(mfs):
                    first = ks['t'] == 0
                    btag = ('h', ks['t'], mi) if ks['strip'][0] == 'P' else ('x', ks['t'], mi)
                    gaps.append(dict(q=qi, ks=ks, u=u, mi=mi, n=len(mfs), btag=btag,
                                     inst=I('v_mfma_f32_16x16x32_bf16', accr, vr(fr(qi), 4), breg, '0' if first else accr)))
                qi += 1
        NG = len(gaps)
        sf, sl, frag_first, ks_first = {}, {}, {}, {}
        for gi, g in enumerate(gaps):
            sf.setdefault(g['ks']['strip'], gi)
            sl[g['ks']['strip']] = gi
            frag_first.setdefault(g['q'], gi)
            ks_first.setdefault((g['ks']['strip'], g['ks']['t']), gi)
        fstage = [frags[q][0]['stage'] for q in range(NQ)]
        NST = len(self.stages)
        first_frag_of_stage = {}
        for q in range(NQ):
            first_frag_of_stage.setdefault(fstage[q], q)
        stage_of0 = lambda name, k: [st for st in self.strips if st['name'] == name][0]['ks'][k]['stage']
        read_pos, bar_pos = {}, {}
        LAG = o.get('barlag', 2)
        for q in range(NQ):
            s = fstage[q]
            p = q - DIST
            if s > 0:
                lastq_prev = first_frag_of_stage[s] - 1
                bp = read_pos[lastq_prev] + LAG
                bar_pos[s - 1] = bp
                p = max(p, bp)
            read_pos[q] = p
            assert p < q or q == 0, (q, p)
            assert p >= q - NFR + 1
        bars_at = {}
        for s, p in bar_pos.items():
            bars_at.setdefault(p, []).append(s)
        bar_gap = {s: frag_first[p] for s, p in bar_pos.items()}
        rq = []
        for q in range(NQ):
            if read_pos[q] < 0:
                continue
            for h, ins in enumerate(frag_reads(q)):
                rq.append((frag_first[read_pos[q]], frag_first[q] - o.get('minlead', 7), ins, frag_first[read_pos[q]] + 2 * h))

        self.hfree_bar = None
        dq = []
        b_hfree = bar_gap[stage_of0('P0', 9)]
        prev_user = {}
        last_issue = 0
        for sid in range(NST):
            sl_ = self.slot[sid]
            pu = prev_user.get(sl_)
            prev_user[sl_] = sid
            if sid < 2:
                continue
            if pu is not None:
                lo = bar_gap[pu]
            elif sl_ >= 3:
                lo = b_hfree
            else:
                lo = 0
            hi = bar_gap[sid - 1]
            items = self.stage_dma(sid)
            n = len(items)
            lo = max(lo, last_issue)
            nb = min(b for b in list(bar_gap.values()) + [NG] if b > lo)
            span = max(n, int((nb - lo - 2) * (o.get('dmaspan', 60) if sid >= 8 else 95) / 100))
            step = max(o.get('dmastep', 5) if sid >= 8 else 4, span // n) if sl_ < 3 or sid < self.first_deep else o.get('dmastep', 5)
            if sid >= self.first_deep:
                step = o.get('dmastep', 5)
            for k, it in enumerate(items):
                gi_ = lo + 1 + k * step
                assert gi_ < hi, (sid, gi_, hi)
                dq.append((gi_, it))
            last_issue = lo + 1 + (n - 1) * step
        dq.sort(key=lambda x: x[0])

        LAT = 10
        strip = lambda name: [st for st in self.strips if st['name'] == name][0]
        stage_of = lambda name, k: strip(name)['ks'][k]['stage']

        def next_bar(gi):
            return min(b for b in bar_gap.values() if b > gi)
        tasks = []

        def add(st_, en_, lst):
            if isinstance(lst, tuple):
                for l in lst:
                    tasks.append([st_, en_, l, 0])
            else:
                tasks.append([st_, en_, lst, 0])
        rq2 = []
        for t in range(3, 18):
            r = t // 3
            dl = ks_first[('QKV', t)] - 8
            for ins in self.xf_reads(t):
                rq2.append((bar_gap[r - 1] + 1, dl, ins))
        bq = bar_gap[stage_of('F0', 0)] if o.get('qkvbar', 1) == 0 else bar_gap[stage_of('F0', 3)]
        add(sf['F0'] + LAT, bq - 1, self.task_qkv_epi())
        add(bq + 1, sl['F0'], self.task_attn())
        add(sf['F1'] + LAT, sl['F1'], self.task_silu(self.ACC1, 0))
        add(sf['F2'] + LAT, sl['F2'], self.task_silu(self.ACC0, 1))
        add(sf['F3'] + LAT, sl['F3'], self.task_silu(self.ACC1, 2))
        add(sf['F4h'] + LAT, sl['F4h'], self.task_silu(self.ACC0, 3))
        b_f4h = bar_gap[stage_of('P0', 3)]
        add(sf['P0'] + LAT, b_f4h - 1, self.task_silu_h(self.ACC1))
        bF2 = next_bar(sl['F3'])
        bF3 = next_bar(sl['F4h'])
        for k in range(11):
            if k < 8:
                st_ = ks_first[('F4h', k + 1)] + 1
                if k in (4, 5):
                    st_ = max(st_, bF2 + 1)
            elif k < 10:
                st_ = max(bF3 + 1, ks_first[('F4h', k + 1)] + 1)
            else:
                st_ = b_f4h + 1
            dl = ks_first[('P0', k)] - 8
            assert st_ < dl, (k, st_, dl)
            for ins in self.task_hload(k):
                rq2.append((st_, dl, ins))
        rq2.sort(key=lambda x: x[1])
        if o.get('deep', 1):
            add(sf['P0'] + 2, sf['P0'] + 30, [I('v_add_u32', vr(self.TD + k), str(HB), vr(self.TP + k)) for k in range(6)])
        add(sf['P1'] + LAT, sl['P1'], self.task_out(self.ACC0, 0))
        add(sf['P2'] + LAT, sl['P2'], self.task_out(self.ACC1, 1))
        add(sf['P3'] + LAT, sl['P3'], self.task_out(self.ACC0, 2))
        add(sf['P4h'] + LAT, sl['P4h'], self.task_out(self.ACC1, 3))

        if o.get('notask', 0):
            tasks = []
        PROF = o.get('prof', 0)
        names = ['QKV', 'F0', 'F1', 'F2', 'F3', 'F4h', 'P0', 'P1', 'P2', 'P3', 'P4h']
        pfrom = names[o.get('pfrom', 0)]
        stamps = list(pst)

        def stamp():
            if PROF:
                r = 72 + 2 * len(stamps)
                P.raw(f"  s_memtime s[{r}:{r + 1}]")
                stamps.append(r)

        P.wait_lds_flagged()
        P.wait_vm_tag(('st', 0))
        if PROF == 3:
            stamp()
        P.barrier()
        if PROF == 3:
            stamp()
        P.emit(self.xf_reads(0))
        for q in range(NQ):
            if read_pos[q] < 0:
                P.emit(frag_reads(q))
        P.emit(self.xf_reads(1))
        P.emit(self.xf_reads(2))
        stamp()

        def icost(x):
            if isinstance(x, list):
                if x[0].op.startswith('v_dot'):
                    return 100
                return sum(y.cost for y in x)
            return x.cost

        def kind(x):
            return x[-1].kind if isinstance(x, list) else x.kind
        SLACK = o.get('slack', 5)
        LEAD = o.get('lead', 4)
        ri = 0
        di = 0
        last_ds_gap = -10
        for gi, g in enumerate(gaps):
            if PROF == 1 and gi in sf.values() and gi > 0:
                stamp()
            if g['mi'] == 0:
                p = g['q']
                if PROF in (2, 3) and len(stamps) < 12 and gi >= sf[pfrom] and bars_at.get(p):
                    stamp()
                for s in bars_at.get(p, []):
                    p4 = PROF == 4 and gi >= sf[pfrom] and len(stamps) < 11
                    if p4: stamp()
                    if not o.get('nolgkm', 0):
                        P.wait_lds_flagged()
                    if p4: stamp()
                    P.wait_vm_tag(('st', s + 1))
                    if p4: stamp()
                    if not o.get('nobar', 0):
                        P.barrier()
                    if p4: stamp()
            self.check_b(g)
            if not o.get('nomfma', 0):
                P.emit(g['inst'])
            cap = 8
            ds = False
            while ri < len(rq) and rq[ri][3] <= gi:
                urgent = rq[ri][1] <= gi
                if ds and not urgent:
                    break
                P.emit(rq[ri][2]); ri += 1
                cap -= 4; ds = True
            while True:
                el = [x for x in rq2 if x[0] <= gi]
                if not el:
                    break
                x = el[0]
                isds = kind(x[2]) in ('ldsr',) or isinstance(x[2], list)
                urgent = x[1] - 2 * len([y for y in el if y[1] == x[1]]) <= gi
                if urgent or (isds and not ds and cap >= 4) or (not isds and cap >= 4):
                    P.emit(x[2]); rq2.remove(x); cap -= 4
                    if isds:
                        ds = True
                    if not urgent:
                        break
                else:
                    break
            if di < len(dq) and dq[di][0] <= gi and (cap == 8 or dq[di][0] <= gi - 3):
                self.emit_dma(dq[di][1]); di += 1; cap = 0
                if di < len(dq) and o.get('hoist', 1):
                    self.emit_setup(dq[di][1])
            progress = True
            while progress:
                progress = False
                for t_ in tasks:
                    st_, en_, lst, idx = t_
                    if gi < st_ or idx >= len(lst):
                        continue
                    force = gi >= en_
                    target = len(lst) if force else len(lst) * (gi - st_ + 1) / (en_ - st_ + 1)
                    x = lst[idx]
                    c = icost(x); k = kind(x)
                    behind = idx < target - SLACK
                    if not force and idx >= target + LEAD:
                        continue
                    if k in ('ldsr', 'ldsw'):
                        fit = (not ds) and cap >= c
                    elif c >= 100:
                        fit = cap == 8 and idx < target
                    else:
                        fit = cap >= c
                    if fit or force or (behind and cap > 0):
                        P.emit(x); cap -= c; t_[3] = idx + 1
                        if k in ('ldsr', 'ldsw'):
                            ds = True
                        progress = True
        assert ri == len(rq) and di == len(dq) and not rq2, (ri, len(rq), di, len(dq), len(rq2))
        for t_ in tasks:
            assert t_[3] == len(t_[2])
        while PROF >= 2 and len(stamps) < 12:
            stamp()
        stamp()
        P.emit(self.task_out(self.ACC0, 4, half=True))
        if PROF:
            P.wait_vm(0)
            stamp()
            P.raw("  s_memrealtime s[100:101]")
            P.raw("  s_waitcnt lgkmcnt(0)")
            e('s_add_u32', 's4', 's14', str(64 << 20)); e('s_addc_u32', 's5', 's15', '0')
            srd(P, 8, 's4', 's5', 1 << 20)
            e('s_lshl_b32', 's6', 's2', '2'); e('s_add_u32', 's6', 's6', sr(self.S_W)); e('s_lshl_b32', 's6', 's6', '7')
            e('v_mov_b32', 'v4', '0')
            allst = [46] + stamps + [100, 98]
            for k, r in enumerate(allst):
                e('v_mov_b32', 'v5', sr(r))
                e('buffer_store_dword', 'v5', 'v4', 's[8:11]', 's6', mods=f'offen offset:{4 * k}')
        tl_end(P, self.o, 1)
        P.label("K1_end")
        P.raw("  s_endpgm")


def gen_k1(opts):
    k = K1(opts)
    name = "k1_main_kernel"
    kernel_begin(k.P, name)
    k.emit_all()
    print("K1 stats", k.P.stats, file=sys.stderr)
    return k.P.text(), descriptor(name, 512, 256, 102), (name, 256, 256, LDS_TOTAL)


def main():
    out = sys.argv[1]
    opts = {}
    for a in sys.argv[2:]:
        kk, v = a.split('='); opts[kk] = int(v)
    parts = [gen_k0(opts), gen_k1(opts), gen_k2(opts)]
    txt = header_comments([p[2] for p in parts])
    for p in parts:
        txt += p[0]
    txt += '.section .rodata,"a"\n'
    for p in parts:
        txt += p[1]
    open(out, 'w').write(txt)


if __name__ == "__main__":
    main()
```

```python
import sys, math
from asmlib import *

KN = "parallel_sum__sliding_local_dilated__swiglu_ffn__prompt"

XF_OFF = 0
XF_SIZE = 128 * 18 * 1024
PQ_OFF = 5 << 19
PQ_SIZE = 16 * 147456
P_OFF = 6 << 20
P_TILE = 144 * 1024
FP_OFF = 0
HP_OFF = 8 * 16 * 131072
MB_OFF = HP_OFF + 256 * 16384
FL_OFF = MB_OFF + 256 * 65536
P_SIZE = FL_OFF + 256 * 128

SLOT = 24576
RING = 0
HB = 3 * SLOT
SB = HB + 16384
SPITCH = 272
XB = HB + 4 * 16384
XPITCH = 144
LDS_TOTAL = XB + 128 * XPITCH

LOG2E = 1.4426950408889634


def f2h(x):
    import struct
    return "0x%08x" % struct.unpack('<I', struct.pack('<f', x))[0]


def header_comments(launches):
    L = []
    L.append(";   0 A_x, 8 A_wqkv, 16 A_wo, 24 B_x, 32 B_w_gate, 40 B_w_up, 48 B_w_down, 56 d_out, 64 d_debug, 72 d_ws")
    L.append("; Generated by a hand-written python generator (work/gen.py).")
    for (k, g, b, lds) in launches:
        L.append(f"; @launch kernel={k} grid=({g},1,1) block=({b},1,1) lds={lds}")
    L.append('.amdgcn_target "amdgcn-amd-amdhsa--gfx950"')
    L.append(".text")
    return "\n".join(L) + "\n"


def kernel_begin(P, name):
    P.raw(f".globl {name}")
    P.raw(".p2align 8")
    P.raw(f".type {name},@function")
    P.raw(f"{name}:")


def descriptor(name, vgpr, accum, sgpr=102):
    return "\n".join([
        ".p2align 6", f".amdhsa_kernel {name}",
        f"  .amdhsa_next_free_vgpr {vgpr}", f"  .amdhsa_next_free_sgpr {sgpr}", f"  .amdhsa_accum_offset {accum}",
        "  .amdhsa_group_segment_fixed_size 0", "  .amdhsa_kernarg_size 80", "  .amdhsa_user_sgpr_count 2",
        "  .amdhsa_user_sgpr_kernarg_segment_ptr 1", "  .amdhsa_system_sgpr_workgroup_id_x 1", ".end_amdhsa_kernel"]) + "\n"


def tl_start(P, opts):
    if opts.get('tl', 0):
        P.raw("  s_memrealtime s[96:97]")


def tl_end(P, opts, kidx, wsreg_lo=None):
    if not opts.get('tl', 0):
        return
    P.raw("  s_waitcnt vmcnt(0)")
    P.raw("  s_memrealtime s[98:99]")
    P.raw("  s_load_dwordx2 s[94:95], s[0:1], 72")
    P.raw("  s_waitcnt lgkmcnt(0)")
    P.raw(f"  s_add_u32 s94, s94, {(80 << 20) + kidx * 65536}")
    P.raw("  s_addc_u32 s95, s95, 0")
    P.raw("  s_mov_b32 s88, s94")
    P.raw("  s_and_b32 s89, s95, 0xffff")
    P.raw("  s_mov_b32 s90, 65536")
    P.raw("  s_mov_b32 s91, 0x20000")
    P.raw("  s_lshl_b32 s92, s2, 3")
    P.raw("  v_mov_b32 v2, s96")
    P.raw("  v_mov_b32 v3, s98")
    P.raw("  v_mov_b32 v4, 0")
    P.raw("  v_cmp_eq_u32 vcc, 0, v0")
    P.raw("  s_and_saveexec_b64 s[86:87], vcc")
    P.raw("  buffer_store_dwordx2 v[2:3], v4, s[88:91], s92 offen")
    P.raw("  s_mov_b64 exec, s[86:87]")


def srd(P, d, lo, hi, size):
    P.e('s_mov_b32', sr(d), lo)
    P.e('s_and_b32', sr(d + 1), hi, '0xffff')
    P.e('s_mov_b32', sr(d + 2), str(size))
    P.e('s_mov_b32', sr(d + 3), '0x20000')


def gen_k0(opts):
    P = Prog()
    name = "k0_ln_kernel"
    kernel_begin(P, name)
    NPK = 288
    NCP = 8 if opts.get('codepf', 1) else 0
    P.e('s_cmp_ge_u32', 's2', str(128 + NPK + NCP))
    P.raw("  s_cbranch_scc1 K0_end")
    tl_start(P, opts)
    if NCP:
        P.e('s_cmp_ge_u32', 's2', str(128 + NPK))
        P.raw("  s_cbranch_scc1 K0_code")
    P.e('s_cmp_ge_u32', 's2', '128')
    P.raw("  s_cbranch_scc1 K0_pack")
    P.e('s_load_dwordx2', 's[4:5]', 's[0:1]', '0')
    P.e('s_load_dwordx2', 's[6:7]', 's[0:1]', '72')
    P.e('v_and_b32', 'v1', '63', 'v0')
    P.e('v_lshrrev_b32', 'v2', '6', 'v0')
    P.e('v_and_b32', 'v3', '15', 'v1')
    P.e('v_lshrrev_b32', 'v4', '4', 'v1')
    P.e('v_readfirstlane_b32', 's20', 'v2')
    P.raw("  s_waitcnt lgkmcnt(0)")
    srd(P, 8, 's4', 's5', 2048 * 1152)
    srd(P, 12, 's6', 's7', XF_OFF + XF_SIZE)
    P.e('s_lshl_b32', 's21', 's2', '4')
    P.e('v_add_u32', 'v5', 's21', 'v3')
    P.e('s_movk_i32', 's22', '1152')
    P.e('v_mul_lo_u32', 'v5', 'v5', 's22')
    P.e('v_lshlrev_b32', 'v6', '4', 'v4')
    P.e('v_add_u32', 'v5', 'v5', 'v6')
    P.e('s_mul_i32', 's23', 's20', '576')
    X = 16
    for t in range(9):
        P.e('buffer_load_dwordx4', vr(X + 4 * t, 4), 'v5', 's[8:11]', 's23', mods=f'offen offset:{64 * t}')
    P.e('s_add_u32', 's28', 's6', str(P_OFF + FL_OFF)); P.e('s_addc_u32', 's29', 's7', '0')
    srd(P, 32, 's28', 's29', 256 * 128)
    P.e('v_mov_b32', 'v60', '0'); P.e('v_mov_b32', 'v61', '0'); P.e('v_mov_b32', 'v62', '0'); P.e('v_mov_b32', 'v63', '0')
    P.e('v_lshlrev_b32', 'v59', '4', 'v0')
    P.e('s_lshl_b32', 's30', 's2', '8')
    P.e('v_cmp_gt_u32', 'vcc', '16', 'v0')
    P.e('s_and_saveexec_b64', 's[36:37]', 'vcc')
    P.raw("  s_cbranch_execz K0_nz")
    P.raw("  buffer_store_dwordx4 v[60:63], v59, s[32:35], s30 offen")
    P.label("K0_nz")
    P.e('s_mov_b64', 'exec', 's[36:37]')
    P.e('v_mov_b32', 'v7', '0x3f803f80')
    P.e('v_mov_b32', 'v8', '0'); P.e('v_mov_b32', 'v9', '0'); P.e('v_mov_b32', 'v10', '0'); P.e('v_mov_b32', 'v11', '0')
    for j in range(36):
        P.e('v_dot2c_f32_bf16', 'v8' if j % 2 == 0 else 'v10', vr(X + j), 'v7')
        P.e('v_dot2c_f32_bf16', 'v9' if j % 2 == 0 else 'v11', vr(X + j), vr(X + j))
    P.e('v_add_f32', 'v8', 'v8', 'v10')
    P.e('v_add_f32', 'v9', 'v9', 'v11')
    for sw in ('v_permlane32_swap_b32', 'v_permlane16_swap_b32'):
        P.e('v_mov_b32', 'v10', 'v8'); P.e('v_mov_b32', 'v11', 'v9')
        P.e('v_mov_b32', 'v12', 'v8'); P.e('v_mov_b32', 'v13', 'v9')
        P.e(sw, 'v10', 'v12'); P.e(sw, 'v11', 'v13')
        P.e('v_add_f32', 'v8', 'v10', 'v12'); P.e('v_add_f32', 'v9', 'v11', 'v13')
    P.e('v_lshlrev_b32', 'v10', '3', 'v0')
    P.e('ds_write_b64', 'v10', 'v[8:9]')
    P.e('v_xor_b32', 'v11', '512', 'v10')
    P.wait_lgkm(0)
    P.barrier()
    P.e('ds_read_b64', 'v[12:13]', 'v11')
    P.e('v_add_f32', 'v8', 'v8', 'v12')
    P.e('v_add_f32', 'v9', 'v9', 'v13')
    P.e('v_mul_f32', 'v8', f2h(1.0 / 576), 'v8')
    P.e('v_mul_f32', 'v9', f2h(1.0 / 576), 'v9')
    P.e('v_fma_f32', 'v9', '-v8', 'v8', 'v9')
    P.e('v_max_f32', 'v9', '0', 'v9')
    P.e('v_add_f32', 'v9', f2h(1e-5), 'v9')
    P.e('v_rsq_f32', 'v9', 'v9')
    P.e('v_mul_f32', 'v8', 'v8', 'v9')
    P.e('v_sub_f32', 'v8', '0', 'v8')
    P.e('s_mov_b32', 's24', '0xffff0000')
    for j in range(36):
        a, b = 10 + 2 * (j % 2), 11 + 2 * (j % 2)
        P.e('v_lshlrev_b32', vr(a), '16', vr(X + j))
        P.e('v_and_b32', vr(b), 's24', vr(X + j))
        P.e('v_fma_f32', vr(a), vr(a), 'v9', 'v8')
        P.e('v_fma_f32', vr(b), vr(b), 'v9', 'v8')
        P.e('v_cvt_pk_bf16_f32', vr(X + j), vr(a), vr(b))
    P.e('v_lshlrev_b32', 'v6', '4', 'v1')
    P.e('s_mul_i32', 's25', 's2', str(18 * 1024))
    P.e('s_mul_i32', 's26', 's20', str(9 * 1024))
    P.e('s_add_u32', 's25', 's25', 's26')
    for t in range(9):
        if t % 4 == 0 and t:
            P.e('s_add_u32', 's25', 's25', '4096')
        P.e('buffer_store_dwordx4', vr(X + 4 * t, 4), 'v6', 's[12:15]', 's25', mods=f'offen offset:{1024 * (t % 4)}')
    tl_end(P, opts, 0)
    P.raw("  s_endpgm")
    P.label("K0_pack")
    P.vm_q = []; P.lds_q = []
    e = P.e
    e('s_load_dwordx2', 's[4:5]', 's[0:1]', '8')
    e('s_load_dwordx2', 's[6:7]', 's[0:1]', '72')
    e('v_and_b32', 'v1', '63', 'v0'); e('v_lshrrev_b32', 'v2', '6', 'v0')
    e('v_readfirstlane_b32', 's20', 'v2')
    e('s_sub_u32', 's21', 's2', '128'); e('s_lshl_b32', 's21', 's21', '1'); e('s_add_u32', 's21', 's21', 's20')
    P.raw("  s_waitcnt lgkmcnt(0)")
    srd(P, 12, 's4', 's5', 576 * 3456)
    e('s_add_u32', 's6', 's6', str(PQ_OFF)); e('s_addc_u32', 's7', 's7', '0')
    srd(P, 16, 's6', 's7', PQ_SIZE)
    e('v_and_b32', 'v3', '15', 'v1')
    e('v_lshrrev_b32', 'v4', '4', 'v1')
    e('v_lshlrev_b32', 'v9', '4', 'v1')
    for k in range(4):
        e('s_lshl_b32', 's22', 's21', '2'); e('s_add_u32', 's22', 's22', str(k))
        e('s_mul_hi_u32', 's23', 's22', str((2 ** 32 + 143) // 144))
        e('s_mul_i32', 's24', 's23', '144'); e('s_sub_u32', 's24', 's22', 's24')
        e('s_mul_hi_u32', 's25', 's24', str((2 ** 32 + 5) // 6))
        e('s_mul_i32', 's26', 's25', '6'); e('s_sub_u32', 's26', 's24', 's26')
        e('s_lshr_b32', 's27', 's25', '2')
        e('s_and_b32', 's28', 's25', '3')
        e('s_mul_i32', 's29', 's27', '96'); e('s_lshl_b32', 's30', 's26', '4'); e('s_add_u32', 's29', 's29', 's30')
        e('s_lshl_b32', 's30', 's28', '2'); e('s_add_u32', 's29', 's29', 's30')
        e('v_add_u32', 'v5', 's29', 'v4')
        e('s_lshr_b32', 's30', 's28', '1'); e('s_lshl_b32', 's30', 's30', '2')
        e('v_or_b32', 'v6', 's30', 'v4'); e('v_lshrrev_b32', 'v7', '1', 'v3'); e('v_xor_b32', 'v6', 'v6', 'v7')
        e('v_lshlrev_b32', 'v6', '1', 'v6'); e('v_and_b32', 'v7', '1', 'v3'); e('v_or_b32', 'v6', 'v6', 'v7')
        e('v_mul_u32_u24', 'v7', '13', 'v6'); e('v_lshrrev_b32', 'v7', '6', 'v7'); e('v_min_u32', 'v7', '2', 'v7')
        e('v_mul_u32_u24', 'v8', '5', 'v7'); e('v_sub_u32', 'v8', 'v6', 'v8'); e('v_lshlrev_b32', 'v8', '4', 'v8')
        e('v_add_u32', 'v7', '1', 'v7'); e('v_cmp_eq_u32', 'vcc', '3', 'v7'); e('v_mov_b32', 'v10', '0')
        e('v_cndmask_b32', 'v7', 'v7', 'v10', 'vcc')
        e('v_mul_u32_u24', 'v7', '1152', 'v7'); e('v_add_u32', 'v8', 'v8', 'v7')
        e('s_mul_i32', 's30', 's23', '72'); e('v_add_u32', 'v8', 's30', 'v8')
        e('v_mul_u32_u24', 'v5', '3456', 'v5'); e('v_add_u32', 'v5', 'v5', 'v8')
        e('buffer_load_dwordx4', vr(16 + 4 * k, 4), 'v5', 's[12:15]', '0', mods='offen')
    e('s_lshl_b32', 's22', 's21', '12')
    for k in range(4):
        e('buffer_store_dwordx4', vr(16 + 4 * k, 4), 'v9', 's[16:19]', 's22', mods=f'offen offset:{1024 * k}')
    if NCP:
        P.raw("  s_endpgm")
        P.label("K0_code")
        P.raw("  s_getpc_b64 s[4:5]")
        P.raw("K0_pc:")
        P.raw("  s_add_u32 s4, s4, k1_main_kernel-K0_pc")
        P.raw("  s_addc_u32 s5, s5, 0")
        P.raw("  s_mov_b32 s8, s4")
        P.raw("  s_and_b32 s9, s5, 0xffff")
        P.raw("  s_mov_b32 s10, K2_end-k1_main_kernel")
        P.raw("  s_mov_b32 s11, 0x20000")
        P.raw("  v_lshlrev_b32 v1, 4, v0")
        P.raw("  s_mov_b32 s12, 0")
        P.raw("K0_cl:")
        P.raw("  buffer_load_dwordx4 v[4:7], v1, s[8:11], s12 offen")
        P.raw("  s_add_u32 s12, s12, 2048")
        P.raw("  s_cmp_lt_u32 s12, s10")
        P.raw("  s_cbranch_scc1 K0_cl")
    P.label("K0_end")
    P.raw("  s_endpgm")
    return P.text(), descriptor(name, 64, 64, 102), (name, 128 + NPK + NCP, 128, 1024)


def gen_k2(opts):
    P = Prog()
    name = "k2_reduce_kernel"
    kernel_begin(P, name)
    NWG = 576
    P.e('s_cmp_ge_u32', 's2', str(NWG))
    P.raw("  s_cbranch_scc1 K2_end")
    tl_start(P, opts)
    P.e('s_load_dwordx2', 's[4:5]', 's[0:1]', '0')
    P.e('s_load_dwordx2', 's[6:7]', 's[0:1]', '72')
    P.e('s_load_dwordx2', 's[16:17]', 's[0:1]', '56')
    P.e('v_and_b32', 'v1', '63', 'v0')
    P.e('v_lshrrev_b32', 'v2', '6', 'v0')
    P.e('v_and_b32', 'v3', '15', 'v1')
    P.e('v_lshrrev_b32', 'v4', '4', 'v1')
    P.e('v_readfirstlane_b32', 's20', 'v2')
    P.e('v_lshlrev_b32', 'v5', '4', 'v1')
    P.raw("  s_waitcnt lgkmcnt(0)")
    srd(P, 8, 's4', 's5', 2048 * 1152)
    P.e('s_add_u32', 's6', 's6', str(P_OFF)); P.e('s_addc_u32', 's7', 's7', '0')
    srd(P, 12, 's6', 's7', P_SIZE)
    srd(P, 24, 's16', 's17', 2048 * 1152)
    P.e('s_lshl_b32', 's21', 's2', '2'); P.e('s_add_u32', 's21', 's21', 's20')
    P.e('s_mul_hi_u32', 's22', 's21', str((2 ** 32 + 143) // 144))
    P.e('s_mul_i32', 's23', 's22', '144'); P.e('s_sub_u32', 's23', 's21', 's23')
    D = 16
    lf = ['', ' nt', ' sc1'][opts.get('ldflag', 0)]
    P.e('s_cmp_ge_u32', 's23', '128')
    P.raw("  s_cbranch_scc1 K2_half")
    for half in (0, 1):
        if half:
            P.label("K2_half")
            P.vm_q = []; P.lds_q = []
        n = 16 if half else 8
        if not half:
            P.e('s_lshl_b32', 's28', 's22', '17'); P.e('s_lshl_b32', 's29', 's23', '10'); P.e('s_add_u32', 's28', 's28', 's29')
            stride = 16 * 131072
        else:
            P.e('s_lshl_b32', 's28', 's22', '14'); P.e('s_sub_u32', 's23', 's23', '128'); P.e('s_lshl_b32', 's29', 's23', '10')
            P.e('s_add_u32', 's28', 's28', 's29'); P.e('s_add_u32', 's28', 's28', str(HP_OFF))
            stride = 16 * 16384
        for s in range(n):
            P.e('buffer_load_dwordx4', vr(D + 4 * s, 4), 'v5', 's[12:15]', 's28', mods='offen' + lf)
            if s < n - 1:
                P.e('s_add_u32', 's28', 's28', str(stride))
        P.e('s_and_b32', 's29', 's23', '3')
        if not half:
            P.e('s_lshr_b32', 's31', 's23', '3'); P.e('s_and_b32', 's31', 's31', '3')
            P.e('s_lshr_b32', 's34', 's31', '1')
            P.e('s_lshr_b32', 's35', 's23', '5'); P.e('s_lshl_b32', 's35', 's35', '7')
            P.e('s_lshl_b32', 's36', 's34', '6'); P.e('s_add_u32', 's35', 's35', 's36')
            P.e('s_lshr_b32', 's36', 's23', '2'); P.e('s_and_b32', 's36', 's36', '1'); P.e('s_lshl_b32', 's36', 's36', '5')
            P.e('s_add_u32', 's35', 's35', 's36')
        else:
            P.e('s_lshr_b32', 's31', 's23', '2')
            P.e('s_lshr_b32', 's34', 's31', '1')
            P.e('s_lshl_b32', 's35', 's34', '5'); P.e('s_add_u32', 's35', 's35', '512')
        P.e('s_and_b32', 's33', 's31', '1')
        P.e('s_lshl_b32', 's37', 's22', '7'); P.e('s_lshl_b32', 's38', 's33', '6'); P.e('s_add_u32', 's37', 's37', 's38')
        P.e('s_lshl_b32', 's38', 's29', '4'); P.e('s_add_u32', 's37', 's37', 's38')
        P.e('v_add_u32', 'v6', 's37', 'v3')
        P.e('v_mul_u32_u24', 'v6', '1152', 'v6')
        P.e('s_lshl_b32', 's40', 's35', '1')
        P.e('v_add_u32', 'v6', 's40', 'v6')
        P.e('v_lshlrev_b32', 'v7', '3', 'v4')
        P.e('v_add_u32', 'v7', 'v6', 'v7')
        P.e('buffer_load_dwordx2', 'v[8:9]', 'v7', 's[8:11]', '0', mods='offen')
        P.e('buffer_load_dwordx2', 'v[10:11]', 'v7', 's[8:11]', '0', mods='offen offset:32')
        P.e('v_and_b32', 'v12', '1', 'v4'); P.e('v_lshlrev_b32', 'v12', '5', 'v12')
        P.e('v_lshrrev_b32', 'v13', '1', 'v4'); P.e('v_lshlrev_b32', 'v13', '4', 'v13')
        P.e('v_add3_u32', 'v6', 'v6', 'v12', 'v13')
        P.e('s_mov_b32', 's41', '0xffff0000')
        ACC = 80
        srcs = [D + 4 * s for s in range(n)] + [8]
        for si, base in enumerate(srcs):
            for j in range(4):
                d = vr(base + j)
                if si == 0:
                    P.e('v_lshlrev_b32', vr(ACC + 2 * j), '16', d)
                    P.e('v_and_b32', vr(ACC + 2 * j + 1), 's41', d)
                else:
                    t0, t1 = 88 + 2 * (j % 2), 89 + 2 * (j % 2)
                    P.e('v_lshlrev_b32', vr(t0), '16', d)
                    P.e('v_and_b32', vr(t1), 's41', d)
                    P.e('v_add_f32', vr(ACC + 2 * j), vr(ACC + 2 * j), vr(t0))
                    P.e('v_add_f32', vr(ACC + 2 * j + 1), vr(ACC + 2 * j + 1), vr(t1))
        for j in range(4):
            P.e('v_cvt_pk_bf16_f32', vr(92 + j), vr(ACC + 2 * j), vr(ACC + 2 * j + 1))
        P.e('v_permlane16_swap_b32', 'v92', 'v94')
        P.e('v_permlane16_swap_b32', 'v93', 'v95')
        P.e('buffer_store_dwordx4', 'v[92:95]', 'v6', 's[24:27]', '0', mods='offen')
        tl_end(P, opts, 2)
        if not half:
            P.raw("  s_endpgm")
    P.label("K2_end")
    P.raw("  s_endpgm")
    return P.text(), descriptor(name, 96, 96, 102), (name, NWG, 256, 0)


class K1:
    V_LANE, V_C16, V_G, V_T0, V_T1, V_T2, V_T3, V_T4 = 1, 2, 3, 4, 5, 6, 7, 8
    ACC0, ACC1 = 16, 80
    FR = 144
    NFR = 6
    XV = 168
    TQ = 200
    TG = 204
    TH = 208
    TP = 210
    TPH = 214
    DQ = 216
    DG = 219
    DH = 222
    DP = 225
    DPH = 228
    HW = 231
    HWX = 233
    HR = 234
    XR = 236
    SW = 237
    AB = 241
    OW = 242
    PV = 243
    MG = 244
    XA = 245
    TD = 168
    HAL = 248
    HALX = 8

    S_W, S_S, S_I = 20, 21, 22
    S_RG2, S_CH = 23, 24
    S_LDSW = 25
    S_XF = 26
    S_FB = 88
    S_YC = 28
    S_FPB, S_MBO, S_MBP, S_HPB, S_FSH, S_FOFF = 17, 18, 19, 44, 26, 27
    SRD_DBG = 48
    INC = [176, 180, 184, 188, 192, 196, 248, 252]
    INC2 = [200, 204, 216, 220, 232, 236, 8, 12]
    V_POLL = 4
    S_T0, S_T1, S_T2, S_T3 = 34, 35, 36, 37
    S_SOFF = 38
    S_NLOG2E = 39
    S_AC = 40
    S_PERM0, S_PERM1 = 41, 42
    S_NEG = 43
    S_QC = 44
    S_PO = 45
    S_PO2 = 40
    SRD_XF, SRD_QKV, SRD_GU, SRD_WD, SRD_WO, SRD_P = 48, 52, 56, 60, 64, 68
    S_FB2 = 4
    S_FBR = 9
    S_WOR = 16
    S_XL, S_XH, S_SOFF2 = 17, 18, 19

    def __init__(self, opts):
        self.P = Prog()
        self.o = opts

    def xreg(self, t, mb):
        j = 4 * t + mb
        return ar(4 * j, 4) if j < 64 else vr(self.XV + 4 * (j - 64), 4)

    def hreg(self, k, mb):
        return ar(16 * k + 4 * mb, 4)

    def halo_x(self, t):
        return vr(self.ACC1 + 4 * t, 4) if t < 16 else vr(self.HALX + 4 * (t - 16), 4)

    def prologue(self):
        P = self.P
        e = P.e
        e('s_cmp_ge_u32', 's2', '256')
        P.raw("  s_cbranch_scc1 K1_end")
        tl_start(P, self.o)
        if self.o.get('prof', 0):
            P.raw("  s_memtime s[46:47]")
            P.raw("  s_memrealtime s[98:99]")
        e('s_load_dwordx2', 's[14:15]', 's[0:1]', '72')
        e('s_load_dwordx2', 's[6:7]', 's[0:1]', '16')
        e('s_load_dwordx4', 's[8:11]', 's[0:1]', '32')
        e('s_load_dwordx2', 's[12:13]', 's[0:1]', '48')
        L, C16, G = vr(self.V_LANE), vr(self.V_C16), vr(self.V_G)
        e('v_and_b32', L, '63', 'v0')
        e('v_lshrrev_b32', 'v4', '6', 'v0')
        e('v_and_b32', C16, '15', L)
        e('v_lshrrev_b32', G, '4', L)
        e('v_readfirstlane_b32', sr(self.S_W), 'v4')
        e('v_lshlrev_b32', vr(self.PV), '4', L)
        e('s_and_b32', sr(self.S_S), 's2', '3'); e('s_lshl_b32', sr(self.S_S), sr(self.S_S), '2')
        e('s_bfe_u32', sr(self.S_T0), 's2', '0x20003'); e('s_add_u32', sr(self.S_S), sr(self.S_S), sr(self.S_T0))
        e('s_bfe_u32', sr(self.S_I), 's2', '0x10002'); e('s_lshl_b32', sr(self.S_I), sr(self.S_I), '3')
        e('s_lshr_b32', sr(self.S_T0), 's2', '5'); e('s_add_u32', sr(self.S_I), sr(self.S_I), sr(self.S_T0))
        e('s_and_b32', sr(self.S_RG2), sr(self.S_W), '1'); e('s_lshr_b32', sr(self.S_CH), sr(self.S_W), '1')
        e('s_mul_i32', sr(self.S_LDSW), sr(self.S_W), '6144')
        e('s_lshl_b32', sr(self.S_T0), sr(self.S_I), '3'); e('s_lshl_b32', sr(self.S_T1), sr(self.S_W), '1')
        e('s_add_u32', sr(self.S_T0), sr(self.S_T0), sr(self.S_T1))
        e('s_mul_i32', sr(self.S_XF), sr(self.S_T0), '18432')
        e('s_lshr_b32', sr(self.S_T0), sr(self.S_W), '1'); e('s_mul_i32', sr(self.S_XL), sr(self.S_T0), '36864')
        e('s_and_b32', sr(self.S_T0), sr(self.S_W), '1'); e('s_mul_i32', sr(self.S_T0), sr(self.S_T0), '6144')
        e('s_add_u32', sr(self.S_XL), sr(self.S_XL), sr(self.S_T0))
        e('s_min_u32', sr(self.S_T1), sr(self.S_W), '2'); e('s_lshl_b32', sr(self.S_XH), sr(self.S_T1), '10')
        e('s_lshl_b32', sr(self.S_T0), sr(self.S_I), '3'); e('s_sub_u32', sr(self.S_T0), sr(self.S_T0), '1')
        e('s_mul_i32', sr(self.S_T0), sr(self.S_T0), '18432'); e('s_add_u32', sr(self.S_T0), sr(self.S_T0), sr(self.S_XH))
        e('s_cmp_eq_u32', sr(self.S_I), '0'); e('s_cselect_b32', sr(self.S_XF + 1), '0x7f000000', sr(self.S_T0))
        e('s_mul_i32', sr(self.S_T2), sr(self.S_S), '147456'); e('s_add_u32', sr(self.S_T2), sr(self.S_T2), str(PQ_OFF))
        P.raw("  s_waitcnt lgkmcnt(0)")
        e('s_add_u32', sr(self.S_T0), 's14', str(XF_OFF)); e('s_addc_u32', sr(self.S_T1), 's15', '0')
        srd(P, self.SRD_XF, sr(self.S_T0), sr(self.S_T1), XF_SIZE)
        e('s_add_u32', sr(self.S_T0), 's14', sr(self.S_T2)); e('s_addc_u32', sr(self.S_T1), 's15', '0')
        srd(P, self.SRD_QKV, sr(self.S_T0), sr(self.S_T1), 147456)

    def scalars_late(self, e, srd_):
        srd_(self.SRD_WO, 's6', 's7', 576 * 1152)
        e('s_cmp_ge_u32', sr(self.S_W), '2')
        e('s_cselect_b32', sr(self.S_T0), 's10', 's8'); e('s_cselect_b32', sr(self.S_T1), 's11', 's9')
        srd_(self.SRD_GU, sr(self.S_T0), sr(self.S_T1), 576 * 9216)
        srd_(self.SRD_WD, 's12', 's13', 4608 * 1152)
        e('s_add_u32', sr(self.S_T0), 's14', str(P_OFF)); e('s_addc_u32', sr(self.S_T1), 's15', '0')
        srd_(self.SRD_P, sr(self.S_T0), sr(self.S_T1), P_SIZE)
        e('s_mul_i32', sr(self.S_T0), sr(self.S_S), '288')
        e('s_and_b32', sr(self.S_T1), sr(self.S_S), '1')
        e('s_lshl_b32', sr(self.S_T2), sr(self.S_T1), '5'); e('s_add_u32', sr(self.S_T2), sr(self.S_T2), sr(self.S_T0))
        for j in range(4):
            e('s_add_u32', sr(self.S_T3), sr(self.S_I), str(j)); e('s_and_b32', sr(self.S_T3), sr(self.S_T3), '3')
            e('s_lshl_b32', sr(self.S_T3), sr(self.S_T3), '6'); e('s_add_u32', sr(self.S_FB + j), sr(self.S_T2), sr(self.S_T3))
        e('s_cmp_eq_u32', sr(self.S_T1), '1'); e('s_cselect_b32', sr(self.S_T3), '0', '256')
        e('s_add_u32', sr(self.S_FB + 4), sr(self.S_T0), sr(self.S_T3))
        for j in range(5):
            e('s_lshl_b32', sr(self.S_FB2 + j), sr(self.S_FB + j), '1')
            e('s_mul_i32', sr(self.S_FBR + j), sr(self.S_FB + j), '1152')
        e('s_mul_i32', sr(self.S_WOR), sr(self.S_S), str(36 * 1152))
        e('s_and_b32', sr(self.S_T0), sr(self.S_S), '1'); e('s_lshl_b32', sr(self.S_T0), sr(self.S_T0), '1')
        for k in range(4):
            e('s_add_u32', sr(self.S_T1), sr(self.S_T0), str(k)); e('s_and_b32', sr(self.S_T1), sr(self.S_T1), '3')
            e('s_lshl_b32', sr(self.S_YC + k), sr(self.S_T1), '8')
        e('s_mov_b32', sr(self.S_NLOG2E), f2h(-LOG2E))
        e('s_mov_b32', sr(self.S_AC), f2h(LOG2E / math.sqrt(18.0)))
        e('s_mov_b32', sr(self.S_PERM0), '0x05040100'); e('s_mov_b32', sr(self.S_PERM1), '0x07060302')
        e('s_mov_b32', sr(self.S_NEG), f2h(-1e30))

    TA, TB, TC, TDm = 'v4', 'v5', 'v6', 'v7'
    TR, TCC8, TG1, TG2 = 'v247', 'v244', 'v242', 'v241'

    def addr_first(self, e):
        L, C16, G = vr(self.V_LANE), vr(self.V_C16), vr(self.V_G)
        a, b, c = self.TA, self.TB, self.TC
        r, cc8, g1, g2 = self.TR, self.TCC8, self.TG1, self.TG2
        W, RG2 = sr(self.S_W), sr(self.S_RG2)
        T0, T1, T2, T3 = sr(self.S_T0), sr(self.S_T1), sr(self.S_T2), sr(self.S_T3)
        e('v_lshrrev_b32', r, '2', C16)
        e('v_and_b32', cc8, '3', C16); e('v_lshlrev_b32', cc8, '3', cc8)
        e('v_and_b32', g1, '1', G)
        e('v_lshrrev_b32', g2, '1', G)
        e('v_mul_u32_u24', a, '12288', g1)
        e('v_lshl_add_u32', a, g2, '10', a)
        e('v_lshl_add_u32', a, r, '8', a)
        e('v_add_u32', a, a, cc8)
        e('v_lshl_or_b32', b, g1, '2', r)
        e('s_mov_b32', T0, '0x10525210'); e('s_mov_b32', T1, '0x63747463')
        e('s_lshl_b32', T2, W, '4')
        e('s_lshr_b64', sr(self.S_T0, 2), sr(self.S_T0, 2), T2)
        e('s_mov_b32', sr(self.S_QC), T0)
        for u in range(4):
            e('s_bfe_u32', T2, T0, hex((4 << 16) | (4 * u)))
            e('v_xor_b32', c, T2, b); e('v_lshl_add_u32', vr(self.TQ + u), c, '5', a)
        e('s_mul_i32', T0, RG2, '36864'); e('s_add_u32', T0, T0, str(HB))
        e('v_add_u32', vr(self.XA), T0, vr(self.PV))
        e('v_add_u32', vr(self.XA + 1), str(HB + 73728), vr(self.PV))

    def addr_late(self, e):
        L, C16, G = vr(self.V_LANE), vr(self.V_C16), vr(self.V_G)
        a, b, c, d = self.TA, self.TB, self.TC, self.TDm
        r, cc8, g1, g2 = self.TR, self.TCC8, self.TG1, self.TG2
        W, CH, RG2 = sr(self.S_W), sr(self.S_CH), sr(self.S_RG2)
        T0, T1, T2, T3 = sr(self.S_T0), sr(self.S_T1), sr(self.S_T2), sr(self.S_T3)
        e('v_lshrrev_b32', b, '3', L)
        e('v_bfe_u32', a, b, '1', '1')
        e('s_and_b32', T0, W, '1'); e('s_lshl_b32', T1, T0, '1')
        e('v_or_b32', a, T1, a)
        e('v_bfe_u32', c, L, '1', '2')
        e('v_xor_b32', a, a, c); e('v_lshlrev_b32', a, '1', a)
        e('v_and_b32', c, '1', L); e('v_or_b32', a, a, c)
        e('s_lshl_b32', T1, T0, '3')
        e('v_add_u32', c, T1, b)
        e('v_mul_u32_u24', c, '9216', c)
        e('v_lshl_add_u32', vr(self.DG), a, '4', c)
        for j in (1, 2):
            e('v_add_u32', vr(self.DG + j), str(j * (16 * 9216 - 1024)), vr(self.DG))
        e('s_lshl_b32', T1, W, '3')
        e('v_add_u32', c, T1, b)
        e('v_mul_u32_u24', c, '1152', c)
        e('v_lshl_add_u32', vr(self.DPH), a, '4', c)
        for j in (1, 2):
            e('v_add_u32', vr(self.DPH + j), str(j * (32 * 1152 - 1024)), vr(self.DPH))
        e('v_lshrrev_b32', b, '2', L)
        e('v_lshrrev_b32', a, '3', b); e('v_lshlrev_b32', a, '1', a)
        e('v_and_b32', c, '3', L); e('v_xor_b32', a, a, c)
        e('s_lshl_b32', T1, T0, '4')
        e('v_add_u32', c, T1, b)
        e('v_mul_u32_u24', c, '9216', c)
        e('v_lshl_add_u32', vr(self.DH), a, '4', c)
        for j in (1, 2):
            e('v_add_u32', vr(self.DH + j), str(j * (32 * 9216 - 1024)), vr(self.DH))
        e('s_lshr_b32', T0, W, '1'); e('s_lshl_b32', T0, T0, '2')
        e('v_or_b32', a, T0, G)
        e('v_lshrrev_b32', b, '1', C16)
        e('v_xor_b32', a, a, b)
        e('v_lshlrev_b32', a, '1', a)
        e('v_and_b32', b, '1', C16)
        e('v_or_b32', a, a, b)
        e('s_lshl_b32', T1, W, '2')
        e('v_add_u32', b, T1, G)
        e('v_mul_u32_u24', c, '1152', b)
        e('v_lshl_add_u32', vr(self.DP), a, '4', c)
        for j in (1, 2):
            e('v_add_u32', vr(self.DP + j), str(j * (16 * 1152 - 1024)), vr(self.DP))
        e('v_mul_u32_u24', a, '6144', g1)
        e('v_lshl_add_u32', a, g2, '10', a)
        e('v_lshl_add_u32', a, r, '7', a)
        e('v_add_u32', a, a, cc8)
        e('v_lshrrev_b32', b, '1', r); e('v_lshl_or_b32', b, g1, '1', b)
        for bb in range(2):
            e('s_lshl_b32', T2, CH, '1'); e('s_add_u32', T2, T2, str(bb))
            e('v_xor_b32', c, T2, b); e('v_lshl_add_u32', vr(self.TG + bb), c, '5', a)
            e('v_add_u32', vr(self.TG + 2 + bb), '12288', vr(self.TG + bb))
        e('v_mul_u32_u24', a, '6144', G)
        e('v_lshl_add_u32', a, r, '7', a)
        e('v_add_u32', a, a, cc8)
        for bb in range(2):
            e('s_lshl_b32', T2, CH, '1'); e('s_add_u32', T2, T2, str(bb))
            e('v_xor_b32', c, T2, b); e('v_lshl_add_u32', vr(self.TPH + bb), c, '5', a)
        e('v_mul_u32_u24', a, '6144', g2)
        e('v_lshl_add_u32', c, g1, '3', r); e('v_lshl_add_u32', a, c, '6', a)
        e('v_add_u32', a, a, cc8)
        e('v_xor_b32', c, CH, g1); e('v_lshl_add_u32', vr(self.TH), c, '5', a)
        e('v_add_u32', vr(self.TH + 1), '12288', vr(self.TH))
        e('v_mul_u32_u24', a, '12288', g1)
        e('v_lshl_add_u32', a, g2, '10', a)
        e('v_lshl_add_u32', a, r, '8', a)
        e('v_add_u32', a, a, cc8)
        e('v_lshl_or_b32', b, g1, '2', r)
        for u in range(4):
            e('s_lshl_b32', T2, CH, '2'); e('s_add_u32', T2, T2, str(u))
            e('v_xor_b32', c, T2, b); e('v_lshl_add_u32', vr(self.TP + u), c, '5', a)
        e('s_lshl_b32', T3, RG2, '6'); e('s_add_u32', T3, T3, '16')
        e('v_add_u32', c, T3, C16); e('v_mul_u32_u24', c, str(SPITCH), c)
        e('v_lshl_add_u32', c, G, '3', c)
        for u in range(4):
            e('s_bfe_u32', T2, sr(self.S_QC), hex((4 << 16) | (4 * u)))
            e('s_lshl_b32', T2, T2, '5'); e('s_add_u32', T2, T2, str(SB))
            e('v_add_u32', vr(self.SW + u), T2, c)
        e('s_lshl_b32', T2, RG2, '6'); e('v_add_u32', a, T2, C16)
        e('s_lshl_b32', T3, CH, '2'); e('v_add_u32', b, T3, g2)
        e('v_and_b32', c, '7', C16); e('v_xor_b32', b, b, c)
        e('v_lshlrev_b32', b, '4', b); e('v_lshl_add_u32', b, g1, '3', b)
        e('v_lshl_add_u32', b, a, '7', b)
        e('v_add_u32', vr(self.HW), str(HB), b)
        e('v_xor_b32', vr(self.HW + 1), '32', vr(self.HW))
        e('v_xor_b32', b, G, c); e('v_lshlrev_b32', b, '4', b); e('v_lshl_add_u32', b, a, '7', b)
        e('v_add_u32', vr(self.HR), str(HB), b)
        e('v_xor_b32', vr(self.HR + 1), '64', vr(self.HR))
        e('v_mul_u32_u24', b, str(XPITCH), a)
        e('v_add_u32', b, str(XB), b)
        e('v_lshl_add_u32', vr(self.XR), G, '4', b)
        e('s_lshl_b32', T3, CH, '5')
        e('v_lshl_add_u32', c, G, '3', b); e('v_add_u32', vr(self.HWX), T3, c)
        e('v_and_b32', a, '31', L); e('v_lshrrev_b32', b, '5', L)
        e('s_lshl_b32', T2, W, '5')
        e('v_add_u32', a, T2, a)
        e('s_lshl_b32', T3, sr(self.S_I), '7'); e('v_add_u32', vr(self.MG), T3, a)
        e('v_add_u32', c, '2', a); e('v_mul_u32_u24', c, str(SPITCH), c)
        e('v_lshl_add_u32', c, b, '5', c); e('v_add_u32', vr(self.AB), str(SB), c)
        e('v_mul_u32_u24', c, str(XPITCH), a); e('v_lshl_add_u32', c, b, '5', c)
        e('v_add_u32', vr(self.OW), str(XB + 64), c)

    def task_late_setup(self):
        T = []
        e = lambda op, *a, **k: T.append(I(op, *a, **k))

        def srd_(d, lo, hi, size):
            e('s_mov_b32', sr(d), lo); e('s_and_b32', sr(d + 1), hi, '0xffff'); e('s_mov_b32', sr(d + 2), str(size)); e('s_mov_b32', sr(d + 3), '0x20000')
        self.scalars_late(e, srd_)
        S = list(T)
        T.clear()
        self.addr_late(e)
        return [S] + T

    def build(self):
        self.stages = []
        self.ksteps = []
        strips = []

        def add_stage(dml):
            self.stages.append(dml)
            return len(self.stages) - 1

        def strip_generic(name, nk, ks_per_stage, nfrag, dma_fn, tr_fn, mf_fn):
            st = dict(name=name, ks=[])
            for t in range(nk):
                tl = t % ks_per_stage
                if tl == 0:
                    n_in = min(ks_per_stage, nk - t)
                    dml = []
                    for tt in range(n_in):
                        dml += dma_fn(t + tt, tt)
                    sid = add_stage(dml)
                frs = [tr_fn(t, tl, u) for u in range(nfrag)]
                st['ks'].append(dict(t=t, stage=sid, frags=frs, mf=[mf_fn(t, u) for u in range(nfrag)], last_in_stage=(tl == ks_per_stage - 1 or t == nk - 1)))
            strips.append(st)
            return st

        A0, A1 = self.ACC0, self.ACC1
        acc = lambda buf, u, mb: vr(buf + 16 * u + 4 * mb, 4)

        def dq(t, tt):
            r = t // 3
            return [(self.SRD_QKV, ('pq', 0), (r * 24 + 2 * tt + e) * 1024, self.PV, 1024, 2 * tt + e) for e in range(2)]

        def trq(t, tl, u):
            return (self.TQ + u, tl * 2048, 6144)

        def mfq(t, u):
            L = [(acc(A0, u, mb), self.xreg(t, mb)) for mb in range(4)]
            if u < 2:
                L.append((vr(self.HAL + 4 * u, 4), self.halo_x(t)))
            return L
        strip_generic('QKV', 18, 3, 4, dq, trq, mfq)

        def ffn(j, buf):
            def dg(t, tt):
                return [(self.SRD_GU, ('fb2', j), (32 * t + 16 * e) * 9216, self.DG, 16 * 9216, 2 * tt + e) for e in range(2)]

            def trg(t, tl, u):
                return (self.TG + u, tl * 2048, 512)

            def mfg(t, u):
                return [(acc(buf, u, mb), self.xreg(t, mb)) for mb in range(4)]
            return strip_generic(f'F{j}', 18, 3, 4, dg, trg, mfg)
        ffn(0, A1); ffn(1, A0); ffn(2, A1); ffn(3, A0)

        def dh(t, tt):
            return [(self.SRD_GU, ('fb2', 4), (32 * t) * 9216, self.DH, 32 * 9216, tt)]

        def trh(t, tl, u):
            return (self.TH + u, tl * 1024, 256)

        def mfh(t, u):
            return [(acc(A1, u, mb), self.xreg(t, mb)) for mb in range(4)]
        strip_generic('F4h', 18, 6, 2, dh, trh, mfh)

        self.kmap = [('F', 0, 0), ('F', 0, 1), ('F', 1, 0), ('F', 1, 1), ('F', 2, 0), ('F', 2, 1), ('O', 0, 0), ('O', 0, 1), ('F', 3, 0), ('F', 3, 1), ('X', 4, 0)]

        def p2rows(k):
            kind, j, tt = self.kmap[k]
            if kind == 'O':
                return self.SRD_WO, ('wo', 0), 32 * tt
            return self.SRD_WD, ('fbr', j), 32 * tt

        def p2full(Y, buf):
            def dp(t, tt):
                s_, b_, r0 = p2rows(t)
                return [(s_, b_ + ('y', Y), (r0 + 16 * e) * 1152, self.DP, 16 * 1152, 2 * tt + e) for e in range(2)]

            def trp(t, tl, u):
                return (self.TP + u, tl * 2048, 6144)

            def mfp(t, u):
                return [(acc(buf, u, mb), self.hreg(t, mb)) for mb in range(4)]
            return strip_generic(f'P{Y}', 11, 3, 4, dp, trp, mfp)
        def dph(t, tt):
            s_, b_, r0 = p2rows(t)
            return [(s_, b_, r0 * 1152 + 1024, self.DPH, 32 * 1152, tt)]

        def trph(t, tl, u):
            return (self.TPH + u, tl * 1024, 512)

        def mfph(t, u):
            return [(acc(A0, u, mb), self.hreg(t, mb)) for mb in range(4)]
        p2full(0, A0); p2full(1, A1)
        strip_generic('P4h', 11, 6, 2, dph, trph, mfph)
        p2full(2, A1); p2full(3, A0)
        self.strips = strips
        x0 = [st for st in strips if st['name'] == 'P0'][0]['ks'][9]['stage']
        first_deep = x0
        self.first_deep = first_deep
        self.slot = {}
        nst = len(self.stages)
        for sid in range(nst):
            if sid < first_deep or not self.o.get('deep', 1):
                self.slot[sid] = sid % 3
        if self.o.get('deep', 1):
            order = [3, 4, (x0 - 3) % 3, (x0 - 2) % 3, 5, (x0 - 1) % 3]
            for k, sid in enumerate(range(first_deep, nst)):
                self.slot[sid] = order[k % 6]

    def slot_base(self, sid):
        sl = self.slot[sid]
        return sl * SLOT if sl < 3 else HB + (sl - 3) * SLOT

    def dma_items(self, sid):
        sbase = self.slot_base(sid)
        items = []
        prev = None
        for (srd_, base, goff, vbase, qdelta, q) in self.stages[sid]:
            share = False
            lin = base is not None and base[0] == 'pq'
            if prev is not None:
                psrd, pbase, pgoff, pq, pj = prev
                j = pj + 1
                if psrd == srd_ and pbase == base and j <= (3 if lin else 2) and q == pq + 1 and goff == pgoff + qdelta:
                    share = True
            pre = []
            if not share:
                j = 0
                pre.append(I('s_add_u32', 'm0', sr(self.S_LDSW), str(sbase + q * 1024)))
                so = sr(self.S_SOFF)
                if lin:
                    pre.append(I('s_add_u32', so, sr(self.S_LDSW), str(goff)))
                elif base[0] == 'fb2':
                    pre.append(I('s_add_u32', so, sr(self.S_FB2 + base[1]), str(goff)))
                elif base[0] == 'fbr':
                    pre.append(I('s_add_u32', so, sr(self.S_FBR + base[1]), str(goff)))
                elif base[0] == 'wo':
                    pre.append(I('s_add_u32', so, sr(self.S_WOR), str(goff)))
                if base[-2] == 'y':
                    pre.append(I('s_add_u32', so, so, sr(self.S_YC + base[-1])))
            if pre:
                cur = pre
            items.append((cur, I('buffer_load_dwordx4', vr(vbase if lin else vbase + j), sr(srd_, 4), sr(self.S_SOFF),
                                 mods=f'offen offset:{1024 * j} lds' if j else 'offen lds', tag=('st', sid))))
            prev = (srd_, base, goff, q, j)
        return items

    def task_qkv_epi(self):
        T = []
        A0 = self.ACC0
        T.append(I('v_mov_b32', 'v4', '0')); T.append(I('v_mov_b32', 'v5', '0'))
        T.append(I('v_and_b32', 'v6', '127', 'v0')); T.append(I('v_mul_u32_u24', 'v6', str(XPITCH), 'v6'))
        T.append(I('v_add_u32', 'v6', str(XB + 136), 'v6'))
        T.append(I('ds_write_b64', 'v6', 'v[4:5]', flag='bar'))
        for u in range(4):
            for mb in range(4):
                a = A0 + 16 * u + 4 * mb
                T.append(I('v_cvt_pk_bf16_f32', vr(a), vr(a), vr(a + 1)))
                T.append(I('v_cvt_pk_bf16_f32', vr(a + 1), vr(a + 2), vr(a + 3)))
                T.append(I('ds_write_b64', vr(self.SW + u), vr(a, 2), mods=f'offset:{mb * 16 * SPITCH}', flag='bar'))
        for u in range(2):
            a = self.HAL + 4 * u
            T.append(I('v_cvt_pk_bf16_f32', vr(a), vr(a), vr(a + 1)))
            T.append(I('v_cvt_pk_bf16_f32', vr(a + 1), vr(a + 2), vr(a + 3)))
            T.append(I('s_lshl_b32', sr(self.S_T2), sr(self.S_RG2), '6'))
            T.append(I('s_add_u32', sr(self.S_T2), sr(self.S_T2), '16'))
            T.append(I('s_mul_i32', sr(self.S_T2), sr(self.S_T2), str(SPITCH)))
            T.append(I('v_subrev_u32', vr(a + 2), sr(self.S_T2), vr(self.SW + u)))
            T.append(I('ds_write_b64', vr(a + 2), vr(a, 2), flag='bar'))
        return T

    def task_attn(self):
        T = []
        B = self.ACC0
        Q = B
        K0_, K1_ = B + 12, B + 24
        S = B + 36
        O = B + 44
        TP = 4
        AB = vr(self.AB)

        def rd(dst, off):
            return [I('ds_read_b128', vr(dst, 4), AB, mods=f'offset:{off}'),
                    I('ds_read_b128', vr(dst + 4, 4), AB, mods=f'offset:{off + 16}'),
                    I('ds_read_b64', vr(dst + 8, 2), AB, mods=f'offset:{off + 32}')]
        rowoff = lambda w: (14 - 2 * w) * SPITCH
        T += rd(Q, rowoff(0) + 160)
        T += rd(K0_, rowoff(0) + 0)
        T += rd(K1_, rowoff(1) + 0)
        T.append(I('v_cmp_gt_u32', 'vcc', '32', vr(self.V_LANE)))
        T.append(I('v_mov_b32', vr(S), '0'))
        T.append([I('v_cmp_gt_u32', 'vcc', '32', vr(self.V_LANE)),
                  I('v_cndmask_b32', vr(Q + 9), vr(Q + 9), vr(S), 'vcc'),
                  I('v_cndmask_b32', vr(Q + 0), vr(S), vr(Q + 0), 'vcc')])
        for w in range(0, 8, 2):
            burst = []
            for ww, kb in ((w, K0_), (w + 1, K1_)):
                burst.append(I('v_dot2_f32_bf16', vr(S + ww), vr(Q), vr(kb), '0'))
            for j in range(1, 10):
                for ww, kb in ((w, K0_), (w + 1, K1_)):
                    burst.append(I('v_dot2_f32_bf16', vr(S + ww), vr(Q + j), vr(kb + j), vr(S + ww)))
            T.append(burst)
            if w + 2 < 8:
                T += rd(K0_, rowoff(w + 2)); T += rd(K1_, rowoff(w + 3))
            else:
                T += rd(K0_, rowoff(0) + 80); T += rd(K1_, rowoff(1) + 80)
        NEG = vr(Q + 10)
        T.append(I('v_mov_b32', NEG, sr(self.S_NEG)))
        for w in range(1, 8):
            T.append([I('v_cmp_le_u32', 'vcc', str(2 * w), vr(self.MG)), I('s_nop', '1'),
                      I('v_cndmask_b32', vr(S + w), NEG, vr(S + w), 'vcc')])
        MX = vr(Q + 11)
        T.append(I('v_max3_f32', MX, vr(S), vr(S + 1), vr(S + 2)))
        T.append(I('v_max3_f32', MX, MX, vr(S + 3), vr(S + 4)))
        T.append(I('v_max3_f32', MX, MX, vr(S + 5), vr(S + 6)))
        T.append(I('v_max_f32', MX, MX, vr(S + 7)))
        T.append(I('v_mul_f32', MX, sr(self.S_AC), MX))
        for w in range(8):
            T.append(I('v_fma_f32', vr(S + w), vr(S + w), sr(self.S_AC), '-' + MX))
        for w in range(8):
            T.append(I('v_exp_f32', vr(S + w), vr(S + w)))
        SUM = vr(Q + 10)
        T.append(I('v_add_f32', SUM, vr(S), vr(S + 1)))
        for w in range(2, 8):
            T.append(I('v_add_f32', SUM, SUM, vr(S + w)))
        T.append(I('v_rcp_f32', SUM, SUM))
        for w in range(8):
            T.append(I('v_mul_f32', vr(S + w), vr(S + w), SUM))
        for pp in range(4):
            T.append(I('v_cvt_pk_bf16_f32', vr(Q + pp), vr(S + 2 * pp), vr(S + 2 * pp + 1)))
        for pp in range(4):
            for half in range(2):
                burst = []
                for jj in range(5):
                    j = half * 5 + jj
                    a, b = TP + 2 * jj, TP + 2 * jj + 1
                    T.append(I('v_perm_b32', vr(a), vr(K1_ + j), vr(K0_ + j), sr(self.S_PERM0)))
                    T.append(I('v_perm_b32', vr(b), vr(K1_ + j), vr(K0_ + j), sr(self.S_PERM1)))
                    burst.append(I('v_dot2_f32_bf16', vr(O + 2 * j), vr(a), vr(Q + pp), '0' if pp == 0 else vr(O + 2 * j)))
                    burst.append(I('v_dot2_f32_bf16', vr(O + 2 * j + 1), vr(b), vr(Q + pp), '0' if pp == 0 else vr(O + 2 * j + 1)))
                T.append(burst)
            if pp < 3:
                T += rd(K0_, rowoff(2 * pp + 2) + 80)
                T += rd(K1_, rowoff(2 * pp + 3) + 80)
        OP = K0_
        for j in range(10):
            T.append(I('v_cvt_pk_bf16_f32', vr(OP + j), vr(O + 2 * j), vr(O + 2 * j + 1)))
        OW = vr(self.OW)
        for j in range(1, 9, 2):
            T.append(I('ds_write2_b32', OW, vr(OP + j), vr(OP + j + 1), mods=f'offset0:{j} offset1:{j + 1}', flag='bar'))
        t0 = TP
        T.append(I('v_add_u32', vr(t0), '36', OW))
        T.append([I('v_cmp_gt_u32', 'vcc', '32', vr(self.V_LANE)), I('s_nop', '1'),
                  I('v_cndmask_b32', vr(OP), vr(OP + 9), vr(OP), 'vcc'),
                  I('v_cndmask_b32', vr(t0), vr(t0), OW, 'vcc')])
        T.append(I('ds_write_b32', vr(t0), vr(OP), flag='bar'))
        return T

    def task_silu(self, buf, j):
        T = []
        NL = sr(self.S_NLOG2E)
        chains = []
        for bb in range(2):
            for mb in range(4):
                g = buf + 16 * bb + 4 * mb
                u = buf + 16 * (2 + bb) + 4 * mb
                c = []
                for r in range(4):
                    c.append(I('v_mul_f32', vr(u + r), vr(g + r), vr(u + r)))
                for r in range(4):
                    c.append(I('v_mul_f32', vr(g + r), NL, vr(g + r)))
                for r in range(4):
                    c.append(I('v_exp_f32', vr(g + r), vr(g + r)))
                for r in range(4):
                    c.append(I('v_add_f32', vr(g + r), '1.0', vr(g + r)))
                for r in range(4):
                    c.append(I('v_rcp_f32', vr(g + r), vr(g + r)))
                for r in range(4):
                    c.append(I('v_mul_f32', vr(u + r), vr(g + r), vr(u + r)))
                c.append(I('v_cvt_pk_bf16_f32', vr(g), vr(u), vr(u + 1)))
                c.append(I('v_cvt_pk_bf16_f32', vr(g + 1), vr(u + 2), vr(u + 3)))
                if j < 4:
                    c.append(I('ds_write_b64', vr(self.HW + bb), vr(g, 2), mods=f'offset:{j * 16384 + mb * 2048}', flag='bar'))
                chains.append(c)
        Ta, Tb = [], []
        for k, c in enumerate(chains):
            (Ta if k % 2 == 0 else Tb).extend(c)
        return Ta, Tb

    def task_silu_h(self, buf):
        TT = ([], [])
        NL = sr(self.S_NLOG2E)
        for mb in range(4):
            T = TT[mb % 2]
            g = buf + 4 * mb
            u = buf + 16 + 4 * mb
            for r in range(4):
                T.append(I('v_mul_f32', vr(u + r), vr(g + r), vr(u + r)))
            for r in range(4):
                T.append(I('v_mul_f32', vr(g + r), NL, vr(g + r)))
            for r in range(4):
                T.append(I('v_exp_f32', vr(g + r), vr(g + r)))
            for r in range(4):
                T.append(I('v_add_f32', vr(g + r), '1.0', vr(g + r)))
            for r in range(4):
                T.append(I('v_rcp_f32', vr(g + r), vr(g + r)))
            for r in range(4):
                T.append(I('v_mul_f32', vr(u + r), vr(g + r), vr(u + r)))
            T.append(I('v_cvt_pk_bf16_f32', vr(g), vr(u), vr(u + 1)))
            T.append(I('v_cvt_pk_bf16_f32', vr(g + 1), vr(u + 2), vr(u + 3)))
            T.append(I('ds_write_b64', vr(self.HWX), vr(g, 2), mods=f'offset:{mb * 16 * XPITCH}', flag='bar'))
        return TT

    def task_hload(self, k):
        kind, j, tt = self.kmap[k]
        T = []
        for mb in range(4):
            d = self.hreg(k, mb)
            if kind == 'F':
                T.append(I('ds_read_b128', d, vr(self.HR + tt), mods=f'offset:{j * 16384 + mb * 2048}', flag='bar', tag=('h', k, mb)))
            elif kind == 'X':
                T.append(I('ds_read_b128', d, vr(self.XR), mods=f'offset:{mb * 16 * XPITCH}', flag='bar', tag=('h', k, mb)))
            elif tt == 0:
                T.append(I('ds_read_b128', d, vr(self.XR), mods=f'offset:{mb * 16 * XPITCH + 64}', flag='bar', tag=('h', k, mb)))
        if kind == 'O' and tt == 1:
            for mb in range(4):
                for r in range(4):
                    T.append(I('v_accvgpr_write_b32', ar(16 * k + 4 * mb + r), '0'))
            grp = [I('s_mov_b64', 'exec', '0xffff')]
            for mb in range(4):
                grp.append(I('ds_read_b128', self.hreg(k, mb), vr(self.XR), mods=f'offset:{mb * 16 * XPITCH + 128}', flag='bar', tag=('h', k, mb)))
            grp.append(I('s_mov_b64', 'exec', '-1'))
            T.append(grp)
        return T

    def task_p2setup(self):
        T = []
        T0, T1 = sr(self.S_T0), sr(self.S_T1)
        S, II, W = sr(self.S_S), sr(self.S_I), sr(self.S_W)
        T += [I('s_lshl_b32', T0, S, '4'), I('s_add_u32', T0, T0, II)]
        T += [I('s_lshl_b32', T1, W, '13')]
        T += [I('s_lshl_b32', sr(self.S_MBO), T0, '16'), I('s_add_u32', sr(self.S_MBO), sr(self.S_MBO), T1),
              I('s_add_u32', sr(self.S_MBO), sr(self.S_MBO), str(MB_OFF))]
        T += [I('s_xor_b32', sr(self.S_MBP), sr(self.S_MBO), str(16 << 16))]
        T += [I('s_lshl_b32', sr(self.S_HPB), T0, '14'), I('s_lshl_b32', T1, W, '12'), I('s_add_u32', sr(self.S_HPB), sr(self.S_HPB), T1),
              I('s_add_u32', sr(self.S_HPB), sr(self.S_HPB), str(HP_OFF))]
        T += [I('s_lshr_b32', T0, S, '1'), I('s_lshl_b32', T0, T0, '4'), I('s_add_u32', T0, T0, II), I('s_lshl_b32', sr(self.S_FPB), T0, '17'),
              I('s_lshl_b32', T1, W, '13'), I('s_add_u32', sr(self.S_FPB), sr(self.S_FPB), T1)]
        T += [I('s_lshl_b32', sr(self.S_FOFF), 's2', '7'), I('s_add_u32', sr(self.S_FOFF), sr(self.S_FOFF), str(FL_OFF)),
              I('s_xor_b32', sr(self.S_FSH), sr(self.S_FOFF), str(8 << 7))]
        T += [I('s_lshl_b32', T1, W, '2'), I('s_add_u32', sr(self.S_FOFF), sr(self.S_FOFF), T1)]
        T += [I('s_mov_b32', sr(self.S_NEG), '0xffff0000')]
        return T

    def _pack_store(self, T, buf, pair, mb, soff_reg, first, flags, tag=None):
        a = buf + 16 * (2 * pair) + 4 * mb
        b = buf + 16 * (2 * pair + 1) + 4 * mb
        T.append(I('v_cvt_pk_bf16_f32', vr(a), vr(a), vr(a + 1)))
        T.append(I('v_cvt_pk_bf16_f32', vr(a + 1), vr(a + 2), vr(a + 3)))
        T.append(I('v_cvt_pk_bf16_f32', vr(a + 2), vr(b), vr(b + 1)))
        T.append(I('v_cvt_pk_bf16_f32', vr(a + 3), vr(b + 2), vr(b + 3)))
        T += first
        T.append(I('buffer_store_dwordx4', vr(a, 4), vr(self.PV), sr(self.SRD_P, 4), sr(self.S_PO),
                   mods=(f'offen offset:{1024 * mb}' if mb else 'offen') + flags, tag=tag))

    def task_send(self, buf, k):
        T = []
        for pair in range(2):
            for mb in range(4):
                first = [I('s_add_u32', sr(self.S_PO), sr(self.S_MBO), str(k * 32768 + pair * 4096))] if mb == 0 else []
                self._pack_store(T, buf, pair, mb, None, first, ' sc1', tag=('mb', k))
        return T

    def item_signal(self, k):
        return ('signal', k)

    def task_keep(self, buf, k):
        T = []
        M = sr(self.S_PERM0 + 2)
        for pair in range(2):
            for mb in range(4):
                a = buf + 16 * (2 * pair) + 4 * mb
                b = buf + 16 * (2 * pair + 1) + 4 * mb
                q = (self.INC if k == 2 else self.INC2)[pair * 4 + mb]
                t0, t1 = 244, 245
                for half, r in ((0, a), (1, b)):
                    for d in range(2):
                        src = vr(q + 2 * half + d)
                        T.append(I('v_lshlrev_b32', vr(t0), '16', src))
                        T.append(I('v_and_b32', vr(t1), M, src))
                        T.append(I('v_add_f32', vr(r + 2 * d), vr(r + 2 * d), vr(t0)))
                        T.append(I('v_add_f32', vr(r + 2 * d + 1), vr(r + 2 * d + 1), vr(t1)))
                        t0, t1 = (246, 247) if t0 == 244 else (244, 245)
                first = []
                if mb == 0:
                    first = [I('s_lshl_b32', sr(self.S_PO), sr(self.S_YC + k), '7'),
                             I('s_add_u32', sr(self.S_PO), sr(self.S_PO), sr(self.S_FPB)),
                             I('s_add_u32', sr(self.S_PO), sr(self.S_PO), str(pair * 4096))]
                self._pack_store(T, buf, pair, mb, None, first, ['', ' nt', ' sc1'][self.o.get('stflag', 0)])
        return T

    def items_incoming(self, k):
        T = []
        for pair in range(2):
            for mb in range(4):
                if mb == 0:
                    T.append(I('s_add_u32', sr(self.S_PO2), sr(self.S_MBP), str((k - 2) * 32768 + pair * 4096)))
                T.append(I('buffer_load_dwordx4', vr((self.INC if k == 2 else self.INC2)[pair * 4 + mb], 4), vr(self.PV), sr(self.SRD_P, 4), sr(self.S_PO2),
                           mods=(f'offen offset:{1024 * mb}' if mb else 'offen') + ' sc1'))
        return T

    def task_half(self, buf):
        T = []
        for mb in range(4):
            first = [I('s_mov_b32', sr(self.S_PO), sr(self.S_HPB))] if mb == 0 else []
            self._pack_store(T, buf, 0, mb, None, first, ['', ' nt', ' sc1'][self.o.get('stflag', 0)])
        return T

    def emit_signal(self, k):
        P = self.P
        P.wait_vm_tag(('mb', k))
        P.e('v_mov_b32', 'v9', '1')
        P.e('v_mov_b32', 'v10', str(16 * k))
        P.e('s_mov_b64', 'exec', '1')
        P.e('buffer_store_dword', 'v9', 'v10', sr(self.SRD_P, 4), sr(self.S_FOFF), mods='offen sc1')
        P.e('s_mov_b64', 'exec', '-1')

    def poll_issue(self, k):
        return [I('v_mov_b32', 'v11', str(16 * (k - 2))),
                I('buffer_load_dwordx4', vr(self.V_POLL, 4), 'v11', sr(self.SRD_P, 4), sr(self.S_FSH), mods='offen sc1')]

    def emit_poll_check(self, lab):
        P = self.P
        T2 = sr(self.S_T2)
        V = self.V_POLL
        P.e('v_and_b32', vr(V), vr(V), vr(V + 1)); P.e('v_and_b32', vr(V + 2), vr(V + 2), vr(V + 3)); P.e('v_and_b32', vr(V), vr(V), vr(V + 2))
        P.e('v_readfirstlane_b32', T2, vr(V))
        P.e('s_cmp_eq_u32', T2, '1')
        P.raw(f"  s_cbranch_scc1 {lab}_ok")
        P.label(f"{lab}_spin")
        P.raw("  s_sleep 1")
        P.raw(f"  buffer_load_dwordx4 v[{V}:{V + 3}], v11, s[{self.SRD_P}:{self.SRD_P + 3}], {sr(self.S_FSH)} offen sc1")
        P.raw("  s_waitcnt vmcnt(0)")
        P.raw(f"  v_and_b32 v{V}, v{V}, v{V + 1}")
        P.raw(f"  v_and_b32 v{V + 2}, v{V + 2}, v{V + 3}")
        P.raw(f"  v_and_b32 v{V}, v{V}, v{V + 2}")
        P.raw("  s_nop 1")
        P.raw(f"  v_readfirstlane_b32 {T2}, v{V}")
        P.raw("  s_nop 3")
        P.raw(f"  s_cmp_eq_u32 {T2}, 1")
        P.raw(f"  s_cbranch_scc0 {lab}_spin")
        P.label(f"{lab}_ok")

    def check_b(self, g):
        ins = g['inst']
        b = ins.ops[2]
        want = g['btag']
        got = self.P.regtag.get(regs_of(b)[0])
        assert got == want, (g['ks']['strip'], g['ks']['t'], b, want, got)

    def emit_setup(self, it):
        pre, ins = it
        if self.o.get('nodma', 0) and ins.tag[0] == 'st' and ins.tag[1] >= 2:
            return
        if self.cur_setup is not pre:
            self.P.emit(pre)
            self.cur_setup = pre

    def emit_dma(self, it):
        pre, ins = it
        if self.o.get('nodma', 0) and ins.tag[0] == 'st' and ins.tag[1] >= 2:
            return
        if self.cur_setup is not pre:
            self.P.emit(pre)
            self.cur_setup = pre
        self.P.emit(ins)

    XSLOT = 27 * 1024

    def xf_dma(self, r):
        items = []
        tag = ('st', r)
        for mm in range(2):
            pre = [I('s_add_u32', 'm0', sr(self.S_XL), str(HB + (r % 3) * 12288 + mm * 3072)),
                   I('s_add_u32', sr(self.S_SOFF2), sr(self.S_XF), str((mm * 18 + 3 * r) * 1024))]
            for k in range(3):
                items.append((pre, I('buffer_load_dwordx4', vr(self.PV), sr(self.SRD_XF, 4), sr(self.S_SOFF2),
                                     mods=(f'offen offset:{1024 * k} lds' if k else 'offen lds'), tag=tag)))
        pre = [I('s_add_u32', 'm0', sr(self.S_XH), str(HB + 73728 + (r % 3) * 3072)),
               I('s_add_u32', sr(self.S_SOFF2), sr(self.S_XF + 1), str(3 * r * 1024))]
        items.append((pre, I('buffer_load_dwordx4', vr(self.PV), sr(self.SRD_XF, 4), sr(self.S_SOFF2), mods='offen lds', tag=tag)))
        return items

    def xf_reads(self, t):
        T = []
        r, tt = divmod(t, 3)
        for mb in range(4):
            T.append(I('ds_read_b128', self.xreg(t, mb), vr(self.XA), mods=f'offset:{(r % 3) * 12288 + (mb * 3 + tt) * 1024}', flag='bar', tag=('x', t, mb)))
        T.append(I('ds_read_b128', self.halo_x(t), vr(self.XA + 1), mods=f'offset:{(r % 3) * 3072 + tt * 1024}', flag='bar', tag=('x', t, 4)))
        return T

    def stage_dma(self, sid):
        a = self.dma_items(sid)
        if sid < 6:
            b = self.xf_dma(sid)
            out = []
            out = b[:3] + a[:3] + b[3:] + a[3:]
            return out
        return a

    def emit_all(self):
        P = self.P
        e = P.e
        o = self.o
        self.prologue()
        self.build()
        self.cur_setup = None
        pst = []

        def pstamp():
            if o.get('prof', 0) == 3:
                r = 72 + 2 * len(pst)
                P.raw(f"  s_memtime s[{r}:{r + 1}]")
                pst.append(r)
        pstamp()
        for it in self.stage_dma(0):
            self.emit_dma(it)
        pstamp()
        for it in self.stage_dma(1):
            self.emit_dma(it)
        pstamp()
        self.addr_first(e)
        pstamp()

        frags = []
        KS = []
        for st in self.strips:
            for ks in st['ks']:
                ks['strip'] = st['name']
                KS.append(ks)
                for u in range(len(ks['frags'])):
                    frags.append((ks, u))
        NQ = len(frags)
        NFR = self.NFR
        DIST = NFR - 1
        fr = lambda q: self.FR + 4 * (q % NFR)

        def frag_reads(q):
            ks, u = frags[q]
            areg, off, hd = ks['frags'][u]
            slot = self.slot[ks['stage']]
            if slot >= 3:
                areg = self.TD + (areg - self.TP)
                slot -= 3
            return [I('ds_read_b64_tr_b16', vr(fr(q) + 2 * h, 2), vr(areg), mods=f'offset:{slot * SLOT + off + h * hd}', flag='bar') for h in range(2)]

        gaps = []
        qi = 0
        for ks in KS:
            for u in range(len(ks['frags'])):
                mfs = ks['mf'][u]
                for mi, (accr, breg) in enumerate(mfs):
                    first = ks['t'] == 0
                    btag = ('h', ks['t'], mi) if ks['strip'][0] == 'P' else ('x', ks['t'], mi)
                    gaps.append(dict(q=qi, ks=ks, u=u, mi=mi, n=len(mfs), btag=btag,
                                     inst=I('v_mfma_f32_16x16x32_bf16', accr, vr(fr(qi), 4), breg, '0' if first else accr)))
                qi += 1
        NG = len(gaps)
        sf, sl, frag_first, ks_first = {}, {}, {}, {}
        for gi, g in enumerate(gaps):
            sf.setdefault(g['ks']['strip'], gi)
            sl[g['ks']['strip']] = gi
            frag_first.setdefault(g['q'], gi)
            ks_first.setdefault((g['ks']['strip'], g['ks']['t']), gi)
        fstage = [frags[q][0]['stage'] for q in range(NQ)]
        NST = len(self.stages)
        first_frag_of_stage = {}
        for q in range(NQ):
            first_frag_of_stage.setdefault(fstage[q], q)
        stage_of0 = lambda name, k: [st for st in self.strips if st['name'] == name][0]['ks'][k]['stage']
        read_pos, bar_pos = {}, {}
        LAG = o.get('barlag', 2)
        for q in range(NQ):
            s = fstage[q]
            p = q - DIST
            if s > 0:
                lastq_prev = first_frag_of_stage[s] - 1
                bp = read_pos[lastq_prev] + LAG
                bar_pos[s - 1] = bp
                p = max(p, bp)
            read_pos[q] = p
            assert p < q or q == 0, (q, p)
            assert p >= q - NFR + 1
        bars_at = {}
        for s, p in bar_pos.items():
            bars_at.setdefault(p, []).append(s)
        bar_gap = {s: frag_first[p] for s, p in bar_pos.items()}
        rq = []
        for q in range(NQ):
            if read_pos[q] < 0:
                continue
            for h, ins in enumerate(frag_reads(q)):
                rq.append((frag_first[read_pos[q]], frag_first[q] - o.get('minlead', 7), ins, frag_first[read_pos[q]] + 2 * h))

        self.hfree_bar = None
        dq = []
        b_hfree = bar_gap[stage_of0('P0', 9)]
        b_h6 = bar_gap[stage_of0('P0', 0)]
        prev_user = {}
        last_issue = 0
        for sid in range(NST):
            sl_ = self.slot[sid]
            pu = prev_user.get(sl_)
            prev_user[sl_] = sid
            if sid < 2:
                continue
            if pu is not None:
                lo = bar_gap[pu]
            elif sl_ == 5:
                lo = b_hfree
            elif sl_ >= 3:
                lo = b_h6
            else:
                lo = 0
            hi = bar_gap[sid - 1]
            items = self.stage_dma(sid)
            n = len(items)
            lo = max(lo, last_issue)
            nb = min(b for b in list(bar_gap.values()) + [NG] if b > lo)
            span = max(n, int((nb - lo - 2) * (o.get('dmaspan', 60) if sid >= 8 else 95) / 100))
            step = max(o.get('dmastep', 5) if sid >= 8 else 4, span // n) if sl_ < 3 or sid < self.first_deep else o.get('dmastep', 5)
            if sid >= self.first_deep:
                step = o.get('dmastep', 4)
            for k, it in enumerate(items):
                gi_ = lo + 1 + k * step
                assert gi_ < hi, (sid, gi_, hi)
                dq.append((gi_, it))
            last_issue = lo + 1 + (n - 1) * step
        dq.sort(key=lambda x: x[0])

        LAT = 10
        strip = lambda name: [st for st in self.strips if st['name'] == name][0]
        stage_of = lambda name, k: strip(name)['ks'][k]['stage']

        def next_bar(gi):
            return min(b for b in bar_gap.values() if b > gi)
        tasks = []

        def add(st_, en_, lst):
            if isinstance(lst, tuple):
                for l in lst:
                    tasks.append([st_, en_, l, 0])
            else:
                tasks.append([st_, en_, lst, 0])
        add(2, 110, self.task_late_setup())
        rq2 = []
        for t in range(3, 18):
            r = t // 3
            dl = ks_first[('QKV', t)] - 8
            for ins in self.xf_reads(t):
                rq2.append((bar_gap[r - 1] + 1, dl, ins))
        bq = bar_gap[stage_of('F0', 0)] if o.get('qkvbar', 1) == 0 else bar_gap[stage_of('F0', 3)]
        add(sf['F0'] + LAT, bq - 1, self.task_qkv_epi())
        add(bq + 1, sl['F0'], self.task_attn())
        add(sf['F1'] + LAT, sl['F1'], self.task_silu(self.ACC1, 0))
        add(sf['F2'] + LAT, sl['F2'], self.task_silu(self.ACC0, 1))
        add(sf['F3'] + LAT, sl['F3'], self.task_silu(self.ACC1, 2))
        add(sf['F4h'] + LAT, sl['F4h'], self.task_silu(self.ACC0, 3))
        b_f4h = bar_gap[stage_of('P0', 3)]
        add(sf['P0'] + LAT, b_f4h - 1, self.task_silu_h(self.ACC1))
        bF2 = next_bar(sl['F3'])
        bF3 = next_bar(sl['F4h'])
        for k in range(11):
            if k < 8:
                st_ = ks_first[('F4h', k + 1)] + 1
                if k in (4, 5):
                    st_ = max(st_, bF2 + 1)
            elif k < 10:
                st_ = max(bF3 + 1, ks_first[('F4h', k + 1)] + 1)
            else:
                st_ = b_f4h + 1
            dl = ks_first[('P0', k)] - 8
            if k < 6:
                dl = min(dl, bar_gap[stage_of('P0', 0)] - 10)
            assert st_ < dl, (k, st_, dl)
            for ins in self.task_hload(k):
                rq2.append((st_, dl, ins))
        rq2.sort(key=lambda x: x[1])
        if o.get('deep', 1):
            add(sf['P0'] + 2, sf['P0'] + 30, [I('v_add_u32', vr(self.TD + k), str(HB), vr(self.TP + k)) for k in range(6)])
        actions = {}
        prebar = {}
        add(sf['F4h'] + 2, sf['F4h'] + 6, self.task_p2setup())
        add(sf['P1'] + 40, sf['P1'] + 85, self.task_send(self.ACC0, 0))
        actions[sf['P4h'] + o.get('sig0', 50)] = lambda: self.emit_signal(0)
        add(sf['P4h'] + LAT, sf['P4h'] + 80, self.task_send(self.ACC1, 1))
        actions[sf['P2'] + o.get('sig1', 130)] = lambda: self.emit_signal(1)
        add(sf['P2'] + LAT, sf['P2'] + 60, self.task_half(self.ACC0))
        for k, nm, pa, kb in ((2, 'P2', 20, 6), (3, 'P3', 20, o.get('kb3', 3))):
            add(sf[nm] + pa, sf[nm] + pa + 2, self.poll_issue(k))
            sb = stage_of(nm, kb)
            prebar[sb] = (lambda kk=k: self.emit_poll_check(f"K1_poll{kk}"))
            add(bar_gap[sb] + 1, bar_gap[sb] + 30, self.items_incoming(k))
        add(sf['P3'] + o.get('keepat', 50), sl['P3'], self.task_keep(self.ACC1, 2))

        if o.get('notask', 0):
            tasks = []; actions = {}; prebar = {}
        PROF = o.get('prof', 0)
        names = ['QKV', 'F0', 'F1', 'F2', 'F3', 'F4h', 'P0', 'P1', 'P4h', 'P2', 'P3']
        pfrom = names[o.get('pfrom', 0)]
        stamps = list(pst)

        def stamp():
            if PROF:
                r = 72 + 2 * len(stamps)
                P.raw(f"  s_memtime s[{r}:{r + 1}]")
                stamps.append(r)

        P.wait_lds_flagged()
        P.wait_vm_tag(('st', 0))
        if PROF == 3:
            stamp()
        P.barrier()
        if PROF == 3:
            stamp()
        P.emit(self.xf_reads(0))
        for q in range(NQ):
            if read_pos[q] < 0:
                P.emit(frag_reads(q))
        P.emit(self.xf_reads(1))
        P.emit(self.xf_reads(2))
        stamp()

        def icost(x):
            if isinstance(x, list):
                if x[0].op.startswith('v_dot'):
                    return 100
                return sum(y.cost for y in x)
            return x.cost

        def kind(x):
            return x[-1].kind if isinstance(x, list) else x.kind
        SLACK = o.get('slack', 5)
        LEAD = o.get('lead', 4)
        ri = 0
        di = 0
        last_ds_gap = -10
        for gi, g in enumerate(gaps):
            if PROF == 1 and gi in sf.values() and gi > 0:
                stamp()
            if g['mi'] == 0:
                p = g['q']
                if PROF in (2, 3) and len(stamps) < 12 and gi >= sf[pfrom] and bars_at.get(p):
                    stamp()
                for s in bars_at.get(p, []):
                    p4 = PROF == 4 and gi >= sf[pfrom] and len(stamps) < 11
                    if s in prebar:
                        prebar[s]()
                    if p4: stamp()
                    if not o.get('nolgkm', 0):
                        P.wait_lds_flagged()
                    if p4: stamp()
                    P.wait_vm_tag(('st', s + 1))
                    if p4: stamp()
                    if not o.get('nobar', 0):
                        P.barrier()
                    if p4: stamp()
            self.check_b(g)
            if not o.get('nomfma', 0):
                P.emit(g['inst'])
            cap = 8
            ds = False
            while ri < len(rq) and rq[ri][3] <= gi:
                urgent = rq[ri][1] <= gi
                if ds and not urgent:
                    break
                P.emit(rq[ri][2]); ri += 1
                cap -= 4; ds = True
            while True:
                el = [x for x in rq2 if x[0] <= gi]
                if not el:
                    break
                x = el[0]
                isds = kind(x[2]) in ('ldsr',) or isinstance(x[2], list)
                urgent = x[1] - 2 * len([y for y in el if y[1] == x[1]]) <= gi
                if urgent or (isds and not ds and cap >= 4) or (not isds and cap >= 4):
                    P.emit(x[2]); rq2.remove(x); cap -= 4
                    if isds:
                        ds = True
                    if not urgent:
                        break
                else:
                    break
            if di < len(dq) and dq[di][0] <= gi and (cap == 8 or dq[di][0] <= gi - 3):
                self.emit_dma(dq[di][1]); di += 1; cap = 0
                if di < len(dq) and o.get('hoist', 1):
                    self.emit_setup(dq[di][1])
            progress = True
            while progress:
                progress = False
                for t_ in tasks:
                    st_, en_, lst, idx = t_
                    if gi < st_ or idx >= len(lst):
                        continue
                    force = gi >= en_
                    target = len(lst) if force else len(lst) * (gi - st_ + 1) / (en_ - st_ + 1)
                    x = lst[idx]
                    c = icost(x); k = kind(x)
                    behind = idx < target - SLACK
                    if not force and idx >= target + LEAD:
                        continue
                    if k in ('ldsr', 'ldsw'):
                        fit = (not ds) and cap >= c
                    elif c >= 100:
                        fit = cap == 8 and idx < target
                    else:
                        fit = cap >= c
                    if fit or force or (behind and cap > 0):
                        P.emit(x); cap -= c; t_[3] = idx + 1
                        if k in ('ldsr', 'ldsw'):
                            ds = True
                        progress = True
            if gi in actions:
                actions[gi]()
        assert ri == len(rq) and di == len(dq) and not rq2, (ri, len(rq), di, len(dq), len(rq2))
        for t_ in tasks:
            assert t_[3] == len(t_[2])
        while PROF >= 2 and len(stamps) < 12:
            stamp()
        stamp()
        if not o.get('notask', 0):
            P.emit(self.task_keep(self.ACC0, 3))
        if PROF:
            P.wait_vm(0)
            stamp()
            P.raw("  s_memrealtime s[100:101]")
            P.raw("  s_waitcnt lgkmcnt(0)")
            e('s_add_u32', 's4', 's14', str(64 << 20)); e('s_addc_u32', 's5', 's15', '0')
            srd(P, 8, 's4', 's5', 1 << 20)
            e('s_lshl_b32', 's6', 's2', '2'); e('s_add_u32', 's6', 's6', sr(self.S_W)); e('s_lshl_b32', 's6', 's6', '7')
            e('v_mov_b32', 'v4', '0')
            allst = [46] + stamps + [100, 98]
            for k, r in enumerate(allst):
                e('v_mov_b32', 'v5', sr(r))
                e('buffer_store_dword', 'v5', 'v4', 's[8:11]', 's6', mods=f'offen offset:{4 * k}')
        tl_end(P, self.o, 1)
        P.label("K1_end")
        P.raw("  s_endpgm")


def gen_k1(opts):
    k = K1(opts)
    name = "k1_main_kernel"
    kernel_begin(k.P, name)
    k.emit_all()
    print("K1 stats", k.P.stats, file=sys.stderr)
    return k.P.text(), descriptor(name, 512, 256, 102), (name, 256, 256, LDS_TOTAL)


def main():
    out = sys.argv[1]
    opts = {}
    for a in sys.argv[2:]:
        kk, v = a.split('='); opts[kk] = int(v)
    parts = [gen_k0(opts), gen_k1(opts), gen_k2(opts)]
    txt = header_comments([p[2] for p in parts])
    for p in parts:
        txt += p[0]
    txt += '.section .rodata,"a"\n'
    for p in parts:
        txt += p[1]
    open(out, 'w').write(txt)


if __name__ == "__main__":
    main()
```

```python
import sys, math
from asmlib import *

KN = "parallel_sum__sliding_local_dilated__swiglu_ffn__prompt"

XF_OFF = 0
XF_SIZE = 128 * 18 * 1024
PQ_OFF = 5 << 19
PQ_SIZE = 16 * 147456
P_OFF = 6 << 20
P_TILE = 144 * 1024
FP_OFF = 0
HP_OFF = 8 * 16 * 131072
MB_OFF = HP_OFF + 256 * 16384
FL_OFF = MB_OFF + 256 * 65536
P_SIZE = FL_OFF + 256 * 128

SLOT = 24576
RING = 0
HB = 3 * SLOT
SB = HB + 16384
SPITCH = 272
XB = HB + 4 * 16384
XPITCH = 144
LDS_TOTAL = XB + 128 * XPITCH

LOG2E = 1.4426950408889634


def f2h(x):
    import struct
    return "0x%08x" % struct.unpack('<I', struct.pack('<f', x))[0]


def header_comments(launches):
    L = []
    L.append(";   0 A_x, 8 A_wqkv, 16 A_wo, 24 B_x, 32 B_w_gate, 40 B_w_up, 48 B_w_down, 56 d_out, 64 d_debug, 72 d_ws")
    L.append("; Generated by a hand-written python generator (work/gen.py).")
    for (k, g, b, lds) in launches:
        L.append(f"; @launch kernel={k} grid=({g},1,1) block=({b},1,1) lds={lds}")
    L.append('.amdgcn_target "amdgcn-amd-amdhsa--gfx950"')
    L.append(".text")
    return "\n".join(L) + "\n"


def kernel_begin(P, name):
    P.raw(f".globl {name}")
    P.raw(".p2align 8")
    P.raw(f".type {name},@function")
    P.raw(f"{name}:")


def descriptor(name, vgpr, accum, sgpr=102):
    return "\n".join([
        ".p2align 6", f".amdhsa_kernel {name}",
        f"  .amdhsa_next_free_vgpr {vgpr}", f"  .amdhsa_next_free_sgpr {sgpr}", f"  .amdhsa_accum_offset {accum}",
        "  .amdhsa_group_segment_fixed_size 0", "  .amdhsa_kernarg_size 80", "  .amdhsa_user_sgpr_count 2",
        "  .amdhsa_user_sgpr_kernarg_segment_ptr 1", "  .amdhsa_system_sgpr_workgroup_id_x 1", ".end_amdhsa_kernel"]) + "\n"


def tl_start(P, opts):
    if opts.get('tl', 0):
        P.raw("  s_memrealtime s[96:97]")


def tl_end(P, opts, kidx, wsreg_lo=None):
    if not opts.get('tl', 0):
        return
    P.raw("  s_waitcnt vmcnt(0)")
    P.raw("  s_memrealtime s[98:99]")
    P.raw("  s_load_dwordx2 s[94:95], s[0:1], 72")
    P.raw("  s_waitcnt lgkmcnt(0)")
    P.raw(f"  s_add_u32 s94, s94, {(80 << 20) + kidx * 65536}")
    P.raw("  s_addc_u32 s95, s95, 0")
    P.raw("  s_mov_b32 s88, s94")
    P.raw("  s_and_b32 s89, s95, 0xffff")
    P.raw("  s_mov_b32 s90, 65536")
    P.raw("  s_mov_b32 s91, 0x20000")
    P.raw("  s_lshl_b32 s92, s2, 3")
    P.raw("  v_mov_b32 v2, s96")
    P.raw("  v_mov_b32 v3, s98")
    P.raw("  v_mov_b32 v4, 0")
    P.raw("  v_cmp_eq_u32 vcc, 0, v0")
    P.raw("  s_and_saveexec_b64 s[86:87], vcc")
    P.raw("  buffer_store_dwordx2 v[2:3], v4, s[88:91], s92 offen")
    P.raw("  s_mov_b64 exec, s[86:87]")


def srd(P, d, lo, hi, size):
    P.e('s_mov_b32', sr(d), lo)
    P.e('s_and_b32', sr(d + 1), hi, '0xffff')
    P.e('s_mov_b32', sr(d + 2), str(size))
    P.e('s_mov_b32', sr(d + 3), '0x20000')


def gen_k0(opts):
    P = Prog()
    name = "k0_ln_kernel"
    kernel_begin(P, name)
    NPK = 288
    NCP = 8 if opts.get('codepf', 1) else 0
    P.e('s_cmp_ge_u32', 's2', str(128 + NPK + NCP))
    P.raw("  s_cbranch_scc1 K0_end")
    tl_start(P, opts)
    if NCP:
        P.e('s_cmp_ge_u32', 's2', str(128 + NPK))
        P.raw("  s_cbranch_scc1 K0_code")
    P.e('s_cmp_ge_u32', 's2', '128')
    P.raw("  s_cbranch_scc1 K0_pack")
    P.e('s_load_dwordx2', 's[4:5]', 's[0:1]', '0')
    P.e('s_load_dwordx2', 's[6:7]', 's[0:1]', '72')
    P.e('v_and_b32', 'v1', '63', 'v0')
    P.e('v_lshrrev_b32', 'v2', '6', 'v0')
    P.e('v_and_b32', 'v3', '15', 'v1')
    P.e('v_lshrrev_b32', 'v4', '4', 'v1')
    P.e('v_readfirstlane_b32', 's20', 'v2')
    P.raw("  s_waitcnt lgkmcnt(0)")
    srd(P, 8, 's4', 's5', 2048 * 1152)
    srd(P, 12, 's6', 's7', XF_OFF + XF_SIZE)
    P.e('s_lshl_b32', 's21', 's2', '4')
    P.e('v_add_u32', 'v5', 's21', 'v3')
    P.e('s_movk_i32', 's22', '1152')
    P.e('v_mul_lo_u32', 'v5', 'v5', 's22')
    P.e('v_lshlrev_b32', 'v6', '4', 'v4')
    P.e('v_add_u32', 'v5', 'v5', 'v6')
    P.e('s_mul_i32', 's23', 's20', '576')
    X = 16
    for t in range(9):
        P.e('buffer_load_dwordx4', vr(X + 4 * t, 4), 'v5', 's[8:11]', 's23', mods=f'offen offset:{64 * t}')
    P.e('s_add_u32', 's28', 's6', str(P_OFF + FL_OFF)); P.e('s_addc_u32', 's29', 's7', '0')
    srd(P, 32, 's28', 's29', 256 * 128)
    P.e('v_mov_b32', 'v60', '0'); P.e('v_mov_b32', 'v61', '0'); P.e('v_mov_b32', 'v62', '0'); P.e('v_mov_b32', 'v63', '0')
    P.e('v_lshlrev_b32', 'v59', '4', 'v0')
    P.e('s_lshl_b32', 's30', 's2', '8')
    P.e('v_cmp_gt_u32', 'vcc', '16', 'v0')
    P.e('s_and_saveexec_b64', 's[36:37]', 'vcc')
    P.raw("  s_cbranch_execz K0_nz")
    P.raw("  buffer_store_dwordx4 v[60:63], v59, s[32:35], s30 offen")
    P.label("K0_nz")
    P.e('s_mov_b64', 'exec', 's[36:37]')
    P.e('v_mov_b32', 'v7', '0x3f803f80')
    P.e('v_mov_b32', 'v8', '0'); P.e('v_mov_b32', 'v9', '0'); P.e('v_mov_b32', 'v10', '0'); P.e('v_mov_b32', 'v11', '0')
    for j in range(36):
        P.e('v_dot2c_f32_bf16', 'v8' if j % 2 == 0 else 'v10', vr(X + j), 'v7')
        P.e('v_dot2c_f32_bf16', 'v9' if j % 2 == 0 else 'v11', vr(X + j), vr(X + j))
    P.e('v_add_f32', 'v8', 'v8', 'v10')
    P.e('v_add_f32', 'v9', 'v9', 'v11')
    for sw in ('v_permlane32_swap_b32', 'v_permlane16_swap_b32'):
        P.e('v_mov_b32', 'v10', 'v8'); P.e('v_mov_b32', 'v11', 'v9')
        P.e('v_mov_b32', 'v12', 'v8'); P.e('v_mov_b32', 'v13', 'v9')
        P.e(sw, 'v10', 'v12'); P.e(sw, 'v11', 'v13')
        P.e('v_add_f32', 'v8', 'v10', 'v12'); P.e('v_add_f32', 'v9', 'v11', 'v13')
    P.e('v_lshlrev_b32', 'v10', '3', 'v0')
    P.e('ds_write_b64', 'v10', 'v[8:9]')
    P.e('v_xor_b32', 'v11', '512', 'v10')
    P.wait_lgkm(0)
    P.barrier()
    P.e('ds_read_b64', 'v[12:13]', 'v11')
    P.e('v_add_f32', 'v8', 'v8', 'v12')
    P.e('v_add_f32', 'v9', 'v9', 'v13')
    P.e('v_mul_f32', 'v8', f2h(1.0 / 576), 'v8')
    P.e('v_mul_f32', 'v9', f2h(1.0 / 576), 'v9')
    P.e('v_fma_f32', 'v9', '-v8', 'v8', 'v9')
    P.e('v_max_f32', 'v9', '0', 'v9')
    P.e('v_add_f32', 'v9', f2h(1e-5), 'v9')
    P.e('v_rsq_f32', 'v9', 'v9')
    P.e('v_mul_f32', 'v8', 'v8', 'v9')
    P.e('v_sub_f32', 'v8', '0', 'v8')
    P.e('s_mov_b32', 's24', '0xffff0000')
    for j in range(36):
        a, b = 10 + 2 * (j % 2), 11 + 2 * (j % 2)
        P.e('v_lshlrev_b32', vr(a), '16', vr(X + j))
        P.e('v_and_b32', vr(b), 's24', vr(X + j))
        P.e('v_fma_f32', vr(a), vr(a), 'v9', 'v8')
        P.e('v_fma_f32', vr(b), vr(b), 'v9', 'v8')
        P.e('v_cvt_pk_bf16_f32', vr(X + j), vr(a), vr(b))
    P.e('v_lshlrev_b32', 'v6', '4', 'v1')
    P.e('s_mul_i32', 's25', 's2', str(18 * 1024))
    P.e('s_mul_i32', 's26', 's20', str(9 * 1024))
    P.e('s_add_u32', 's25', 's25', 's26')
    for t in range(9):
        if t % 4 == 0 and t:
            P.e('s_add_u32', 's25', 's25', '4096')
        P.e('buffer_store_dwordx4', vr(X + 4 * t, 4), 'v6', 's[12:15]', 's25', mods=f'offen offset:{1024 * (t % 4)}')
    tl_end(P, opts, 0)
    P.raw("  s_endpgm")
    P.label("K0_pack")
    P.vm_q = []; P.lds_q = []
    e = P.e
    e('s_load_dwordx2', 's[4:5]', 's[0:1]', '8')
    e('s_load_dwordx2', 's[6:7]', 's[0:1]', '72')
    e('v_and_b32', 'v1', '63', 'v0'); e('v_lshrrev_b32', 'v2', '6', 'v0')
    e('v_readfirstlane_b32', 's20', 'v2')
    e('s_sub_u32', 's21', 's2', '128'); e('s_lshl_b32', 's21', 's21', '1'); e('s_add_u32', 's21', 's21', 's20')
    P.raw("  s_waitcnt lgkmcnt(0)")
    srd(P, 12, 's4', 's5', 576 * 3456)
    e('s_add_u32', 's6', 's6', str(PQ_OFF)); e('s_addc_u32', 's7', 's7', '0')
    srd(P, 16, 's6', 's7', PQ_SIZE)
    e('v_and_b32', 'v3', '15', 'v1')
    e('v_lshrrev_b32', 'v4', '4', 'v1')
    e('v_lshlrev_b32', 'v9', '4', 'v1')
    for k in range(4):
        e('s_lshl_b32', 's22', 's21', '2'); e('s_add_u32', 's22', 's22', str(k))
        e('s_mul_hi_u32', 's23', 's22', str((2 ** 32 + 143) // 144))
        e('s_mul_i32', 's24', 's23', '144'); e('s_sub_u32', 's24', 's22', 's24')
        e('s_mul_hi_u32', 's25', 's24', str((2 ** 32 + 5) // 6))
        e('s_mul_i32', 's26', 's25', '6'); e('s_sub_u32', 's26', 's24', 's26')
        e('s_lshr_b32', 's27', 's25', '2')
        e('s_and_b32', 's28', 's25', '3')
        e('s_mul_i32', 's29', 's27', '96'); e('s_lshl_b32', 's30', 's26', '4'); e('s_add_u32', 's29', 's29', 's30')
        e('s_lshl_b32', 's30', 's28', '2'); e('s_add_u32', 's29', 's29', 's30')
        e('v_add_u32', 'v5', 's29', 'v4')
        e('s_lshr_b32', 's30', 's28', '1'); e('s_lshl_b32', 's30', 's30', '2')
        e('v_or_b32', 'v6', 's30', 'v4'); e('v_lshrrev_b32', 'v7', '1', 'v3'); e('v_xor_b32', 'v6', 'v6', 'v7')
        e('v_lshlrev_b32', 'v6', '1', 'v6'); e('v_and_b32', 'v7', '1', 'v3'); e('v_or_b32', 'v6', 'v6', 'v7')
        e('v_mul_u32_u24', 'v7', '13', 'v6'); e('v_lshrrev_b32', 'v7', '6', 'v7'); e('v_min_u32', 'v7', '2', 'v7')
        e('v_mul_u32_u24', 'v8', '5', 'v7'); e('v_sub_u32', 'v8', 'v6', 'v8'); e('v_lshlrev_b32', 'v8', '4', 'v8')
        e('v_add_u32', 'v7', '1', 'v7'); e('v_cmp_eq_u32', 'vcc', '3', 'v7'); e('v_mov_b32', 'v10', '0')
        e('v_cndmask_b32', 'v7', 'v7', 'v10', 'vcc')
        e('v_mul_u32_u24', 'v7', '1152', 'v7'); e('v_add_u32', 'v8', 'v8', 'v7')
        e('s_mul_i32', 's30', 's23', '72'); e('v_add_u32', 'v8', 's30', 'v8')
        e('v_mul_u32_u24', 'v5', '3456', 'v5'); e('v_add_u32', 'v5', 'v5', 'v8')
        e('buffer_load_dwordx4', vr(16 + 4 * k, 4), 'v5', 's[12:15]', '0', mods='offen')
    e('s_lshl_b32', 's22', 's21', '12')
    for k in range(4):
        e('buffer_store_dwordx4', vr(16 + 4 * k, 4), 'v9', 's[16:19]', 's22', mods=f'offen offset:{1024 * k}')
    if NCP:
        P.raw("  s_endpgm")
        P.label("K0_code")
        P.raw("  s_getpc_b64 s[4:5]")
        P.raw("K0_pc:")
        P.raw("  s_add_u32 s4, s4, k1_main_kernel-K0_pc")
        P.raw("  s_addc_u32 s5, s5, 0")
        P.raw("  s_mov_b32 s8, s4")
        P.raw("  s_and_b32 s9, s5, 0xffff")
        P.raw("  s_mov_b32 s10, K2_end-k1_main_kernel")
        P.raw("  s_mov_b32 s11, 0x20000")
        P.raw("  v_lshlrev_b32 v1, 4, v0")
        P.raw("  s_mov_b32 s12, 0")
        P.raw("K0_cl:")
        P.raw("  buffer_load_dwordx4 v[4:7], v1, s[8:11], s12 offen")
        P.raw("  s_add_u32 s12, s12, 2048")
        P.raw("  s_cmp_lt_u32 s12, s10")
        P.raw("  s_cbranch_scc1 K0_cl")
    P.label("K0_end")
    P.raw("  s_endpgm")
    return P.text(), descriptor(name, 64, 64, 102), (name, 128 + NPK + NCP, 128, 1024)


def gen_k2(opts):
    P = Prog()
    name = "k2_reduce_kernel"
    kernel_begin(P, name)
    K2W = opts.get('k2w', 4)
    NWG = 2304 // K2W
    P.e('s_cmp_ge_u32', 's2', str(NWG))
    P.raw("  s_cbranch_scc1 K2_end")
    tl_start(P, opts)
    P.e('s_load_dwordx2', 's[4:5]', 's[0:1]', '0')
    P.e('s_load_dwordx2', 's[6:7]', 's[0:1]', '72')
    P.e('s_load_dwordx2', 's[16:17]', 's[0:1]', '56')
    P.e('v_and_b32', 'v1', '63', 'v0')
    P.e('v_lshrrev_b32', 'v2', '6', 'v0')
    P.e('v_and_b32', 'v3', '15', 'v1')
    P.e('v_lshrrev_b32', 'v4', '4', 'v1')
    P.e('v_readfirstlane_b32', 's20', 'v2')
    P.e('v_lshlrev_b32', 'v5', '4', 'v1')
    P.raw("  s_waitcnt lgkmcnt(0)")
    srd(P, 8, 's4', 's5', 2048 * 1152)
    P.e('s_add_u32', 's6', 's6', str(P_OFF)); P.e('s_addc_u32', 's7', 's7', '0')
    srd(P, 12, 's6', 's7', P_SIZE)
    srd(P, 24, 's16', 's17', 2048 * 1152)
    P.e('s_mul_i32', 's21', 's2', str(K2W)); P.e('s_add_u32', 's21', 's21', 's20')
    P.e('s_mul_hi_u32', 's22', 's21', str((2 ** 32 + 143) // 144))
    P.e('s_mul_i32', 's23', 's22', '144'); P.e('s_sub_u32', 's23', 's21', 's23')
    D = 16
    lf = ['', ' nt', ' sc1'][opts.get('ldflag', 0)]
    P.e('s_cmp_ge_u32', 's23', '128')
    P.raw("  s_cbranch_scc1 K2_half")
    for half in (0, 1):
        if half:
            P.label("K2_half")
            P.vm_q = []; P.lds_q = []
        n = 16 if half else 8
        if not half:
            P.e('s_lshl_b32', 's28', 's22', '17'); P.e('s_lshl_b32', 's29', 's23', '10'); P.e('s_add_u32', 's28', 's28', 's29')
            stride = 16 * 131072
        else:
            P.e('s_lshl_b32', 's28', 's22', '14'); P.e('s_sub_u32', 's23', 's23', '128'); P.e('s_lshl_b32', 's29', 's23', '10')
            P.e('s_add_u32', 's28', 's28', 's29'); P.e('s_add_u32', 's28', 's28', str(HP_OFF))
            stride = 16 * 16384
        for s in range(n):
            P.e('buffer_load_dwordx4', vr(D + 4 * s, 4), 'v5', 's[12:15]', 's28', mods='offen' + lf)
            if s < n - 1:
                P.e('s_add_u32', 's28', 's28', str(stride))
        P.e('s_and_b32', 's29', 's23', '3')
        if not half:
            P.e('s_lshr_b32', 's31', 's23', '3'); P.e('s_and_b32', 's31', 's31', '3')
            P.e('s_lshr_b32', 's34', 's31', '1')
            P.e('s_lshr_b32', 's35', 's23', '5'); P.e('s_lshl_b32', 's35', 's35', '7')
            P.e('s_lshl_b32', 's36', 's34', '6'); P.e('s_add_u32', 's35', 's35', 's36')
            P.e('s_lshr_b32', 's36', 's23', '2'); P.e('s_and_b32', 's36', 's36', '1'); P.e('s_lshl_b32', 's36', 's36', '5')
            P.e('s_add_u32', 's35', 's35', 's36')
        else:
            P.e('s_lshr_b32', 's31', 's23', '2')
            P.e('s_lshr_b32', 's34', 's31', '1')
            P.e('s_lshl_b32', 's35', 's34', '5'); P.e('s_add_u32', 's35', 's35', '512')
        P.e('s_and_b32', 's33', 's31', '1')
        P.e('s_lshl_b32', 's37', 's22', '7'); P.e('s_lshl_b32', 's38', 's33', '6'); P.e('s_add_u32', 's37', 's37', 's38')
        P.e('s_lshl_b32', 's38', 's29', '4'); P.e('s_add_u32', 's37', 's37', 's38')
        P.e('v_add_u32', 'v6', 's37', 'v3')
        P.e('v_mul_u32_u24', 'v6', '1152', 'v6')
        P.e('s_lshl_b32', 's40', 's35', '1')
        P.e('v_add_u32', 'v6', 's40', 'v6')
        P.e('v_lshlrev_b32', 'v7', '3', 'v4')
        P.e('v_add_u32', 'v7', 'v6', 'v7')
        P.e('buffer_load_dwordx2', 'v[8:9]', 'v7', 's[8:11]', '0', mods='offen')
        P.e('buffer_load_dwordx2', 'v[10:11]', 'v7', 's[8:11]', '0', mods='offen offset:32')
        P.e('v_and_b32', 'v12', '1', 'v4'); P.e('v_lshlrev_b32', 'v12', '5', 'v12')
        P.e('v_lshrrev_b32', 'v13', '1', 'v4'); P.e('v_lshlrev_b32', 'v13', '4', 'v13')
        P.e('v_add3_u32', 'v6', 'v6', 'v12', 'v13')
        P.e('s_mov_b32', 's41', '0xffff0000')
        ACC = 80
        srcs = [D + 4 * s for s in range(n)] + [8]
        for si, base in enumerate(srcs):
            for j in range(4):
                d = vr(base + j)
                if si == 0:
                    P.e('v_lshlrev_b32', vr(ACC + 2 * j), '16', d)
                    P.e('v_and_b32', vr(ACC + 2 * j + 1), 's41', d)
                else:
                    t0, t1 = 88 + 2 * (j % 2), 89 + 2 * (j % 2)
                    P.e('v_lshlrev_b32', vr(t0), '16', d)
                    P.e('v_and_b32', vr(t1), 's41', d)
                    P.e('v_add_f32', vr(ACC + 2 * j), vr(ACC + 2 * j), vr(t0))
                    P.e('v_add_f32', vr(ACC + 2 * j + 1), vr(ACC + 2 * j + 1), vr(t1))
        for j in range(4):
            P.e('v_cvt_pk_bf16_f32', vr(92 + j), vr(ACC + 2 * j), vr(ACC + 2 * j + 1))
        P.e('v_permlane16_swap_b32', 'v92', 'v94')
        P.e('v_permlane16_swap_b32', 'v93', 'v95')
        P.e('buffer_store_dwordx4', 'v[92:95]', 'v6', 's[24:27]', '0', mods='offen')
        tl_end(P, opts, 2)
        if not half:
            P.raw("  s_endpgm")
    P.label("K2_end")
    P.raw("  s_endpgm")
    return P.text(), descriptor(name, 96, 96, 102), (name, NWG, 64 * K2W, 0)


class K1:
    V_LANE, V_C16, V_G, V_T0, V_T1, V_T2, V_T3, V_T4 = 1, 2, 3, 4, 5, 6, 7, 8
    ACC0, ACC1 = 16, 80
    FR = 144
    NFR = 6
    XV = 168
    TQ = 200
    TG = 204
    TH = 208
    TP = 210
    TPH = 214
    DQ = 216
    DG = 219
    DH = 222
    DP = 225
    DPH = 228
    HW = 231
    HWX = 233
    HR = 234
    XR = 236
    SW = 237
    AB = 241
    OW = 242
    PV = 243
    MG = 244
    XA = 245
    TD = 168
    HAL = 248
    HALX = 8

    S_W, S_S, S_I = 20, 21, 22
    S_RG2, S_CH = 23, 24
    S_LDSW = 25
    S_XF = 26
    S_FB = 88
    S_YC = 28
    S_FPB, S_MBO, S_MBP, S_HPB, S_FSH, S_FOFF = 17, 18, 19, 44, 26, 27
    SRD_DBG = 48
    S_TCH = 33
    INC = [176, 180, 184, 188, 192, 196, 248, 252]
    INC2 = [200, 204, 216, 220, 232, 236, 8, 12]
    V_POLL = 4
    S_T0, S_T1, S_T2, S_T3 = 34, 35, 36, 37
    S_SOFF = 38
    S_NLOG2E = 39
    S_AC = 40
    S_PERM0, S_PERM1 = 41, 42
    S_NEG = 43
    S_QC = 44
    S_PO = 45
    S_PO2 = 40
    SRD_XF, SRD_QKV, SRD_GU, SRD_WD, SRD_WO, SRD_P = 48, 52, 56, 60, 64, 68
    S_FB2 = 4
    S_FBR = 9
    S_WOR = 16
    S_XL, S_XH, S_SOFF2 = 17, 18, 19

    def __init__(self, opts):
        self.P = Prog()
        self.o = opts

    def xreg(self, t, mb):
        j = 4 * t + mb
        return ar(4 * j, 4) if j < 64 else vr(self.XV + 4 * (j - 64), 4)

    def hreg(self, k, mb):
        return ar(16 * k + 4 * mb, 4)

    def halo_x(self, t):
        return vr(self.ACC1 + 4 * t, 4) if t < 16 else vr(self.HALX + 4 * (t - 16), 4)

    def prologue(self):
        P = self.P
        e = P.e
        e('s_cmp_ge_u32', 's2', '256')
        P.raw("  s_cbranch_scc1 K1_end")
        tl_start(P, self.o)
        if self.o.get('prof', 0):
            P.raw("  s_memtime s[46:47]")
            P.raw("  s_memrealtime s[98:99]")
        e('s_load_dwordx2', 's[14:15]', 's[0:1]', '72')
        e('s_load_dwordx2', 's[6:7]', 's[0:1]', '16')
        e('s_load_dwordx4', 's[8:11]', 's[0:1]', '32')
        e('s_load_dwordx2', 's[12:13]', 's[0:1]', '48')
        L, C16, G = vr(self.V_LANE), vr(self.V_C16), vr(self.V_G)
        e('v_and_b32', L, '63', 'v0')
        e('v_lshrrev_b32', 'v4', '6', 'v0')
        e('v_and_b32', C16, '15', L)
        e('v_lshrrev_b32', G, '4', L)
        e('v_readfirstlane_b32', sr(self.S_W), 'v4')
        e('v_lshlrev_b32', vr(self.PV), '4', L)
        e('s_and_b32', sr(self.S_S), 's2', '3'); e('s_lshl_b32', sr(self.S_S), sr(self.S_S), '2')
        e('s_bfe_u32', sr(self.S_T0), 's2', '0x20003'); e('s_add_u32', sr(self.S_S), sr(self.S_S), sr(self.S_T0))
        e('s_bfe_u32', sr(self.S_I), 's2', '0x10002'); e('s_lshl_b32', sr(self.S_I), sr(self.S_I), '3')
        e('s_lshr_b32', sr(self.S_T0), 's2', '5'); e('s_add_u32', sr(self.S_I), sr(self.S_I), sr(self.S_T0))
        e('s_and_b32', sr(self.S_RG2), sr(self.S_W), '1'); e('s_lshr_b32', sr(self.S_CH), sr(self.S_W), '1')
        e('s_mul_i32', sr(self.S_LDSW), sr(self.S_W), '6144')
        e('s_lshl_b32', sr(self.S_T0), sr(self.S_I), '3'); e('s_lshl_b32', sr(self.S_T1), sr(self.S_W), '1')
        e('s_add_u32', sr(self.S_T0), sr(self.S_T0), sr(self.S_T1))
        e('s_mul_i32', sr(self.S_XF), sr(self.S_T0), '18432')
        e('s_lshr_b32', sr(self.S_T0), sr(self.S_W), '1'); e('s_mul_i32', sr(self.S_XL), sr(self.S_T0), '36864')
        e('s_and_b32', sr(self.S_T0), sr(self.S_W), '1'); e('s_mul_i32', sr(self.S_T0), sr(self.S_T0), '6144')
        e('s_add_u32', sr(self.S_XL), sr(self.S_XL), sr(self.S_T0))
        e('s_min_u32', sr(self.S_T1), sr(self.S_W), '2'); e('s_lshl_b32', sr(self.S_XH), sr(self.S_T1), '10')
        e('s_lshl_b32', sr(self.S_T0), sr(self.S_I), '3'); e('s_sub_u32', sr(self.S_T0), sr(self.S_T0), '1')
        e('s_mul_i32', sr(self.S_T0), sr(self.S_T0), '18432'); e('s_add_u32', sr(self.S_T0), sr(self.S_T0), sr(self.S_XH))
        e('s_cmp_eq_u32', sr(self.S_I), '0'); e('s_cselect_b32', sr(self.S_XF + 1), '0x7f000000', sr(self.S_T0))
        e('s_mul_i32', sr(self.S_T2), sr(self.S_S), '147456'); e('s_add_u32', sr(self.S_T2), sr(self.S_T2), str(PQ_OFF))
        P.raw("  s_waitcnt lgkmcnt(0)")
        e('s_add_u32', sr(self.S_T0), 's14', str(XF_OFF)); e('s_addc_u32', sr(self.S_T1), 's15', '0')
        srd(P, self.SRD_XF, sr(self.S_T0), sr(self.S_T1), XF_SIZE)
        e('s_add_u32', sr(self.S_T0), 's14', sr(self.S_T2)); e('s_addc_u32', sr(self.S_T1), 's15', '0')
        srd(P, self.SRD_QKV, sr(self.S_T0), sr(self.S_T1), 147456)

    def scalars_late(self, e, srd_):
        srd_(self.SRD_WO, 's6', 's7', 576 * 1152)
        e('s_cmp_ge_u32', sr(self.S_W), '2')
        e('s_cselect_b32', sr(self.S_T0), 's10', 's8'); e('s_cselect_b32', sr(self.S_T1), 's11', 's9')
        srd_(self.SRD_GU, sr(self.S_T0), sr(self.S_T1), 576 * 9216)
        srd_(self.SRD_WD, 's12', 's13', 4608 * 1152)
        e('s_add_u32', sr(self.S_T0), 's14', str(P_OFF)); e('s_addc_u32', sr(self.S_T1), 's15', '0')
        srd_(self.SRD_P, sr(self.S_T0), sr(self.S_T1), P_SIZE)
        e('s_mul_i32', sr(self.S_T0), sr(self.S_S), '288')
        e('s_and_b32', sr(self.S_T1), sr(self.S_S), '1')
        e('s_lshl_b32', sr(self.S_T2), sr(self.S_T1), '5'); e('s_add_u32', sr(self.S_T2), sr(self.S_T2), sr(self.S_T0))
        for j in range(4):
            e('s_add_u32', sr(self.S_T3), sr(self.S_I), str(j)); e('s_and_b32', sr(self.S_T3), sr(self.S_T3), '3')
            e('s_lshl_b32', sr(self.S_T3), sr(self.S_T3), '6'); e('s_add_u32', sr(self.S_FB + j), sr(self.S_T2), sr(self.S_T3))
        e('s_cmp_eq_u32', sr(self.S_T1), '1'); e('s_cselect_b32', sr(self.S_T3), '0', '256')
        e('s_add_u32', sr(self.S_FB + 4), sr(self.S_T0), sr(self.S_T3))
        for j in range(5):
            e('s_lshl_b32', sr(self.S_FB2 + j), sr(self.S_FB + j), '1')
            e('s_mul_i32', sr(self.S_FBR + j), sr(self.S_FB + j), '1152')
        e('s_mul_i32', sr(self.S_WOR), sr(self.S_S), str(36 * 1152))
        e('s_and_b32', sr(self.S_T0), sr(self.S_S), '1'); e('s_lshl_b32', sr(self.S_T0), sr(self.S_T0), '1')
        for k in range(4):
            e('s_add_u32', sr(self.S_T1), sr(self.S_T0), str(k)); e('s_and_b32', sr(self.S_T1), sr(self.S_T1), '3')
            e('s_lshl_b32', sr(self.S_YC + k), sr(self.S_T1), '8')
        e('s_mov_b32', sr(self.S_NLOG2E), f2h(-LOG2E))
        e('s_mov_b32', sr(self.S_AC), f2h(LOG2E / math.sqrt(18.0)))
        e('s_mov_b32', sr(self.S_PERM0), '0x05040100'); e('s_mov_b32', sr(self.S_PERM1), '0x07060302')
        e('s_mov_b32', sr(self.S_NEG), f2h(-1e30))

    TA, TB, TC, TDm = 'v4', 'v5', 'v6', 'v7'
    TR, TCC8, TG1, TG2 = 'v247', 'v244', 'v242', 'v241'

    def addr_first(self, e):
        L, C16, G = vr(self.V_LANE), vr(self.V_C16), vr(self.V_G)
        a, b, c = self.TA, self.TB, self.TC
        r, cc8, g1, g2 = self.TR, self.TCC8, self.TG1, self.TG2
        W, RG2 = sr(self.S_W), sr(self.S_RG2)
        T0, T1, T2, T3 = sr(self.S_T0), sr(self.S_T1), sr(self.S_T2), sr(self.S_T3)
        e('v_lshrrev_b32', r, '2', C16)
        e('v_and_b32', cc8, '3', C16); e('v_lshlrev_b32', cc8, '3', cc8)
        e('v_and_b32', g1, '1', G)
        e('v_lshrrev_b32', g2, '1', G)
        e('v_mul_u32_u24', a, '12288', g1)
        e('v_lshl_add_u32', a, g2, '10', a)
        e('v_lshl_add_u32', a, r, '8', a)
        e('v_add_u32', a, a, cc8)
        e('v_lshl_or_b32', b, g1, '2', r)
        e('s_mov_b32', T0, '0x10525210'); e('s_mov_b32', T1, '0x63747463')
        e('s_lshl_b32', T2, W, '4')
        e('s_lshr_b64', sr(self.S_T0, 2), sr(self.S_T0, 2), T2)
        e('s_mov_b32', sr(self.S_QC), T0)
        for u in range(4):
            e('s_bfe_u32', T2, T0, hex((4 << 16) | (4 * u)))
            e('v_xor_b32', c, T2, b); e('v_lshl_add_u32', vr(self.TQ + u), c, '5', a)
        e('s_mul_i32', T0, RG2, '36864'); e('s_add_u32', T0, T0, str(HB))
        e('v_add_u32', vr(self.XA), T0, vr(self.PV))
        e('v_add_u32', vr(self.XA + 1), str(HB + 73728), vr(self.PV))

    def addr_late(self, e):
        L, C16, G = vr(self.V_LANE), vr(self.V_C16), vr(self.V_G)
        a, b, c, d = self.TA, self.TB, self.TC, self.TDm
        r, cc8, g1, g2 = self.TR, self.TCC8, self.TG1, self.TG2
        W, CH, RG2 = sr(self.S_W), sr(self.S_CH), sr(self.S_RG2)
        T0, T1, T2, T3 = sr(self.S_T0), sr(self.S_T1), sr(self.S_T2), sr(self.S_T3)
        e('v_lshrrev_b32', b, '3', L)
        e('v_bfe_u32', a, b, '1', '1')
        e('s_and_b32', T0, W, '1'); e('s_lshl_b32', T1, T0, '1')
        e('v_or_b32', a, T1, a)
        e('v_bfe_u32', c, L, '1', '2')
        e('v_xor_b32', a, a, c); e('v_lshlrev_b32', a, '1', a)
        e('v_and_b32', c, '1', L); e('v_or_b32', a, a, c)
        e('s_lshl_b32', T1, T0, '3')
        e('v_add_u32', c, T1, b)
        e('v_mul_u32_u24', c, '9216', c)
        e('v_lshl_add_u32', vr(self.DG), a, '4', c)
        for j in (1, 2):
            e('v_add_u32', vr(self.DG + j), str(j * (16 * 9216 - 1024)), vr(self.DG))
        e('s_lshl_b32', T1, W, '3')
        e('v_add_u32', c, T1, b)
        e('v_mul_u32_u24', c, '1152', c)
        e('v_lshl_add_u32', vr(self.DPH), a, '4', c)
        for j in (1, 2):
            e('v_add_u32', vr(self.DPH + j), str(j * (32 * 1152 - 1024)), vr(self.DPH))
        e('v_lshrrev_b32', b, '2', L)
        e('v_lshrrev_b32', a, '3', b); e('v_lshlrev_b32', a, '1', a)
        e('v_and_b32', c, '3', L); e('v_xor_b32', a, a, c)
        e('s_lshl_b32', T1, T0, '4')
        e('v_add_u32', c, T1, b)
        e('v_mul_u32_u24', c, '9216', c)
        e('v_lshl_add_u32', vr(self.DH), a, '4', c)
        for j in (1, 2):
            e('v_add_u32', vr(self.DH + j), str(j * (32 * 9216 - 1024)), vr(self.DH))
        e('s_lshr_b32', T0, W, '1'); e('s_lshl_b32', T0, T0, '2')
        e('v_or_b32', a, T0, G)
        e('v_lshrrev_b32', b, '1', C16)
        e('v_xor_b32', a, a, b)
        e('v_lshlrev_b32', a, '1', a)
        e('v_and_b32', b, '1', C16)
        e('v_or_b32', a, a, b)
        e('s_lshl_b32', T1, W, '2')
        e('v_add_u32', b, T1, G)
        e('v_mul_u32_u24', c, '1152', b)
        e('v_lshl_add_u32', vr(self.DP), a, '4', c)
        for j in (1, 2):
            e('v_add_u32', vr(self.DP + j), str(j * (16 * 1152 - 1024)), vr(self.DP))
        e('v_mul_u32_u24', a, '6144', g1)
        e('v_lshl_add_u32', a, g2, '10', a)
        e('v_lshl_add_u32', a, r, '7', a)
        e('v_add_u32', a, a, cc8)
        e('v_lshrrev_b32', b, '1', r); e('v_lshl_or_b32', b, g1, '1', b)
        for bb in range(2):
            e('s_lshl_b32', T2, CH, '1'); e('s_add_u32', T2, T2, str(bb))
            e('v_xor_b32', c, T2, b); e('v_lshl_add_u32', vr(self.TG + bb), c, '5', a)
            e('v_add_u32', vr(self.TG + 2 + bb), '12288', vr(self.TG + bb))
        e('v_mul_u32_u24', a, '6144', G)
        e('v_lshl_add_u32', a, r, '7', a)
        e('v_add_u32', a, a, cc8)
        for bb in range(2):
            e('s_lshl_b32', T2, CH, '1'); e('s_add_u32', T2, T2, str(bb))
            e('v_xor_b32', c, T2, b); e('v_lshl_add_u32', vr(self.TPH + bb), c, '5', a)
        e('v_mul_u32_u24', a, '6144', g2)
        e('v_lshl_add_u32', c, g1, '3', r); e('v_lshl_add_u32', a, c, '6', a)
        e('v_add_u32', a, a, cc8)
        e('v_xor_b32', c, CH, g1); e('v_lshl_add_u32', vr(self.TH), c, '5', a)
        e('v_add_u32', vr(self.TH + 1), '12288', vr(self.TH))
        e('v_mul_u32_u24', a, '12288', g1)
        e('v_lshl_add_u32', a, g2, '10', a)
        e('v_lshl_add_u32', a, r, '8', a)
        e('v_add_u32', a, a, cc8)
        e('v_lshl_or_b32', b, g1, '2', r)
        for u in range(4):
            e('s_lshl_b32', T2, CH, '2'); e('s_add_u32', T2, T2, str(u))
            e('v_xor_b32', c, T2, b); e('v_lshl_add_u32', vr(self.TP + u), c, '5', a)
        e('s_lshl_b32', T3, RG2, '6'); e('s_add_u32', T3, T3, '16')
        e('v_add_u32', c, T3, C16); e('v_mul_u32_u24', c, str(SPITCH), c)
        e('v_lshl_add_u32', c, G, '3', c)
        for u in range(4):
            e('s_bfe_u32', T2, sr(self.S_QC), hex((4 << 16) | (4 * u)))
            e('s_lshl_b32', T2, T2, '5'); e('s_add_u32', T2, T2, str(SB))
            e('v_add_u32', vr(self.SW + u), T2, c)
        e('s_lshl_b32', T2, RG2, '6'); e('v_add_u32', a, T2, C16)
        e('s_lshl_b32', T3, CH, '2'); e('v_add_u32', b, T3, g2)
        e('v_and_b32', c, '7', C16); e('v_xor_b32', b, b, c)
        e('v_lshlrev_b32', b, '4', b); e('v_lshl_add_u32', b, g1, '3', b)
        e('v_lshl_add_u32', b, a, '7', b)
        e('v_add_u32', vr(self.HW), str(HB), b)
        e('v_xor_b32', vr(self.HW + 1), '32', vr(self.HW))
        e('v_xor_b32', b, G, c); e('v_lshlrev_b32', b, '4', b); e('v_lshl_add_u32', b, a, '7', b)
        e('v_add_u32', vr(self.HR), str(HB), b)
        e('v_xor_b32', vr(self.HR + 1), '64', vr(self.HR))
        e('v_mul_u32_u24', b, str(XPITCH), a)
        e('v_add_u32', b, str(XB), b)
        e('v_lshl_add_u32', vr(self.XR), G, '4', b)
        e('s_lshl_b32', T3, CH, '5')
        e('v_lshl_add_u32', c, G, '3', b); e('v_add_u32', vr(self.HWX), T3, c)
        e('v_and_b32', a, '31', L); e('v_lshrrev_b32', b, '5', L)
        e('s_lshl_b32', T2, W, '5')
        e('v_add_u32', a, T2, a)
        e('s_lshl_b32', T3, sr(self.S_I), '7'); e('v_add_u32', vr(self.MG), T3, a)
        e('v_add_u32', c, '2', a); e('v_mul_u32_u24', c, str(SPITCH), c)
        e('v_lshl_add_u32', c, b, '5', c); e('v_add_u32', vr(self.AB), str(SB), c)
        e('v_mul_u32_u24', c, str(XPITCH), a); e('v_lshl_add_u32', c, b, '5', c)
        e('v_add_u32', vr(self.OW), str(XB + 64), c)

    def task_late_setup(self):
        T = []
        e = lambda op, *a, **k: T.append(I(op, *a, **k))

        def srd_(d, lo, hi, size):
            e('s_mov_b32', sr(d), lo); e('s_and_b32', sr(d + 1), hi, '0xffff'); e('s_mov_b32', sr(d + 2), str(size)); e('s_mov_b32', sr(d + 3), '0x20000')
        self.scalars_late(e, srd_)
        S = list(T)
        T.clear()
        self.addr_late(e)
        return [S] + T

    def build(self):
        self.stages = []
        self.ksteps = []
        strips = []

        def add_stage(dml):
            self.stages.append(dml)
            return len(self.stages) - 1

        def strip_generic(name, nk, ks_per_stage, nfrag, dma_fn, tr_fn, mf_fn):
            st = dict(name=name, ks=[])
            for t in range(nk):
                tl = t % ks_per_stage
                if tl == 0:
                    n_in = min(ks_per_stage, nk - t)
                    dml = []
                    for tt in range(n_in):
                        dml += dma_fn(t + tt, tt)
                    sid = add_stage(dml)
                frs = [tr_fn(t, tl, u) for u in range(nfrag)]
                st['ks'].append(dict(t=t, stage=sid, frags=frs, mf=[mf_fn(t, u) for u in range(nfrag)], last_in_stage=(tl == ks_per_stage - 1 or t == nk - 1)))
            strips.append(st)
            return st

        A0, A1 = self.ACC0, self.ACC1
        acc = lambda buf, u, mb: vr(buf + 16 * u + 4 * mb, 4)

        def dq(t, tt):
            r = t // 3
            return [(self.SRD_QKV, ('pq', 0), (r * 24 + 2 * tt + e) * 1024, self.PV, 1024, 2 * tt + e) for e in range(2)]

        def trq(t, tl, u):
            return (self.TQ + u, tl * 2048, 6144)

        def mfq(t, u):
            L = [(acc(A0, u, mb), self.xreg(t, mb)) for mb in range(4)]
            if u < 2:
                L.append((vr(self.HAL + 4 * u, 4), self.halo_x(t)))
            return L
        strip_generic('QKV', 18, 3, 4, dq, trq, mfq)

        def ffn(j, buf):
            def dg(t, tt):
                return [(self.SRD_GU, ('fb2', j), (32 * t + 16 * e) * 9216, self.DG, 16 * 9216, 2 * tt + e) for e in range(2)]

            def trg(t, tl, u):
                return (self.TG + u, tl * 2048, 512)

            def mfg(t, u):
                return [(acc(buf, u, mb), self.xreg(t, mb)) for mb in range(4)]
            return strip_generic(f'F{j}', 18, 3, 4, dg, trg, mfg)
        ffn(0, A1); ffn(1, A0); ffn(2, A1); ffn(3, A0)

        def dh(t, tt):
            return [(self.SRD_GU, ('fb2', 4), (32 * t) * 9216, self.DH, 32 * 9216, tt)]

        def trh(t, tl, u):
            return (self.TH + u, tl * 1024, 256)

        def mfh(t, u):
            return [(acc(A1, u, mb), self.xreg(t, mb)) for mb in range(4)]
        strip_generic('F4h', 18, 6, 2, dh, trh, mfh)

        self.kmap = [('F', 0, 0), ('F', 0, 1), ('F', 1, 0), ('F', 1, 1), ('F', 2, 0), ('F', 2, 1), ('O', 0, 0), ('O', 0, 1), ('F', 3, 0), ('F', 3, 1), ('X', 4, 0)]

        def p2rows(k):
            kind, j, tt = self.kmap[k]
            if kind == 'O':
                return self.SRD_WO, ('wo', 0), 32 * tt
            return self.SRD_WD, ('fbr', j), 32 * tt

        def p2full(Y, buf):
            def dp(t, tt):
                s_, b_, r0 = p2rows(t)
                return [(s_, b_ + ('y', Y), (r0 + 16 * e) * 1152, self.DP, 16 * 1152, 2 * tt + e) for e in range(2)]

            def trp(t, tl, u):
                return (self.TP + u, tl * 2048, 6144)

            def mfp(t, u):
                return [(acc(buf, u, mb), self.hreg(t, mb)) for mb in range(4)]
            return strip_generic(f'P{Y}', 11, 3, 4, dp, trp, mfp)
        def dph(t, tt):
            s_, b_, r0 = p2rows(t)
            return [(s_, b_, r0 * 1152 + 1024, self.DPH, 32 * 1152, tt)]

        def trph(t, tl, u):
            return (self.TPH + u, tl * 1024, 512)

        def mfph(t, u):
            return [(acc(A0, u, mb), self.hreg(t, mb)) for mb in range(4)]
        p2full(0, A0); p2full(1, A1)
        strip_generic('P4h', 11, 6, 2, dph, trph, mfph)
        p2full(2, A1); p2full(3, A0)
        self.strips = strips
        x0 = [st for st in strips if st['name'] == 'P0'][0]['ks'][9]['stage']
        first_deep = x0
        self.first_deep = first_deep
        self.slot = {}
        nst = len(self.stages)
        for sid in range(nst):
            if sid < first_deep or not self.o.get('deep', 1):
                self.slot[sid] = sid % 3
        if self.o.get('deep', 1):
            order = [3, 4, (x0 - 3) % 3, (x0 - 2) % 3, 5, (x0 - 1) % 3]
            for k, sid in enumerate(range(first_deep, nst)):
                self.slot[sid] = order[k % 6]

    def slot_base(self, sid):
        sl = self.slot[sid]
        return sl * SLOT if sl < 3 else HB + (sl - 3) * SLOT

    def dma_items(self, sid):
        sbase = self.slot_base(sid)
        items = []
        prev = None
        for (srd_, base, goff, vbase, qdelta, q) in self.stages[sid]:
            share = False
            lin = base is not None and base[0] == 'pq'
            if prev is not None:
                psrd, pbase, pgoff, pq, pj = prev
                j = pj + 1
                if psrd == srd_ and pbase == base and j <= (3 if lin else 2) and q == pq + 1 and goff == pgoff + qdelta:
                    share = True
            pre = []
            if not share:
                j = 0
                pre.append(I('s_add_u32', 'm0', sr(self.S_LDSW), str(sbase + q * 1024)))
                so = sr(self.S_SOFF)
                if lin:
                    pre.append(I('s_add_u32', so, sr(self.S_LDSW), str(goff)))
                elif base[0] == 'fb2':
                    pre.append(I('s_add_u32', so, sr(self.S_FB2 + base[1]), str(goff)))
                elif base[0] == 'fbr':
                    pre.append(I('s_add_u32', so, sr(self.S_FBR + base[1]), str(goff)))
                elif base[0] == 'wo':
                    pre.append(I('s_add_u32', so, sr(self.S_WOR), str(goff)))
                if base[-2] == 'y':
                    pre.append(I('s_add_u32', so, so, sr(self.S_YC + base[-1])))
            if pre:
                cur = pre
            items.append((cur, I('buffer_load_dwordx4', vr(vbase if lin else vbase + j), sr(srd_, 4), sr(self.S_SOFF),
                                 mods=f'offen offset:{1024 * j} lds' if j else 'offen lds', tag=('st', sid))))
            prev = (srd_, base, goff, q, j)
        return items

    def task_qkv_epi(self):
        T = []
        A0 = self.ACC0
        T.append(I('v_mov_b32', 'v4', '0')); T.append(I('v_mov_b32', 'v5', '0'))
        T.append(I('v_and_b32', 'v6', '127', 'v0')); T.append(I('v_mul_u32_u24', 'v6', str(XPITCH), 'v6'))
        T.append(I('v_add_u32', 'v6', str(XB + 136), 'v6'))
        T.append(I('ds_write_b64', 'v6', 'v[4:5]', flag='bar'))
        for u in range(4):
            for mb in range(4):
                a = A0 + 16 * u + 4 * mb
                T.append(I('v_cvt_pk_bf16_f32', vr(a), vr(a), vr(a + 1)))
                T.append(I('v_cvt_pk_bf16_f32', vr(a + 1), vr(a + 2), vr(a + 3)))
                T.append(I('ds_write_b64', vr(self.SW + u), vr(a, 2), mods=f'offset:{mb * 16 * SPITCH}', flag='bar'))
        for u in range(2):
            a = self.HAL + 4 * u
            T.append(I('v_cvt_pk_bf16_f32', vr(a), vr(a), vr(a + 1)))
            T.append(I('v_cvt_pk_bf16_f32', vr(a + 1), vr(a + 2), vr(a + 3)))
            T.append(I('s_lshl_b32', sr(self.S_T2), sr(self.S_RG2), '6'))
            T.append(I('s_add_u32', sr(self.S_T2), sr(self.S_T2), '16'))
            T.append(I('s_mul_i32', sr(self.S_T2), sr(self.S_T2), str(SPITCH)))
            T.append(I('v_subrev_u32', vr(a + 2), sr(self.S_T2), vr(self.SW + u)))
            T.append(I('ds_write_b64', vr(a + 2), vr(a, 2), flag='bar'))
        return T

    def task_attn(self):
        T = []
        B = self.ACC0
        Q = B
        KA = [B + 12, B + 24]
        S = B + 36
        O = B + 44
        KB = [O, O + 10]
        TP = [4, 5, 6, 7, 8, 9, 10, 11, 12, 13, 14, 15, 248, 249, 250, 251, 252, 253, 254, 255]
        AB = vr(self.AB)

        def rd(dst, off):
            if dst % 2 == 0 and dst % 4 == 0:
                return [I('ds_read_b128', vr(dst, 4), AB, mods=f'offset:{off}'),
                        I('ds_read_b128', vr(dst + 4, 4), AB, mods=f'offset:{off + 16}'),
                        I('ds_read_b64', vr(dst + 8, 2), AB, mods=f'offset:{off + 32}')]
            return [I('ds_read_b128', vr(dst, 4), AB, mods=f'offset:{off}'),
                    I('ds_read_b128', vr(dst + 4, 4), AB, mods=f'offset:{off + 16}'),
                    I('ds_read_b64', vr(dst + 8, 2), AB, mods=f'offset:{off + 32}')]
        rowoff = lambda w: (14 - 2 * w) * SPITCH
        T += rd(Q, rowoff(0) + 160)
        T += rd(KA[0], rowoff(0)); T += rd(KA[1], rowoff(1))
        T += rd(KB[0], rowoff(2)); T += rd(KB[1], rowoff(3))
        T.append(I('v_mov_b32', vr(S), '0'))
        T.append([I('v_cmp_gt_u32', 'vcc', '32', vr(self.V_LANE)),
                  I('v_cndmask_b32', vr(Q + 9), vr(Q + 9), vr(S), 'vcc'),
                  I('v_cndmask_b32', vr(Q + 0), vr(S), vr(Q + 0), 'vcc')])
        for w in range(0, 8, 2):
            bufs = KA if (w // 2) % 2 == 0 else KB
            burst = []
            for ww, kb in ((w, bufs[0]), (w + 1, bufs[1])):
                burst.append(I('v_dot2_f32_bf16', vr(S + ww), vr(Q), vr(kb), '0'))
            for j in range(1, 10):
                for ww, kb in ((w, bufs[0]), (w + 1, bufs[1])):
                    burst.append(I('v_dot2_f32_bf16', vr(S + ww), vr(Q + j), vr(kb + j), vr(S + ww)))
            T.append(burst)
            if w + 4 < 8:
                T += rd(bufs[0], rowoff(w + 4)); T += rd(bufs[1], rowoff(w + 5))
            elif w == 4:
                T += rd(KA[0], rowoff(0) + 80); T += rd(KA[1], rowoff(1) + 80)
        NEG = vr(Q + 10)
        T.append(I('v_mov_b32', NEG, sr(self.S_NEG)))
        for w in range(1, 8):
            T.append([I('v_cmp_le_u32', 'vcc', str(2 * w), vr(self.MG)), I('s_nop', '1'),
                      I('v_cndmask_b32', vr(S + w), NEG, vr(S + w), 'vcc')])
        MX = vr(Q + 11)
        T.append(I('v_max3_f32', MX, vr(S), vr(S + 1), vr(S + 2)))
        T.append(I('v_max3_f32', MX, MX, vr(S + 3), vr(S + 4)))
        T.append(I('v_max3_f32', MX, MX, vr(S + 5), vr(S + 6)))
        T.append(I('v_max_f32', MX, MX, vr(S + 7)))
        T.append(I('v_mul_f32', MX, sr(self.S_AC), MX))
        for w in range(8):
            T.append(I('v_fma_f32', vr(S + w), vr(S + w), sr(self.S_AC), '-' + MX))
        for w in range(8):
            T.append(I('v_exp_f32', vr(S + w), vr(S + w)))
        SUM = vr(Q + 10)
        T.append(I('v_add_f32', SUM, vr(S), vr(S + 1)))
        for w in range(2, 8):
            T.append(I('v_add_f32', SUM, SUM, vr(S + w)))
        T.append(I('v_rcp_f32', SUM, SUM))
        for w in range(8):
            T.append(I('v_mul_f32', vr(S + w), vr(S + w), SUM))
        for pp in range(4):
            T.append(I('v_cvt_pk_bf16_f32', vr(Q + pp), vr(S + 2 * pp), vr(S + 2 * pp + 1)))
        K0_, K1_ = KA
        for pp in range(4):
            burst = []
            for j in range(10):
                a, b = TP[2 * j], TP[2 * j + 1]
                T.append(I('v_perm_b32', vr(a), vr(K1_ + j), vr(K0_ + j), sr(self.S_PERM0)))
                T.append(I('v_perm_b32', vr(b), vr(K1_ + j), vr(K0_ + j), sr(self.S_PERM1)))
                burst.append(I('v_dot2_f32_bf16', vr(O + 2 * j), vr(a), vr(Q + pp), '0' if pp == 0 else vr(O + 2 * j)))
                burst.append(I('v_dot2_f32_bf16', vr(O + 2 * j + 1), vr(b), vr(Q + pp), '0' if pp == 0 else vr(O + 2 * j + 1)))
            if pp < 3:
                T += rd(K0_, rowoff(2 * pp + 2) + 80)
                T += rd(K1_, rowoff(2 * pp + 3) + 80)
            T.append(burst)
        OP = K0_
        for j in range(10):
            T.append(I('v_cvt_pk_bf16_f32', vr(OP + j), vr(O + 2 * j), vr(O + 2 * j + 1)))
        OW = vr(self.OW)
        for j in range(1, 9, 2):
            T.append(I('ds_write2_b32', OW, vr(OP + j), vr(OP + j + 1), mods=f'offset0:{j} offset1:{j + 1}', flag='bar'))
        t0 = TP[0]
        T.append(I('v_add_u32', vr(t0), '36', OW))
        T.append([I('v_cmp_gt_u32', 'vcc', '32', vr(self.V_LANE)), I('s_nop', '1'),
                  I('v_cndmask_b32', vr(OP), vr(OP + 9), vr(OP), 'vcc'),
                  I('v_cndmask_b32', vr(t0), vr(t0), OW, 'vcc')])
        T.append(I('ds_write_b32', vr(t0), vr(OP), flag='bar'))
        return T

    def task_silu(self, buf, j):
        T = []
        NL = sr(self.S_NLOG2E)
        chains = []
        for bb in range(2):
            for mb in range(4):
                g = buf + 16 * bb + 4 * mb
                u = buf + 16 * (2 + bb) + 4 * mb
                c = []
                for r in range(4):
                    c.append(I('v_mul_f32', vr(u + r), vr(g + r), vr(u + r)))
                for r in range(4):
                    c.append(I('v_mul_f32', vr(g + r), NL, vr(g + r)))
                for r in range(4):
                    c.append(I('v_exp_f32', vr(g + r), vr(g + r)))
                for r in range(4):
                    c.append(I('v_add_f32', vr(g + r), '1.0', vr(g + r)))
                for r in range(4):
                    c.append(I('v_rcp_f32', vr(g + r), vr(g + r)))
                for r in range(4):
                    c.append(I('v_mul_f32', vr(u + r), vr(g + r), vr(u + r)))
                c.append(I('v_cvt_pk_bf16_f32', vr(g), vr(u), vr(u + 1)))
                c.append(I('v_cvt_pk_bf16_f32', vr(g + 1), vr(u + 2), vr(u + 3)))
                if j < 4:
                    c.append(I('ds_write_b64', vr(self.HW + bb), vr(g, 2), mods=f'offset:{j * 16384 + mb * 2048}', flag='bar'))
                chains.append(c)
        Ta, Tb = [], []
        for k, c in enumerate(chains):
            (Ta if k % 2 == 0 else Tb).extend(c)
        return Ta, Tb

    def task_silu_h(self, buf):
        TT = ([], [])
        NL = sr(self.S_NLOG2E)
        for mb in range(4):
            T = TT[mb % 2]
            g = buf + 4 * mb
            u = buf + 16 + 4 * mb
            for r in range(4):
                T.append(I('v_mul_f32', vr(u + r), vr(g + r), vr(u + r)))
            for r in range(4):
                T.append(I('v_mul_f32', vr(g + r), NL, vr(g + r)))
            for r in range(4):
                T.append(I('v_exp_f32', vr(g + r), vr(g + r)))
            for r in range(4):
                T.append(I('v_add_f32', vr(g + r), '1.0', vr(g + r)))
            for r in range(4):
                T.append(I('v_rcp_f32', vr(g + r), vr(g + r)))
            for r in range(4):
                T.append(I('v_mul_f32', vr(u + r), vr(g + r), vr(u + r)))
            T.append(I('v_cvt_pk_bf16_f32', vr(g), vr(u), vr(u + 1)))
            T.append(I('v_cvt_pk_bf16_f32', vr(g + 1), vr(u + 2), vr(u + 3)))
            T.append(I('ds_write_b64', vr(self.HWX), vr(g, 2), mods=f'offset:{mb * 16 * XPITCH}', flag='bar'))
        return TT

    def task_hload(self, k):
        kind, j, tt = self.kmap[k]
        T = []
        for mb in range(4):
            d = self.hreg(k, mb)
            if kind == 'F':
                T.append(I('ds_read_b128', d, vr(self.HR + tt), mods=f'offset:{j * 16384 + mb * 2048}', flag='bar', tag=('h', k, mb)))
            elif kind == 'X':
                T.append(I('ds_read_b128', d, vr(self.XR), mods=f'offset:{mb * 16 * XPITCH}', flag='bar', tag=('h', k, mb)))
            elif tt == 0:
                T.append(I('ds_read_b128', d, vr(self.XR), mods=f'offset:{mb * 16 * XPITCH + 64}', flag='bar', tag=('h', k, mb)))
        if kind == 'O' and tt == 1:
            for mb in range(4):
                for r in range(4):
                    T.append(I('v_accvgpr_write_b32', ar(16 * k + 4 * mb + r), '0'))
            grp = [I('s_mov_b64', 'exec', '0xffff')]
            for mb in range(4):
                grp.append(I('ds_read_b128', self.hreg(k, mb), vr(self.XR), mods=f'offset:{mb * 16 * XPITCH + 128}', flag='bar', tag=('h', k, mb)))
            grp.append(I('s_mov_b64', 'exec', '-1'))
            T.append(grp)
        return T

    def task_touch(self):
        T = []
        T0, T1 = sr(self.S_T0), sr(self.S_T1)
        S = [I('s_and_b32', T0, sr(self.S_I), '7'), I('s_mul_i32', T0, T0, '41472'), I('s_mul_i32', T1, sr(self.S_S), str(288 * 1152)),
             I('s_add_u32', T0, T0, T1), I('s_mul_i32', T1, sr(self.S_W), '10368'), I('s_add_u32', sr(self.S_TCH), T0, T1)]
        T.append(S)
        T.append(I('v_lshlrev_b32', 'v247', '7', vr(self.V_LANE)))
        T.append(I('buffer_load_dword', 'v7', 'v247', sr(self.SRD_WD, 4), sr(self.S_TCH), mods='offen'))
        T.append([I('s_add_u32', sr(self.S_TCH), sr(self.S_TCH), str(17 * 128))])
        T.append(I('buffer_load_dword', 'v7', 'v247', sr(self.SRD_WD, 4), sr(self.S_TCH), mods='offen'))
        S = [I('s_and_b32', T0, sr(self.S_I), '7'), I('s_mul_i32', T0, T0, '5184'), I('s_add_u32', T0, T0, sr(self.S_WOR)),
             I('s_mul_i32', T1, sr(self.S_W), '1296'), I('s_add_u32', sr(self.S_TCH), T0, T1)]
        T.append(S)
        T.append([I('s_mov_b64', 'exec', '0xfff'), I('buffer_load_dword', 'v7', 'v247', sr(self.SRD_WO, 4), sr(self.S_TCH), mods='offen'), I('s_mov_b64', 'exec', '-1')])
        return T

    def task_touch_gu(self):
        T = []
        T0, T1 = sr(self.S_T0), sr(self.S_T1)
        L = vr(self.V_LANE)
        T.append(I('v_mul_u32_u24', 'v6', '205', L)); T.append(I('v_lshrrev_b32', 'v6', '10', 'v6'))
        T.append(I('v_mul_u32_u24', 'v7', '5', 'v6')); T.append(I('v_sub_u32', 'v7', L, 'v7'))
        T.append(I('v_mul_u32_u24', 'v6', '9216', 'v6')); T.append(I('v_lshl_add_u32', 'v6', 'v7', '7', 'v6'))
        S = [I('s_and_b32', T0, sr(self.S_I), '7'), I('s_mul_i32', T0, T0, '72'), I('s_and_b32', T1, sr(self.S_W), '1'), I('s_mul_i32', T1, T1, '36'),
             I('s_add_u32', T0, T0, T1), I('s_mul_i32', T0, T0, '9216'), I('s_mul_i32', T1, sr(self.S_S), '576'), I('s_and_b32', T1, T1, '0xffffff80'),
             I('s_add_u32', sr(self.S_TCH), T0, T1)]
        T.append(S)
        for j in range(3):
            T.append(I('buffer_load_dword', 'v7', 'v6', sr(self.SRD_GU, 4), sr(self.S_TCH), mods='offen'))
            if j < 2:
                T.append([I('s_add_u32', sr(self.S_TCH), sr(self.S_TCH), str(12 * 9216))])
        return T

    def task_p2setup(self):
        T = []
        T0, T1 = sr(self.S_T0), sr(self.S_T1)
        S, II, W = sr(self.S_S), sr(self.S_I), sr(self.S_W)
        T += [I('s_lshl_b32', T0, S, '4'), I('s_add_u32', T0, T0, II)]
        T += [I('s_lshl_b32', T1, W, '13')]
        T += [I('s_lshl_b32', sr(self.S_MBO), T0, '16'), I('s_add_u32', sr(self.S_MBO), sr(self.S_MBO), T1),
              I('s_add_u32', sr(self.S_MBO), sr(self.S_MBO), str(MB_OFF))]
        T += [I('s_xor_b32', sr(self.S_MBP), sr(self.S_MBO), str(16 << 16))]
        T += [I('s_lshl_b32', sr(self.S_HPB), T0, '14'), I('s_lshl_b32', T1, W, '12'), I('s_add_u32', sr(self.S_HPB), sr(self.S_HPB), T1),
              I('s_add_u32', sr(self.S_HPB), sr(self.S_HPB), str(HP_OFF))]
        T += [I('s_lshr_b32', T0, S, '1'), I('s_lshl_b32', T0, T0, '4'), I('s_add_u32', T0, T0, II), I('s_lshl_b32', sr(self.S_FPB), T0, '17'),
              I('s_lshl_b32', T1, W, '13'), I('s_add_u32', sr(self.S_FPB), sr(self.S_FPB), T1)]
        T += [I('s_lshl_b32', sr(self.S_FOFF), 's2', '7'), I('s_add_u32', sr(self.S_FOFF), sr(self.S_FOFF), str(FL_OFF)),
              I('s_xor_b32', sr(self.S_FSH), sr(self.S_FOFF), str(8 << 7))]
        T += [I('s_lshl_b32', T1, W, '2'), I('s_add_u32', sr(self.S_FOFF), sr(self.S_FOFF), T1)]
        T += [I('s_mov_b32', sr(self.S_NEG), '0xffff0000')]
        return T

    def _pack_store(self, T, buf, pair, mb, soff_reg, first, flags, tag=None):
        a = buf + 16 * (2 * pair) + 4 * mb
        b = buf + 16 * (2 * pair + 1) + 4 * mb
        T.append(I('v_cvt_pk_bf16_f32', vr(a), vr(a), vr(a + 1)))
        T.append(I('v_cvt_pk_bf16_f32', vr(a + 1), vr(a + 2), vr(a + 3)))
        T.append(I('v_cvt_pk_bf16_f32', vr(a + 2), vr(b), vr(b + 1)))
        T.append(I('v_cvt_pk_bf16_f32', vr(a + 3), vr(b + 2), vr(b + 3)))
        T += first
        T.append(I('buffer_store_dwordx4', vr(a, 4), vr(self.PV), sr(self.SRD_P, 4), sr(self.S_PO),
                   mods=(f'offen offset:{1024 * mb}' if mb else 'offen') + flags, tag=tag))

    def task_send(self, buf, k):
        T = []
        for pair in range(2):
            for mb in range(4):
                first = [I('s_add_u32', sr(self.S_PO), sr(self.S_MBO), str(k * 32768 + pair * 4096))] if mb == 0 else []
                self._pack_store(T, buf, pair, mb, None, first, ' sc1', tag=('mb', k))
        return T

    def item_signal(self, k):
        return ('signal', k)

    def task_keep(self, buf, k):
        T = []
        M = sr(self.S_PERM0 + 2)
        for pair in range(2):
            for mb in range(4):
                a = buf + 16 * (2 * pair) + 4 * mb
                b = buf + 16 * (2 * pair + 1) + 4 * mb
                q = (self.INC if k == 2 else self.INC2)[pair * 4 + mb]
                t0, t1 = 244, 245
                for half, r in ((0, a), (1, b)):
                    for d in range(2):
                        src = vr(q + 2 * half + d)
                        T.append(I('v_lshlrev_b32', vr(t0), '16', src))
                        T.append(I('v_and_b32', vr(t1), M, src))
                        T.append(I('v_add_f32', vr(r + 2 * d), vr(r + 2 * d), vr(t0)))
                        T.append(I('v_add_f32', vr(r + 2 * d + 1), vr(r + 2 * d + 1), vr(t1)))
                        t0, t1 = (246, 247) if t0 == 244 else (244, 245)
                first = []
                if mb == 0:
                    first = [I('s_lshl_b32', sr(self.S_PO), sr(self.S_YC + k), '7'),
                             I('s_add_u32', sr(self.S_PO), sr(self.S_PO), sr(self.S_FPB)),
                             I('s_add_u32', sr(self.S_PO), sr(self.S_PO), str(pair * 4096))]
                self._pack_store(T, buf, pair, mb, None, first, ['', ' nt', ' sc1'][self.o.get('stflag', 2)])
        return T

    def items_incoming(self, k):
        T = []
        for pair in range(2):
            for mb in range(4):
                if mb == 0:
                    T.append(I('s_add_u32', sr(self.S_PO2), sr(self.S_MBP), str((k - 2) * 32768 + pair * 4096)))
                T.append(I('buffer_load_dwordx4', vr((self.INC if k == 2 else self.INC2)[pair * 4 + mb], 4), vr(self.PV), sr(self.SRD_P, 4), sr(self.S_PO2),
                           mods=(f'offen offset:{1024 * mb}' if mb else 'offen') + ' sc1'))
        return T

    def task_half(self, buf):
        T = []
        for mb in range(4):
            first = [I('s_mov_b32', sr(self.S_PO), sr(self.S_HPB))] if mb == 0 else []
            self._pack_store(T, buf, 0, mb, None, first, ['', ' nt', ' sc1'][self.o.get('stflag', 2)])
        return T

    def emit_signal(self, k):
        P = self.P
        P.wait_vm_tag(('mb', k))
        P.e('v_mov_b32', 'v9', '1')
        P.e('v_mov_b32', 'v10', str(16 * k))
        P.e('s_mov_b64', 'exec', '1')
        P.e('buffer_store_dword', 'v9', 'v10', sr(self.SRD_P, 4), sr(self.S_FOFF), mods='offen sc1')
        P.e('s_mov_b64', 'exec', '-1')

    def poll_issue(self, k):
        return [I('v_mov_b32', 'v11', str(16 * (k - 2))),
                I('buffer_load_dwordx4', vr(self.V_POLL, 4), 'v11', sr(self.SRD_P, 4), sr(self.S_FSH), mods='offen sc1')]

    def emit_poll_check(self, lab):
        P = self.P
        T2 = sr(self.S_T2)
        V = self.V_POLL
        P.e('v_and_b32', vr(V), vr(V), vr(V + 1)); P.e('v_and_b32', vr(V + 2), vr(V + 2), vr(V + 3)); P.e('v_and_b32', vr(V), vr(V), vr(V + 2))
        P.e('v_readfirstlane_b32', T2, vr(V))
        P.e('s_cmp_eq_u32', T2, '1')
        P.raw(f"  s_cbranch_scc1 {lab}_ok")
        P.label(f"{lab}_spin")
        P.raw("  s_sleep 1")
        P.raw(f"  buffer_load_dwordx4 v[{V}:{V + 3}], v11, s[{self.SRD_P}:{self.SRD_P + 3}], {sr(self.S_FSH)} offen sc1")
        P.raw("  s_waitcnt vmcnt(0)")
        P.raw(f"  v_and_b32 v{V}, v{V}, v{V + 1}")
        P.raw(f"  v_and_b32 v{V + 2}, v{V + 2}, v{V + 3}")
        P.raw(f"  v_and_b32 v{V}, v{V}, v{V + 2}")
        P.raw("  s_nop 1")
        P.raw(f"  v_readfirstlane_b32 {T2}, v{V}")
        P.raw("  s_nop 3")
        P.raw(f"  s_cmp_eq_u32 {T2}, 1")
        P.raw(f"  s_cbranch_scc0 {lab}_spin")
        P.label(f"{lab}_ok")

    def check_b(self, g):
        ins = g['inst']
        b = ins.ops[2]
        want = g['btag']
        got = self.P.regtag.get(regs_of(b)[0])
        assert got == want, (g['ks']['strip'], g['ks']['t'], b, want, got)

    def emit_setup(self, it):
        pre, ins = it
        if self.o.get('nodma', 0) and ins.tag[0] == 'st' and ins.tag[1] >= 2:
            return
        if self.cur_setup is not pre:
            self.P.emit(pre)
            self.cur_setup = pre

    def emit_dma(self, it):
        pre, ins = it
        if self.o.get('nodma', 0) and ins.tag[0] == 'st' and ins.tag[1] >= 2:
            return
        if self.cur_setup is not pre:
            self.P.emit(pre)
            self.cur_setup = pre
        self.P.emit(ins)

    XSLOT = 27 * 1024

    def xf_dma(self, r):
        items = []
        tag = ('st', r)
        for mm in range(2):
            pre = [I('s_add_u32', 'm0', sr(self.S_XL), str(HB + (r % 3) * 12288 + mm * 3072)),
                   I('s_add_u32', sr(self.S_SOFF2), sr(self.S_XF), str((mm * 18 + 3 * r) * 1024))]
            for k in range(3):
                items.append((pre, I('buffer_load_dwordx4', vr(self.PV), sr(self.SRD_XF, 4), sr(self.S_SOFF2),
                                     mods=(f'offen offset:{1024 * k} lds' if k else 'offen lds'), tag=tag)))
        pre = [I('s_add_u32', 'm0', sr(self.S_XH), str(HB + 73728 + (r % 3) * 3072)),
               I('s_add_u32', sr(self.S_SOFF2), sr(self.S_XF + 1), str(3 * r * 1024))]
        items.append((pre, I('buffer_load_dwordx4', vr(self.PV), sr(self.SRD_XF, 4), sr(self.S_SOFF2), mods='offen lds', tag=tag)))
        return items

    def xf_reads(self, t):
        T = []
        r, tt = divmod(t, 3)
        for mb in range(4):
            T.append(I('ds_read_b128', self.xreg(t, mb), vr(self.XA), mods=f'offset:{(r % 3) * 12288 + (mb * 3 + tt) * 1024}', flag='bar', tag=('x', t, mb)))
        T.append(I('ds_read_b128', self.halo_x(t), vr(self.XA + 1), mods=f'offset:{(r % 3) * 3072 + tt * 1024}', flag='bar', tag=('x', t, 4)))
        return T

    def stage_dma(self, sid):
        a = self.dma_items(sid)
        if sid < 6:
            b = self.xf_dma(sid)
            out = []
            out = b[:3] + a[:3] + b[3:] + a[3:]
            return out
        return a

    def emit_all(self):
        P = self.P
        e = P.e
        o = self.o
        self.prologue()
        self.build()
        self.cur_setup = None
        pst = []

        def pstamp():
            if o.get('prof', 0) == 3:
                r = 72 + 2 * len(pst)
                P.raw(f"  s_memtime s[{r}:{r + 1}]")
                pst.append(r)
        pstamp()
        for it in self.stage_dma(0):
            self.emit_dma(it)
        pstamp()
        for it in self.stage_dma(1):
            self.emit_dma(it)
        pstamp()
        self.addr_first(e)
        pstamp()

        frags = []
        KS = []
        for st in self.strips:
            for ks in st['ks']:
                ks['strip'] = st['name']
                KS.append(ks)
                for u in range(len(ks['frags'])):
                    frags.append((ks, u))
        NQ = len(frags)
        NFR = self.NFR
        DIST = NFR - 1
        fr = lambda q: self.FR + 4 * (q % NFR)

        def frag_reads(q):
            ks, u = frags[q]
            areg, off, hd = ks['frags'][u]
            slot = self.slot[ks['stage']]
            if slot >= 3:
                areg = self.TD + (areg - self.TP)
                slot -= 3
            return [I('ds_read_b64_tr_b16', vr(fr(q) + 2 * h, 2), vr(areg), mods=f'offset:{slot * SLOT + off + h * hd}', flag='bar') for h in range(2)]

        gaps = []
        qi = 0
        for ks in KS:
            for u in range(len(ks['frags'])):
                mfs = ks['mf'][u]
                for mi, (accr, breg) in enumerate(mfs):
                    first = ks['t'] == 0
                    btag = ('h', ks['t'], mi) if ks['strip'][0] == 'P' else ('x', ks['t'], mi)
                    gaps.append(dict(q=qi, ks=ks, u=u, mi=mi, n=len(mfs), btag=btag,
                                     inst=I('v_mfma_f32_16x16x32_bf16', accr, vr(fr(qi), 4), breg, '0' if first else accr)))
                qi += 1
        NG = len(gaps)
        sf, sl, frag_first, ks_first = {}, {}, {}, {}
        for gi, g in enumerate(gaps):
            sf.setdefault(g['ks']['strip'], gi)
            sl[g['ks']['strip']] = gi
            frag_first.setdefault(g['q'], gi)
            ks_first.setdefault((g['ks']['strip'], g['ks']['t']), gi)
        fstage = [frags[q][0]['stage'] for q in range(NQ)]
        NST = len(self.stages)
        first_frag_of_stage = {}
        for q in range(NQ):
            first_frag_of_stage.setdefault(fstage[q], q)
        stage_of0 = lambda name, k: [st for st in self.strips if st['name'] == name][0]['ks'][k]['stage']
        read_pos, bar_pos = {}, {}
        LAG = o.get('barlag', 2)
        for q in range(NQ):
            s = fstage[q]
            p = q - DIST
            if s > 0:
                lastq_prev = first_frag_of_stage[s] - 1
                bp = read_pos[lastq_prev] + LAG
                bar_pos[s - 1] = bp
                p = max(p, bp)
            read_pos[q] = p
            assert p < q or q == 0, (q, p)
            assert p >= q - NFR + 1
        bars_at = {}
        for s, p in bar_pos.items():
            bars_at.setdefault(p, []).append(s)
        bar_gap = {s: frag_first[p] for s, p in bar_pos.items()}
        rq = []
        for q in range(NQ):
            if read_pos[q] < 0:
                continue
            for h, ins in enumerate(frag_reads(q)):
                rq.append((frag_first[read_pos[q]], frag_first[q] - o.get('minlead', 7), ins, frag_first[read_pos[q]] + 2 * h))

        self.hfree_bar = None
        dq = []
        b_hfree = bar_gap[stage_of0('P0', 9)]
        b_h6 = bar_gap[stage_of0('P0', 0)]
        prev_user = {}
        last_issue = 0
        for sid in range(NST):
            sl_ = self.slot[sid]
            pu = prev_user.get(sl_)
            prev_user[sl_] = sid
            if sid < 2:
                continue
            if pu is not None:
                lo = bar_gap[pu]
            elif sl_ == 5:
                lo = b_hfree
            elif sl_ >= 3:
                lo = b_h6
            else:
                lo = 0
            hi = bar_gap[sid - 1]
            items = self.stage_dma(sid)
            n = len(items)
            lo = max(lo, last_issue)
            nb = min(b for b in list(bar_gap.values()) + [NG] if b > lo)
            span = max(n, int((nb - lo - 2) * (o.get('dmaspan', 60) if sid >= 8 else 95) / 100))
            step = max(o.get('dmastep', 5) if sid >= 8 else 4, span // n) if sl_ < 3 or sid < self.first_deep else o.get('dmastep', 5)
            if sid >= self.first_deep:
                step = o.get('dmastep', 4)
            for k, it in enumerate(items):
                gi_ = lo + 1 + k * step
                assert gi_ < hi, (sid, gi_, hi)
                dq.append((gi_, it))
            last_issue = lo + 1 + (n - 1) * step
        dq.sort(key=lambda x: x[0])

        LAT = 10
        names0 = ['QKV', 'F0', 'F1', 'F2', 'F3', 'F4h']
        strip = lambda name: [st for st in self.strips if st['name'] == name][0]
        stage_of = lambda name, k: strip(name)['ks'][k]['stage']

        def next_bar(gi):
            return min(b for b in bar_gap.values() if b > gi)
        tasks = []

        def add(st_, en_, lst):
            if isinstance(lst, tuple):
                for l in lst:
                    tasks.append([st_, en_, l, 0])
            else:
                tasks.append([st_, en_, lst, 0])
        late_end = o.get('lateend', 60)
        add(2, late_end, self.task_late_setup())
        rq2 = []
        for t in range(3, 18):
            r = t // 3
            dl = ks_first[('QKV', t)] - 8
            for ins in self.xf_reads(t):
                rq2.append((bar_gap[r - 1] + 1, dl, ins))
        bq = bar_gap[stage_of('F0', 0)] if o.get('qkvbar', 1) == 0 else bar_gap[stage_of('F0', 3)]
        add(sf['F0'] + LAT, bq - 1, self.task_qkv_epi())
        add(bq + 1, sl['F0'], self.task_attn())
        add(sf['F1'] + LAT, sl['F1'], self.task_silu(self.ACC1, 0))
        add(sf['F2'] + LAT, sl['F2'], self.task_silu(self.ACC0, 1))
        add(sf['F3'] + LAT, sl['F3'], self.task_silu(self.ACC1, 2))
        add(sf['F4h'] + LAT, sl['F4h'], self.task_silu(self.ACC0, 3))
        b_f4h = bar_gap[stage_of('P0', 3)]
        add(sf['P0'] + LAT, b_f4h - 1, self.task_silu_h(self.ACC1))
        bF2 = next_bar(sl['F3'])
        bF3 = next_bar(sl['F4h'])
        for k in range(11):
            if k < 8:
                st_ = ks_first[('F4h', k + 1)] + 1
                if k in (4, 5):
                    st_ = max(st_, bF2 + 1)
            elif k < 10:
                st_ = max(bF3 + 1, ks_first[('F4h', k + 1)] + 1)
            else:
                st_ = b_f4h + 1
            dl = ks_first[('P0', k)] - 8
            if k < 6:
                dl = min(dl, bar_gap[stage_of('P0', 0)] - 10)
            assert st_ < dl, (k, st_, dl)
            for ins in self.task_hload(k):
                rq2.append((st_, dl, ins))
        rq2.sort(key=lambda x: x[1])
        if o.get('deep', 1):
            add(sf['P0'] + 2, sf['P0'] + 30, [I('v_add_u32', vr(self.TD + k), str(HB), vr(self.TP + k)) for k in range(6)])
        actions = {}
        prebar = {}
        if o.get('touchgu', 0):
            ta = late_end + 1 + o.get('guoff', 0)
            add(ta, ta + 12, self.task_touch_gu())
        if o.get('touch', 1):
            ta = late_end + 14 + o.get('touchoff', 0)
            add(ta, ta + 8, self.task_touch())
        add(sf['F4h'] + 2, sf['F4h'] + 6, self.task_p2setup())
        add(sf['P1'] + 40, sf['P1'] + 85, self.task_send(self.ACC0, 0))
        actions[sf['P4h'] + o.get('sig0', 50)] = lambda: self.emit_signal(0)
        add(sf['P4h'] + LAT, sf['P4h'] + 80, self.task_send(self.ACC1, 1))
        actions[sf['P2'] + o.get('sig1', 130)] = lambda: self.emit_signal(1)
        add(sf['P2'] + LAT, sf['P2'] + 60, self.task_half(self.ACC0))
        for k, nm, pa, kb in ((2, 'P2', 20, 6), (3, 'P3', 20, o.get('kb3', 3))):
            add(sf[nm] + pa, sf[nm] + pa + 2, self.poll_issue(k))
            sb = stage_of(nm, kb)
            prebar[sb] = (lambda kk=k: self.emit_poll_check(f"K1_poll{kk}"))
            add(bar_gap[sb] + 1, bar_gap[sb] + 30, self.items_incoming(k))
        add(sf['P3'] + o.get('keepat', 50), sl['P3'], self.task_keep(self.ACC1, 2))

        if o.get('notask', 0):
            tasks = []; actions = {}; prebar = {}
        PROF = o.get('prof', 0)
        names = ['QKV', 'F0', 'F1', 'F2', 'F3', 'F4h', 'P0', 'P1', 'P4h', 'P2', 'P3']
        pfrom = names[o.get('pfrom', 0)]
        stamps = list(pst)

        def stamp():
            if PROF:
                r = 72 + 2 * len(stamps)
                P.raw(f"  s_memtime s[{r}:{r + 1}]")
                stamps.append(r)

        P.wait_lds_flagged()
        P.wait_vm_tag(('st', 0))
        if PROF == 3:
            stamp()
        P.barrier()
        if PROF == 3:
            stamp()
        P.emit(self.xf_reads(0))
        for q in range(NQ):
            if read_pos[q] < 0:
                P.emit(frag_reads(q))
        P.emit(self.xf_reads(1))
        P.emit(self.xf_reads(2))
        stamp()

        def icost(x):
            if isinstance(x, list):
                if x[0].op.startswith('v_dot'):
                    return 100
                return sum(y.cost for y in x)
            return x.cost

        def kind(x):
            return x[-1].kind if isinstance(x, list) else x.kind
        SLACK = o.get('slack', 5)
        LEAD = o.get('lead', 4)
        ri = 0
        di = 0
        last_ds_gap = -10
        for gi, g in enumerate(gaps):
            if PROF == 1 and gi in sf.values() and gi > 0:
                stamp()
            if g['mi'] == 0:
                p = g['q']
                if PROF in (2, 3) and len(stamps) < 12 and gi >= sf[pfrom] and bars_at.get(p):
                    stamp()
                for s in bars_at.get(p, []):
                    p4 = PROF == 4 and gi >= sf[pfrom] and len(stamps) < 11
                    if s in prebar:
                        prebar[s]()
                    if p4: stamp()
                    if not o.get('nolgkm', 0):
                        P.wait_lds_flagged()
                    if p4: stamp()
                    P.wait_vm_tag(('st', s + 1))
                    if p4: stamp()
                    if not o.get('nobar', 0):
                        P.barrier()
                    if p4: stamp()
            self.check_b(g)
            if not o.get('nomfma', 0):
                P.emit(g['inst'])
            cap = 8
            ds = False
            while ri < len(rq) and rq[ri][3] <= gi:
                urgent = rq[ri][1] <= gi
                if ds and not urgent:
                    break
                P.emit(rq[ri][2]); ri += 1
                cap -= 4; ds = True
            while True:
                el = [x for x in rq2 if x[0] <= gi]
                if not el:
                    break
                x = el[0]
                isds = kind(x[2]) in ('ldsr',) or isinstance(x[2], list)
                urgent = x[1] - 2 * len([y for y in el if y[1] == x[1]]) <= gi
                if urgent or (isds and not ds and cap >= 4) or (not isds and cap >= 4):
                    P.emit(x[2]); rq2.remove(x); cap -= 4
                    if isds:
                        ds = True
                    if not urgent:
                        break
                else:
                    break
            if di < len(dq) and dq[di][0] <= gi and (cap == 8 or dq[di][0] <= gi - 3):
                self.emit_dma(dq[di][1]); di += 1; cap = 0
                if di < len(dq) and o.get('hoist', 1):
                    self.emit_setup(dq[di][1])
            progress = True
            while progress:
                progress = False
                for t_ in tasks:
                    st_, en_, lst, idx = t_
                    if gi < st_ or idx >= len(lst):
                        continue
                    force = gi >= en_
                    target = len(lst) if force else len(lst) * (gi - st_ + 1) / (en_ - st_ + 1)
                    x = lst[idx]
                    c = icost(x); k = kind(x)
                    behind = idx < target - SLACK
                    if not force and idx >= target + LEAD:
                        continue
                    if k in ('ldsr', 'ldsw'):
                        fit = (not ds) and cap >= c
                    elif c >= 100:
                        fit = cap == 8 and idx < target
                    else:
                        fit = cap >= c
                    if fit or force or (behind and cap > 0):
                        P.emit(x); cap -= c; t_[3] = idx + 1
                        if k in ('ldsr', 'ldsw'):
                            ds = True
                        progress = True
            if gi in actions:
                actions[gi]()
        assert ri == len(rq) and di == len(dq) and not rq2, (ri, len(rq), di, len(dq), len(rq2))
        for t_ in tasks:
            assert t_[3] == len(t_[2])
        while PROF >= 2 and len(stamps) < 12:
            stamp()
        stamp()
        if not o.get('notask', 0):
            P.emit(self.task_keep(self.ACC0, 3))
        if PROF:
            P.wait_vm(0)
            stamp()
            P.raw("  s_memrealtime s[100:101]")
            P.raw("  s_waitcnt lgkmcnt(0)")
            e('s_add_u32', 's4', 's14', str(64 << 20)); e('s_addc_u32', 's5', 's15', '0')
            srd(P, 8, 's4', 's5', 1 << 20)
            e('s_lshl_b32', 's6', 's2', '2'); e('s_add_u32', 's6', 's6', sr(self.S_W)); e('s_lshl_b32', 's6', 's6', '7')
            e('v_mov_b32', 'v4', '0')
            allst = [46] + stamps + [100, 98]
            for k, r in enumerate(allst):
                e('v_mov_b32', 'v5', sr(r))
                e('buffer_store_dword', 'v5', 'v4', 's[8:11]', 's6', mods=f'offen offset:{4 * k}')
        tl_end(P, self.o, 1)
        P.label("K1_end")
        P.raw("  s_endpgm")


def gen_k1(opts):
    k = K1(opts)
    name = "k1_main_kernel"
    kernel_begin(k.P, name)
    k.emit_all()
    print("K1 stats", k.P.stats, file=sys.stderr)
    return k.P.text(), descriptor(name, 512, 256, 102), (name, 256, 256, LDS_TOTAL)


def main():
    out = sys.argv[1]
    opts = {}
    for a in sys.argv[2:]:
        kk, v = a.split('='); opts[kk] = int(v)
    parts = [gen_k0(opts), gen_k1(opts), gen_k2(opts)]
    txt = header_comments([p[2] for p in parts])
    for p in parts:
        txt += p[0]
    txt += '.section .rodata,"a"\n'
    for p in parts:
        txt += p[1]
    open(out, 'w').write(txt)


if __name__ == "__main__":
    main()
```

```python
import sys, math
from asmlib import *

KN = "parallel_sum__sliding_local_dilated__swiglu_ffn__prompt"

XF_OFF = 0
XF_SIZE = 128 * 18 * 1024
PQ_OFF = 5 << 19
PQ_SIZE = 16 * 147456
P_OFF = 6 << 20
P_TILE = 144 * 1024
FP_OFF = 0
HP_OFF = 8 * 16 * 131072
MB_OFF = HP_OFF + 256 * 16384
FL_OFF = MB_OFF + 256 * 65536
P_SIZE = FL_OFF + 256 * 128

SLOT = 24576
RING = 0
HB = 3 * SLOT
SB = HB + 16384
SPITCH = 272
XB = HB + 4 * 16384
XPITCH = 144
LDS_TOTAL = XB + 128 * XPITCH

LOG2E = 1.4426950408889634


def f2h(x):
    import struct
    return "0x%08x" % struct.unpack('<I', struct.pack('<f', x))[0]


def header_comments(launches):
    L = []
    L.append(";   0 A_x, 8 A_wqkv, 16 A_wo, 24 B_x, 32 B_w_gate, 40 B_w_up, 48 B_w_down, 56 d_out, 64 d_debug, 72 d_ws")
    L.append("; Generated by a hand-written python generator (work/gen.py).")
    for (k, g, b, lds) in launches:
        L.append(f"; @launch kernel={k} grid=({g},1,1) block=({b},1,1) lds={lds}")
    L.append('.amdgcn_target "amdgcn-amd-amdhsa--gfx950"')
    L.append(".text")
    return "\n".join(L) + "\n"


def kernel_begin(P, name):
    P.raw(f".globl {name}")
    P.raw(".p2align 8")
    P.raw(f".type {name},@function")
    P.raw(f"{name}:")


def descriptor(name, vgpr, accum, sgpr=102):
    return "\n".join([
        ".p2align 6", f".amdhsa_kernel {name}",
        f"  .amdhsa_next_free_vgpr {vgpr}", f"  .amdhsa_next_free_sgpr {sgpr}", f"  .amdhsa_accum_offset {accum}",
        "  .amdhsa_group_segment_fixed_size 0", "  .amdhsa_kernarg_size 80", "  .amdhsa_user_sgpr_count 2",
        "  .amdhsa_user_sgpr_kernarg_segment_ptr 1", "  .amdhsa_system_sgpr_workgroup_id_x 1", ".end_amdhsa_kernel"]) + "\n"


def tl_start(P, opts):
    if opts.get('tl', 0):
        P.raw("  s_memrealtime s[96:97]")


def tl_end(P, opts, kidx, wsreg_lo=None):
    if not opts.get('tl', 0):
        return
    P.raw("  s_waitcnt vmcnt(0)")
    P.raw("  s_memrealtime s[98:99]")
    P.raw("  s_load_dwordx2 s[94:95], s[0:1], 72")
    P.raw("  s_waitcnt lgkmcnt(0)")
    P.raw(f"  s_add_u32 s94, s94, {(80 << 20) + kidx * 65536}")
    P.raw("  s_addc_u32 s95, s95, 0")
    P.raw("  s_mov_b32 s88, s94")
    P.raw("  s_and_b32 s89, s95, 0xffff")
    P.raw("  s_mov_b32 s90, 65536")
    P.raw("  s_mov_b32 s91, 0x20000")
    P.raw("  s_lshl_b32 s92, s2, 3")
    P.raw("  v_mov_b32 v2, s96")
    P.raw("  v_mov_b32 v3, s98")
    P.raw("  v_mov_b32 v4, 0")
    P.raw("  v_cmp_eq_u32 vcc, 0, v0")
    P.raw("  s_and_saveexec_b64 s[86:87], vcc")
    P.raw("  buffer_store_dwordx2 v[2:3], v4, s[88:91], s92 offen")
    P.raw("  s_mov_b64 exec, s[86:87]")


def hx_slot(P, opts, slot, op, only_wg0, final=False):
    if not opts.get('hx', 0):
        return
    lab = f"HX_{slot}_{op}_{len(P.lines)}"
    P.raw("  s_waitcnt vmcnt(0) lgkmcnt(0)")
    P.raw("  s_memrealtime s[86:87]")
    P.raw("  s_load_dwordx2 s[84:85], s[0:1], 72")
    P.raw("  s_waitcnt lgkmcnt(0)")
    P.raw(f"  s_add_u32 s84, s84, {96 << 20}")
    P.raw("  s_addc_u32 s85, s85, 0")
    P.raw("  s_mov_b32 s80, s84"); P.raw("  s_and_b32 s81, s85, 0xffff"); P.raw("  s_mov_b32 s82, 4096"); P.raw("  s_mov_b32 s83, 0x20000")
    if only_wg0:
        P.raw("  s_cmp_lg_u32 s2, 0"); P.raw(f"  s_cbranch_scc1 {lab}")
    P.raw("  v_mov_b32 v250, s86"); P.raw(f"  v_mov_b32 v251, {slot * 4}")
    P.raw("  v_cmp_eq_u32 vcc, 0, v0"); P.raw("  s_and_saveexec_b64 s[78:79], vcc")
    if op == 'st':
        P.raw("  buffer_store_dword v250, v251, s[80:83], 0 offen sc1")
    else:
        P.raw("  buffer_atomic_umax v250, v251, s[80:83], 0 offen")
    P.raw("  s_waitcnt vmcnt(0)")
    P.raw("  s_mov_b64 exec, s[78:79]")
    P.raw(f"{lab}:")


def srd(P, d, lo, hi, size):
    P.e('s_mov_b32', sr(d), lo)
    P.e('s_and_b32', sr(d + 1), hi, '0xffff')
    P.e('s_mov_b32', sr(d + 2), str(size))
    P.e('s_mov_b32', sr(d + 3), '0x20000')


def gen_k0(opts):
    P = Prog()
    name = "k0_ln_kernel"
    kernel_begin(P, name)
    NPK = 288
    NCP = 8 if opts.get('codepf', 1) else 0
    P.e('s_cmp_ge_u32', 's2', str(128 + NPK + NCP))
    P.raw("  s_cbranch_scc1 K0_end")
    tl_start(P, opts)
    hx_slot(P, opts, 0, 'st', True)
    if opts.get('hx', 0):
        P.raw("  s_cmp_lg_u32 s2, 0"); P.raw("  s_cbranch_scc1 HX_z")
        P.raw("  v_mov_b32 v250, 0"); P.raw("  v_mov_b32 v251, 8"); P.raw("  buffer_store_dword v250, v251, s[80:83], 0 offen sc1")
        P.raw("  v_mov_b32 v251, 16"); P.raw("  buffer_store_dword v250, v251, s[80:83], 0 offen sc1"); P.raw("  v_mov_b32 v251, 20"); P.raw("  buffer_store_dword v250, v251, s[80:83], 0 offen sc1")
        P.raw("HX_z:")
    if NCP:
        P.e('s_cmp_ge_u32', 's2', str(128 + NPK))
        P.raw("  s_cbranch_scc1 K0_code")
    P.e('s_cmp_ge_u32', 's2', '128')
    P.raw("  s_cbranch_scc1 K0_pack")
    P.e('s_load_dwordx2', 's[4:5]', 's[0:1]', '0')
    P.e('s_load_dwordx2', 's[6:7]', 's[0:1]', '72')
    P.e('v_and_b32', 'v1', '63', 'v0')
    P.e('v_lshrrev_b32', 'v2', '6', 'v0')
    P.e('v_and_b32', 'v3', '15', 'v1')
    P.e('v_lshrrev_b32', 'v4', '4', 'v1')
    P.e('v_readfirstlane_b32', 's20', 'v2')
    P.raw("  s_waitcnt lgkmcnt(0)")
    srd(P, 8, 's4', 's5', 2048 * 1152)
    srd(P, 12, 's6', 's7', XF_OFF + XF_SIZE)
    P.e('s_lshl_b32', 's21', 's2', '4')
    P.e('v_add_u32', 'v5', 's21', 'v3')
    P.e('s_movk_i32', 's22', '1152')
    P.e('v_mul_lo_u32', 'v5', 'v5', 's22')
    P.e('v_lshlrev_b32', 'v6', '4', 'v4')
    P.e('v_add_u32', 'v5', 'v5', 'v6')
    P.e('s_mul_i32', 's23', 's20', '576')
    X = 16
    for t in range(9):
        P.e('buffer_load_dwordx4', vr(X + 4 * t, 4), 'v5', 's[8:11]', 's23', mods=f'offen offset:{64 * t}')
    P.e('s_add_u32', 's28', 's6', str(P_OFF + FL_OFF)); P.e('s_addc_u32', 's29', 's7', '0')
    srd(P, 32, 's28', 's29', 256 * 128)
    P.e('v_mov_b32', 'v60', '0'); P.e('v_mov_b32', 'v61', '0'); P.e('v_mov_b32', 'v62', '0'); P.e('v_mov_b32', 'v63', '0')
    P.e('v_lshlrev_b32', 'v59', '4', 'v0')
    P.e('s_lshl_b32', 's30', 's2', '8')
    P.e('v_cmp_gt_u32', 'vcc', '16', 'v0')
    P.e('s_and_saveexec_b64', 's[36:37]', 'vcc')
    P.raw("  s_cbranch_execz K0_nz")
    P.raw("  buffer_store_dwordx4 v[60:63], v59, s[32:35], s30 offen")
    P.label("K0_nz")
    P.e('s_mov_b64', 'exec', 's[36:37]')
    P.e('v_mov_b32', 'v7', '0x3f803f80')
    P.e('v_mov_b32', 'v8', '0'); P.e('v_mov_b32', 'v9', '0'); P.e('v_mov_b32', 'v10', '0'); P.e('v_mov_b32', 'v11', '0')
    for j in range(36):
        P.e('v_dot2c_f32_bf16', 'v8' if j % 2 == 0 else 'v10', vr(X + j), 'v7')
        P.e('v_dot2c_f32_bf16', 'v9' if j % 2 == 0 else 'v11', vr(X + j), vr(X + j))
    P.e('v_add_f32', 'v8', 'v8', 'v10')
    P.e('v_add_f32', 'v9', 'v9', 'v11')
    for sw in ('v_permlane32_swap_b32', 'v_permlane16_swap_b32'):
        P.e('v_mov_b32', 'v10', 'v8'); P.e('v_mov_b32', 'v11', 'v9')
        P.e('v_mov_b32', 'v12', 'v8'); P.e('v_mov_b32', 'v13', 'v9')
        P.e(sw, 'v10', 'v12'); P.e(sw, 'v11', 'v13')
        P.e('v_add_f32', 'v8', 'v10', 'v12'); P.e('v_add_f32', 'v9', 'v11', 'v13')
    P.e('v_lshlrev_b32', 'v10', '3', 'v0')
    P.e('ds_write_b64', 'v10', 'v[8:9]')
    P.e('v_xor_b32', 'v11', '512', 'v10')
    P.wait_lgkm(0)
    P.barrier()
    P.e('ds_read_b64', 'v[12:13]', 'v11')
    P.e('v_add_f32', 'v8', 'v8', 'v12')
    P.e('v_add_f32', 'v9', 'v9', 'v13')
    P.e('v_mul_f32', 'v8', f2h(1.0 / 576), 'v8')
    P.e('v_mul_f32', 'v9', f2h(1.0 / 576), 'v9')
    P.e('v_fma_f32', 'v9', '-v8', 'v8', 'v9')
    P.e('v_max_f32', 'v9', '0', 'v9')
    P.e('v_add_f32', 'v9', f2h(1e-5), 'v9')
    P.e('v_rsq_f32', 'v9', 'v9')
    P.e('v_mul_f32', 'v8', 'v8', 'v9')
    P.e('v_sub_f32', 'v8', '0', 'v8')
    P.e('s_mov_b32', 's24', '0xffff0000')
    for j in range(36):
        a, b = 10 + 2 * (j % 2), 11 + 2 * (j % 2)
        P.e('v_lshlrev_b32', vr(a), '16', vr(X + j))
        P.e('v_and_b32', vr(b), 's24', vr(X + j))
        P.e('v_fma_f32', vr(a), vr(a), 'v9', 'v8')
        P.e('v_fma_f32', vr(b), vr(b), 'v9', 'v8')
        P.e('v_cvt_pk_bf16_f32', vr(X + j), vr(a), vr(b))
    P.e('v_lshlrev_b32', 'v6', '4', 'v1')
    P.e('s_mul_i32', 's25', 's2', str(18 * 1024))
    P.e('s_mul_i32', 's26', 's20', str(9 * 1024))
    P.e('s_add_u32', 's25', 's25', 's26')
    for t in range(9):
        if t % 4 == 0 and t:
            P.e('s_add_u32', 's25', 's25', '4096')
        P.e('buffer_store_dwordx4', vr(X + 4 * t, 4), 'v6', 's[12:15]', 's25', mods=f'offen offset:{1024 * (t % 4)}')
    tl_end(P, opts, 0)
    hx_slot(P, opts, 5, 'max', False)
    P.raw("  s_endpgm")
    P.label("K0_pack")
    P.vm_q = []; P.lds_q = []
    e = P.e
    e('s_load_dwordx2', 's[4:5]', 's[0:1]', '8')
    e('s_load_dwordx2', 's[6:7]', 's[0:1]', '72')
    e('v_and_b32', 'v1', '63', 'v0'); e('v_lshrrev_b32', 'v2', '6', 'v0')
    e('v_readfirstlane_b32', 's20', 'v2')
    e('s_sub_u32', 's21', 's2', '128'); e('s_lshl_b32', 's21', 's21', '1'); e('s_add_u32', 's21', 's21', 's20')
    P.raw("  s_waitcnt lgkmcnt(0)")
    srd(P, 12, 's4', 's5', 576 * 3456)
    e('s_add_u32', 's6', 's6', str(PQ_OFF)); e('s_addc_u32', 's7', 's7', '0')
    srd(P, 16, 's6', 's7', PQ_SIZE)
    e('v_and_b32', 'v3', '15', 'v1')
    e('v_lshrrev_b32', 'v4', '4', 'v1')
    e('v_lshlrev_b32', 'v9', '4', 'v1')
    for k in range(4):
        e('s_lshl_b32', 's22', 's21', '2'); e('s_add_u32', 's22', 's22', str(k))
        e('s_mul_hi_u32', 's23', 's22', str((2 ** 32 + 143) // 144))
        e('s_mul_i32', 's24', 's23', '144'); e('s_sub_u32', 's24', 's22', 's24')
        e('s_mul_hi_u32', 's25', 's24', str((2 ** 32 + 5) // 6))
        e('s_mul_i32', 's26', 's25', '6'); e('s_sub_u32', 's26', 's24', 's26')
        e('s_lshr_b32', 's27', 's25', '2')
        e('s_and_b32', 's28', 's25', '3')
        e('s_mul_i32', 's29', 's27', '96'); e('s_lshl_b32', 's30', 's26', '4'); e('s_add_u32', 's29', 's29', 's30')
        e('s_lshl_b32', 's30', 's28', '2'); e('s_add_u32', 's29', 's29', 's30')
        e('v_add_u32', 'v5', 's29', 'v4')
        e('s_lshr_b32', 's30', 's28', '1'); e('s_lshl_b32', 's30', 's30', '2')
        e('v_or_b32', 'v6', 's30', 'v4'); e('v_lshrrev_b32', 'v7', '1', 'v3'); e('v_xor_b32', 'v6', 'v6', 'v7')
        e('v_lshlrev_b32', 'v6', '1', 'v6'); e('v_and_b32', 'v7', '1', 'v3'); e('v_or_b32', 'v6', 'v6', 'v7')
        e('v_mul_u32_u24', 'v7', '13', 'v6'); e('v_lshrrev_b32', 'v7', '6', 'v7'); e('v_min_u32', 'v7', '2', 'v7')
        e('v_mul_u32_u24', 'v8', '5', 'v7'); e('v_sub_u32', 'v8', 'v6', 'v8'); e('v_lshlrev_b32', 'v8', '4', 'v8')
        e('v_add_u32', 'v7', '1', 'v7'); e('v_cmp_eq_u32', 'vcc', '3', 'v7'); e('v_mov_b32', 'v10', '0')
        e('v_cndmask_b32', 'v7', 'v7', 'v10', 'vcc')
        e('v_mul_u32_u24', 'v7', '1152', 'v7'); e('v_add_u32', 'v8', 'v8', 'v7')
        e('s_mul_i32', 's30', 's23', '72'); e('v_add_u32', 'v8', 's30', 'v8')
        e('v_mul_u32_u24', 'v5', '3456', 'v5'); e('v_add_u32', 'v5', 'v5', 'v8')
        e('buffer_load_dwordx4', vr(16 + 4 * k, 4), 'v5', 's[12:15]', '0', mods='offen')
    e('s_lshl_b32', 's22', 's21', '12')
    for k in range(4):
        e('buffer_store_dwordx4', vr(16 + 4 * k, 4), 'v9', 's[16:19]', 's22', mods=f'offen offset:{1024 * k}')
    if NCP:
        P.raw("  s_endpgm")
        P.label("K0_code")
        P.raw("  s_getpc_b64 s[4:5]")
        P.raw("K0_pc:")
        P.raw("  s_add_u32 s4, s4, k1_main_kernel-K0_pc")
        P.raw("  s_addc_u32 s5, s5, 0")
        P.raw("  s_mov_b32 s8, s4")
        P.raw("  s_and_b32 s9, s5, 0xffff")
        P.raw("  s_mov_b32 s10, K2_end-k1_main_kernel")
        P.raw("  s_mov_b32 s11, 0x20000")
        P.raw("  v_lshlrev_b32 v1, 4, v0")
        P.raw("  s_mov_b32 s12, 0")
        P.raw("K0_cl:")
        P.raw("  buffer_load_dwordx4 v[4:7], v1, s[8:11], s12 offen")
        P.raw("  s_add_u32 s12, s12, 2048")
        P.raw("  s_cmp_lt_u32 s12, s10")
        P.raw("  s_cbranch_scc1 K0_cl")
    P.label("K0_end")
    P.raw("  s_endpgm")
    return P.text(), descriptor(name, 256 if opts.get('hx', 0) else 64, 256 if opts.get('hx', 0) else 64, 102), (name, 128 + NPK + NCP, 128, 1024)


def gen_k2(opts):
    P = Prog()
    name = "k2_reduce_kernel"
    kernel_begin(P, name)
    K2W = opts.get('k2w', 4)
    NWG = 2304 // K2W
    P.e('s_cmp_ge_u32', 's2', str(NWG))
    P.raw("  s_cbranch_scc1 K2_end")
    tl_start(P, opts)
    hx_slot(P, opts, 3, 'st', True)
    P.e('s_load_dwordx2', 's[4:5]', 's[0:1]', '0')
    P.e('s_load_dwordx2', 's[6:7]', 's[0:1]', '72')
    P.e('s_load_dwordx2', 's[16:17]', 's[0:1]', '56')
    P.e('v_and_b32', 'v1', '63', 'v0')
    P.e('v_lshrrev_b32', 'v2', '6', 'v0')
    P.e('v_and_b32', 'v3', '15', 'v1')
    P.e('v_lshrrev_b32', 'v4', '4', 'v1')
    P.e('v_readfirstlane_b32', 's20', 'v2')
    P.e('v_lshlrev_b32', 'v5', '4', 'v1')
    P.raw("  s_waitcnt lgkmcnt(0)")
    srd(P, 8, 's4', 's5', 2048 * 1152)
    P.e('s_add_u32', 's6', 's6', str(P_OFF)); P.e('s_addc_u32', 's7', 's7', '0')
    srd(P, 12, 's6', 's7', P_SIZE)
    srd(P, 24, 's16', 's17', 2048 * 1152)
    P.e('s_mul_i32', 's21', 's2', str(K2W)); P.e('s_add_u32', 's21', 's21', 's20')
    P.e('s_mul_hi_u32', 's22', 's21', str((2 ** 32 + 143) // 144))
    P.e('s_mul_i32', 's23', 's22', '144'); P.e('s_sub_u32', 's23', 's21', 's23')
    D = 16
    lf = ['', ' nt', ' sc1'][opts.get('ldflag', 0)]
    P.e('s_cmp_ge_u32', 's23', '128')
    P.raw("  s_cbranch_scc1 K2_half")
    for half in (0, 1):
        if half:
            P.label("K2_half")
            P.vm_q = []; P.lds_q = []
        n = 16 if half else 8
        if not half:
            P.e('s_lshl_b32', 's28', 's22', '17'); P.e('s_lshl_b32', 's29', 's23', '10'); P.e('s_add_u32', 's28', 's28', 's29')
            stride = 16 * 131072
        else:
            P.e('s_lshl_b32', 's28', 's22', '14'); P.e('s_sub_u32', 's23', 's23', '128'); P.e('s_lshl_b32', 's29', 's23', '10')
            P.e('s_add_u32', 's28', 's28', 's29'); P.e('s_add_u32', 's28', 's28', str(HP_OFF))
            stride = 16 * 16384
        for s in range(n):
            P.e('buffer_load_dwordx4', vr(D + 4 * s, 4), 'v5', 's[12:15]', 's28', mods='offen' + lf)
            if s < n - 1:
                P.e('s_add_u32', 's28', 's28', str(stride))
        P.e('s_and_b32', 's29', 's23', '3')
        if not half:
            P.e('s_lshr_b32', 's31', 's23', '3'); P.e('s_and_b32', 's31', 's31', '3')
            P.e('s_lshr_b32', 's34', 's31', '1')
            P.e('s_lshr_b32', 's35', 's23', '5'); P.e('s_lshl_b32', 's35', 's35', '7')
            P.e('s_lshl_b32', 's36', 's34', '6'); P.e('s_add_u32', 's35', 's35', 's36')
            P.e('s_lshr_b32', 's36', 's23', '2'); P.e('s_and_b32', 's36', 's36', '1'); P.e('s_lshl_b32', 's36', 's36', '5')
            P.e('s_add_u32', 's35', 's35', 's36')
        else:
            P.e('s_lshr_b32', 's31', 's23', '2')
            P.e('s_lshr_b32', 's34', 's31', '1')
            P.e('s_lshl_b32', 's35', 's34', '5'); P.e('s_add_u32', 's35', 's35', '512')
        P.e('s_and_b32', 's33', 's31', '1')
        P.e('s_lshl_b32', 's37', 's22', '7'); P.e('s_lshl_b32', 's38', 's33', '6'); P.e('s_add_u32', 's37', 's37', 's38')
        P.e('s_lshl_b32', 's38', 's29', '4'); P.e('s_add_u32', 's37', 's37', 's38')
        P.e('v_add_u32', 'v6', 's37', 'v3')
        P.e('v_mul_u32_u24', 'v6', '1152', 'v6')
        P.e('s_lshl_b32', 's40', 's35', '1')
        P.e('v_add_u32', 'v6', 's40', 'v6')
        P.e('v_lshlrev_b32', 'v7', '3', 'v4')
        P.e('v_add_u32', 'v7', 'v6', 'v7')
        P.e('buffer_load_dwordx2', 'v[8:9]', 'v7', 's[8:11]', '0', mods='offen')
        P.e('buffer_load_dwordx2', 'v[10:11]', 'v7', 's[8:11]', '0', mods='offen offset:32')
        P.e('v_and_b32', 'v12', '1', 'v4'); P.e('v_lshlrev_b32', 'v12', '5', 'v12')
        P.e('v_lshrrev_b32', 'v13', '1', 'v4'); P.e('v_lshlrev_b32', 'v13', '4', 'v13')
        P.e('v_add3_u32', 'v6', 'v6', 'v12', 'v13')
        P.e('s_mov_b32', 's41', '0xffff0000')
        ACC = 80
        srcs = [D + 4 * s for s in range(n)] + [8]
        for si, base in enumerate(srcs):
            for j in range(4):
                d = vr(base + j)
                if si == 0:
                    P.e('v_lshlrev_b32', vr(ACC + 2 * j), '16', d)
                    P.e('v_and_b32', vr(ACC + 2 * j + 1), 's41', d)
                else:
                    t0, t1 = 88 + 2 * (j % 2), 89 + 2 * (j % 2)
                    P.e('v_lshlrev_b32', vr(t0), '16', d)
                    P.e('v_and_b32', vr(t1), 's41', d)
                    P.e('v_add_f32', vr(ACC + 2 * j), vr(ACC + 2 * j), vr(t0))
                    P.e('v_add_f32', vr(ACC + 2 * j + 1), vr(ACC + 2 * j + 1), vr(t1))
        for j in range(4):
            P.e('v_cvt_pk_bf16_f32', vr(92 + j), vr(ACC + 2 * j), vr(ACC + 2 * j + 1))
        P.e('v_permlane16_swap_b32', 'v92', 'v94')
        P.e('v_permlane16_swap_b32', 'v93', 'v95')
        P.e('buffer_store_dwordx4', 'v[92:95]', 'v6', 's[24:27]', '0', mods='offen')
        tl_end(P, opts, 2)
        if opts.get('hx', 0):
            P.raw("  s_waitcnt vmcnt(0) lgkmcnt(0)")
            P.raw("  s_memrealtime s[86:87]")
            P.raw("  s_load_dwordx2 s[84:85], s[0:1], 64")
            P.raw("  s_load_dwordx2 s[76:77], s[0:1], 72")
            P.raw("  s_waitcnt lgkmcnt(0)")
            pass
            P.raw("  s_mov_b32 s80, s84"); P.raw("  s_and_b32 s81, s85, 0xffff"); P.raw("  s_mov_b32 s82, 256"); P.raw("  s_mov_b32 s83, 0x20000")
            P.raw("  v_mov_b32 v90, s86"); P.raw("  v_mov_b32 v91, 0")
            P.raw("  v_cmp_eq_u32 vcc, 0, v1"); P.raw("  s_and_saveexec_b64 s[78:79], vcc")
            P.raw("  buffer_atomic_umax v90, v91, s[80:83], 0 offen")
            P.raw("  s_mov_b64 exec, s[78:79]")
            P.raw(f"  s_add_u32 s76, s76, {96 << 20}"); P.raw("  s_addc_u32 s77, s77, 0")
            P.raw("  s_mov_b32 s72, s76"); P.raw("  s_and_b32 s73, s77, 0xffff"); P.raw("  s_mov_b32 s74, 4096"); P.raw("  s_mov_b32 s75, 0x20000")
            P.raw("  v_lshlrev_b32 v91, 2, v1")
            P.raw("  v_cmp_gt_u32 vcc, 6, v1"); P.raw("  s_and_saveexec_b64 s[78:79], vcc")
            P.raw("  buffer_load_dword v90, v91, s[72:75], 0 offen sc1"); P.raw("  s_waitcnt vmcnt(0)")
            P.raw("  buffer_store_dword v90, v91, s[80:83], 0 offen offset:4")
            P.raw("  s_waitcnt vmcnt(0)")
            P.raw("  s_mov_b64 exec, s[78:79]")
        if not half:
            P.raw("  s_endpgm")
    P.label("K2_end")
    P.raw("  s_endpgm")
    return P.text(), descriptor(name, 256 if opts.get('hx', 0) else 96, 256 if opts.get('hx', 0) else 96, 102), (name, NWG, 64 * K2W, 0)


class K1:
    V_LANE, V_C16, V_G, V_T0, V_T1, V_T2, V_T3, V_T4 = 1, 2, 3, 4, 5, 6, 7, 8
    ACC0, ACC1 = 16, 80
    FR = 144
    NFR = 6
    XV = 168
    TQ = 200
    TG = 204
    TH = 208
    TP = 210
    TPH = 214
    DQ = 216
    DG = 219
    DH = 222
    DP = 225
    DPH = 228
    HW = 231
    HWX = 233
    HR = 234
    XR = 236
    SW = 237
    AB = 241
    OW = 242
    PV = 243
    MG = 244
    XA = 245
    TD = 168
    HAL = 248
    HALX = 8

    S_W, S_S, S_I = 20, 21, 22
    S_RG2, S_CH = 23, 24
    S_LDSW = 25
    S_XF = 26
    S_FB = 88
    S_YC = 28
    S_FPB, S_MBO, S_MBP, S_HPB, S_FSH, S_FOFF = 17, 18, 19, 44, 26, 27
    SRD_DBG = 48
    S_TCH = 33
    INC = [176, 180, 184, 188, 192, 196, 248, 252]
    INC2 = [200, 204, 216, 220, 232, 236, 8, 12]
    V_POLL = 4
    S_T0, S_T1, S_T2, S_T3 = 34, 35, 36, 37
    S_SOFF = 38
    S_NLOG2E = 39
    S_AC = 40
    S_PERM0, S_PERM1 = 41, 42
    S_NEG = 43
    S_QC = 44
    S_PO = 45
    S_PO2 = 40
    SRD_XF, SRD_QKV, SRD_GU, SRD_WD, SRD_WO, SRD_P = 48, 52, 56, 60, 64, 68
    S_FB2 = 4
    S_FBR = 9
    S_WOR = 16
    S_XL, S_XH, S_SOFF2 = 17, 18, 19

    def __init__(self, opts):
        self.P = Prog()
        self.o = opts

    def xreg(self, t, mb):
        j = 4 * t + mb
        return ar(4 * j, 4) if j < 64 else vr(self.XV + 4 * (j - 64), 4)

    def hreg(self, k, mb):
        return ar(16 * k + 4 * mb, 4)

    def halo_x(self, t):
        return vr(self.ACC1 + 4 * t, 4) if t < 16 else vr(self.HALX + 4 * (t - 16), 4)

    def prologue(self):
        P = self.P
        e = P.e
        e('s_cmp_ge_u32', 's2', '256')
        P.raw("  s_cbranch_scc1 K1_end")
        tl_start(P, self.o)
        hx_slot(P, self.o, 1, 'st', True)
        if self.o.get('prof', 0):
            P.raw("  s_memtime s[46:47]")
            P.raw("  s_memrealtime s[98:99]")
        e('s_load_dwordx2', 's[14:15]', 's[0:1]', '72')
        e('s_load_dwordx2', 's[6:7]', 's[0:1]', '16')
        e('s_load_dwordx4', 's[8:11]', 's[0:1]', '32')
        e('s_load_dwordx2', 's[12:13]', 's[0:1]', '48')
        L, C16, G = vr(self.V_LANE), vr(self.V_C16), vr(self.V_G)
        e('v_and_b32', L, '63', 'v0')
        e('v_lshrrev_b32', 'v4', '6', 'v0')
        e('v_and_b32', C16, '15', L)
        e('v_lshrrev_b32', G, '4', L)
        e('v_readfirstlane_b32', sr(self.S_W), 'v4')
        e('v_lshlrev_b32', vr(self.PV), '4', L)
        e('s_and_b32', sr(self.S_S), 's2', '3'); e('s_lshl_b32', sr(self.S_S), sr(self.S_S), '2')
        e('s_bfe_u32', sr(self.S_T0), 's2', '0x20003'); e('s_add_u32', sr(self.S_S), sr(self.S_S), sr(self.S_T0))
        e('s_bfe_u32', sr(self.S_I), 's2', '0x10002'); e('s_lshl_b32', sr(self.S_I), sr(self.S_I), '3')
        e('s_lshr_b32', sr(self.S_T0), 's2', '5'); e('s_add_u32', sr(self.S_I), sr(self.S_I), sr(self.S_T0))
        e('s_and_b32', sr(self.S_RG2), sr(self.S_W), '1'); e('s_lshr_b32', sr(self.S_CH), sr(self.S_W), '1')
        e('s_mul_i32', sr(self.S_LDSW), sr(self.S_W), '6144')
        e('s_lshl_b32', sr(self.S_T0), sr(self.S_I), '3'); e('s_lshl_b32', sr(self.S_T1), sr(self.S_W), '1')
        e('s_add_u32', sr(self.S_T0), sr(self.S_T0), sr(self.S_T1))
        e('s_mul_i32', sr(self.S_XF), sr(self.S_T0), '18432')
        e('s_lshr_b32', sr(self.S_T0), sr(self.S_W), '1'); e('s_mul_i32', sr(self.S_XL), sr(self.S_T0), '36864')
        e('s_and_b32', sr(self.S_T0), sr(self.S_W), '1'); e('s_mul_i32', sr(self.S_T0), sr(self.S_T0), '6144')
        e('s_add_u32', sr(self.S_XL), sr(self.S_XL), sr(self.S_T0))
        e('s_min_u32', sr(self.S_T1), sr(self.S_W), '2'); e('s_lshl_b32', sr(self.S_XH), sr(self.S_T1), '10')
        e('s_lshl_b32', sr(self.S_T0), sr(self.S_I), '3'); e('s_sub_u32', sr(self.S_T0), sr(self.S_T0), '1')
        e('s_mul_i32', sr(self.S_T0), sr(self.S_T0), '18432'); e('s_add_u32', sr(self.S_T0), sr(self.S_T0), sr(self.S_XH))
        e('s_cmp_eq_u32', sr(self.S_I), '0'); e('s_cselect_b32', sr(self.S_XF + 1), '0x7f000000', sr(self.S_T0))
        e('s_mul_i32', sr(self.S_T2), sr(self.S_S), '147456'); e('s_add_u32', sr(self.S_T2), sr(self.S_T2), str(PQ_OFF))
        P.raw("  s_waitcnt lgkmcnt(0)")
        e('s_add_u32', sr(self.S_T0), 's14', str(XF_OFF)); e('s_addc_u32', sr(self.S_T1), 's15', '0')
        srd(P, self.SRD_XF, sr(self.S_T0), sr(self.S_T1), XF_SIZE)
        e('s_add_u32', sr(self.S_T0), 's14', sr(self.S_T2)); e('s_addc_u32', sr(self.S_T1), 's15', '0')
        srd(P, self.SRD_QKV, sr(self.S_T0), sr(self.S_T1), 147456)

    def scalars_late(self, e, srd_):
        srd_(self.SRD_WO, 's6', 's7', 576 * 1152)
        e('s_cmp_ge_u32', sr(self.S_W), '2')
        e('s_cselect_b32', sr(self.S_T0), 's10', 's8'); e('s_cselect_b32', sr(self.S_T1), 's11', 's9')
        srd_(self.SRD_GU, sr(self.S_T0), sr(self.S_T1), 576 * 9216)
        srd_(self.SRD_WD, 's12', 's13', 4608 * 1152)
        e('s_add_u32', sr(self.S_T0), 's14', str(P_OFF)); e('s_addc_u32', sr(self.S_T1), 's15', '0')
        srd_(self.SRD_P, sr(self.S_T0), sr(self.S_T1), P_SIZE)
        e('s_mul_i32', sr(self.S_T0), sr(self.S_S), '288')
        e('s_and_b32', sr(self.S_T1), sr(self.S_S), '1')
        e('s_lshl_b32', sr(self.S_T2), sr(self.S_T1), '5'); e('s_add_u32', sr(self.S_T2), sr(self.S_T2), sr(self.S_T0))
        for j in range(4):
            e('s_add_u32', sr(self.S_T3), sr(self.S_I), str(j)); e('s_and_b32', sr(self.S_T3), sr(self.S_T3), '3')
            e('s_lshl_b32', sr(self.S_T3), sr(self.S_T3), '6'); e('s_add_u32', sr(self.S_FB + j), sr(self.S_T2), sr(self.S_T3))
        e('s_cmp_eq_u32', sr(self.S_T1), '1'); e('s_cselect_b32', sr(self.S_T3), '0', '256')
        e('s_add_u32', sr(self.S_FB + 4), sr(self.S_T0), sr(self.S_T3))
        for j in range(5):
            e('s_lshl_b32', sr(self.S_FB2 + j), sr(self.S_FB + j), '1')
            e('s_mul_i32', sr(self.S_FBR + j), sr(self.S_FB + j), '1152')
        e('s_mul_i32', sr(self.S_WOR), sr(self.S_S), str(36 * 1152))
        e('s_and_b32', sr(self.S_T0), sr(self.S_S), '1'); e('s_lshl_b32', sr(self.S_T0), sr(self.S_T0), '1')
        for k in range(4):
            e('s_add_u32', sr(self.S_T1), sr(self.S_T0), str(k)); e('s_and_b32', sr(self.S_T1), sr(self.S_T1), '3')
            e('s_lshl_b32', sr(self.S_YC + k), sr(self.S_T1), '8')
        e('s_mov_b32', sr(self.S_NLOG2E), f2h(-LOG2E))
        e('s_mov_b32', sr(self.S_AC), f2h(LOG2E / math.sqrt(18.0)))
        e('s_mov_b32', sr(self.S_PERM0), '0x05040100'); e('s_mov_b32', sr(self.S_PERM1), '0x07060302')
        e('s_mov_b32', sr(self.S_NEG), f2h(-1e30))

    TA, TB, TC, TDm = 'v4', 'v5', 'v6', 'v7'
    TR, TCC8, TG1, TG2 = 'v247', 'v244', 'v242', 'v241'

    def addr_first(self, e):
        L, C16, G = vr(self.V_LANE), vr(self.V_C16), vr(self.V_G)
        a, b, c = self.TA, self.TB, self.TC
        r, cc8, g1, g2 = self.TR, self.TCC8, self.TG1, self.TG2
        W, RG2 = sr(self.S_W), sr(self.S_RG2)
        T0, T1, T2, T3 = sr(self.S_T0), sr(self.S_T1), sr(self.S_T2), sr(self.S_T3)
        e('v_lshrrev_b32', r, '2', C16)
        e('v_and_b32', cc8, '3', C16); e('v_lshlrev_b32', cc8, '3', cc8)
        e('v_and_b32', g1, '1', G)
        e('v_lshrrev_b32', g2, '1', G)
        e('v_mul_u32_u24', a, '12288', g1)
        e('v_lshl_add_u32', a, g2, '10', a)
        e('v_lshl_add_u32', a, r, '8', a)
        e('v_add_u32', a, a, cc8)
        e('v_lshl_or_b32', b, g1, '2', r)
        e('s_mov_b32', T0, '0x10525210'); e('s_mov_b32', T1, '0x63747463')
        e('s_lshl_b32', T2, W, '4')
        e('s_lshr_b64', sr(self.S_T0, 2), sr(self.S_T0, 2), T2)
        e('s_mov_b32', sr(self.S_QC), T0)
        for u in range(4):
            e('s_bfe_u32', T2, T0, hex((4 << 16) | (4 * u)))
            e('v_xor_b32', c, T2, b); e('v_lshl_add_u32', vr(self.TQ + u), c, '5', a)
        e('s_mul_i32', T0, RG2, '36864'); e('s_add_u32', T0, T0, str(HB))
        e('v_add_u32', vr(self.XA), T0, vr(self.PV))
        e('v_add_u32', vr(self.XA + 1), str(HB + 73728), vr(self.PV))

    def addr_late(self, e):
        L, C16, G = vr(self.V_LANE), vr(self.V_C16), vr(self.V_G)
        a, b, c, d = self.TA, self.TB, self.TC, self.TDm
        r, cc8, g1, g2 = self.TR, self.TCC8, self.TG1, self.TG2
        W, CH, RG2 = sr(self.S_W), sr(self.S_CH), sr(self.S_RG2)
        T0, T1, T2, T3 = sr(self.S_T0), sr(self.S_T1), sr(self.S_T2), sr(self.S_T3)
        e('v_lshrrev_b32', b, '3', L)
        e('v_bfe_u32', a, b, '1', '1')
        e('s_and_b32', T0, W, '1'); e('s_lshl_b32', T1, T0, '1')
        e('v_or_b32', a, T1, a)
        e('v_bfe_u32', c, L, '1', '2')
        e('v_xor_b32', a, a, c); e('v_lshlrev_b32', a, '1', a)
        e('v_and_b32', c, '1', L); e('v_or_b32', a, a, c)
        e('s_lshl_b32', T1, T0, '3')
        e('v_add_u32', c, T1, b)
        e('v_mul_u32_u24', c, '9216', c)
        e('v_lshl_add_u32', vr(self.DG), a, '4', c)
        for j in (1, 2):
            e('v_add_u32', vr(self.DG + j), str(j * (16 * 9216 - 1024)), vr(self.DG))
        e('s_lshl_b32', T1, W, '3')
        e('v_add_u32', c, T1, b)
        e('v_mul_u32_u24', c, '1152', c)
        e('v_lshl_add_u32', vr(self.DPH), a, '4', c)
        for j in (1, 2):
            e('v_add_u32', vr(self.DPH + j), str(j * (32 * 1152 - 1024)), vr(self.DPH))
        e('v_lshrrev_b32', b, '2', L)
        e('v_lshrrev_b32', a, '3', b); e('v_lshlrev_b32', a, '1', a)
        e('v_and_b32', c, '3', L); e('v_xor_b32', a, a, c)
        e('s_lshl_b32', T1, T0, '4')
        e('v_add_u32', c, T1, b)
        e('v_mul_u32_u24', c, '9216', c)
        e('v_lshl_add_u32', vr(self.DH), a, '4', c)
        for j in (1, 2):
            e('v_add_u32', vr(self.DH + j), str(j * (32 * 9216 - 1024)), vr(self.DH))
        e('s_lshr_b32', T0, W, '1'); e('s_lshl_b32', T0, T0, '2')
        e('v_or_b32', a, T0, G)
        e('v_lshrrev_b32', b, '1', C16)
        e('v_xor_b32', a, a, b)
        e('v_lshlrev_b32', a, '1', a)
        e('v_and_b32', b, '1', C16)
        e('v_or_b32', a, a, b)
        e('s_lshl_b32', T1, W, '2')
        e('v_add_u32', b, T1, G)
        e('v_mul_u32_u24', c, '1152', b)
        e('v_lshl_add_u32', vr(self.DP), a, '4', c)
        for j in (1, 2):
            e('v_add_u32', vr(self.DP + j), str(j * (16 * 1152 - 1024)), vr(self.DP))
        e('v_mul_u32_u24', a, '6144', g1)
        e('v_lshl_add_u32', a, g2, '10', a)
        e('v_lshl_add_u32', a, r, '7', a)
        e('v_add_u32', a, a, cc8)
        e('v_lshrrev_b32', b, '1', r); e('v_lshl_or_b32', b, g1, '1', b)
        for bb in range(2):
            e('s_lshl_b32', T2, CH, '1'); e('s_add_u32', T2, T2, str(bb))
            e('v_xor_b32', c, T2, b); e('v_lshl_add_u32', vr(self.TG + bb), c, '5', a)
            e('v_add_u32', vr(self.TG + 2 + bb), '12288', vr(self.TG + bb))
        e('v_mul_u32_u24', a, '6144', G)
        e('v_lshl_add_u32', a, r, '7', a)
        e('v_add_u32', a, a, cc8)
        for bb in range(2):
            e('s_lshl_b32', T2, CH, '1'); e('s_add_u32', T2, T2, str(bb))
            e('v_xor_b32', c, T2, b); e('v_lshl_add_u32', vr(self.TPH + bb), c, '5', a)
        e('v_mul_u32_u24', a, '6144', g2)
        e('v_lshl_add_u32', c, g1, '3', r); e('v_lshl_add_u32', a, c, '6', a)
        e('v_add_u32', a, a, cc8)
        e('v_xor_b32', c, CH, g1); e('v_lshl_add_u32', vr(self.TH), c, '5', a)
        e('v_add_u32', vr(self.TH + 1), '12288', vr(self.TH))
        e('v_mul_u32_u24', a, '12288', g1)
        e('v_lshl_add_u32', a, g2, '10', a)
        e('v_lshl_add_u32', a, r, '8', a)
        e('v_add_u32', a, a, cc8)
        e('v_lshl_or_b32', b, g1, '2', r)
        for u in range(4):
            e('s_lshl_b32', T2, CH, '2'); e('s_add_u32', T2, T2, str(u))
            e('v_xor_b32', c, T2, b); e('v_lshl_add_u32', vr(self.TP + u), c, '5', a)
        e('s_lshl_b32', T3, RG2, '6'); e('s_add_u32', T3, T3, '16')
        e('v_add_u32', c, T3, C16); e('v_mul_u32_u24', c, str(SPITCH), c)
        e('v_lshl_add_u32', c, G, '3', c)
        for u in range(4):
            e('s_bfe_u32', T2, sr(self.S_QC), hex((4 << 16) | (4 * u)))
            e('s_lshl_b32', T2, T2, '5'); e('s_add_u32', T2, T2, str(SB))
            e('v_add_u32', vr(self.SW + u), T2, c)
        e('s_lshl_b32', T2, RG2, '6'); e('v_add_u32', a, T2, C16)
        e('s_lshl_b32', T3, CH, '2'); e('v_add_u32', b, T3, g2)
        e('v_and_b32', c, '7', C16); e('v_xor_b32', b, b, c)
        e('v_lshlrev_b32', b, '4', b); e('v_lshl_add_u32', b, g1, '3', b)
        e('v_lshl_add_u32', b, a, '7', b)
        e('v_add_u32', vr(self.HW), str(HB), b)
        e('v_xor_b32', vr(self.HW + 1), '32', vr(self.HW))
        e('v_xor_b32', b, G, c); e('v_lshlrev_b32', b, '4', b); e('v_lshl_add_u32', b, a, '7', b)
        e('v_add_u32', vr(self.HR), str(HB), b)
        e('v_xor_b32', vr(self.HR + 1), '64', vr(self.HR))
        e('v_mul_u32_u24', b, str(XPITCH), a)
        e('v_add_u32', b, str(XB), b)
        e('v_lshl_add_u32', vr(self.XR), G, '4', b)
        e('s_lshl_b32', T3, CH, '5')
        e('v_lshl_add_u32', c, G, '3', b); e('v_add_u32', vr(self.HWX), T3, c)
        e('v_and_b32', a, '31', L); e('v_lshrrev_b32', b, '5', L)
        e('s_lshl_b32', T2, W, '5')
        e('v_add_u32', a, T2, a)
        e('s_lshl_b32', T3, sr(self.S_I), '7'); e('v_add_u32', vr(self.MG), T3, a)
        e('v_add_u32', c, '2', a); e('v_mul_u32_u24', c, str(SPITCH), c)
        e('v_lshl_add_u32', c, b, '5', c); e('v_add_u32', vr(self.AB), str(SB), c)
        e('v_mul_u32_u24', c, str(XPITCH), a); e('v_lshl_add_u32', c, b, '5', c)
        e('v_add_u32', vr(self.OW), str(XB + 64), c)

    def task_late_setup(self):
        T = []
        e = lambda op, *a, **k: T.append(I(op, *a, **k))

        def srd_(d, lo, hi, size):
            e('s_mov_b32', sr(d), lo); e('s_and_b32', sr(d + 1), hi, '0xffff'); e('s_mov_b32', sr(d + 2), str(size)); e('s_mov_b32', sr(d + 3), '0x20000')
        self.scalars_late(e, srd_)
        S = list(T)
        T.clear()
        self.addr_late(e)
        return [S] + T

    def build(self):
        self.stages = []
        self.ksteps = []
        strips = []

        def add_stage(dml):
            self.stages.append(dml)
            return len(self.stages) - 1

        def strip_generic(name, nk, ks_per_stage, nfrag, dma_fn, tr_fn, mf_fn):
            st = dict(name=name, ks=[])
            for t in range(nk):
                tl = t % ks_per_stage
                if tl == 0:
                    n_in = min(ks_per_stage, nk - t)
                    dml = []
                    for tt in range(n_in):
                        dml += dma_fn(t + tt, tt)
                    sid = add_stage(dml)
                frs = [tr_fn(t, tl, u) for u in range(nfrag)]
                st['ks'].append(dict(t=t, stage=sid, frags=frs, mf=[mf_fn(t, u) for u in range(nfrag)], last_in_stage=(tl == ks_per_stage - 1 or t == nk - 1)))
            strips.append(st)
            return st

        A0, A1 = self.ACC0, self.ACC1
        acc = lambda buf, u, mb: vr(buf + 16 * u + 4 * mb, 4)

        def dq(t, tt):
            r = t // 3
            return [(self.SRD_QKV, ('pq', 0), (r * 24 + 2 * tt + e) * 1024, self.PV, 1024, 2 * tt + e) for e in range(2)]

        def trq(t, tl, u):
            return (self.TQ + u, tl * 2048, 6144)

        def mfq(t, u):
            L = [(acc(A0, u, mb), self.xreg(t, mb)) for mb in range(4)]
            if u < 2:
                L.append((vr(self.HAL + 4 * u, 4), self.halo_x(t)))
            return L
        strip_generic('QKV', 18, 3, 4, dq, trq, mfq)

        def ffn(j, buf):
            def dg(t, tt):
                return [(self.SRD_GU, ('fb2', j), (32 * t + 16 * e) * 9216, self.DG, 16 * 9216, 2 * tt + e) for e in range(2)]

            def trg(t, tl, u):
                return (self.TG + u, tl * 2048, 512)

            def mfg(t, u):
                return [(acc(buf, u, mb), self.xreg(t, mb)) for mb in range(4)]
            return strip_generic(f'F{j}', 18, 3, 4, dg, trg, mfg)
        ffn(0, A1); ffn(1, A0); ffn(2, A1); ffn(3, A0)

        def dh(t, tt):
            return [(self.SRD_GU, ('fb2', 4), (32 * t) * 9216, self.DH, 32 * 9216, tt)]

        def trh(t, tl, u):
            return (self.TH + u, tl * 1024, 256)

        def mfh(t, u):
            return [(acc(A1, u, mb), self.xreg(t, mb)) for mb in range(4)]
        strip_generic('F4h', 18, 6, 2, dh, trh, mfh)

        self.kmap = [('F', 0, 0), ('F', 0, 1), ('F', 1, 0), ('F', 1, 1), ('F', 2, 0), ('F', 2, 1), ('O', 0, 0), ('O', 0, 1), ('F', 3, 0), ('F', 3, 1), ('X', 4, 0)]

        def p2rows(k):
            kind, j, tt = self.kmap[k]
            if kind == 'O':
                return self.SRD_WO, ('wo', 0), 32 * tt
            return self.SRD_WD, ('fbr', j), 32 * tt

        def p2full(Y, buf):
            def dp(t, tt):
                s_, b_, r0 = p2rows(t)
                return [(s_, b_ + ('y', Y), (r0 + 16 * e) * 1152, self.DP, 16 * 1152, 2 * tt + e) for e in range(2)]

            def trp(t, tl, u):
                return (self.TP + u, tl * 2048, 6144)

            def mfp(t, u):
                return [(acc(buf, u, mb), self.hreg(t, mb)) for mb in range(4)]
            return strip_generic(f'P{Y}', 11, 3, 4, dp, trp, mfp)
        def dph(t, tt):
            s_, b_, r0 = p2rows(t)
            return [(s_, b_, r0 * 1152 + 1024, self.DPH, 32 * 1152, tt)]

        def trph(t, tl, u):
            return (self.TPH + u, tl * 1024, 512)

        def mfph(t, u):
            return [(acc(A0, u, mb), self.hreg(t, mb)) for mb in range(4)]
        p2full(0, A0); p2full(1, A1)
        strip_generic('P4h', 11, 6, 2, dph, trph, mfph)
        p2full(2, A1); p2full(3, A0)
        self.strips = strips
        x0 = [st for st in strips if st['name'] == 'P0'][0]['ks'][9]['stage']
        first_deep = x0
        self.first_deep = first_deep
        self.slot = {}
        nst = len(self.stages)
        for sid in range(nst):
            if sid < first_deep or not self.o.get('deep', 1):
                self.slot[sid] = sid % 3
        if self.o.get('deep', 1):
            order = [3, 4, (x0 - 3) % 3, (x0 - 2) % 3, 5, (x0 - 1) % 3]
            for k, sid in enumerate(range(first_deep, nst)):
                self.slot[sid] = order[k % 6]

    def slot_base(self, sid):
        sl = self.slot[sid]
        return sl * SLOT if sl < 3 else HB + (sl - 3) * SLOT

    def dma_items(self, sid):
        sbase = self.slot_base(sid)
        items = []
        prev = None
        for (srd_, base, goff, vbase, qdelta, q) in self.stages[sid]:
            share = False
            lin = base is not None and base[0] == 'pq'
            if prev is not None:
                psrd, pbase, pgoff, pq, pj = prev
                j = pj + 1
                if psrd == srd_ and pbase == base and j <= (3 if lin else 2) and q == pq + 1 and goff == pgoff + qdelta:
                    share = True
            pre = []
            if not share:
                j = 0
                pre.append(I('s_add_u32', 'm0', sr(self.S_LDSW), str(sbase + q * 1024)))
                so = sr(self.S_SOFF)
                if lin:
                    pre.append(I('s_add_u32', so, sr(self.S_LDSW), str(goff)))
                elif base[0] == 'fb2':
                    pre.append(I('s_add_u32', so, sr(self.S_FB2 + base[1]), str(goff)))
                elif base[0] == 'fbr':
                    pre.append(I('s_add_u32', so, sr(self.S_FBR + base[1]), str(goff)))
                elif base[0] == 'wo':
                    pre.append(I('s_add_u32', so, sr(self.S_WOR), str(goff)))
                if base[-2] == 'y':
                    pre.append(I('s_add_u32', so, so, sr(self.S_YC + base[-1])))
            if pre:
                cur = pre
            items.append((cur, I('buffer_load_dwordx4', vr(vbase if lin else vbase + j), sr(srd_, 4), sr(self.S_SOFF),
                                 mods=f'offen offset:{1024 * j} lds' if j else 'offen lds', tag=('st', sid))))
            prev = (srd_, base, goff, q, j)
        return items

    def task_qkv_epi(self):
        T = []
        A0 = self.ACC0
        T.append(I('v_mov_b32', 'v4', '0')); T.append(I('v_mov_b32', 'v5', '0'))
        T.append(I('v_and_b32', 'v6', '127', 'v0')); T.append(I('v_mul_u32_u24', 'v6', str(XPITCH), 'v6'))
        T.append(I('v_add_u32', 'v6', str(XB + 136), 'v6'))
        T.append(I('ds_write_b64', 'v6', 'v[4:5]', flag='bar'))
        for u in range(4):
            for mb in range(4):
                a = A0 + 16 * u + 4 * mb
                T.append(I('v_cvt_pk_bf16_f32', vr(a), vr(a), vr(a + 1)))
                T.append(I('v_cvt_pk_bf16_f32', vr(a + 1), vr(a + 2), vr(a + 3)))
                T.append(I('ds_write_b64', vr(self.SW + u), vr(a, 2), mods=f'offset:{mb * 16 * SPITCH}', flag='bar'))
        for u in range(2):
            a = self.HAL + 4 * u
            T.append(I('v_cvt_pk_bf16_f32', vr(a), vr(a), vr(a + 1)))
            T.append(I('v_cvt_pk_bf16_f32', vr(a + 1), vr(a + 2), vr(a + 3)))
            T.append(I('s_lshl_b32', sr(self.S_T2), sr(self.S_RG2), '6'))
            T.append(I('s_add_u32', sr(self.S_T2), sr(self.S_T2), '16'))
            T.append(I('s_mul_i32', sr(self.S_T2), sr(self.S_T2), str(SPITCH)))
            T.append(I('v_subrev_u32', vr(a + 2), sr(self.S_T2), vr(self.SW + u)))
            T.append(I('ds_write_b64', vr(a + 2), vr(a, 2), flag='bar'))
        return T

    def task_attn(self):
        T = []
        B = self.ACC0
        Q = B
        KA = [B + 12, B + 24]
        S = B + 36
        O = B + 44
        KB = [O, O + 10]
        TP = [4, 5, 6, 7, 8, 9, 10, 11, 12, 13, 14, 15, 248, 249, 250, 251, 252, 253, 254, 255]
        AB = vr(self.AB)

        def rd(dst, off):
            if dst % 2 == 0 and dst % 4 == 0:
                return [I('ds_read_b128', vr(dst, 4), AB, mods=f'offset:{off}'),
                        I('ds_read_b128', vr(dst + 4, 4), AB, mods=f'offset:{off + 16}'),
                        I('ds_read_b64', vr(dst + 8, 2), AB, mods=f'offset:{off + 32}')]
            return [I('ds_read_b128', vr(dst, 4), AB, mods=f'offset:{off}'),
                    I('ds_read_b128', vr(dst + 4, 4), AB, mods=f'offset:{off + 16}'),
                    I('ds_read_b64', vr(dst + 8, 2), AB, mods=f'offset:{off + 32}')]
        rowoff = lambda w: (14 - 2 * w) * SPITCH
        T += rd(Q, rowoff(0) + 160)
        T += rd(KA[0], rowoff(0)); T += rd(KA[1], rowoff(1))
        T += rd(KB[0], rowoff(2)); T += rd(KB[1], rowoff(3))
        T.append(I('v_mov_b32', vr(S), '0'))
        T.append([I('v_cmp_gt_u32', 'vcc', '32', vr(self.V_LANE)),
                  I('v_cndmask_b32', vr(Q + 9), vr(Q + 9), vr(S), 'vcc'),
                  I('v_cndmask_b32', vr(Q + 0), vr(S), vr(Q + 0), 'vcc')])
        for w in range(0, 8, 2):
            bufs = KA if (w // 2) % 2 == 0 else KB
            burst = []
            for ww, kb in ((w, bufs[0]), (w + 1, bufs[1])):
                burst.append(I('v_dot2_f32_bf16', vr(S + ww), vr(Q), vr(kb), '0'))
            for j in range(1, 10):
                for ww, kb in ((w, bufs[0]), (w + 1, bufs[1])):
                    burst.append(I('v_dot2_f32_bf16', vr(S + ww), vr(Q + j), vr(kb + j), vr(S + ww)))
            T.append(burst)
            if w + 4 < 8:
                T += rd(bufs[0], rowoff(w + 4)); T += rd(bufs[1], rowoff(w + 5))
            elif w == 4:
                T += rd(KA[0], rowoff(0) + 80); T += rd(KA[1], rowoff(1) + 80)
        NEG = vr(Q + 10)
        T.append(I('v_mov_b32', NEG, sr(self.S_NEG)))
        for w in range(1, 8):
            T.append([I('v_cmp_le_u32', 'vcc', str(2 * w), vr(self.MG)), I('s_nop', '1'),
                      I('v_cndmask_b32', vr(S + w), NEG, vr(S + w), 'vcc')])
        MX = vr(Q + 11)
        T.append(I('v_max3_f32', MX, vr(S), vr(S + 1), vr(S + 2)))
        T.append(I('v_max3_f32', MX, MX, vr(S + 3), vr(S + 4)))
        T.append(I('v_max3_f32', MX, MX, vr(S + 5), vr(S + 6)))
        T.append(I('v_max_f32', MX, MX, vr(S + 7)))
        T.append(I('v_mul_f32', MX, sr(self.S_AC), MX))
        for w in range(8):
            T.append(I('v_fma_f32', vr(S + w), vr(S + w), sr(self.S_AC), '-' + MX))
        for w in range(8):
            T.append(I('v_exp_f32', vr(S + w), vr(S + w)))
        SUM = vr(Q + 10)
        T.append(I('v_add_f32', SUM, vr(S), vr(S + 1)))
        for w in range(2, 8):
            T.append(I('v_add_f32', SUM, SUM, vr(S + w)))
        T.append(I('v_rcp_f32', SUM, SUM))
        for w in range(8):
            T.append(I('v_mul_f32', vr(S + w), vr(S + w), SUM))
        for pp in range(4):
            T.append(I('v_cvt_pk_bf16_f32', vr(Q + pp), vr(S + 2 * pp), vr(S + 2 * pp + 1)))
        K0_, K1_ = KA
        for pp in range(4):
            burst = []
            for j in range(10):
                a, b = TP[2 * j], TP[2 * j + 1]
                T.append(I('v_perm_b32', vr(a), vr(K1_ + j), vr(K0_ + j), sr(self.S_PERM0)))
                T.append(I('v_perm_b32', vr(b), vr(K1_ + j), vr(K0_ + j), sr(self.S_PERM1)))
                burst.append(I('v_dot2_f32_bf16', vr(O + 2 * j), vr(a), vr(Q + pp), '0' if pp == 0 else vr(O + 2 * j)))
                burst.append(I('v_dot2_f32_bf16', vr(O + 2 * j + 1), vr(b), vr(Q + pp), '0' if pp == 0 else vr(O + 2 * j + 1)))
            if pp < 3:
                T += rd(K0_, rowoff(2 * pp + 2) + 80)
                T += rd(K1_, rowoff(2 * pp + 3) + 80)
            T.append(burst)
        OP = K0_
        for j in range(10):
            T.append(I('v_cvt_pk_bf16_f32', vr(OP + j), vr(O + 2 * j), vr(O + 2 * j + 1)))
        OW = vr(self.OW)
        for j in range(1, 9, 2):
            T.append(I('ds_write2_b32', OW, vr(OP + j), vr(OP + j + 1), mods=f'offset0:{j} offset1:{j + 1}', flag='bar'))
        t0 = TP[0]
        T.append(I('v_add_u32', vr(t0), '36', OW))
        T.append([I('v_cmp_gt_u32', 'vcc', '32', vr(self.V_LANE)), I('s_nop', '1'),
                  I('v_cndmask_b32', vr(OP), vr(OP + 9), vr(OP), 'vcc'),
                  I('v_cndmask_b32', vr(t0), vr(t0), OW, 'vcc')])
        T.append(I('ds_write_b32', vr(t0), vr(OP), flag='bar'))
        return T

    def task_silu(self, buf, j):
        T = []
        NL = sr(self.S_NLOG2E)
        chains = []
        for bb in range(2):
            for mb in range(4):
                g = buf + 16 * bb + 4 * mb
                u = buf + 16 * (2 + bb) + 4 * mb
                c = []
                for r in range(4):
                    c.append(I('v_mul_f32', vr(u + r), vr(g + r), vr(u + r)))
                for r in range(4):
                    c.append(I('v_mul_f32', vr(g + r), NL, vr(g + r)))
                for r in range(4):
                    c.append(I('v_exp_f32', vr(g + r), vr(g + r)))
                for r in range(4):
                    c.append(I('v_add_f32', vr(g + r), '1.0', vr(g + r)))
                for r in range(4):
                    c.append(I('v_rcp_f32', vr(g + r), vr(g + r)))
                for r in range(4):
                    c.append(I('v_mul_f32', vr(u + r), vr(g + r), vr(u + r)))
                c.append(I('v_cvt_pk_bf16_f32', vr(g), vr(u), vr(u + 1)))
                c.append(I('v_cvt_pk_bf16_f32', vr(g + 1), vr(u + 2), vr(u + 3)))
                if j < 4:
                    c.append(I('ds_write_b64', vr(self.HW + bb), vr(g, 2), mods=f'offset:{j * 16384 + mb * 2048}', flag='bar'))
                chains.append(c)
        Ta, Tb = [], []
        for k, c in enumerate(chains):
            (Ta if k % 2 == 0 else Tb).extend(c)
        return Ta, Tb

    def task_silu_h(self, buf):
        TT = ([], [])
        NL = sr(self.S_NLOG2E)
        for mb in range(4):
            T = TT[mb % 2]
            g = buf + 4 * mb
            u = buf + 16 + 4 * mb
            for r in range(4):
                T.append(I('v_mul_f32', vr(u + r), vr(g + r), vr(u + r)))
            for r in range(4):
                T.append(I('v_mul_f32', vr(g + r), NL, vr(g + r)))
            for r in range(4):
                T.append(I('v_exp_f32', vr(g + r), vr(g + r)))
            for r in range(4):
                T.append(I('v_add_f32', vr(g + r), '1.0', vr(g + r)))
            for r in range(4):
                T.append(I('v_rcp_f32', vr(g + r), vr(g + r)))
            for r in range(4):
                T.append(I('v_mul_f32', vr(u + r), vr(g + r), vr(u + r)))
            T.append(I('v_cvt_pk_bf16_f32', vr(g), vr(u), vr(u + 1)))
            T.append(I('v_cvt_pk_bf16_f32', vr(g + 1), vr(u + 2), vr(u + 3)))
            T.append(I('ds_write_b64', vr(self.HWX), vr(g, 2), mods=f'offset:{mb * 16 * XPITCH}', flag='bar'))
        return TT

    def task_hload(self, k):
        kind, j, tt = self.kmap[k]
        T = []
        for mb in range(4):
            d = self.hreg(k, mb)
            if kind == 'F':
                T.append(I('ds_read_b128', d, vr(self.HR + tt), mods=f'offset:{j * 16384 + mb * 2048}', flag='bar', tag=('h', k, mb)))
            elif kind == 'X':
                T.append(I('ds_read_b128', d, vr(self.XR), mods=f'offset:{mb * 16 * XPITCH}', flag='bar', tag=('h', k, mb)))
            elif tt == 0:
                T.append(I('ds_read_b128', d, vr(self.XR), mods=f'offset:{mb * 16 * XPITCH + 64}', flag='bar', tag=('h', k, mb)))
        if kind == 'O' and tt == 1:
            for mb in range(4):
                for r in range(4):
                    T.append(I('v_accvgpr_write_b32', ar(16 * k + 4 * mb + r), '0'))
            grp = [I('s_mov_b64', 'exec', '0xffff')]
            for mb in range(4):
                grp.append(I('ds_read_b128', self.hreg(k, mb), vr(self.XR), mods=f'offset:{mb * 16 * XPITCH + 128}', flag='bar', tag=('h', k, mb)))
            grp.append(I('s_mov_b64', 'exec', '-1'))
            T.append(grp)
        return T

    def task_touch(self):
        T = []
        T0, T1 = sr(self.S_T0), sr(self.S_T1)
        S = [I('s_and_b32', T0, sr(self.S_I), '7'), I('s_mul_i32', T0, T0, '41472'), I('s_mul_i32', T1, sr(self.S_S), str(288 * 1152)),
             I('s_add_u32', T0, T0, T1), I('s_mul_i32', T1, sr(self.S_W), '10368'), I('s_add_u32', sr(self.S_TCH), T0, T1)]
        T.append(S)
        T.append(I('v_lshlrev_b32', 'v247', '7', vr(self.V_LANE)))
        T.append(I('buffer_load_dword', 'v7', 'v247', sr(self.SRD_WD, 4), sr(self.S_TCH), mods='offen'))
        T.append([I('s_add_u32', sr(self.S_TCH), sr(self.S_TCH), str(17 * 128))])
        T.append(I('buffer_load_dword', 'v7', 'v247', sr(self.SRD_WD, 4), sr(self.S_TCH), mods='offen'))
        S = [I('s_and_b32', T0, sr(self.S_I), '7'), I('s_mul_i32', T0, T0, '5184'), I('s_add_u32', T0, T0, sr(self.S_WOR)),
             I('s_mul_i32', T1, sr(self.S_W), '1296'), I('s_add_u32', sr(self.S_TCH), T0, T1)]
        T.append(S)
        T.append([I('s_mov_b64', 'exec', '0xfff'), I('buffer_load_dword', 'v7', 'v247', sr(self.SRD_WO, 4), sr(self.S_TCH), mods='offen'), I('s_mov_b64', 'exec', '-1')])
        return T

    def task_touch_gu(self):
        T = []
        T0, T1 = sr(self.S_T0), sr(self.S_T1)
        L = vr(self.V_LANE)
        T.append(I('v_mul_u32_u24', 'v6', '205', L)); T.append(I('v_lshrrev_b32', 'v6', '10', 'v6'))
        T.append(I('v_mul_u32_u24', 'v7', '5', 'v6')); T.append(I('v_sub_u32', 'v7', L, 'v7'))
        T.append(I('v_mul_u32_u24', 'v6', '9216', 'v6')); T.append(I('v_lshl_add_u32', 'v6', 'v7', '7', 'v6'))
        S = [I('s_and_b32', T0, sr(self.S_I), '7'), I('s_mul_i32', T0, T0, '72'), I('s_and_b32', T1, sr(self.S_W), '1'), I('s_mul_i32', T1, T1, '36'),
             I('s_add_u32', T0, T0, T1), I('s_mul_i32', T0, T0, '9216'), I('s_mul_i32', T1, sr(self.S_S), '576'), I('s_and_b32', T1, T1, '0xffffff80'),
             I('s_add_u32', sr(self.S_TCH), T0, T1)]
        T.append(S)
        for j in range(3):
            T.append(I('buffer_load_dword', 'v7', 'v6', sr(self.SRD_GU, 4), sr(self.S_TCH), mods='offen'))
            if j < 2:
                T.append([I('s_add_u32', sr(self.S_TCH), sr(self.S_TCH), str(12 * 9216))])
        return T

    def task_p2setup(self):
        T = []
        T0, T1 = sr(self.S_T0), sr(self.S_T1)
        S, II, W = sr(self.S_S), sr(self.S_I), sr(self.S_W)
        T += [I('s_lshl_b32', T0, S, '4'), I('s_add_u32', T0, T0, II)]
        T += [I('s_lshl_b32', T1, W, '13')]
        T += [I('s_lshl_b32', sr(self.S_MBO), T0, '16'), I('s_add_u32', sr(self.S_MBO), sr(self.S_MBO), T1),
              I('s_add_u32', sr(self.S_MBO), sr(self.S_MBO), str(MB_OFF))]
        T += [I('s_xor_b32', sr(self.S_MBP), sr(self.S_MBO), str(16 << 16))]
        T += [I('s_lshl_b32', sr(self.S_HPB), T0, '14'), I('s_lshl_b32', T1, W, '12'), I('s_add_u32', sr(self.S_HPB), sr(self.S_HPB), T1),
              I('s_add_u32', sr(self.S_HPB), sr(self.S_HPB), str(HP_OFF))]
        T += [I('s_lshr_b32', T0, S, '1'), I('s_lshl_b32', T0, T0, '4'), I('s_add_u32', T0, T0, II), I('s_lshl_b32', sr(self.S_FPB), T0, '17'),
              I('s_lshl_b32', T1, W, '13'), I('s_add_u32', sr(self.S_FPB), sr(self.S_FPB), T1)]
        T += [I('s_lshl_b32', sr(self.S_FOFF), 's2', '7'), I('s_add_u32', sr(self.S_FOFF), sr(self.S_FOFF), str(FL_OFF)),
              I('s_xor_b32', sr(self.S_FSH), sr(self.S_FOFF), str(8 << 7))]
        T += [I('s_lshl_b32', T1, W, '2'), I('s_add_u32', sr(self.S_FOFF), sr(self.S_FOFF), T1)]
        T += [I('s_mov_b32', sr(self.S_NEG), '0xffff0000')]
        return T

    def _pack_store(self, T, buf, pair, mb, soff_reg, first, flags, tag=None):
        a = buf + 16 * (2 * pair) + 4 * mb
        b = buf + 16 * (2 * pair + 1) + 4 * mb
        T.append(I('v_cvt_pk_bf16_f32', vr(a), vr(a), vr(a + 1)))
        T.append(I('v_cvt_pk_bf16_f32', vr(a + 1), vr(a + 2), vr(a + 3)))
        T.append(I('v_cvt_pk_bf16_f32', vr(a + 2), vr(b), vr(b + 1)))
        T.append(I('v_cvt_pk_bf16_f32', vr(a + 3), vr(b + 2), vr(b + 3)))
        T += first
        T.append(I('buffer_store_dwordx4', vr(a, 4), vr(self.PV), sr(self.SRD_P, 4), sr(self.S_PO),
                   mods=(f'offen offset:{1024 * mb}' if mb else 'offen') + flags, tag=tag))

    def task_send(self, buf, k):
        T = []
        for pair in range(2):
            for mb in range(4):
                first = [I('s_add_u32', sr(self.S_PO), sr(self.S_MBO), str(k * 32768 + pair * 4096))] if mb == 0 else []
                self._pack_store(T, buf, pair, mb, None, first, ' sc1', tag=('mb', k))
        return T

    def item_signal(self, k):
        return ('signal', k)

    def task_keep(self, buf, k):
        T = []
        M = sr(self.S_PERM0 + 2)
        for pair in range(2):
            for mb in range(4):
                a = buf + 16 * (2 * pair) + 4 * mb
                b = buf + 16 * (2 * pair + 1) + 4 * mb
                q = (self.INC if k == 2 else self.INC2)[pair * 4 + mb]
                t0, t1 = 244, 245
                for half, r in ((0, a), (1, b)):
                    for d in range(2):
                        src = vr(q + 2 * half + d)
                        T.append(I('v_lshlrev_b32', vr(t0), '16', src))
                        T.append(I('v_and_b32', vr(t1), M, src))
                        T.append(I('v_add_f32', vr(r + 2 * d), vr(r + 2 * d), vr(t0)))
                        T.append(I('v_add_f32', vr(r + 2 * d + 1), vr(r + 2 * d + 1), vr(t1)))
                        t0, t1 = (246, 247) if t0 == 244 else (244, 245)
                first = []
                if mb == 0:
                    first = [I('s_lshl_b32', sr(self.S_PO), sr(self.S_YC + k), '7'),
                             I('s_add_u32', sr(self.S_PO), sr(self.S_PO), sr(self.S_FPB)),
                             I('s_add_u32', sr(self.S_PO), sr(self.S_PO), str(pair * 4096))]
                self._pack_store(T, buf, pair, mb, None, first, ['', ' nt', ' sc1'][self.o.get('stflag', 2)])
        return T

    def items_incoming(self, k):
        T = []
        for pair in range(2):
            for mb in range(4):
                if mb == 0:
                    T.append(I('s_add_u32', sr(self.S_PO2), sr(self.S_MBP), str((k - 2) * 32768 + pair * 4096)))
                T.append(I('buffer_load_dwordx4', vr((self.INC if k == 2 else self.INC2)[pair * 4 + mb], 4), vr(self.PV), sr(self.SRD_P, 4), sr(self.S_PO2),
                           mods=(f'offen offset:{1024 * mb}' if mb else 'offen') + ' sc1'))
        return T

    def task_half(self, buf):
        T = []
        for mb in range(4):
            first = [I('s_mov_b32', sr(self.S_PO), sr(self.S_HPB))] if mb == 0 else []
            self._pack_store(T, buf, 0, mb, None, first, ['', ' nt', ' sc1'][self.o.get('stflag', 2)])
        return T

    def emit_signal(self, k):
        P = self.P
        P.wait_vm_tag(('mb', k))
        P.e('v_mov_b32', 'v9', '1')
        P.e('v_mov_b32', 'v10', str(16 * k))
        P.e('s_mov_b64', 'exec', '1')
        P.e('buffer_store_dword', 'v9', 'v10', sr(self.SRD_P, 4), sr(self.S_FOFF), mods='offen sc1')
        P.e('s_mov_b64', 'exec', '-1')

    def poll_issue(self, k):
        return [I('v_mov_b32', 'v11', str(16 * (k - 2))),
                I('buffer_load_dwordx4', vr(self.V_POLL, 4), 'v11', sr(self.SRD_P, 4), sr(self.S_FSH), mods='offen sc1')]

    def emit_poll_check(self, lab):
        P = self.P
        T2 = sr(self.S_T2)
        V = self.V_POLL
        P.e('v_and_b32', vr(V), vr(V), vr(V + 1)); P.e('v_and_b32', vr(V + 2), vr(V + 2), vr(V + 3)); P.e('v_and_b32', vr(V), vr(V), vr(V + 2))
        P.e('v_readfirstlane_b32', T2, vr(V))
        P.e('s_cmp_eq_u32', T2, '1')
        P.raw(f"  s_cbranch_scc1 {lab}_ok")
        P.label(f"{lab}_spin")
        P.raw("  s_sleep 1")
        P.raw(f"  buffer_load_dwordx4 v[{V}:{V + 3}], v11, s[{self.SRD_P}:{self.SRD_P + 3}], {sr(self.S_FSH)} offen sc1")
        P.raw("  s_waitcnt vmcnt(0)")
        P.raw(f"  v_and_b32 v{V}, v{V}, v{V + 1}")
        P.raw(f"  v_and_b32 v{V + 2}, v{V + 2}, v{V + 3}")
        P.raw(f"  v_and_b32 v{V}, v{V}, v{V + 2}")
        P.raw("  s_nop 1")
        P.raw(f"  v_readfirstlane_b32 {T2}, v{V}")
        P.raw("  s_nop 3")
        P.raw(f"  s_cmp_eq_u32 {T2}, 1")
        P.raw(f"  s_cbranch_scc0 {lab}_spin")
        P.label(f"{lab}_ok")

    def check_b(self, g):
        ins = g['inst']
        b = ins.ops[2]
        want = g['btag']
        got = self.P.regtag.get(regs_of(b)[0])
        assert got == want, (g['ks']['strip'], g['ks']['t'], b, want, got)

    def emit_setup(self, it):
        pre, ins = it
        if self.o.get('nodma', 0) and ins.tag[0] == 'st' and ins.tag[1] >= 2:
            return
        if self.cur_setup is not pre:
            self.P.emit(pre)
            self.cur_setup = pre

    def emit_dma(self, it):
        pre, ins = it
        if self.o.get('nodma', 0) and ins.tag[0] == 'st' and ins.tag[1] >= 2:
            return
        if self.cur_setup is not pre:
            self.P.emit(pre)
            self.cur_setup = pre
        self.P.emit(ins)

    XSLOT = 27 * 1024

    def xf_dma(self, r):
        items = []
        tag = ('st', r)
        for mm in range(2):
            pre = [I('s_add_u32', 'm0', sr(self.S_XL), str(HB + (r % 3) * 12288 + mm * 3072)),
                   I('s_add_u32', sr(self.S_SOFF2), sr(self.S_XF), str((mm * 18 + 3 * r) * 1024))]
            for k in range(3):
                items.append((pre, I('buffer_load_dwordx4', vr(self.PV), sr(self.SRD_XF, 4), sr(self.S_SOFF2),
                                     mods=(f'offen offset:{1024 * k} lds' if k else 'offen lds'), tag=tag)))
        pre = [I('s_add_u32', 'm0', sr(self.S_XH), str(HB + 73728 + (r % 3) * 3072)),
               I('s_add_u32', sr(self.S_SOFF2), sr(self.S_XF + 1), str(3 * r * 1024))]
        items.append((pre, I('buffer_load_dwordx4', vr(self.PV), sr(self.SRD_XF, 4), sr(self.S_SOFF2), mods='offen lds', tag=tag)))
        return items

    def xf_reads(self, t):
        T = []
        r, tt = divmod(t, 3)
        for mb in range(4):
            T.append(I('ds_read_b128', self.xreg(t, mb), vr(self.XA), mods=f'offset:{(r % 3) * 12288 + (mb * 3 + tt) * 1024}', flag='bar', tag=('x', t, mb)))
        T.append(I('ds_read_b128', self.halo_x(t), vr(self.XA + 1), mods=f'offset:{(r % 3) * 3072 + tt * 1024}', flag='bar', tag=('x', t, 4)))
        return T

    def stage_dma(self, sid):
        a = self.dma_items(sid)
        if sid < 6:
            b = self.xf_dma(sid)
            out = []
            out = b[:3] + a[:3] + b[3:] + a[3:]
            return out
        return a

    def emit_all(self):
        P = self.P
        e = P.e
        o = self.o
        self.prologue()
        self.build()
        self.cur_setup = None
        pst = []

        def pstamp():
            if o.get('prof', 0) == 3:
                r = 72 + 2 * len(pst)
                P.raw(f"  s_memtime s[{r}:{r + 1}]")
                pst.append(r)
        pstamp()
        for it in self.stage_dma(0):
            self.emit_dma(it)
        pstamp()
        for it in self.stage_dma(1):
            self.emit_dma(it)
        pstamp()
        self.addr_first(e)
        pstamp()

        frags = []
        KS = []
        for st in self.strips:
            for ks in st['ks']:
                ks['strip'] = st['name']
                KS.append(ks)
                for u in range(len(ks['frags'])):
                    frags.append((ks, u))
        NQ = len(frags)
        NFR = self.NFR
        DIST = NFR - 1
        fr = lambda q: self.FR + 4 * (q % NFR)

        def frag_reads(q):
            ks, u = frags[q]
            areg, off, hd = ks['frags'][u]
            slot = self.slot[ks['stage']]
            if slot >= 3:
                areg = self.TD + (areg - self.TP)
                slot -= 3
            return [I('ds_read_b64_tr_b16', vr(fr(q) + 2 * h, 2), vr(areg), mods=f'offset:{slot * SLOT + off + h * hd}', flag='bar') for h in range(2)]

        gaps = []
        qi = 0
        for ks in KS:
            for u in range(len(ks['frags'])):
                mfs = ks['mf'][u]
                for mi, (accr, breg) in enumerate(mfs):
                    first = ks['t'] == 0
                    btag = ('h', ks['t'], mi) if ks['strip'][0] == 'P' else ('x', ks['t'], mi)
                    gaps.append(dict(q=qi, ks=ks, u=u, mi=mi, n=len(mfs), btag=btag,
                                     inst=I('v_mfma_f32_16x16x32_bf16', accr, vr(fr(qi), 4), breg, '0' if first else accr)))
                qi += 1
        NG = len(gaps)
        sf, sl, frag_first, ks_first = {}, {}, {}, {}
        for gi, g in enumerate(gaps):
            sf.setdefault(g['ks']['strip'], gi)
            sl[g['ks']['strip']] = gi
            frag_first.setdefault(g['q'], gi)
            ks_first.setdefault((g['ks']['strip'], g['ks']['t']), gi)
        fstage = [frags[q][0]['stage'] for q in range(NQ)]
        NST = len(self.stages)
        first_frag_of_stage = {}
        for q in range(NQ):
            first_frag_of_stage.setdefault(fstage[q], q)
        stage_of0 = lambda name, k: [st for st in self.strips if st['name'] == name][0]['ks'][k]['stage']
        read_pos, bar_pos = {}, {}
        LAG = o.get('barlag', 2)
        for q in range(NQ):
            s = fstage[q]
            p = q - DIST
            if s > 0:
                lastq_prev = first_frag_of_stage[s] - 1
                bp = read_pos[lastq_prev] + LAG
                bar_pos[s - 1] = bp
                p = max(p, bp)
            read_pos[q] = p
            assert p < q or q == 0, (q, p)
            assert p >= q - NFR + 1
        bars_at = {}
        for s, p in bar_pos.items():
            bars_at.setdefault(p, []).append(s)
        bar_gap = {s: frag_first[p] for s, p in bar_pos.items()}
        rq = []
        for q in range(NQ):
            if read_pos[q] < 0:
                continue
            for h, ins in enumerate(frag_reads(q)):
                rq.append((frag_first[read_pos[q]], frag_first[q] - o.get('minlead', 7), ins, frag_first[read_pos[q]] + 2 * h))

        self.hfree_bar = None
        dq = []
        b_hfree = bar_gap[stage_of0('P0', 9)]
        b_h6 = bar_gap[stage_of0('P0', 0)]
        prev_user = {}
        last_issue = 0
        for sid in range(NST):
            sl_ = self.slot[sid]
            pu = prev_user.get(sl_)
            prev_user[sl_] = sid
            if sid < 2:
                continue
            if pu is not None:
                lo = bar_gap[pu]
            elif sl_ == 5:
                lo = b_hfree
            elif sl_ >= 3:
                lo = b_h6
            else:
                lo = 0
            hi = bar_gap[sid - 1]
            items = self.stage_dma(sid)
            n = len(items)
            lo = max(lo, last_issue)
            nb = min(b for b in list(bar_gap.values()) + [NG] if b > lo)
            span = max(n, int((nb - lo - 2) * (o.get('dmaspan', 60) if sid >= 8 else 95) / 100))
            step = max(o.get('dmastep', 5) if sid >= 8 else 4, span // n) if sl_ < 3 or sid < self.first_deep else o.get('dmastep', 5)
            if sid >= self.first_deep:
                step = o.get('dmastep', 4)
            for k, it in enumerate(items):
                gi_ = lo + 1 + k * step
                assert gi_ < hi, (sid, gi_, hi)
                dq.append((gi_, it))
            last_issue = lo + 1 + (n - 1) * step
        dq.sort(key=lambda x: x[0])

        LAT = 10
        names0 = ['QKV', 'F0', 'F1', 'F2', 'F3', 'F4h']
        strip = lambda name: [st for st in self.strips if st['name'] == name][0]
        stage_of = lambda name, k: strip(name)['ks'][k]['stage']

        def next_bar(gi):
            return min(b for b in bar_gap.values() if b > gi)
        tasks = []

        def add(st_, en_, lst):
            if isinstance(lst, tuple):
                for l in lst:
                    tasks.append([st_, en_, l, 0])
            else:
                tasks.append([st_, en_, lst, 0])
        late_end = o.get('lateend', 60)
        add(2, late_end, self.task_late_setup())
        rq2 = []
        for t in range(3, 18):
            r = t // 3
            dl = ks_first[('QKV', t)] - 8
            for ins in self.xf_reads(t):
                rq2.append((bar_gap[r - 1] + 1, dl, ins))
        bq = bar_gap[stage_of('F0', 0)] if o.get('qkvbar', 1) == 0 else bar_gap[stage_of('F0', 3)]
        add(sf['F0'] + LAT, bq - 1, self.task_qkv_epi())
        add(bq + 1, sl['F0'], self.task_attn())
        add(sf['F1'] + LAT, sl['F1'], self.task_silu(self.ACC1, 0))
        add(sf['F2'] + LAT, sl['F2'], self.task_silu(self.ACC0, 1))
        add(sf['F3'] + LAT, sl['F3'], self.task_silu(self.ACC1, 2))
        add(sf['F4h'] + LAT, sl['F4h'], self.task_silu(self.ACC0, 3))
        b_f4h = bar_gap[stage_of('P0', 3)]
        add(sf['P0'] + LAT, b_f4h - 1, self.task_silu_h(self.ACC1))
        bF2 = next_bar(sl['F3'])
        bF3 = next_bar(sl['F4h'])
        for k in range(11):
            if k < 8:
                st_ = ks_first[('F4h', k + 1)] + 1
                if k in (4, 5):
                    st_ = max(st_, bF2 + 1)
            elif k < 10:
                st_ = max(bF3 + 1, ks_first[('F4h', k + 1)] + 1)
            else:
                st_ = b_f4h + 1
            dl = ks_first[('P0', k)] - 8
            if k < 6:
                dl = min(dl, bar_gap[stage_of('P0', 0)] - 10)
            assert st_ < dl, (k, st_, dl)
            for ins in self.task_hload(k):
                rq2.append((st_, dl, ins))
        rq2.sort(key=lambda x: x[1])
        if o.get('deep', 1):
            add(sf['P0'] + 2, sf['P0'] + 30, [I('v_add_u32', vr(self.TD + k), str(HB), vr(self.TP + k)) for k in range(6)])
        actions = {}
        prebar = {}
        if o.get('touchgu', 0):
            ta = late_end + 1 + o.get('guoff', 0)
            add(ta, ta + 12, self.task_touch_gu())
        if o.get('touch', 1):
            ta = late_end + 14 + o.get('touchoff', 0)
            add(ta, ta + 8, self.task_touch())
        add(sf['F4h'] + 2, sf['F4h'] + 6, self.task_p2setup())
        add(sf['P1'] + 40, sf['P1'] + 85, self.task_send(self.ACC0, 0))
        actions[sf['P4h'] + o.get('sig0', 50)] = lambda: self.emit_signal(0)
        add(sf['P4h'] + LAT, sf['P4h'] + 80, self.task_send(self.ACC1, 1))
        actions[sf['P2'] + o.get('sig1', 130)] = lambda: self.emit_signal(1)
        add(sf['P2'] + LAT, sf['P2'] + 60, self.task_half(self.ACC0))
        for k, nm, pa, kb in ((2, 'P2', 20, 6), (3, 'P3', 20, o.get('kb3', 3))):
            add(sf[nm] + pa, sf[nm] + pa + 2, self.poll_issue(k))
            sb = stage_of(nm, kb)
            prebar[sb] = (lambda kk=k: self.emit_poll_check(f"K1_poll{kk}"))
            add(bar_gap[sb] + 1, bar_gap[sb] + 30, self.items_incoming(k))
        add(sf['P3'] + o.get('keepat', 50), sl['P3'], self.task_keep(self.ACC1, 2))

        if o.get('notask', 0):
            tasks = []; actions = {}; prebar = {}
        PROF = o.get('prof', 0)
        names = ['QKV', 'F0', 'F1', 'F2', 'F3', 'F4h', 'P0', 'P1', 'P4h', 'P2', 'P3']
        pfrom = names[o.get('pfrom', 0)]
        stamps = list(pst)

        def stamp():
            if PROF:
                r = 72 + 2 * len(stamps)
                P.raw(f"  s_memtime s[{r}:{r + 1}]")
                stamps.append(r)

        P.wait_lds_flagged()
        P.wait_vm_tag(('st', 0))
        if PROF == 3:
            stamp()
        P.barrier()
        if PROF == 3:
            stamp()
        P.emit(self.xf_reads(0))
        for q in range(NQ):
            if read_pos[q] < 0:
                P.emit(frag_reads(q))
        P.emit(self.xf_reads(1))
        P.emit(self.xf_reads(2))
        stamp()

        def icost(x):
            if isinstance(x, list):
                if x[0].op.startswith('v_dot'):
                    return 100
                return sum(y.cost for y in x)
            return x.cost

        def kind(x):
            return x[-1].kind if isinstance(x, list) else x.kind
        SLACK = o.get('slack', 5)
        LEAD = o.get('lead', 4)
        ri = 0
        di = 0
        last_ds_gap = -10
        for gi, g in enumerate(gaps):
            if PROF == 1 and gi in sf.values() and gi > 0:
                stamp()
            if g['mi'] == 0:
                p = g['q']
                if PROF in (2, 3) and len(stamps) < 12 and gi >= sf[pfrom] and bars_at.get(p):
                    stamp()
                for s in bars_at.get(p, []):
                    p4 = PROF == 4 and gi >= sf[pfrom] and len(stamps) < 11
                    if s in prebar:
                        prebar[s]()
                    if p4: stamp()
                    if not o.get('nolgkm', 0):
                        P.wait_lds_flagged()
                    if p4: stamp()
                    P.wait_vm_tag(('st', s + 1))
                    if p4: stamp()
                    if not o.get('nobar', 0):
                        P.barrier()
                    if p4: stamp()
            self.check_b(g)
            if not o.get('nomfma', 0):
                P.emit(g['inst'])
            cap = 8
            ds = False
            while ri < len(rq) and rq[ri][3] <= gi:
                urgent = rq[ri][1] <= gi
                if ds and not urgent:
                    break
                P.emit(rq[ri][2]); ri += 1
                cap -= 4; ds = True
            while True:
                el = [x for x in rq2 if x[0] <= gi]
                if not el:
                    break
                x = el[0]
                isds = kind(x[2]) in ('ldsr',) or isinstance(x[2], list)
                urgent = x[1] - 2 * len([y for y in el if y[1] == x[1]]) <= gi
                if urgent or (isds and not ds and cap >= 4) or (not isds and cap >= 4):
                    P.emit(x[2]); rq2.remove(x); cap -= 4
                    if isds:
                        ds = True
                    if not urgent:
                        break
                else:
                    break
            if di < len(dq) and dq[di][0] <= gi and (cap == 8 or dq[di][0] <= gi - 3):
                self.emit_dma(dq[di][1]); di += 1; cap = 0
                if di < len(dq) and o.get('hoist', 1):
                    self.emit_setup(dq[di][1])
            progress = True
            while progress:
                progress = False
                for t_ in tasks:
                    st_, en_, lst, idx = t_
                    if gi < st_ or idx >= len(lst):
                        continue
                    force = gi >= en_
                    target = len(lst) if force else len(lst) * (gi - st_ + 1) / (en_ - st_ + 1)
                    x = lst[idx]
                    c = icost(x); k = kind(x)
                    behind = idx < target - SLACK
                    if not force and idx >= target + LEAD:
                        continue
                    if k in ('ldsr', 'ldsw'):
                        fit = (not ds) and cap >= c
                    elif c >= 100:
                        fit = cap == 8 and idx < target
                    else:
                        fit = cap >= c
                    if fit or force or (behind and cap > 0):
                        P.emit(x); cap -= c; t_[3] = idx + 1
                        if k in ('ldsr', 'ldsw'):
                            ds = True
                        progress = True
            if gi in actions:
                actions[gi]()
        assert ri == len(rq) and di == len(dq) and not rq2, (ri, len(rq), di, len(dq), len(rq2))
        for t_ in tasks:
            assert t_[3] == len(t_[2])
        while PROF >= 2 and len(stamps) < 12:
            stamp()
        stamp()
        if not o.get('notask', 0):
            P.emit(self.task_keep(self.ACC0, 3))
        if PROF:
            P.wait_vm(0)
            stamp()
            P.raw("  s_memrealtime s[100:101]")
            P.raw("  s_waitcnt lgkmcnt(0)")
            e('s_add_u32', 's4', 's14', str(64 << 20)); e('s_addc_u32', 's5', 's15', '0')
            srd(P, 8, 's4', 's5', 1 << 20)
            e('s_lshl_b32', 's6', 's2', '2'); e('s_add_u32', 's6', 's6', sr(self.S_W)); e('s_lshl_b32', 's6', 's6', '7')
            e('v_mov_b32', 'v4', '0')
            allst = [46] + stamps + [100, 98]
            for k, r in enumerate(allst):
                e('v_mov_b32', 'v5', sr(r))
                e('buffer_store_dword', 'v5', 'v4', 's[8:11]', 's6', mods=f'offen offset:{4 * k}')
        tl_end(P, self.o, 1)
        hx_slot(P, self.o, 2, 'max', False)
        P.label("K1_end")
        P.raw("  s_endpgm")


def gen_k1(opts):
    k = K1(opts)
    name = "k1_main_kernel"
    kernel_begin(k.P, name)
    k.emit_all()
    print("K1 stats", k.P.stats, file=sys.stderr)
    return k.P.text(), descriptor(name, 512, 256, 102), (name, 256, 256, LDS_TOTAL)


def main():
    out = sys.argv[1]
    opts = {}
    for a in sys.argv[2:]:
        kk, v = a.split('='); opts[kk] = int(v)
    parts = [gen_k0(opts), gen_k1(opts), gen_k2(opts)]
    txt = header_comments([p[2] for p in parts])
    for p in parts:
        txt += p[0]
    txt += '.section .rodata,"a"\n'
    for p in parts:
        txt += p[1]
    open(out, 'w').write(txt)


if __name__ == "__main__":
    main()
```

```python
import sys, math
from asmlib import *

KN = "parallel_sum__sliding_local_dilated__swiglu_ffn__prompt"

XF_OFF = 0
XF_SIZE = 128 * 18 * 1024
PQ_OFF = 5 << 19
PQ_SIZE = 16 * 147456
P_OFF = 6 << 20
P_TILE = 144 * 1024
FP_OFF = 0
HP_OFF = 8 * 16 * 131072
MB_OFF = HP_OFF + 256 * 16384
FL_OFF = MB_OFF + 256 * 65536
P_SIZE = FL_OFF + 256 * 128

SLOT = 24576
RING = 0
HB = 3 * SLOT
SB = HB + 16384
SPITCH = 272
XB = HB + 4 * 16384
XPITCH = 144
LDS_TOTAL = XB + 128 * XPITCH

LOG2E = 1.4426950408889634


def f2h(x):
    import struct
    return "0x%08x" % struct.unpack('<I', struct.pack('<f', x))[0]


def header_comments(launches):
    L = []
    L.append(";   0 A_x, 8 A_wqkv, 16 A_wo, 24 B_x, 32 B_w_gate, 40 B_w_up, 48 B_w_down, 56 d_out, 64 d_debug, 72 d_ws")
    L.append("; Generated by a hand-written python generator (work/gen.py).")
    for (k, g, b, lds) in launches:
        L.append(f"; @launch kernel={k} grid=({g},1,1) block=({b},1,1) lds={lds}")
    L.append('.amdgcn_target "amdgcn-amd-amdhsa--gfx950"')
    L.append(".text")
    return "\n".join(L) + "\n"


def kernel_begin(P, name):
    P.raw(f".globl {name}")
    P.raw(".p2align 8")
    P.raw(f".type {name},@function")
    P.raw(f"{name}:")


def descriptor(name, vgpr, accum, sgpr=102):
    return "\n".join([
        ".p2align 6", f".amdhsa_kernel {name}",
        f"  .amdhsa_next_free_vgpr {vgpr}", f"  .amdhsa_next_free_sgpr {sgpr}", f"  .amdhsa_accum_offset {accum}",
        "  .amdhsa_group_segment_fixed_size 0", "  .amdhsa_kernarg_size 80", "  .amdhsa_user_sgpr_count 2",
        "  .amdhsa_user_sgpr_kernarg_segment_ptr 1", "  .amdhsa_system_sgpr_workgroup_id_x 1", ".end_amdhsa_kernel"]) + "\n"


def tl_start(P, opts):
    if opts.get('tl', 0):
        P.raw("  s_memrealtime s[96:97]")


def tl_end(P, opts, kidx, wsreg_lo=None):
    if not opts.get('tl', 0):
        return
    P.raw("  s_waitcnt vmcnt(0)")
    P.raw("  s_memrealtime s[98:99]")
    P.raw("  s_load_dwordx2 s[94:95], s[0:1], 72")
    P.raw("  s_waitcnt lgkmcnt(0)")
    P.raw(f"  s_add_u32 s94, s94, {(80 << 20) + kidx * 65536}")
    P.raw("  s_addc_u32 s95, s95, 0")
    P.raw("  s_mov_b32 s88, s94")
    P.raw("  s_and_b32 s89, s95, 0xffff")
    P.raw("  s_mov_b32 s90, 65536")
    P.raw("  s_mov_b32 s91, 0x20000")
    P.raw("  s_lshl_b32 s92, s2, 3")
    P.raw("  v_mov_b32 v2, s96")
    P.raw("  v_mov_b32 v3, s98")
    P.raw("  v_mov_b32 v4, 0")
    P.raw("  v_cmp_eq_u32 vcc, 0, v0")
    P.raw("  s_and_saveexec_b64 s[86:87], vcc")
    P.raw("  buffer_store_dwordx2 v[2:3], v4, s[88:91], s92 offen")
    P.raw("  s_mov_b64 exec, s[86:87]")


def hx_slot(P, opts, slot, op, only_wg0, final=False):
    if not opts.get('hx', 0):
        return
    lab = f"HX_{slot}_{op}_{len(P.lines)}"
    P.raw("  s_waitcnt vmcnt(0) lgkmcnt(0)")
    P.raw("  s_memrealtime s[86:87]")
    P.raw("  s_load_dwordx2 s[84:85], s[0:1], 72")
    P.raw("  s_waitcnt lgkmcnt(0)")
    P.raw(f"  s_add_u32 s84, s84, {96 << 20}")
    P.raw("  s_addc_u32 s85, s85, 0")
    P.raw("  s_mov_b32 s80, s84"); P.raw("  s_and_b32 s81, s85, 0xffff"); P.raw("  s_mov_b32 s82, 4096"); P.raw("  s_mov_b32 s83, 0x20000")
    if only_wg0:
        P.raw("  s_cmp_lg_u32 s2, 0"); P.raw(f"  s_cbranch_scc1 {lab}")
    P.raw("  v_mov_b32 v250, s86"); P.raw(f"  v_mov_b32 v251, {slot * 4}")
    P.raw("  v_cmp_eq_u32 vcc, 0, v0"); P.raw("  s_and_saveexec_b64 s[78:79], vcc")
    if op == 'st':
        P.raw("  buffer_store_dword v250, v251, s[80:83], 0 offen sc1")
    else:
        P.raw("  buffer_atomic_umax v250, v251, s[80:83], 0 offen")
    P.raw("  s_waitcnt vmcnt(0)")
    P.raw("  s_mov_b64 exec, s[78:79]")
    P.raw(f"{lab}:")


def srd(P, d, lo, hi, size):
    P.e('s_mov_b32', sr(d), lo)
    P.e('s_and_b32', sr(d + 1), hi, '0xffff')
    P.e('s_mov_b32', sr(d + 2), str(size))
    P.e('s_mov_b32', sr(d + 3), '0x20000')


def gen_k0(opts):
    P = Prog()
    name = "k0_ln_kernel"
    kernel_begin(P, name)
    NPK = 288
    NCP = 8 if opts.get('codepf', 1) else 0
    NTW = 96 if opts.get('k0touch', 0) else 0
    P.e('s_cmp_ge_u32', 's2', str(128 + NPK + NCP + NTW))
    P.raw("  s_cbranch_scc1 K0_end")
    tl_start(P, opts)
    hx_slot(P, opts, 0, 'st', True)
    if opts.get('hx', 0):
        P.raw("  s_cmp_lg_u32 s2, 0"); P.raw("  s_cbranch_scc1 HX_z")
        P.raw("  v_mov_b32 v250, 0"); P.raw("  v_mov_b32 v251, 8"); P.raw("  buffer_store_dword v250, v251, s[80:83], 0 offen sc1")
        P.raw("  v_mov_b32 v251, 16"); P.raw("  buffer_store_dword v250, v251, s[80:83], 0 offen sc1"); P.raw("  v_mov_b32 v251, 20"); P.raw("  buffer_store_dword v250, v251, s[80:83], 0 offen sc1")
        P.raw("HX_z:")
    if NTW:
        P.e('s_cmp_ge_u32', 's2', str(128 + NPK + NCP))
        P.raw("  s_cbranch_scc1 K0_touch")
    if NCP:
        P.e('s_cmp_ge_u32', 's2', str(128 + NPK))
        P.raw("  s_cbranch_scc1 K0_code")
    P.e('s_cmp_ge_u32', 's2', '128')
    P.raw("  s_cbranch_scc1 K0_pack")
    P.e('s_load_dwordx2', 's[4:5]', 's[0:1]', '0')
    P.e('s_load_dwordx2', 's[6:7]', 's[0:1]', '72')
    P.e('v_and_b32', 'v1', '63', 'v0')
    P.e('v_lshrrev_b32', 'v2', '6', 'v0')
    P.e('v_and_b32', 'v3', '15', 'v1')
    P.e('v_lshrrev_b32', 'v4', '4', 'v1')
    P.e('v_readfirstlane_b32', 's20', 'v2')
    P.raw("  s_waitcnt lgkmcnt(0)")
    srd(P, 8, 's4', 's5', 2048 * 1152)
    srd(P, 12, 's6', 's7', XF_OFF + XF_SIZE)
    P.e('s_lshl_b32', 's21', 's2', '4')
    P.e('v_add_u32', 'v5', 's21', 'v3')
    P.e('s_movk_i32', 's22', '1152')
    P.e('v_mul_lo_u32', 'v5', 'v5', 's22')
    P.e('v_lshlrev_b32', 'v6', '4', 'v4')
    P.e('v_add_u32', 'v5', 'v5', 'v6')
    P.e('s_mul_i32', 's23', 's20', '576')
    X = 16
    for t in range(9):
        P.e('buffer_load_dwordx4', vr(X + 4 * t, 4), 'v5', 's[8:11]', 's23', mods=f'offen offset:{64 * t}')
    P.e('s_add_u32', 's28', 's6', str(P_OFF + FL_OFF)); P.e('s_addc_u32', 's29', 's7', '0')
    srd(P, 32, 's28', 's29', 256 * 128)
    P.e('v_mov_b32', 'v60', '0'); P.e('v_mov_b32', 'v61', '0'); P.e('v_mov_b32', 'v62', '0'); P.e('v_mov_b32', 'v63', '0')
    P.e('v_lshlrev_b32', 'v59', '4', 'v0')
    P.e('s_lshl_b32', 's30', 's2', '8')
    P.e('v_cmp_gt_u32', 'vcc', '16', 'v0')
    P.e('s_and_saveexec_b64', 's[36:37]', 'vcc')
    P.raw("  s_cbranch_execz K0_nz")
    P.raw("  buffer_store_dwordx4 v[60:63], v59, s[32:35], s30 offen")
    P.label("K0_nz")
    P.e('s_mov_b64', 'exec', 's[36:37]')
    P.e('v_mov_b32', 'v7', '0x3f803f80')
    P.e('v_mov_b32', 'v8', '0'); P.e('v_mov_b32', 'v9', '0'); P.e('v_mov_b32', 'v10', '0'); P.e('v_mov_b32', 'v11', '0')
    for j in range(36):
        P.e('v_dot2c_f32_bf16', 'v8' if j % 2 == 0 else 'v10', vr(X + j), 'v7')
        P.e('v_dot2c_f32_bf16', 'v9' if j % 2 == 0 else 'v11', vr(X + j), vr(X + j))
    P.e('v_add_f32', 'v8', 'v8', 'v10')
    P.e('v_add_f32', 'v9', 'v9', 'v11')
    for sw in ('v_permlane32_swap_b32', 'v_permlane16_swap_b32'):
        P.e('v_mov_b32', 'v10', 'v8'); P.e('v_mov_b32', 'v11', 'v9')
        P.e('v_mov_b32', 'v12', 'v8'); P.e('v_mov_b32', 'v13', 'v9')
        P.e(sw, 'v10', 'v12'); P.e(sw, 'v11', 'v13')
        P.e('v_add_f32', 'v8', 'v10', 'v12'); P.e('v_add_f32', 'v9', 'v11', 'v13')
    P.e('v_lshlrev_b32', 'v10', '3', 'v0')
    P.e('ds_write_b64', 'v10', 'v[8:9]')
    P.e('v_xor_b32', 'v11', '512', 'v10')
    P.wait_lgkm(0)
    P.barrier()
    P.e('ds_read_b64', 'v[12:13]', 'v11')
    P.e('v_add_f32', 'v8', 'v8', 'v12')
    P.e('v_add_f32', 'v9', 'v9', 'v13')
    P.e('v_mul_f32', 'v8', f2h(1.0 / 576), 'v8')
    P.e('v_mul_f32', 'v9', f2h(1.0 / 576), 'v9')
    P.e('v_fma_f32', 'v9', '-v8', 'v8', 'v9')
    P.e('v_max_f32', 'v9', '0', 'v9')
    P.e('v_add_f32', 'v9', f2h(1e-5), 'v9')
    P.e('v_rsq_f32', 'v9', 'v9')
    P.e('v_mul_f32', 'v8', 'v8', 'v9')
    P.e('v_sub_f32', 'v8', '0', 'v8')
    P.e('s_mov_b32', 's24', '0xffff0000')
    for j in range(36):
        a, b = 10 + 2 * (j % 2), 11 + 2 * (j % 2)
        P.e('v_lshlrev_b32', vr(a), '16', vr(X + j))
        P.e('v_and_b32', vr(b), 's24', vr(X + j))
        P.e('v_fma_f32', vr(a), vr(a), 'v9', 'v8')
        P.e('v_fma_f32', vr(b), vr(b), 'v9', 'v8')
        P.e('v_cvt_pk_bf16_f32', vr(X + j), vr(a), vr(b))
    P.e('v_lshlrev_b32', 'v6', '4', 'v1')
    P.e('s_mul_i32', 's25', 's2', str(18 * 1024))
    P.e('s_mul_i32', 's26', 's20', str(9 * 1024))
    P.e('s_add_u32', 's25', 's25', 's26')
    for t in range(9):
        if t % 4 == 0 and t:
            P.e('s_add_u32', 's25', 's25', '4096')
        P.e('buffer_store_dwordx4', vr(X + 4 * t, 4), 'v6', 's[12:15]', 's25', mods=f'offen offset:{1024 * (t % 4)}')
    tl_end(P, opts, 0)
    hx_slot(P, opts, 5, 'max', False)
    P.raw("  s_endpgm")
    P.label("K0_pack")
    P.vm_q = []; P.lds_q = []
    e = P.e
    e('s_load_dwordx2', 's[4:5]', 's[0:1]', '8')
    e('s_load_dwordx2', 's[6:7]', 's[0:1]', '72')
    e('v_and_b32', 'v1', '63', 'v0'); e('v_lshrrev_b32', 'v2', '6', 'v0')
    e('v_readfirstlane_b32', 's20', 'v2')
    e('s_sub_u32', 's21', 's2', '128'); e('s_lshl_b32', 's21', 's21', '1'); e('s_add_u32', 's21', 's21', 's20')
    P.raw("  s_waitcnt lgkmcnt(0)")
    srd(P, 12, 's4', 's5', 576 * 3456)
    e('s_add_u32', 's6', 's6', str(PQ_OFF)); e('s_addc_u32', 's7', 's7', '0')
    srd(P, 16, 's6', 's7', PQ_SIZE)
    e('v_and_b32', 'v3', '15', 'v1')
    e('v_lshrrev_b32', 'v4', '4', 'v1')
    e('v_lshlrev_b32', 'v9', '4', 'v1')
    for k in range(4):
        e('s_lshl_b32', 's22', 's21', '2'); e('s_add_u32', 's22', 's22', str(k))
        e('s_mul_hi_u32', 's23', 's22', str((2 ** 32 + 143) // 144))
        e('s_mul_i32', 's24', 's23', '144'); e('s_sub_u32', 's24', 's22', 's24')
        e('s_mul_hi_u32', 's25', 's24', str((2 ** 32 + 5) // 6))
        e('s_mul_i32', 's26', 's25', '6'); e('s_sub_u32', 's26', 's24', 's26')
        e('s_lshr_b32', 's27', 's25', '2')
        e('s_and_b32', 's28', 's25', '3')
        e('s_mul_i32', 's29', 's27', '96'); e('s_lshl_b32', 's30', 's26', '4'); e('s_add_u32', 's29', 's29', 's30')
        e('s_lshl_b32', 's30', 's28', '2'); e('s_add_u32', 's29', 's29', 's30')
        e('v_add_u32', 'v5', 's29', 'v4')
        e('s_lshr_b32', 's30', 's28', '1'); e('s_lshl_b32', 's30', 's30', '2')
        e('v_or_b32', 'v6', 's30', 'v4'); e('v_lshrrev_b32', 'v7', '1', 'v3'); e('v_xor_b32', 'v6', 'v6', 'v7')
        e('v_lshlrev_b32', 'v6', '1', 'v6'); e('v_and_b32', 'v7', '1', 'v3'); e('v_or_b32', 'v6', 'v6', 'v7')
        e('v_mul_u32_u24', 'v7', '13', 'v6'); e('v_lshrrev_b32', 'v7', '6', 'v7'); e('v_min_u32', 'v7', '2', 'v7')
        e('v_mul_u32_u24', 'v8', '5', 'v7'); e('v_sub_u32', 'v8', 'v6', 'v8'); e('v_lshlrev_b32', 'v8', '4', 'v8')
        e('v_add_u32', 'v7', '1', 'v7'); e('v_cmp_eq_u32', 'vcc', '3', 'v7'); e('v_mov_b32', 'v10', '0')
        e('v_cndmask_b32', 'v7', 'v7', 'v10', 'vcc')
        e('v_mul_u32_u24', 'v7', '1152', 'v7'); e('v_add_u32', 'v8', 'v8', 'v7')
        e('s_mul_i32', 's30', 's23', '72'); e('v_add_u32', 'v8', 's30', 'v8')
        e('v_mul_u32_u24', 'v5', '3456', 'v5'); e('v_add_u32', 'v5', 'v5', 'v8')
        e('buffer_load_dwordx4', vr(16 + 4 * k, 4), 'v5', 's[12:15]', '0', mods='offen')
    e('s_lshl_b32', 's22', 's21', '12')
    for k in range(4):
        e('buffer_store_dwordx4', vr(16 + 4 * k, 4), 'v9', 's[16:19]', 's22', mods=f'offen offset:{1024 * k}')
    if NCP:
        P.raw("  s_endpgm")
        P.label("K0_code")
        P.raw("  s_getpc_b64 s[4:5]")
        P.raw("K0_pc:")
        P.raw("  s_add_u32 s4, s4, k1_main_kernel-K0_pc")
        P.raw("  s_addc_u32 s5, s5, 0")
        P.raw("  s_mov_b32 s8, s4")
        P.raw("  s_and_b32 s9, s5, 0xffff")
        P.raw("  s_mov_b32 s10, K2_end-k1_main_kernel")
        P.raw("  s_mov_b32 s11, 0x20000")
        P.raw("  v_lshlrev_b32 v1, 4, v0")
        P.raw("  s_mov_b32 s12, 0")
        P.raw("K0_cl:")
        P.raw("  buffer_load_dwordx4 v[4:7], v1, s[8:11], s12 offen")
        P.raw("  s_add_u32 s12, s12, 2048")
        P.raw("  s_cmp_lt_u32 s12, s10")
        P.raw("  s_cbranch_scc1 K0_cl")
    if NTW:
        P.raw("  s_endpgm")
        P.label("K0_touch")
        P.vm_q = []; P.lds_q = []
        e('s_load_dwordx2', 's[4:5]', 's[0:1]', '48')
        e('s_load_dwordx2', 's[6:7]', 's[0:1]', '16')
        e('s_sub_u32', 's21', 's2', str(128 + NPK + NCP))
        e('v_lshlrev_b32', 'v1', '7', 'v0')
        P.raw("  s_waitcnt lgkmcnt(0)")
        e('s_cmp_ge_u32', 's21', '81')
        e('s_cselect_b32', 's8', 's6', 's4'); e('s_cselect_b32', 's9', 's7', 's5')
        e('s_mov_b32', 's12', str(576 * 1152)); e('s_mov_b32', 's13', str(4608 * 1152))
        e('s_cselect_b32', 's10', 's12', 's13')
        e('s_cselect_b32', 's22', '81', '0')
        e('s_and_b32', 's9', 's9', '0xffff'); e('s_mov_b32', 's11', '0x20000')
        e('s_sub_u32', 's21', 's21', 's22'); e('s_lshl_b32', 's21', 's21', '16')
        for k in range(4):
            e('buffer_load_dword', 'v4', 'v1', 's[8:11]', 's21', mods='offen')
            e('s_add_u32', 's21', 's21', '16384')
    P.label("K0_end")
    P.raw("  s_endpgm")
    return P.text(), descriptor(name, 256 if opts.get('hx', 0) else 64, 256 if opts.get('hx', 0) else 64, 102), (name, 128 + NPK + NCP + NTW, 128, 1024)


def gen_k2(opts):
    P = Prog()
    name = "k2_reduce_kernel"
    kernel_begin(P, name)
    K2W = opts.get('k2w', 4)
    NWG = 2304 // K2W
    P.e('s_cmp_ge_u32', 's2', str(NWG))
    P.raw("  s_cbranch_scc1 K2_end")
    tl_start(P, opts)
    hx_slot(P, opts, 3, 'st', True)
    P.e('s_load_dwordx2', 's[4:5]', 's[0:1]', '0')
    P.e('s_load_dwordx2', 's[6:7]', 's[0:1]', '72')
    P.e('s_load_dwordx2', 's[16:17]', 's[0:1]', '56')
    P.e('v_and_b32', 'v1', '63', 'v0')
    P.e('v_lshrrev_b32', 'v2', '6', 'v0')
    P.e('v_and_b32', 'v3', '15', 'v1')
    P.e('v_lshrrev_b32', 'v4', '4', 'v1')
    P.e('v_readfirstlane_b32', 's20', 'v2')
    P.e('v_lshlrev_b32', 'v5', '4', 'v1')
    P.raw("  s_waitcnt lgkmcnt(0)")
    srd(P, 8, 's4', 's5', 2048 * 1152)
    P.e('s_add_u32', 's6', 's6', str(P_OFF)); P.e('s_addc_u32', 's7', 's7', '0')
    srd(P, 12, 's6', 's7', P_SIZE)
    srd(P, 24, 's16', 's17', 2048 * 1152)
    P.e('s_mul_i32', 's21', 's2', str(K2W)); P.e('s_add_u32', 's21', 's21', 's20')
    P.e('s_mul_hi_u32', 's22', 's21', str((2 ** 32 + 143) // 144))
    P.e('s_mul_i32', 's23', 's22', '144'); P.e('s_sub_u32', 's23', 's21', 's23')
    D = 16
    lf = ['', ' nt', ' sc1'][opts.get('ldflag', 0)]
    P.e('s_cmp_ge_u32', 's23', '128')
    P.raw("  s_cbranch_scc1 K2_half")
    for half in (0, 1):
        if half:
            P.label("K2_half")
            P.vm_q = []; P.lds_q = []
        n = 16 if half else 8
        if not half:
            P.e('s_lshl_b32', 's28', 's22', '17'); P.e('s_lshl_b32', 's29', 's23', '10'); P.e('s_add_u32', 's28', 's28', 's29')
            stride = 16 * 131072
        else:
            P.e('s_lshl_b32', 's28', 's22', '14'); P.e('s_sub_u32', 's23', 's23', '128'); P.e('s_lshl_b32', 's29', 's23', '10')
            P.e('s_add_u32', 's28', 's28', 's29'); P.e('s_add_u32', 's28', 's28', str(HP_OFF))
            stride = 16 * 16384
        for s in range(n):
            P.e('buffer_load_dwordx4', vr(D + 4 * s, 4), 'v5', 's[12:15]', 's28', mods='offen' + lf)
            if s < n - 1:
                P.e('s_add_u32', 's28', 's28', str(stride))
        P.e('s_and_b32', 's29', 's23', '3')
        if not half:
            P.e('s_lshr_b32', 's31', 's23', '3'); P.e('s_and_b32', 's31', 's31', '3')
            P.e('s_lshr_b32', 's34', 's31', '1')
            P.e('s_lshr_b32', 's35', 's23', '5'); P.e('s_lshl_b32', 's35', 's35', '7')
            P.e('s_lshl_b32', 's36', 's34', '6'); P.e('s_add_u32', 's35', 's35', 's36')
            P.e('s_lshr_b32', 's36', 's23', '2'); P.e('s_and_b32', 's36', 's36', '1'); P.e('s_lshl_b32', 's36', 's36', '5')
            P.e('s_add_u32', 's35', 's35', 's36')
        else:
            P.e('s_lshr_b32', 's31', 's23', '2')
            P.e('s_lshr_b32', 's34', 's31', '1')
            P.e('s_lshl_b32', 's35', 's34', '5'); P.e('s_add_u32', 's35', 's35', '512')
        P.e('s_and_b32', 's33', 's31', '1')
        P.e('s_lshl_b32', 's37', 's22', '7'); P.e('s_lshl_b32', 's38', 's33', '6'); P.e('s_add_u32', 's37', 's37', 's38')
        P.e('s_lshl_b32', 's38', 's29', '4'); P.e('s_add_u32', 's37', 's37', 's38')
        P.e('v_add_u32', 'v6', 's37', 'v3')
        P.e('v_mul_u32_u24', 'v6', '1152', 'v6')
        P.e('s_lshl_b32', 's40', 's35', '1')
        P.e('v_add_u32', 'v6', 's40', 'v6')
        P.e('v_lshlrev_b32', 'v7', '3', 'v4')
        P.e('v_add_u32', 'v7', 'v6', 'v7')
        P.e('buffer_load_dwordx2', 'v[8:9]', 'v7', 's[8:11]', '0', mods='offen')
        P.e('buffer_load_dwordx2', 'v[10:11]', 'v7', 's[8:11]', '0', mods='offen offset:32')
        P.e('v_and_b32', 'v12', '1', 'v4'); P.e('v_lshlrev_b32', 'v12', '5', 'v12')
        P.e('v_lshrrev_b32', 'v13', '1', 'v4'); P.e('v_lshlrev_b32', 'v13', '4', 'v13')
        P.e('v_add3_u32', 'v6', 'v6', 'v12', 'v13')
        P.e('s_mov_b32', 's41', '0xffff0000')
        ACC = 80
        srcs = [D + 4 * s for s in range(n)] + [8]
        for si, base in enumerate(srcs):
            for j in range(4):
                d = vr(base + j)
                if si == 0:
                    P.e('v_lshlrev_b32', vr(ACC + 2 * j), '16', d)
                    P.e('v_and_b32', vr(ACC + 2 * j + 1), 's41', d)
                else:
                    t0, t1 = 88 + 2 * (j % 2), 89 + 2 * (j % 2)
                    P.e('v_lshlrev_b32', vr(t0), '16', d)
                    P.e('v_and_b32', vr(t1), 's41', d)
                    P.e('v_add_f32', vr(ACC + 2 * j), vr(ACC + 2 * j), vr(t0))
                    P.e('v_add_f32', vr(ACC + 2 * j + 1), vr(ACC + 2 * j + 1), vr(t1))
        for j in range(4):
            P.e('v_cvt_pk_bf16_f32', vr(92 + j), vr(ACC + 2 * j), vr(ACC + 2 * j + 1))
        P.e('v_permlane16_swap_b32', 'v92', 'v94')
        P.e('v_permlane16_swap_b32', 'v93', 'v95')
        P.e('buffer_store_dwordx4', 'v[92:95]', 'v6', 's[24:27]', '0', mods='offen')
        tl_end(P, opts, 2)
        if opts.get('hx', 0):
            P.raw("  s_waitcnt vmcnt(0) lgkmcnt(0)")
            P.raw("  s_memrealtime s[86:87]")
            P.raw("  s_load_dwordx2 s[84:85], s[0:1], 64")
            P.raw("  s_load_dwordx2 s[76:77], s[0:1], 72")
            P.raw("  s_waitcnt lgkmcnt(0)")
            pass
            P.raw("  s_mov_b32 s80, s84"); P.raw("  s_and_b32 s81, s85, 0xffff"); P.raw("  s_mov_b32 s82, 256"); P.raw("  s_mov_b32 s83, 0x20000")
            P.raw("  v_mov_b32 v90, s86"); P.raw("  v_mov_b32 v91, 0")
            P.raw("  v_cmp_eq_u32 vcc, 0, v1"); P.raw("  s_and_saveexec_b64 s[78:79], vcc")
            P.raw("  buffer_atomic_umax v90, v91, s[80:83], 0 offen")
            P.raw("  s_mov_b64 exec, s[78:79]")
            P.raw(f"  s_add_u32 s76, s76, {96 << 20}"); P.raw("  s_addc_u32 s77, s77, 0")
            P.raw("  s_mov_b32 s72, s76"); P.raw("  s_and_b32 s73, s77, 0xffff"); P.raw("  s_mov_b32 s74, 4096"); P.raw("  s_mov_b32 s75, 0x20000")
            P.raw("  v_lshlrev_b32 v91, 2, v1")
            P.raw("  v_cmp_gt_u32 vcc, 6, v1"); P.raw("  s_and_saveexec_b64 s[78:79], vcc")
            P.raw("  buffer_load_dword v90, v91, s[72:75], 0 offen sc1"); P.raw("  s_waitcnt vmcnt(0)")
            P.raw("  buffer_store_dword v90, v91, s[80:83], 0 offen offset:4")
            P.raw("  s_waitcnt vmcnt(0)")
            P.raw("  s_mov_b64 exec, s[78:79]")
        if not half:
            P.raw("  s_endpgm")
    P.label("K2_end")
    P.raw("  s_endpgm")
    return P.text(), descriptor(name, 256 if opts.get('hx', 0) else 96, 256 if opts.get('hx', 0) else 96, 102), (name, NWG, 64 * K2W, 0)


class K1:
    V_LANE, V_C16, V_G, V_T0, V_T1, V_T2, V_T3, V_T4 = 1, 2, 3, 4, 5, 6, 7, 8
    ACC0, ACC1 = 16, 80
    FR = 144
    NFR = 6
    XV = 168
    TQ = 200
    TG = 204
    TH = 208
    TP = 210
    TPH = 214
    DQ = 216
    DG = 219
    DH = 222
    DP = 225
    DPH = 228
    HW = 231
    HWX = 233
    HR = 234
    XR = 236
    SW = 237
    AB = 241
    OW = 242
    PV = 243
    MG = 244
    XA = 245
    TD = 168
    HAL = 248
    HALX = 8

    S_W, S_S, S_I = 20, 21, 22
    S_RG2, S_CH = 23, 24
    S_LDSW = 25
    S_XF = 26
    S_FB = 88
    S_YC = 28
    S_FPB, S_MBO, S_MBP, S_HPB, S_FSH, S_FOFF = 17, 18, 19, 44, 26, 27
    SRD_DBG = 48
    S_TCH = 33
    INC = [176, 180, 184, 188, 192, 196, 248, 252]
    INC2 = [200, 204, 216, 220, 232, 236, 8, 12]
    V_POLL = 4
    S_T0, S_T1, S_T2, S_T3 = 34, 35, 36, 37
    S_SOFF = 38
    S_NLOG2E = 39
    S_AC = 40
    S_PERM0, S_PERM1 = 41, 42
    S_NEG = 43
    S_QC = 44
    S_PO = 45
    S_PO2 = 40
    SRD_XF, SRD_QKV, SRD_GU, SRD_WD, SRD_WO, SRD_P = 48, 52, 56, 60, 64, 68
    S_FB2 = 4
    S_FBR = 9
    S_WOR = 16
    S_XL, S_XH, S_SOFF2 = 17, 18, 19

    def __init__(self, opts):
        self.P = Prog()
        self.o = opts

    def xreg(self, t, mb):
        j = 4 * t + mb
        return ar(4 * j, 4) if j < 64 else vr(self.XV + 4 * (j - 64), 4)

    def hreg(self, k, mb):
        return ar(16 * k + 4 * mb, 4)

    def halo_x(self, t):
        return vr(self.ACC1 + 4 * t, 4) if t < 16 else vr(self.HALX + 4 * (t - 16), 4)

    def prologue(self):
        P = self.P
        e = P.e
        e('s_cmp_ge_u32', 's2', '256')
        P.raw("  s_cbranch_scc1 K1_end")
        tl_start(P, self.o)
        hx_slot(P, self.o, 1, 'st', True)
        if self.o.get('prof', 0):
            P.raw("  s_memtime s[46:47]")
            P.raw("  s_memrealtime s[98:99]")
        e('s_load_dwordx2', 's[14:15]', 's[0:1]', '72')
        e('s_load_dwordx2', 's[6:7]', 's[0:1]', '16')
        e('s_load_dwordx4', 's[8:11]', 's[0:1]', '32')
        e('s_load_dwordx2', 's[12:13]', 's[0:1]', '48')
        L, C16, G = vr(self.V_LANE), vr(self.V_C16), vr(self.V_G)
        e('v_and_b32', L, '63', 'v0')
        e('v_lshrrev_b32', 'v4', '6', 'v0')
        e('v_and_b32', C16, '15', L)
        e('v_lshrrev_b32', G, '4', L)
        e('v_readfirstlane_b32', sr(self.S_W), 'v4')
        e('v_lshlrev_b32', vr(self.PV), '4', L)
        e('s_and_b32', sr(self.S_S), 's2', '3'); e('s_lshl_b32', sr(self.S_S), sr(self.S_S), '2')
        e('s_bfe_u32', sr(self.S_T0), 's2', '0x20003'); e('s_add_u32', sr(self.S_S), sr(self.S_S), sr(self.S_T0))
        e('s_bfe_u32', sr(self.S_I), 's2', '0x10002'); e('s_lshl_b32', sr(self.S_I), sr(self.S_I), '3')
        e('s_lshr_b32', sr(self.S_T0), 's2', '5'); e('s_add_u32', sr(self.S_I), sr(self.S_I), sr(self.S_T0))
        e('s_and_b32', sr(self.S_RG2), sr(self.S_W), '1'); e('s_lshr_b32', sr(self.S_CH), sr(self.S_W), '1')
        e('s_mul_i32', sr(self.S_LDSW), sr(self.S_W), '6144')
        e('s_lshl_b32', sr(self.S_T0), sr(self.S_I), '3'); e('s_lshl_b32', sr(self.S_T1), sr(self.S_W), '1')
        e('s_add_u32', sr(self.S_T0), sr(self.S_T0), sr(self.S_T1))
        e('s_mul_i32', sr(self.S_XF), sr(self.S_T0), '18432')
        e('s_lshr_b32', sr(self.S_T0), sr(self.S_W), '1'); e('s_mul_i32', sr(self.S_XL), sr(self.S_T0), '36864')
        e('s_and_b32', sr(self.S_T0), sr(self.S_W), '1'); e('s_mul_i32', sr(self.S_T0), sr(self.S_T0), '6144')
        e('s_add_u32', sr(self.S_XL), sr(self.S_XL), sr(self.S_T0))
        e('s_min_u32', sr(self.S_T1), sr(self.S_W), '2'); e('s_lshl_b32', sr(self.S_XH), sr(self.S_T1), '10')
        e('s_lshl_b32', sr(self.S_T0), sr(self.S_I), '3'); e('s_sub_u32', sr(self.S_T0), sr(self.S_T0), '1')
        e('s_mul_i32', sr(self.S_T0), sr(self.S_T0), '18432'); e('s_add_u32', sr(self.S_T0), sr(self.S_T0), sr(self.S_XH))
        e('s_cmp_eq_u32', sr(self.S_I), '0'); e('s_cselect_b32', sr(self.S_XF + 1), '0x7f000000', sr(self.S_T0))
        e('s_mul_i32', sr(self.S_T2), sr(self.S_S), '147456'); e('s_add_u32', sr(self.S_T2), sr(self.S_T2), str(PQ_OFF))
        P.raw("  s_waitcnt lgkmcnt(0)")
        e('s_add_u32', sr(self.S_T0), 's14', str(XF_OFF)); e('s_addc_u32', sr(self.S_T1), 's15', '0')
        srd(P, self.SRD_XF, sr(self.S_T0), sr(self.S_T1), XF_SIZE)
        e('s_add_u32', sr(self.S_T0), 's14', sr(self.S_T2)); e('s_addc_u32', sr(self.S_T1), 's15', '0')
        srd(P, self.SRD_QKV, sr(self.S_T0), sr(self.S_T1), 147456)

    def scalars_late(self, e, srd_):
        srd_(self.SRD_WO, 's6', 's7', 576 * 1152)
        e('s_cmp_ge_u32', sr(self.S_W), '2')
        e('s_cselect_b32', sr(self.S_T0), 's10', 's8'); e('s_cselect_b32', sr(self.S_T1), 's11', 's9')
        srd_(self.SRD_GU, sr(self.S_T0), sr(self.S_T1), 576 * 9216)
        srd_(self.SRD_WD, 's12', 's13', 4608 * 1152)
        e('s_add_u32', sr(self.S_T0), 's14', str(P_OFF)); e('s_addc_u32', sr(self.S_T1), 's15', '0')
        srd_(self.SRD_P, sr(self.S_T0), sr(self.S_T1), P_SIZE)
        e('s_mul_i32', sr(self.S_T0), sr(self.S_S), '288')
        e('s_and_b32', sr(self.S_T1), sr(self.S_S), '1')
        e('s_lshl_b32', sr(self.S_T2), sr(self.S_T1), '5'); e('s_add_u32', sr(self.S_T2), sr(self.S_T2), sr(self.S_T0))
        for j in range(4):
            e('s_add_u32', sr(self.S_T3), sr(self.S_I), str(j)); e('s_and_b32', sr(self.S_T3), sr(self.S_T3), '3')
            e('s_lshl_b32', sr(self.S_T3), sr(self.S_T3), '6'); e('s_add_u32', sr(self.S_FB + j), sr(self.S_T2), sr(self.S_T3))
        e('s_cmp_eq_u32', sr(self.S_T1), '1'); e('s_cselect_b32', sr(self.S_T3), '0', '256')
        e('s_add_u32', sr(self.S_FB + 4), sr(self.S_T0), sr(self.S_T3))
        for j in range(5):
            e('s_lshl_b32', sr(self.S_FB2 + j), sr(self.S_FB + j), '1')
            e('s_mul_i32', sr(self.S_FBR + j), sr(self.S_FB + j), '1152')
        e('s_mul_i32', sr(self.S_WOR), sr(self.S_S), str(36 * 1152))
        e('s_and_b32', sr(self.S_T0), sr(self.S_S), '1'); e('s_lshl_b32', sr(self.S_T0), sr(self.S_T0), '1')
        for k in range(4):
            e('s_add_u32', sr(self.S_T1), sr(self.S_T0), str(k)); e('s_and_b32', sr(self.S_T1), sr(self.S_T1), '3')
            e('s_lshl_b32', sr(self.S_YC + k), sr(self.S_T1), '8')
        e('s_mov_b32', sr(self.S_NLOG2E), f2h(-LOG2E))
        e('s_mov_b32', sr(self.S_AC), f2h(LOG2E / math.sqrt(18.0)))
        e('s_mov_b32', sr(self.S_PERM0), '0x05040100'); e('s_mov_b32', sr(self.S_PERM1), '0x07060302')
        e('s_mov_b32', sr(self.S_NEG), f2h(-1e30))

    TA, TB, TC, TDm = 'v4', 'v5', 'v6', 'v7'
    TR, TCC8, TG1, TG2 = 'v247', 'v244', 'v242', 'v241'

    def addr_first(self, e):
        L, C16, G = vr(self.V_LANE), vr(self.V_C16), vr(self.V_G)
        a, b, c = self.TA, self.TB, self.TC
        r, cc8, g1, g2 = self.TR, self.TCC8, self.TG1, self.TG2
        W, RG2 = sr(self.S_W), sr(self.S_RG2)
        T0, T1, T2, T3 = sr(self.S_T0), sr(self.S_T1), sr(self.S_T2), sr(self.S_T3)
        e('v_lshrrev_b32', r, '2', C16)
        e('v_and_b32', cc8, '3', C16); e('v_lshlrev_b32', cc8, '3', cc8)
        e('v_and_b32', g1, '1', G)
        e('v_lshrrev_b32', g2, '1', G)
        e('v_mul_u32_u24', a, '12288', g1)
        e('v_lshl_add_u32', a, g2, '10', a)
        e('v_lshl_add_u32', a, r, '8', a)
        e('v_add_u32', a, a, cc8)
        e('v_lshl_or_b32', b, g1, '2', r)
        e('s_mov_b32', T0, '0x10525210'); e('s_mov_b32', T1, '0x63747463')
        e('s_lshl_b32', T2, W, '4')
        e('s_lshr_b64', sr(self.S_T0, 2), sr(self.S_T0, 2), T2)
        e('s_mov_b32', sr(self.S_QC), T0)
        for u in range(4):
            e('s_bfe_u32', T2, T0, hex((4 << 16) | (4 * u)))
            e('v_xor_b32', c, T2, b); e('v_lshl_add_u32', vr(self.TQ + u), c, '5', a)
        e('s_mul_i32', T0, RG2, '36864'); e('s_add_u32', T0, T0, str(HB))
        e('v_add_u32', vr(self.XA), T0, vr(self.PV))
        e('v_add_u32', vr(self.XA + 1), str(HB + 73728), vr(self.PV))

    def addr_late(self, e):
        L, C16, G = vr(self.V_LANE), vr(self.V_C16), vr(self.V_G)
        a, b, c, d = self.TA, self.TB, self.TC, self.TDm
        r, cc8, g1, g2 = self.TR, self.TCC8, self.TG1, self.TG2
        W, CH, RG2 = sr(self.S_W), sr(self.S_CH), sr(self.S_RG2)
        T0, T1, T2, T3 = sr(self.S_T0), sr(self.S_T1), sr(self.S_T2), sr(self.S_T3)
        e('v_lshrrev_b32', b, '3', L)
        e('v_bfe_u32', a, b, '1', '1')
        e('s_and_b32', T0, W, '1'); e('s_lshl_b32', T1, T0, '1')
        e('v_or_b32', a, T1, a)
        e('v_bfe_u32', c, L, '1', '2')
        e('v_xor_b32', a, a, c); e('v_lshlrev_b32', a, '1', a)
        e('v_and_b32', c, '1', L); e('v_or_b32', a, a, c)
        e('s_lshl_b32', T1, T0, '3')
        e('v_add_u32', c, T1, b)
        e('v_mul_u32_u24', c, '9216', c)
        e('v_lshl_add_u32', vr(self.DG), a, '4', c)
        for j in (1, 2):
            e('v_add_u32', vr(self.DG + j), str(j * (16 * 9216 - 1024)), vr(self.DG))
        e('s_lshl_b32', T1, W, '3')
        e('v_add_u32', c, T1, b)
        e('v_mul_u32_u24', c, '1152', c)
        e('v_lshl_add_u32', vr(self.DPH), a, '4', c)
        for j in (1, 2):
            e('v_add_u32', vr(self.DPH + j), str(j * (32 * 1152 - 1024)), vr(self.DPH))
        e('v_lshrrev_b32', b, '2', L)
        e('v_lshrrev_b32', a, '3', b); e('v_lshlrev_b32', a, '1', a)
        e('v_and_b32', c, '3', L); e('v_xor_b32', a, a, c)
        e('s_lshl_b32', T1, T0, '4')
        e('v_add_u32', c, T1, b)
        e('v_mul_u32_u24', c, '9216', c)
        e('v_lshl_add_u32', vr(self.DH), a, '4', c)
        for j in (1, 2):
            e('v_add_u32', vr(self.DH + j), str(j * (32 * 9216 - 1024)), vr(self.DH))
        e('s_lshr_b32', T0, W, '1'); e('s_lshl_b32', T0, T0, '2')
        e('v_or_b32', a, T0, G)
        e('v_lshrrev_b32', b, '1', C16)
        e('v_xor_b32', a, a, b)
        e('v_lshlrev_b32', a, '1', a)
        e('v_and_b32', b, '1', C16)
        e('v_or_b32', a, a, b)
        e('s_lshl_b32', T1, W, '2')
        e('v_add_u32', b, T1, G)
        e('v_mul_u32_u24', c, '1152', b)
        e('v_lshl_add_u32', vr(self.DP), a, '4', c)
        for j in (1, 2):
            e('v_add_u32', vr(self.DP + j), str(j * (16 * 1152 - 1024)), vr(self.DP))
        e('v_mul_u32_u24', a, '6144', g1)
        e('v_lshl_add_u32', a, g2, '10', a)
        e('v_lshl_add_u32', a, r, '7', a)
        e('v_add_u32', a, a, cc8)
        e('v_lshrrev_b32', b, '1', r); e('v_lshl_or_b32', b, g1, '1', b)
        for bb in range(2):
            e('s_lshl_b32', T2, CH, '1'); e('s_add_u32', T2, T2, str(bb))
            e('v_xor_b32', c, T2, b); e('v_lshl_add_u32', vr(self.TG + bb), c, '5', a)
            e('v_add_u32', vr(self.TG + 2 + bb), '12288', vr(self.TG + bb))
        e('v_mul_u32_u24', a, '6144', G)
        e('v_lshl_add_u32', a, r, '7', a)
        e('v_add_u32', a, a, cc8)
        for bb in range(2):
            e('s_lshl_b32', T2, CH, '1'); e('s_add_u32', T2, T2, str(bb))
            e('v_xor_b32', c, T2, b); e('v_lshl_add_u32', vr(self.TPH + bb), c, '5', a)
        e('v_mul_u32_u24', a, '6144', g2)
        e('v_lshl_add_u32', c, g1, '3', r); e('v_lshl_add_u32', a, c, '6', a)
        e('v_add_u32', a, a, cc8)
        e('v_xor_b32', c, CH, g1); e('v_lshl_add_u32', vr(self.TH), c, '5', a)
        e('v_add_u32', vr(self.TH + 1), '12288', vr(self.TH))
        e('v_mul_u32_u24', a, '12288', g1)
        e('v_lshl_add_u32', a, g2, '10', a)
        e('v_lshl_add_u32', a, r, '8', a)
        e('v_add_u32', a, a, cc8)
        e('v_lshl_or_b32', b, g1, '2', r)
        for u in range(4):
            e('s_lshl_b32', T2, CH, '2'); e('s_add_u32', T2, T2, str(u))
            e('v_xor_b32', c, T2, b); e('v_lshl_add_u32', vr(self.TP + u), c, '5', a)
        e('s_lshl_b32', T3, RG2, '6'); e('s_add_u32', T3, T3, '16')
        e('v_add_u32', c, T3, C16); e('v_mul_u32_u24', c, str(SPITCH), c)
        e('v_lshl_add_u32', c, G, '3', c)
        for u in range(4):
            e('s_bfe_u32', T2, sr(self.S_QC), hex((4 << 16) | (4 * u)))
            e('s_lshl_b32', T2, T2, '5'); e('s_add_u32', T2, T2, str(SB))
            e('v_add_u32', vr(self.SW + u), T2, c)
        e('s_lshl_b32', T2, RG2, '6'); e('v_add_u32', a, T2, C16)
        e('s_lshl_b32', T3, CH, '2'); e('v_add_u32', b, T3, g2)
        e('v_and_b32', c, '7', C16); e('v_xor_b32', b, b, c)
        e('v_lshlrev_b32', b, '4', b); e('v_lshl_add_u32', b, g1, '3', b)
        e('v_lshl_add_u32', b, a, '7', b)
        e('v_add_u32', vr(self.HW), str(HB), b)
        e('v_xor_b32', vr(self.HW + 1), '32', vr(self.HW))
        e('v_xor_b32', b, G, c); e('v_lshlrev_b32', b, '4', b); e('v_lshl_add_u32', b, a, '7', b)
        e('v_add_u32', vr(self.HR), str(HB), b)
        e('v_xor_b32', vr(self.HR + 1), '64', vr(self.HR))
        e('v_mul_u32_u24', b, str(XPITCH), a)
        e('v_add_u32', b, str(XB), b)
        e('v_lshl_add_u32', vr(self.XR), G, '4', b)
        e('s_lshl_b32', T3, CH, '5')
        e('v_lshl_add_u32', c, G, '3', b); e('v_add_u32', vr(self.HWX), T3, c)
        e('v_and_b32', a, '31', L); e('v_lshrrev_b32', b, '5', L)
        e('s_lshl_b32', T2, W, '5')
        e('v_add_u32', a, T2, a)
        e('s_lshl_b32', T3, sr(self.S_I), '7'); e('v_add_u32', vr(self.MG), T3, a)
        e('v_add_u32', c, '2', a); e('v_mul_u32_u24', c, str(SPITCH), c)
        e('v_lshl_add_u32', c, b, '5', c); e('v_add_u32', vr(self.AB), str(SB), c)
        e('v_mul_u32_u24', c, str(XPITCH), a); e('v_lshl_add_u32', c, b, '5', c)
        e('v_add_u32', vr(self.OW), str(XB + 64), c)

    def task_late_setup(self):
        T = []
        e = lambda op, *a, **k: T.append(I(op, *a, **k))

        def srd_(d, lo, hi, size):
            e('s_mov_b32', sr(d), lo); e('s_and_b32', sr(d + 1), hi, '0xffff'); e('s_mov_b32', sr(d + 2), str(size)); e('s_mov_b32', sr(d + 3), '0x20000')
        self.scalars_late(e, srd_)
        S = list(T)
        T.clear()
        self.addr_late(e)
        return [S] + T

    def build(self):
        self.stages = []
        self.ksteps = []
        strips = []

        def add_stage(dml):
            self.stages.append(dml)
            return len(self.stages) - 1

        def strip_generic(name, nk, ks_per_stage, nfrag, dma_fn, tr_fn, mf_fn):
            st = dict(name=name, ks=[])
            for t in range(nk):
                tl = t % ks_per_stage
                if tl == 0:
                    n_in = min(ks_per_stage, nk - t)
                    dml = []
                    for tt in range(n_in):
                        dml += dma_fn(t + tt, tt)
                    sid = add_stage(dml)
                frs = [tr_fn(t, tl, u) for u in range(nfrag)]
                st['ks'].append(dict(t=t, stage=sid, frags=frs, mf=[mf_fn(t, u) for u in range(nfrag)], last_in_stage=(tl == ks_per_stage - 1 or t == nk - 1)))
            strips.append(st)
            return st

        A0, A1 = self.ACC0, self.ACC1
        acc = lambda buf, u, mb: vr(buf + 16 * u + 4 * mb, 4)

        def dq(t, tt):
            r = t // 3
            return [(self.SRD_QKV, ('pq', 0), (r * 24 + 2 * tt + e) * 1024, self.PV, 1024, 2 * tt + e) for e in range(2)]

        def trq(t, tl, u):
            return (self.TQ + u, tl * 2048, 6144)

        def mfq(t, u):
            L = [(acc(A0, u, mb), self.xreg(t, mb)) for mb in range(4)]
            if u < 2:
                L.append((vr(self.HAL + 4 * u, 4), self.halo_x(t)))
            return L
        strip_generic('QKV', 18, 3, 4, dq, trq, mfq)

        def ffn(j, buf):
            def dg(t, tt):
                return [(self.SRD_GU, ('fb2', j), (32 * t + 16 * e) * 9216, self.DG, 16 * 9216, 2 * tt + e) for e in range(2)]

            def trg(t, tl, u):
                return (self.TG + u, tl * 2048, 512)

            def mfg(t, u):
                return [(acc(buf, u, mb), self.xreg(t, mb)) for mb in range(4)]
            return strip_generic(f'F{j}', 18, 3, 4, dg, trg, mfg)
        ffn(0, A1); ffn(1, A0); ffn(2, A1); ffn(3, A0)

        def dh(t, tt):
            return [(self.SRD_GU, ('fb2', 4), (32 * t) * 9216, self.DH, 32 * 9216, tt)]

        def trh(t, tl, u):
            return (self.TH + u, tl * 1024, 256)

        def mfh(t, u):
            return [(acc(A1, u, mb), self.xreg(t, mb)) for mb in range(4)]
        strip_generic('F4h', 18, 6, 2, dh, trh, mfh)

        self.kmap = [('F', 0, 0), ('F', 0, 1), ('F', 1, 0), ('F', 1, 1), ('F', 2, 0), ('F', 2, 1), ('O', 0, 0), ('O', 0, 1), ('F', 3, 0), ('F', 3, 1), ('X', 4, 0)]

        def p2rows(k):
            kind, j, tt = self.kmap[k]
            if kind == 'O':
                return self.SRD_WO, ('wo', 0), 32 * tt
            return self.SRD_WD, ('fbr', j), 32 * tt

        def p2full(Y, buf):
            def dp(t, tt):
                s_, b_, r0 = p2rows(t)
                return [(s_, b_ + ('y', Y), (r0 + 16 * e) * 1152, self.DP, 16 * 1152, 2 * tt + e) for e in range(2)]

            def trp(t, tl, u):
                return (self.TP + u, tl * 2048, 6144)

            def mfp(t, u):
                return [(acc(buf, u, mb), self.hreg(t, mb)) for mb in range(4)]
            return strip_generic(f'P{Y}', 11, 3, 4, dp, trp, mfp)
        def dph(t, tt):
            s_, b_, r0 = p2rows(t)
            return [(s_, b_, r0 * 1152 + 1024, self.DPH, 32 * 1152, tt)]

        def trph(t, tl, u):
            return (self.TPH + u, tl * 1024, 512)

        def mfph(t, u):
            return [(acc(A0, u, mb), self.hreg(t, mb)) for mb in range(4)]
        p2full(0, A0); p2full(1, A1)
        strip_generic('P4h', 11, 6, 2, dph, trph, mfph)
        p2full(2, A1); p2full(3, A0)
        self.strips = strips
        x0 = [st for st in strips if st['name'] == 'P0'][0]['ks'][9]['stage']
        first_deep = x0
        self.first_deep = first_deep
        self.slot = {}
        nst = len(self.stages)
        for sid in range(nst):
            if sid < first_deep or not self.o.get('deep', 1):
                self.slot[sid] = sid % 3
        if self.o.get('deep', 1):
            order = [3, 4, (x0 - 3) % 3, (x0 - 2) % 3, 5, (x0 - 1) % 3]
            for k, sid in enumerate(range(first_deep, nst)):
                self.slot[sid] = order[k % 6]

    def slot_base(self, sid):
        sl = self.slot[sid]
        return sl * SLOT if sl < 3 else HB + (sl - 3) * SLOT

    def dma_items(self, sid):
        sbase = self.slot_base(sid)
        items = []
        prev = None
        for (srd_, base, goff, vbase, qdelta, q) in self.stages[sid]:
            share = False
            lin = base is not None and base[0] == 'pq'
            if prev is not None:
                psrd, pbase, pgoff, pq, pj = prev
                j = pj + 1
                if psrd == srd_ and pbase == base and j <= (3 if lin else 2) and q == pq + 1 and goff == pgoff + qdelta:
                    share = True
            pre = []
            if not share:
                j = 0
                pre.append(I('s_add_u32', 'm0', sr(self.S_LDSW), str(sbase + q * 1024)))
                so = sr(self.S_SOFF)
                if lin:
                    pre.append(I('s_add_u32', so, sr(self.S_LDSW), str(goff)))
                elif base[0] == 'fb2':
                    pre.append(I('s_add_u32', so, sr(self.S_FB2 + base[1]), str(goff)))
                elif base[0] == 'fbr':
                    pre.append(I('s_add_u32', so, sr(self.S_FBR + base[1]), str(goff)))
                elif base[0] == 'wo':
                    pre.append(I('s_add_u32', so, sr(self.S_WOR), str(goff)))
                if base[-2] == 'y':
                    pre.append(I('s_add_u32', so, so, sr(self.S_YC + base[-1])))
            if pre:
                cur = pre
            items.append((cur, I('buffer_load_dwordx4', vr(vbase if lin else vbase + j), sr(srd_, 4), sr(self.S_SOFF),
                                 mods=f'offen offset:{1024 * j} lds' if j else 'offen lds', tag=('st', sid))))
            prev = (srd_, base, goff, q, j)
        return items

    def task_qkv_epi(self):
        T = []
        A0 = self.ACC0
        T.append(I('v_mov_b32', 'v4', '0')); T.append(I('v_mov_b32', 'v5', '0'))
        T.append(I('v_and_b32', 'v6', '127', 'v0')); T.append(I('v_mul_u32_u24', 'v6', str(XPITCH), 'v6'))
        T.append(I('v_add_u32', 'v6', str(XB + 136), 'v6'))
        T.append(I('ds_write_b64', 'v6', 'v[4:5]', flag='bar'))
        for u in range(4):
            for mb in range(4):
                a = A0 + 16 * u + 4 * mb
                T.append(I('v_cvt_pk_bf16_f32', vr(a), vr(a), vr(a + 1)))
                T.append(I('v_cvt_pk_bf16_f32', vr(a + 1), vr(a + 2), vr(a + 3)))
                T.append(I('ds_write_b64', vr(self.SW + u), vr(a, 2), mods=f'offset:{mb * 16 * SPITCH}', flag='bar'))
        for u in range(2):
            a = self.HAL + 4 * u
            T.append(I('v_cvt_pk_bf16_f32', vr(a), vr(a), vr(a + 1)))
            T.append(I('v_cvt_pk_bf16_f32', vr(a + 1), vr(a + 2), vr(a + 3)))
            T.append(I('s_lshl_b32', sr(self.S_T2), sr(self.S_RG2), '6'))
            T.append(I('s_add_u32', sr(self.S_T2), sr(self.S_T2), '16'))
            T.append(I('s_mul_i32', sr(self.S_T2), sr(self.S_T2), str(SPITCH)))
            T.append(I('v_subrev_u32', vr(a + 2), sr(self.S_T2), vr(self.SW + u)))
            T.append(I('ds_write_b64', vr(a + 2), vr(a, 2), flag='bar'))
        return T

    def task_attn(self):
        T = []
        B = self.ACC0
        Q = B
        KA = [B + 12, B + 24]
        S = B + 36
        O = B + 44
        KB = [O, O + 10]
        TP = [4, 5, 6, 7, 8, 9, 10, 11, 12, 13, 14, 15, 248, 249, 250, 251, 252, 253, 254, 255]
        AB = vr(self.AB)

        def rd(dst, off):
            if dst % 2 == 0 and dst % 4 == 0:
                return [I('ds_read_b128', vr(dst, 4), AB, mods=f'offset:{off}'),
                        I('ds_read_b128', vr(dst + 4, 4), AB, mods=f'offset:{off + 16}'),
                        I('ds_read_b64', vr(dst + 8, 2), AB, mods=f'offset:{off + 32}')]
            return [I('ds_read_b128', vr(dst, 4), AB, mods=f'offset:{off}'),
                    I('ds_read_b128', vr(dst + 4, 4), AB, mods=f'offset:{off + 16}'),
                    I('ds_read_b64', vr(dst + 8, 2), AB, mods=f'offset:{off + 32}')]
        rowoff = lambda w: (14 - 2 * w) * SPITCH
        T += rd(Q, rowoff(0) + 160)
        T += rd(KA[0], rowoff(0)); T += rd(KA[1], rowoff(1))
        T += rd(KB[0], rowoff(2)); T += rd(KB[1], rowoff(3))
        T.append(I('v_mov_b32', vr(S), '0'))
        T.append([I('v_cmp_gt_u32', 'vcc', '32', vr(self.V_LANE)),
                  I('v_cndmask_b32', vr(Q + 9), vr(Q + 9), vr(S), 'vcc'),
                  I('v_cndmask_b32', vr(Q + 0), vr(S), vr(Q + 0), 'vcc')])
        for w in range(0, 8, 2):
            bufs = KA if (w // 2) % 2 == 0 else KB
            burst = []
            for ww, kb in ((w, bufs[0]), (w + 1, bufs[1])):
                burst.append(I('v_dot2_f32_bf16', vr(S + ww), vr(Q), vr(kb), '0'))
            for j in range(1, 10):
                for ww, kb in ((w, bufs[0]), (w + 1, bufs[1])):
                    burst.append(I('v_dot2_f32_bf16', vr(S + ww), vr(Q + j), vr(kb + j), vr(S + ww)))
            T.append(burst)
            if w + 4 < 8:
                T += rd(bufs[0], rowoff(w + 4)); T += rd(bufs[1], rowoff(w + 5))
            elif w == 4:
                T += rd(KA[0], rowoff(0) + 80); T += rd(KA[1], rowoff(1) + 80)
        NEG = vr(Q + 10)
        T.append(I('v_mov_b32', NEG, sr(self.S_NEG)))
        for w in range(1, 8):
            T.append([I('v_cmp_le_u32', 'vcc', str(2 * w), vr(self.MG)), I('s_nop', '1'),
                      I('v_cndmask_b32', vr(S + w), NEG, vr(S + w), 'vcc')])
        MX = vr(Q + 11)
        T.append(I('v_max3_f32', MX, vr(S), vr(S + 1), vr(S + 2)))
        T.append(I('v_max3_f32', MX, MX, vr(S + 3), vr(S + 4)))
        T.append(I('v_max3_f32', MX, MX, vr(S + 5), vr(S + 6)))
        T.append(I('v_max_f32', MX, MX, vr(S + 7)))
        T.append(I('v_mul_f32', MX, sr(self.S_AC), MX))
        for w in range(8):
            T.append(I('v_fma_f32', vr(S + w), vr(S + w), sr(self.S_AC), '-' + MX))
        for w in range(8):
            T.append(I('v_exp_f32', vr(S + w), vr(S + w)))
        SUM = vr(Q + 10)
        T.append(I('v_add_f32', SUM, vr(S), vr(S + 1)))
        for w in range(2, 8):
            T.append(I('v_add_f32', SUM, SUM, vr(S + w)))
        T.append(I('v_rcp_f32', SUM, SUM))
        for w in range(8):
            T.append(I('v_mul_f32', vr(S + w), vr(S + w), SUM))
        for pp in range(4):
            T.append(I('v_cvt_pk_bf16_f32', vr(Q + pp), vr(S + 2 * pp), vr(S + 2 * pp + 1)))
        K0_, K1_ = KA
        for pp in range(4):
            burst = []
            for j in range(10):
                a, b = TP[2 * j], TP[2 * j + 1]
                T.append(I('v_perm_b32', vr(a), vr(K1_ + j), vr(K0_ + j), sr(self.S_PERM0)))
                T.append(I('v_perm_b32', vr(b), vr(K1_ + j), vr(K0_ + j), sr(self.S_PERM1)))
                burst.append(I('v_dot2_f32_bf16', vr(O + 2 * j), vr(a), vr(Q + pp), '0' if pp == 0 else vr(O + 2 * j)))
                burst.append(I('v_dot2_f32_bf16', vr(O + 2 * j + 1), vr(b), vr(Q + pp), '0' if pp == 0 else vr(O + 2 * j + 1)))
            if pp < 3:
                T += rd(K0_, rowoff(2 * pp + 2) + 80)
                T += rd(K1_, rowoff(2 * pp + 3) + 80)
            T.append(burst)
        OP = K0_
        for j in range(10):
            T.append(I('v_cvt_pk_bf16_f32', vr(OP + j), vr(O + 2 * j), vr(O + 2 * j + 1)))
        OW = vr(self.OW)
        for j in range(1, 9, 2):
            T.append(I('ds_write2_b32', OW, vr(OP + j), vr(OP + j + 1), mods=f'offset0:{j} offset1:{j + 1}', flag='bar'))
        t0 = TP[0]
        T.append(I('v_add_u32', vr(t0), '36', OW))
        T.append([I('v_cmp_gt_u32', 'vcc', '32', vr(self.V_LANE)), I('s_nop', '1'),
                  I('v_cndmask_b32', vr(OP), vr(OP + 9), vr(OP), 'vcc'),
                  I('v_cndmask_b32', vr(t0), vr(t0), OW, 'vcc')])
        T.append(I('ds_write_b32', vr(t0), vr(OP), flag='bar'))
        return T

    def task_silu(self, buf, j):
        T = []
        NL = sr(self.S_NLOG2E)
        chains = []
        for bb in range(2):
            for mb in range(4):
                g = buf + 16 * bb + 4 * mb
                u = buf + 16 * (2 + bb) + 4 * mb
                c = []
                for r in range(4):
                    c.append(I('v_mul_f32', vr(u + r), vr(g + r), vr(u + r)))
                for r in range(4):
                    c.append(I('v_mul_f32', vr(g + r), NL, vr(g + r)))
                for r in range(4):
                    c.append(I('v_exp_f32', vr(g + r), vr(g + r)))
                for r in range(4):
                    c.append(I('v_add_f32', vr(g + r), '1.0', vr(g + r)))
                for r in range(4):
                    c.append(I('v_rcp_f32', vr(g + r), vr(g + r)))
                for r in range(4):
                    c.append(I('v_mul_f32', vr(u + r), vr(g + r), vr(u + r)))
                c.append(I('v_cvt_pk_bf16_f32', vr(g), vr(u), vr(u + 1)))
                c.append(I('v_cvt_pk_bf16_f32', vr(g + 1), vr(u + 2), vr(u + 3)))
                if j < 4:
                    c.append(I('ds_write_b64', vr(self.HW + bb), vr(g, 2), mods=f'offset:{j * 16384 + mb * 2048}', flag='bar'))
                chains.append(c)
        Ta, Tb = [], []
        for k, c in enumerate(chains):
            (Ta if k % 2 == 0 else Tb).extend(c)
        return Ta, Tb

    def task_silu_h(self, buf):
        TT = ([], [])
        NL = sr(self.S_NLOG2E)
        for mb in range(4):
            T = TT[mb % 2]
            g = buf + 4 * mb
            u = buf + 16 + 4 * mb
            for r in range(4):
                T.append(I('v_mul_f32', vr(u + r), vr(g + r), vr(u + r)))
            for r in range(4):
                T.append(I('v_mul_f32', vr(g + r), NL, vr(g + r)))
            for r in range(4):
                T.append(I('v_exp_f32', vr(g + r), vr(g + r)))
            for r in range(4):
                T.append(I('v_add_f32', vr(g + r), '1.0', vr(g + r)))
            for r in range(4):
                T.append(I('v_rcp_f32', vr(g + r), vr(g + r)))
            for r in range(4):
                T.append(I('v_mul_f32', vr(u + r), vr(g + r), vr(u + r)))
            T.append(I('v_cvt_pk_bf16_f32', vr(g), vr(u), vr(u + 1)))
            T.append(I('v_cvt_pk_bf16_f32', vr(g + 1), vr(u + 2), vr(u + 3)))
            T.append(I('ds_write_b64', vr(self.HWX), vr(g, 2), mods=f'offset:{mb * 16 * XPITCH}', flag='bar'))
        return TT

    def task_hload(self, k):
        kind, j, tt = self.kmap[k]
        T = []
        for mb in range(4):
            d = self.hreg(k, mb)
            if kind == 'F':
                T.append(I('ds_read_b128', d, vr(self.HR + tt), mods=f'offset:{j * 16384 + mb * 2048}', flag='bar', tag=('h', k, mb)))
            elif kind == 'X':
                T.append(I('ds_read_b128', d, vr(self.XR), mods=f'offset:{mb * 16 * XPITCH}', flag='bar', tag=('h', k, mb)))
            elif tt == 0:
                T.append(I('ds_read_b128', d, vr(self.XR), mods=f'offset:{mb * 16 * XPITCH + 64}', flag='bar', tag=('h', k, mb)))
        if kind == 'O' and tt == 1:
            for mb in range(4):
                for r in range(4):
                    T.append(I('v_accvgpr_write_b32', ar(16 * k + 4 * mb + r), '0'))
            grp = [I('s_mov_b64', 'exec', '0xffff')]
            for mb in range(4):
                grp.append(I('ds_read_b128', self.hreg(k, mb), vr(self.XR), mods=f'offset:{mb * 16 * XPITCH + 128}', flag='bar', tag=('h', k, mb)))
            grp.append(I('s_mov_b64', 'exec', '-1'))
            T.append(grp)
        return T

    def touch_ld(self, vaddr, srd_):
        x = I('buffer_load_dword', 'v7', vaddr, sr(srd_, 4), sr(self.S_TCH), mods='offen')
        x.writes = []
        return x

    def task_touch(self):
        T = []
        T0, T1 = sr(self.S_T0), sr(self.S_T1)
        S = [I('s_and_b32', T0, sr(self.S_I), '7'), I('s_mul_i32', T0, T0, '41472'), I('s_mul_i32', T1, sr(self.S_S), str(288 * 1152)),
             I('s_add_u32', T0, T0, T1), I('s_mul_i32', T1, sr(self.S_W), '10368'), I('s_add_u32', sr(self.S_TCH), T0, T1)]
        T.append(S)
        T.append(I('v_lshlrev_b32', 'v247', '7', vr(self.V_LANE)))
        T.append(self.touch_ld('v247', self.SRD_WD))
        T.append([I('s_add_u32', sr(self.S_TCH), sr(self.S_TCH), str(17 * 128))])
        T.append(self.touch_ld('v247', self.SRD_WD))
        S = [I('s_and_b32', T0, sr(self.S_I), '7'), I('s_mul_i32', T0, T0, '5184'), I('s_add_u32', T0, T0, sr(self.S_WOR)),
             I('s_mul_i32', T1, sr(self.S_W), '1296'), I('s_add_u32', sr(self.S_TCH), T0, T1)]
        T.append(S)
        T.append([I('s_mov_b64', 'exec', '0xfff'), self.touch_ld('v247', self.SRD_WO), I('s_mov_b64', 'exec', '-1')])
        return T

    def task_touch_gu(self):
        T = []
        T0, T1 = sr(self.S_T0), sr(self.S_T1)
        L = vr(self.V_LANE)
        T.append(I('v_mul_u32_u24', 'v6', '205', L)); T.append(I('v_lshrrev_b32', 'v6', '10', 'v6'))
        T.append(I('v_mul_u32_u24', 'v7', '5', 'v6')); T.append(I('v_sub_u32', 'v7', L, 'v7'))
        T.append(I('v_mul_u32_u24', 'v6', '9216', 'v6')); T.append(I('v_lshl_add_u32', 'v6', 'v7', '7', 'v6'))
        S = [I('s_and_b32', T0, sr(self.S_I), '7'), I('s_mul_i32', T0, T0, '72'), I('s_and_b32', T1, sr(self.S_W), '1'), I('s_mul_i32', T1, T1, '36'),
             I('s_add_u32', T0, T0, T1), I('s_mul_i32', T0, T0, '9216'), I('s_mul_i32', T1, sr(self.S_S), '576'), I('s_and_b32', T1, T1, '0xffffff80'),
             I('s_add_u32', sr(self.S_TCH), T0, T1)]
        T.append(S)
        for j in range(3):
            T.append(self.touch_ld('v6', self.SRD_GU))
            if j < 2:
                T.append([I('s_add_u32', sr(self.S_TCH), sr(self.S_TCH), str(12 * 9216))])
        return T

    def task_p2setup(self):
        T = []
        T0, T1 = sr(self.S_T0), sr(self.S_T1)
        S, II, W = sr(self.S_S), sr(self.S_I), sr(self.S_W)
        T += [I('s_lshl_b32', T0, S, '4'), I('s_add_u32', T0, T0, II)]
        T += [I('s_lshl_b32', T1, W, '13')]
        T += [I('s_lshl_b32', sr(self.S_MBO), T0, '16'), I('s_add_u32', sr(self.S_MBO), sr(self.S_MBO), T1),
              I('s_add_u32', sr(self.S_MBO), sr(self.S_MBO), str(MB_OFF))]
        T += [I('s_xor_b32', sr(self.S_MBP), sr(self.S_MBO), str(16 << 16))]
        T += [I('s_lshl_b32', sr(self.S_HPB), T0, '14'), I('s_lshl_b32', T1, W, '12'), I('s_add_u32', sr(self.S_HPB), sr(self.S_HPB), T1),
              I('s_add_u32', sr(self.S_HPB), sr(self.S_HPB), str(HP_OFF))]
        T += [I('s_lshr_b32', T0, S, '1'), I('s_lshl_b32', T0, T0, '4'), I('s_add_u32', T0, T0, II), I('s_lshl_b32', sr(self.S_FPB), T0, '17'),
              I('s_lshl_b32', T1, W, '13'), I('s_add_u32', sr(self.S_FPB), sr(self.S_FPB), T1)]
        T += [I('s_lshl_b32', sr(self.S_FOFF), 's2', '7'), I('s_add_u32', sr(self.S_FOFF), sr(self.S_FOFF), str(FL_OFF)),
              I('s_xor_b32', sr(self.S_FSH), sr(self.S_FOFF), str(8 << 7))]
        T += [I('s_lshl_b32', T1, W, '2'), I('s_add_u32', sr(self.S_FOFF), sr(self.S_FOFF), T1)]
        T += [I('s_mov_b32', sr(self.S_NEG), '0xffff0000')]
        return T

    def _pack_store(self, T, buf, pair, mb, soff_reg, first, flags, tag=None):
        a = buf + 16 * (2 * pair) + 4 * mb
        b = buf + 16 * (2 * pair + 1) + 4 * mb
        T.append(I('v_cvt_pk_bf16_f32', vr(a), vr(a), vr(a + 1)))
        T.append(I('v_cvt_pk_bf16_f32', vr(a + 1), vr(a + 2), vr(a + 3)))
        T.append(I('v_cvt_pk_bf16_f32', vr(a + 2), vr(b), vr(b + 1)))
        T.append(I('v_cvt_pk_bf16_f32', vr(a + 3), vr(b + 2), vr(b + 3)))
        T += first
        T.append(I('buffer_store_dwordx4', vr(a, 4), vr(self.PV), sr(self.SRD_P, 4), sr(self.S_PO),
                   mods=(f'offen offset:{1024 * mb}' if mb else 'offen') + flags, tag=tag))

    def task_send(self, buf, k):
        T = []
        for pair in range(2):
            for mb in range(4):
                first = [I('s_add_u32', sr(self.S_PO), sr(self.S_MBO), str(k * 32768 + pair * 4096))] if mb == 0 else []
                self._pack_store(T, buf, pair, mb, None, first, ' sc1', tag=('mb', k))
        return T

    def item_signal(self, k):
        return ('signal', k)

    def task_keep(self, buf, k):
        T = []
        M = sr(self.S_PERM0 + 2)
        for pair in range(2):
            for mb in range(4):
                a = buf + 16 * (2 * pair) + 4 * mb
                b = buf + 16 * (2 * pair + 1) + 4 * mb
                q = (self.INC if k == 2 else self.INC2)[pair * 4 + mb]
                t0, t1 = 244, 245
                for half, r in ((0, a), (1, b)):
                    for d in range(2):
                        src = vr(q + 2 * half + d)
                        T.append(I('v_lshlrev_b32', vr(t0), '16', src))
                        T.append(I('v_and_b32', vr(t1), M, src))
                        T.append(I('v_add_f32', vr(r + 2 * d), vr(r + 2 * d), vr(t0)))
                        T.append(I('v_add_f32', vr(r + 2 * d + 1), vr(r + 2 * d + 1), vr(t1)))
                        t0, t1 = (246, 247) if t0 == 244 else (244, 245)
                first = []
                if mb == 0:
                    first = [I('s_lshl_b32', sr(self.S_PO), sr(self.S_YC + k), '7'),
                             I('s_add_u32', sr(self.S_PO), sr(self.S_PO), sr(self.S_FPB)),
                             I('s_add_u32', sr(self.S_PO), sr(self.S_PO), str(pair * 4096))]
                self._pack_store(T, buf, pair, mb, None, first, ['', ' nt', ' sc1'][self.o.get('stflag', 2)])
        return T

    def items_incoming(self, k):
        T = []
        for pair in range(2):
            for mb in range(4):
                if mb == 0:
                    T.append(I('s_add_u32', sr(self.S_PO2), sr(self.S_MBP), str((k - 2) * 32768 + pair * 4096)))
                T.append(I('buffer_load_dwordx4', vr((self.INC if k == 2 else self.INC2)[pair * 4 + mb], 4), vr(self.PV), sr(self.SRD_P, 4), sr(self.S_PO2),
                           mods=(f'offen offset:{1024 * mb}' if mb else 'offen') + ' sc1'))
        return T

    def task_half(self, buf):
        T = []
        for mb in range(4):
            first = [I('s_mov_b32', sr(self.S_PO), sr(self.S_HPB))] if mb == 0 else []
            self._pack_store(T, buf, 0, mb, None, first, ['', ' nt', ' sc1'][self.o.get('stflag', 2)])
        return T

    def emit_signal(self, k):
        P = self.P
        P.wait_vm_tag(('mb', k))
        P.e('v_mov_b32', 'v9', '1')
        P.e('v_mov_b32', 'v10', str(16 * k))
        P.e('s_mov_b64', 'exec', '1')
        P.e('buffer_store_dword', 'v9', 'v10', sr(self.SRD_P, 4), sr(self.S_FOFF), mods='offen sc1')
        P.e('s_mov_b64', 'exec', '-1')

    def poll_issue(self, k):
        return [I('v_mov_b32', 'v11', str(16 * (k - 2))),
                I('buffer_load_dwordx4', vr(self.V_POLL, 4), 'v11', sr(self.SRD_P, 4), sr(self.S_FSH), mods='offen sc1')]

    def emit_poll_check(self, lab):
        P = self.P
        T2 = sr(self.S_T2)
        V = self.V_POLL
        P.e('v_and_b32', vr(V), vr(V), vr(V + 1)); P.e('v_and_b32', vr(V + 2), vr(V + 2), vr(V + 3)); P.e('v_and_b32', vr(V), vr(V), vr(V + 2))
        P.e('v_readfirstlane_b32', T2, vr(V))
        P.e('s_cmp_eq_u32', T2, '1')
        P.raw(f"  s_cbranch_scc1 {lab}_ok")
        P.label(f"{lab}_spin")
        P.raw("  s_sleep 1")
        P.raw(f"  buffer_load_dwordx4 v[{V}:{V + 3}], v11, s[{self.SRD_P}:{self.SRD_P + 3}], {sr(self.S_FSH)} offen sc1")
        P.raw("  s_waitcnt vmcnt(0)")
        P.raw(f"  v_and_b32 v{V}, v{V}, v{V + 1}")
        P.raw(f"  v_and_b32 v{V + 2}, v{V + 2}, v{V + 3}")
        P.raw(f"  v_and_b32 v{V}, v{V}, v{V + 2}")
        P.raw("  s_nop 1")
        P.raw(f"  v_readfirstlane_b32 {T2}, v{V}")
        P.raw("  s_nop 3")
        P.raw(f"  s_cmp_eq_u32 {T2}, 1")
        P.raw(f"  s_cbranch_scc0 {lab}_spin")
        P.label(f"{lab}_ok")

    def check_b(self, g):
        ins = g['inst']
        b = ins.ops[2]
        want = g['btag']
        got = self.P.regtag.get(regs_of(b)[0])
        assert got == want, (g['ks']['strip'], g['ks']['t'], b, want, got)

    def emit_setup(self, it):
        pre, ins = it
        if self.o.get('nodma', 0) and ins.tag[0] == 'st' and ins.tag[1] >= 2:
            return
        if self.cur_setup is not pre:
            self.P.emit(pre)
            self.cur_setup = pre

    def emit_dma(self, it):
        pre, ins = it
        if self.o.get('nodma', 0) and ins.tag[0] == 'st' and ins.tag[1] >= 2:
            return
        if self.cur_setup is not pre:
            self.P.emit(pre)
            self.cur_setup = pre
        self.P.emit(ins)

    XSLOT = 27 * 1024

    def xf_dma(self, r):
        items = []
        tag = ('st', r)
        for mm in range(2):
            pre = [I('s_add_u32', 'm0', sr(self.S_XL), str(HB + (r % 3) * 12288 + mm * 3072)),
                   I('s_add_u32', sr(self.S_SOFF2), sr(self.S_XF), str((mm * 18 + 3 * r) * 1024))]
            for k in range(3):
                items.append((pre, I('buffer_load_dwordx4', vr(self.PV), sr(self.SRD_XF, 4), sr(self.S_SOFF2),
                                     mods=(f'offen offset:{1024 * k} lds' if k else 'offen lds'), tag=tag)))
        pre = [I('s_add_u32', 'm0', sr(self.S_XH), str(HB + 73728 + (r % 3) * 3072)),
               I('s_add_u32', sr(self.S_SOFF2), sr(self.S_XF + 1), str(3 * r * 1024))]
        items.append((pre, I('buffer_load_dwordx4', vr(self.PV), sr(self.SRD_XF, 4), sr(self.S_SOFF2), mods='offen lds', tag=tag)))
        return items

    def xf_reads(self, t):
        T = []
        r, tt = divmod(t, 3)
        for mb in range(4):
            T.append(I('ds_read_b128', self.xreg(t, mb), vr(self.XA), mods=f'offset:{(r % 3) * 12288 + (mb * 3 + tt) * 1024}', flag='bar', tag=('x', t, mb)))
        T.append(I('ds_read_b128', self.halo_x(t), vr(self.XA + 1), mods=f'offset:{(r % 3) * 3072 + tt * 1024}', flag='bar', tag=('x', t, 4)))
        return T

    def stage_dma(self, sid):
        a = self.dma_items(sid)
        if sid < 6:
            b = self.xf_dma(sid)
            out = []
            out = b[:3] + a[:3] + b[3:] + a[3:]
            return out
        return a

    def emit_all(self):
        P = self.P
        e = P.e
        o = self.o
        self.prologue()
        self.build()
        self.cur_setup = None
        pst = []

        def pstamp():
            if o.get('prof', 0) == 3:
                r = 72 + 2 * len(pst)
                P.raw(f"  s_memtime s[{r}:{r + 1}]")
                pst.append(r)
        pstamp()
        for it in self.stage_dma(0):
            self.emit_dma(it)
        pstamp()
        for it in self.stage_dma(1):
            self.emit_dma(it)
        pstamp()
        if o.get('touch', 1) == 2:
            T0, T1 = sr(self.S_T0), sr(self.S_T1)
            srd(P, self.SRD_WO, 's6', 's7', 576 * 1152)
            srd(P, self.SRD_WD, 's12', 's13', 4608 * 1152)
            e('s_mul_i32', sr(self.S_WOR), sr(self.S_S), str(36 * 1152))
            P.emit(self.task_touch())
        self.addr_first(e)
        pstamp()

        frags = []
        KS = []
        for st in self.strips:
            for ks in st['ks']:
                ks['strip'] = st['name']
                KS.append(ks)
                for u in range(len(ks['frags'])):
                    frags.append((ks, u))
        NQ = len(frags)
        NFR = self.NFR
        DIST = NFR - 1
        fr = lambda q: self.FR + 4 * (q % NFR)

        def frag_reads(q):
            ks, u = frags[q]
            areg, off, hd = ks['frags'][u]
            slot = self.slot[ks['stage']]
            if slot >= 3:
                areg = self.TD + (areg - self.TP)
                slot -= 3
            return [I('ds_read_b64_tr_b16', vr(fr(q) + 2 * h, 2), vr(areg), mods=f'offset:{slot * SLOT + off + h * hd}', flag='bar') for h in range(2)]

        gaps = []
        qi = 0
        for ks in KS:
            for u in range(len(ks['frags'])):
                mfs = ks['mf'][u]
                for mi, (accr, breg) in enumerate(mfs):
                    first = ks['t'] == 0
                    btag = ('h', ks['t'], mi) if ks['strip'][0] == 'P' else ('x', ks['t'], mi)
                    gaps.append(dict(q=qi, ks=ks, u=u, mi=mi, n=len(mfs), btag=btag,
                                     inst=I('v_mfma_f32_16x16x32_bf16', accr, vr(fr(qi), 4), breg, '0' if first else accr)))
                qi += 1
        NG = len(gaps)
        sf, sl, frag_first, ks_first = {}, {}, {}, {}
        for gi, g in enumerate(gaps):
            sf.setdefault(g['ks']['strip'], gi)
            sl[g['ks']['strip']] = gi
            frag_first.setdefault(g['q'], gi)
            ks_first.setdefault((g['ks']['strip'], g['ks']['t']), gi)
        fstage = [frags[q][0]['stage'] for q in range(NQ)]
        NST = len(self.stages)
        first_frag_of_stage = {}
        for q in range(NQ):
            first_frag_of_stage.setdefault(fstage[q], q)
        stage_of0 = lambda name, k: [st for st in self.strips if st['name'] == name][0]['ks'][k]['stage']
        read_pos, bar_pos = {}, {}
        LAG = o.get('barlag', 2)
        for q in range(NQ):
            s = fstage[q]
            p = q - DIST
            if s > 0:
                lastq_prev = first_frag_of_stage[s] - 1
                bp = read_pos[lastq_prev] + LAG
                bar_pos[s - 1] = bp
                p = max(p, bp)
            read_pos[q] = p
            assert p < q or q == 0, (q, p)
            assert p >= q - NFR + 1
        bars_at = {}
        for s, p in bar_pos.items():
            bars_at.setdefault(p, []).append(s)
        bar_gap = {s: frag_first[p] for s, p in bar_pos.items()}
        rq = []
        for q in range(NQ):
            if read_pos[q] < 0:
                continue
            for h, ins in enumerate(frag_reads(q)):
                rq.append((frag_first[read_pos[q]], frag_first[q] - o.get('minlead', 7), ins, frag_first[read_pos[q]] + 2 * h))

        self.hfree_bar = None
        dq = []
        b_hfree = bar_gap[stage_of0('P0', 9)]
        b_h6 = bar_gap[stage_of0('P0', 0)]
        prev_user = {}
        last_issue = 0
        for sid in range(NST):
            sl_ = self.slot[sid]
            pu = prev_user.get(sl_)
            prev_user[sl_] = sid
            if sid < 2:
                continue
            if pu is not None:
                lo = bar_gap[pu]
            elif sl_ == 5:
                lo = b_hfree
            elif sl_ >= 3:
                lo = b_h6
            else:
                lo = 0
            hi = bar_gap[sid - 1]
            items = self.stage_dma(sid)
            n = len(items)
            lo = max(lo, last_issue)
            nb = min(b for b in list(bar_gap.values()) + [NG] if b > lo)
            span = max(n, int((nb - lo - 2) * (o.get('dmaspan', 60) if sid >= 8 else 95) / 100))
            step = max(o.get('dmastep', 5) if sid >= 8 else 4, span // n) if sl_ < 3 or sid < self.first_deep else o.get('dmastep', 5)
            if sid >= self.first_deep:
                step = o.get('dmastep', 4)
            for k, it in enumerate(items):
                gi_ = lo + 1 + k * step
                assert gi_ < hi, (sid, gi_, hi)
                dq.append((gi_, it))
            last_issue = lo + 1 + (n - 1) * step
        dq.sort(key=lambda x: x[0])

        LAT = 10
        names0 = ['QKV', 'F0', 'F1', 'F2', 'F3', 'F4h']
        strip = lambda name: [st for st in self.strips if st['name'] == name][0]
        stage_of = lambda name, k: strip(name)['ks'][k]['stage']

        def next_bar(gi):
            return min(b for b in bar_gap.values() if b > gi)
        tasks = []

        def add(st_, en_, lst):
            if isinstance(lst, tuple):
                for l in lst:
                    tasks.append([st_, en_, l, 0])
            else:
                tasks.append([st_, en_, lst, 0])
        late_end = o.get('lateend', 60)
        add(2, late_end, self.task_late_setup())
        rq2 = []
        for t in range(3, 18):
            r = t // 3
            dl = ks_first[('QKV', t)] - 8
            for ins in self.xf_reads(t):
                rq2.append((bar_gap[r - 1] + 1, dl, ins))
        bq = bar_gap[stage_of('F0', 0)] if o.get('qkvbar', 1) == 0 else bar_gap[stage_of('F0', 3)]
        add(sf['F0'] + LAT, bq - 1, self.task_qkv_epi())
        add(bq + 1, sl['F0'], self.task_attn())
        add(sf['F1'] + LAT, sl['F1'], self.task_silu(self.ACC1, 0))
        add(sf['F2'] + LAT, sl['F2'], self.task_silu(self.ACC0, 1))
        add(sf['F3'] + LAT, sl['F3'], self.task_silu(self.ACC1, 2))
        add(sf['F4h'] + LAT, sl['F4h'], self.task_silu(self.ACC0, 3))
        b_f4h = bar_gap[stage_of('P0', 3)]
        add(sf['P0'] + LAT, b_f4h - 1, self.task_silu_h(self.ACC1))
        bF2 = next_bar(sl['F3'])
        bF3 = next_bar(sl['F4h'])
        for k in range(11):
            if k < 8:
                st_ = ks_first[('F4h', k + 1)] + 1
                if k in (4, 5):
                    st_ = max(st_, bF2 + 1)
            elif k < 10:
                st_ = max(bF3 + 1, ks_first[('F4h', k + 1)] + 1)
            else:
                st_ = b_f4h + 1
            dl = ks_first[('P0', k)] - 8
            if k < 6:
                dl = min(dl, bar_gap[stage_of('P0', 0)] - 10)
            assert st_ < dl, (k, st_, dl)
            for ins in self.task_hload(k):
                rq2.append((st_, dl, ins))
        rq2.sort(key=lambda x: x[1])
        if o.get('deep', 1):
            add(sf['P0'] + 2, sf['P0'] + 30, [I('v_add_u32', vr(self.TD + k), str(HB), vr(self.TP + k)) for k in range(6)])
        actions = {}
        prebar = {}
        if o.get('touchgu', 0):
            ta = late_end + 1 + o.get('guoff', 0)
            add(ta, ta + 12, self.task_touch_gu())
        if o.get('touch', 1) == 1:
            ta = sf['F2'] + o.get('touchoff', 170)
            add(ta, ta + 8, self.task_touch())
        add(sf['F4h'] + 2, sf['F4h'] + 6, self.task_p2setup())
        add(sf['P1'] + 40, sf['P1'] + 85, self.task_send(self.ACC0, 0))
        actions[sf['P4h'] + o.get('sig0', 50)] = lambda: self.emit_signal(0)
        add(sf['P4h'] + LAT, sf['P4h'] + 80, self.task_send(self.ACC1, 1))
        actions[sf['P2'] + o.get('sig1', 130)] = lambda: self.emit_signal(1)
        add(sf['P2'] + LAT, sf['P2'] + 60, self.task_half(self.ACC0))
        for k, nm, pa, kb in ((2, 'P2', 20, 6), (3, 'P3', 20, o.get('kb3', 3))):
            add(sf[nm] + pa, sf[nm] + pa + 2, self.poll_issue(k))
            sb = stage_of(nm, kb)
            prebar[sb] = (lambda kk=k: self.emit_poll_check(f"K1_poll{kk}"))
            add(bar_gap[sb] + 1, bar_gap[sb] + 30, self.items_incoming(k))
        add(sf['P3'] + o.get('keepat', 50), sl['P3'], self.task_keep(self.ACC1, 2))

        if o.get('notask', 0):
            tasks = []; actions = {}; prebar = {}
        PROF = o.get('prof', 0)
        names = ['QKV', 'F0', 'F1', 'F2', 'F3', 'F4h', 'P0', 'P1', 'P4h', 'P2', 'P3']
        pfrom = names[o.get('pfrom', 0)]
        stamps = list(pst)

        def stamp():
            if PROF:
                r = 72 + 2 * len(stamps)
                P.raw(f"  s_memtime s[{r}:{r + 1}]")
                stamps.append(r)

        P.wait_lds_flagged()
        P.wait_vm_tag(('st', 0))
        if PROF == 3:
            stamp()
        P.barrier()
        if PROF == 3:
            stamp()
        P.emit(self.xf_reads(0))
        for q in range(NQ):
            if read_pos[q] < 0:
                P.emit(frag_reads(q))
        P.emit(self.xf_reads(1))
        P.emit(self.xf_reads(2))
        stamp()

        def icost(x):
            if isinstance(x, list):
                if x[0].op.startswith('v_dot'):
                    return 100
                return sum(y.cost for y in x)
            return x.cost

        def kind(x):
            return x[-1].kind if isinstance(x, list) else x.kind
        SLACK = o.get('slack', 5)
        LEAD = o.get('lead', 4)
        ri = 0
        di = 0
        last_ds_gap = -10
        for gi, g in enumerate(gaps):
            if PROF == 1 and gi in sf.values() and gi > 0:
                stamp()
            if g['mi'] == 0:
                p = g['q']
                if PROF in (2, 3) and len(stamps) < 12 and gi >= sf[pfrom] and bars_at.get(p):
                    stamp()
                for s in bars_at.get(p, []):
                    p4 = PROF == 4 and gi >= sf[pfrom] and len(stamps) < 11
                    if s in prebar:
                        prebar[s]()
                    if p4: stamp()
                    if not o.get('nolgkm', 0):
                        P.wait_lds_flagged()
                    if p4: stamp()
                    P.wait_vm_tag(('st', s + 1))
                    if p4: stamp()
                    if not o.get('nobar', 0):
                        P.barrier()
                    if p4: stamp()
            self.check_b(g)
            if not o.get('nomfma', 0):
                P.emit(g['inst'])
            cap = 8
            ds = False
            while ri < len(rq) and rq[ri][3] <= gi:
                urgent = rq[ri][1] <= gi
                if ds and not urgent:
                    break
                P.emit(rq[ri][2]); ri += 1
                cap -= 4; ds = True
            while True:
                el = [x for x in rq2 if x[0] <= gi]
                if not el:
                    break
                x = el[0]
                isds = kind(x[2]) in ('ldsr',) or isinstance(x[2], list)
                urgent = x[1] - 2 * len([y for y in el if y[1] == x[1]]) <= gi
                if urgent or (isds and not ds and cap >= 4) or (not isds and cap >= 4):
                    P.emit(x[2]); rq2.remove(x); cap -= 4
                    if isds:
                        ds = True
                    if not urgent:
                        break
                else:
                    break
            if di < len(dq) and dq[di][0] <= gi and (cap == 8 or dq[di][0] <= gi - 3):
                self.emit_dma(dq[di][1]); di += 1; cap = 0
                if di < len(dq) and o.get('hoist', 1):
                    self.emit_setup(dq[di][1])
            progress = True
            while progress:
                progress = False
                for t_ in tasks:
                    st_, en_, lst, idx = t_
                    if gi < st_ or idx >= len(lst):
                        continue
                    force = gi >= en_
                    target = len(lst) if force else len(lst) * (gi - st_ + 1) / (en_ - st_ + 1)
                    x = lst[idx]
                    c = icost(x); k = kind(x)
                    behind = idx < target - SLACK
                    if not force and idx >= target + LEAD:
                        continue
                    if k in ('ldsr', 'ldsw'):
                        fit = (not ds) and cap >= c
                    elif c >= 100:
                        fit = cap == 8 and idx < target
                    else:
                        fit = cap >= c
                    if fit or force or (behind and cap > 0):
                        P.emit(x); cap -= c; t_[3] = idx + 1
                        if k in ('ldsr', 'ldsw'):
                            ds = True
                        progress = True
            if gi in actions:
                actions[gi]()
        assert ri == len(rq) and di == len(dq) and not rq2, (ri, len(rq), di, len(dq), len(rq2))
        for t_ in tasks:
            assert t_[3] == len(t_[2])
        while PROF >= 2 and len(stamps) < 12:
            stamp()
        stamp()
        if not o.get('notask', 0):
            P.emit(self.task_keep(self.ACC0, 3))
        if PROF:
            P.wait_vm(0)
            stamp()
            P.raw("  s_memrealtime s[100:101]")
            P.raw("  s_waitcnt lgkmcnt(0)")
            e('s_add_u32', 's4', 's14', str(64 << 20)); e('s_addc_u32', 's5', 's15', '0')
            srd(P, 8, 's4', 's5', 1 << 20)
            e('s_lshl_b32', 's6', 's2', '2'); e('s_add_u32', 's6', 's6', sr(self.S_W)); e('s_lshl_b32', 's6', 's6', '7')
            e('v_mov_b32', 'v4', '0')
            allst = [46] + stamps + [100, 98]
            for k, r in enumerate(allst):
                e('v_mov_b32', 'v5', sr(r))
                e('buffer_store_dword', 'v5', 'v4', 's[8:11]', 's6', mods=f'offen offset:{4 * k}')
        tl_end(P, self.o, 1)
        hx_slot(P, self.o, 2, 'max', False)
        P.label("K1_end")
        P.raw("  s_endpgm")


def gen_k1(opts):
    k = K1(opts)
    name = "k1_main_kernel"
    kernel_begin(k.P, name)
    k.emit_all()
    print("K1 stats", k.P.stats, file=sys.stderr)
    return k.P.text(), descriptor(name, 512, 256, 102), (name, 256, 256, LDS_TOTAL)


def main():
    out = sys.argv[1]
    opts = {}
    for a in sys.argv[2:]:
        kk, v = a.split('='); opts[kk] = int(v)
    parts = [gen_k0(opts), gen_k1(opts), gen_k2(opts)]
    txt = header_comments([p[2] for p in parts])
    for p in parts:
        txt += p[0]
    txt += '.section .rodata,"a"\n'
    for p in parts:
        txt += p[1]
    open(out, 'w').write(txt)


if __name__ == "__main__":
    main()
```

```python
import sys, math
from asmlib import *

KN = "parallel_sum__sliding_local_dilated__swiglu_ffn__prompt"

XF_OFF = 0
XF_SIZE = 128 * 18 * 1024
PQ_OFF = 5 << 19
PQ_SIZE = 16 * 147456
P_OFF = 6 << 20
P_TILE = 144 * 1024
FP_OFF = 0
HP_OFF = 8 * 16 * 131072
MB_OFF = HP_OFF + 256 * 16384
FL_OFF = MB_OFF + 256 * 65536
P_SIZE = FL_OFF + 256 * 128

SLOT = 24576
RING = 0
HB = 3 * SLOT
SB = HB + 16384
SPITCH = 272
XB = HB + 4 * 16384
XPITCH = 144
LDS_TOTAL = XB + 128 * XPITCH

LOG2E = 1.4426950408889634


def f2h(x):
    import struct
    return "0x%08x" % struct.unpack('<I', struct.pack('<f', x))[0]


def header_comments(launches):
    L = []
    L.append(";   0 A_x, 8 A_wqkv, 16 A_wo, 24 B_x, 32 B_w_gate, 40 B_w_up, 48 B_w_down, 56 d_out, 64 d_debug, 72 d_ws")
    L.append("; Generated by a hand-written python generator (work/gen.py).")
    for (k, g, b, lds) in launches:
        L.append(f"; @launch kernel={k} grid=({g},1,1) block=({b},1,1) lds={lds}")
    L.append('.amdgcn_target "amdgcn-amd-amdhsa--gfx950"')
    L.append(".text")
    return "\n".join(L) + "\n"


def kernel_begin(P, name):
    P.raw(f".globl {name}")
    P.raw(".p2align 8")
    P.raw(f".type {name},@function")
    P.raw(f"{name}:")


def descriptor(name, vgpr, accum, sgpr=102):
    return "\n".join([
        ".p2align 6", f".amdhsa_kernel {name}",
        f"  .amdhsa_next_free_vgpr {vgpr}", f"  .amdhsa_next_free_sgpr {sgpr}", f"  .amdhsa_accum_offset {accum}",
        "  .amdhsa_group_segment_fixed_size 0", "  .amdhsa_kernarg_size 80", "  .amdhsa_user_sgpr_count 2",
        "  .amdhsa_user_sgpr_kernarg_segment_ptr 1", "  .amdhsa_system_sgpr_workgroup_id_x 1", ".end_amdhsa_kernel"]) + "\n"


def tl_start(P, opts):
    if opts.get('tl', 0):
        P.raw("  s_memrealtime s[96:97]")


def tl_end(P, opts, kidx, wsreg_lo=None):
    if not opts.get('tl', 0):
        return
    P.raw("  s_waitcnt vmcnt(0)")
    P.raw("  s_memrealtime s[98:99]")
    P.raw("  s_load_dwordx2 s[94:95], s[0:1], 72")
    P.raw("  s_waitcnt lgkmcnt(0)")
    P.raw(f"  s_add_u32 s94, s94, {(80 << 20) + kidx * 65536}")
    P.raw("  s_addc_u32 s95, s95, 0")
    P.raw("  s_mov_b32 s88, s94")
    P.raw("  s_and_b32 s89, s95, 0xffff")
    P.raw("  s_mov_b32 s90, 65536")
    P.raw("  s_mov_b32 s91, 0x20000")
    P.raw("  s_lshl_b32 s92, s2, 3")
    P.raw("  v_mov_b32 v2, s96")
    P.raw("  v_mov_b32 v3, s98")
    P.raw("  v_mov_b32 v4, 0")
    P.raw("  v_cmp_eq_u32 vcc, 0, v0")
    P.raw("  s_and_saveexec_b64 s[86:87], vcc")
    P.raw("  buffer_store_dwordx2 v[2:3], v4, s[88:91], s92 offen")
    P.raw("  s_mov_b64 exec, s[86:87]")


def hx_slot(P, opts, slot, op, only_wg0, final=False):
    if not opts.get('hx', 0):
        return
    lab = f"HX_{slot}_{op}_{len(P.lines)}"
    P.raw("  s_waitcnt vmcnt(0) lgkmcnt(0)")
    P.raw("  s_memrealtime s[86:87]")
    P.raw("  s_load_dwordx2 s[84:85], s[0:1], 72")
    P.raw("  s_waitcnt lgkmcnt(0)")
    P.raw(f"  s_add_u32 s84, s84, {96 << 20}")
    P.raw("  s_addc_u32 s85, s85, 0")
    P.raw("  s_mov_b32 s80, s84"); P.raw("  s_and_b32 s81, s85, 0xffff"); P.raw("  s_mov_b32 s82, 4096"); P.raw("  s_mov_b32 s83, 0x20000")
    if only_wg0:
        P.raw("  s_cmp_lg_u32 s2, 0"); P.raw(f"  s_cbranch_scc1 {lab}")
    P.raw("  v_mov_b32 v250, s86"); P.raw(f"  v_mov_b32 v251, {slot * 4}")
    P.raw("  v_cmp_eq_u32 vcc, 0, v0"); P.raw("  s_and_saveexec_b64 s[78:79], vcc")
    if op == 'st':
        P.raw("  buffer_store_dword v250, v251, s[80:83], 0 offen sc1")
    else:
        P.raw("  buffer_atomic_umax v250, v251, s[80:83], 0 offen")
    P.raw("  s_waitcnt vmcnt(0)")
    P.raw("  s_mov_b64 exec, s[78:79]")
    P.raw(f"{lab}:")


def srd(P, d, lo, hi, size):
    P.e('s_mov_b32', sr(d), lo)
    P.e('s_and_b32', sr(d + 1), hi, '0xffff')
    P.e('s_mov_b32', sr(d + 2), str(size))
    P.e('s_mov_b32', sr(d + 3), '0x20000')


def gen_k0(opts):
    P = Prog()
    name = "k0_ln_kernel"
    kernel_begin(P, name)
    NPK = 288
    NCP = 8 if opts.get('codepf', 1) else 0
    NTW = 96 if opts.get('k0touch', 0) else 0
    P.e('s_cmp_ge_u32', 's2', str(128 + NPK + NCP + NTW))
    P.raw("  s_cbranch_scc1 K0_end")
    tl_start(P, opts)
    hx_slot(P, opts, 0, 'st', True)
    if opts.get('hx', 0):
        P.raw("  s_cmp_lg_u32 s2, 0"); P.raw("  s_cbranch_scc1 HX_z")
        P.raw("  v_mov_b32 v250, 0"); P.raw("  v_mov_b32 v251, 8"); P.raw("  buffer_store_dword v250, v251, s[80:83], 0 offen sc1")
        P.raw("  v_mov_b32 v251, 16"); P.raw("  buffer_store_dword v250, v251, s[80:83], 0 offen sc1"); P.raw("  v_mov_b32 v251, 20"); P.raw("  buffer_store_dword v250, v251, s[80:83], 0 offen sc1")
        P.raw("HX_z:")
    if NTW:
        P.e('s_cmp_ge_u32', 's2', str(128 + NPK + NCP))
        P.raw("  s_cbranch_scc1 K0_touch")
    if NCP:
        P.e('s_cmp_ge_u32', 's2', str(128 + NPK))
        P.raw("  s_cbranch_scc1 K0_code")
    P.e('s_cmp_ge_u32', 's2', '128')
    P.raw("  s_cbranch_scc1 K0_pack")
    P.e('s_load_dwordx2', 's[4:5]', 's[0:1]', '0')
    P.e('s_load_dwordx2', 's[6:7]', 's[0:1]', '72')
    P.e('v_and_b32', 'v1', '63', 'v0')
    P.e('v_lshrrev_b32', 'v2', '6', 'v0')
    P.e('v_and_b32', 'v3', '15', 'v1')
    P.e('v_lshrrev_b32', 'v4', '4', 'v1')
    P.e('v_readfirstlane_b32', 's20', 'v2')
    P.raw("  s_waitcnt lgkmcnt(0)")
    srd(P, 8, 's4', 's5', 2048 * 1152)
    srd(P, 12, 's6', 's7', XF_OFF + XF_SIZE)
    P.e('s_lshl_b32', 's21', 's2', '4')
    P.e('v_add_u32', 'v5', 's21', 'v3')
    P.e('s_movk_i32', 's22', '1152')
    P.e('v_mul_lo_u32', 'v5', 'v5', 's22')
    P.e('v_lshlrev_b32', 'v6', '4', 'v4')
    P.e('v_add_u32', 'v5', 'v5', 'v6')
    P.e('s_mul_i32', 's23', 's20', '576')
    X = 16
    for t in range(9):
        P.e('buffer_load_dwordx4', vr(X + 4 * t, 4), 'v5', 's[8:11]', 's23', mods=f'offen offset:{64 * t}')
    P.e('s_add_u32', 's28', 's6', str(P_OFF + FL_OFF)); P.e('s_addc_u32', 's29', 's7', '0')
    srd(P, 32, 's28', 's29', 256 * 128)
    P.e('v_mov_b32', 'v60', '0'); P.e('v_mov_b32', 'v61', '0'); P.e('v_mov_b32', 'v62', '0'); P.e('v_mov_b32', 'v63', '0')
    P.e('v_lshlrev_b32', 'v59', '4', 'v0')
    P.e('s_lshl_b32', 's30', 's2', '8')
    P.e('v_cmp_gt_u32', 'vcc', '16', 'v0')
    P.e('s_and_saveexec_b64', 's[36:37]', 'vcc')
    P.raw("  s_cbranch_execz K0_nz")
    P.raw("  buffer_store_dwordx4 v[60:63], v59, s[32:35], s30 offen")
    P.label("K0_nz")
    P.e('s_mov_b64', 'exec', 's[36:37]')
    P.e('v_mov_b32', 'v7', '0x3f803f80')
    P.e('v_mov_b32', 'v8', '0'); P.e('v_mov_b32', 'v9', '0'); P.e('v_mov_b32', 'v10', '0'); P.e('v_mov_b32', 'v11', '0')
    for j in range(36):
        P.e('v_dot2c_f32_bf16', 'v8' if j % 2 == 0 else 'v10', vr(X + j), 'v7')
        P.e('v_dot2c_f32_bf16', 'v9' if j % 2 == 0 else 'v11', vr(X + j), vr(X + j))
    P.e('v_add_f32', 'v8', 'v8', 'v10')
    P.e('v_add_f32', 'v9', 'v9', 'v11')
    for sw in ('v_permlane32_swap_b32', 'v_permlane16_swap_b32'):
        P.e('v_mov_b32', 'v10', 'v8'); P.e('v_mov_b32', 'v11', 'v9')
        P.e('v_mov_b32', 'v12', 'v8'); P.e('v_mov_b32', 'v13', 'v9')
        P.e(sw, 'v10', 'v12'); P.e(sw, 'v11', 'v13')
        P.e('v_add_f32', 'v8', 'v10', 'v12'); P.e('v_add_f32', 'v9', 'v11', 'v13')
    P.e('v_lshlrev_b32', 'v10', '3', 'v0')
    P.e('ds_write_b64', 'v10', 'v[8:9]')
    P.e('v_xor_b32', 'v11', '512', 'v10')
    P.wait_lgkm(0)
    P.barrier()
    P.e('ds_read_b64', 'v[12:13]', 'v11')
    P.e('v_add_f32', 'v8', 'v8', 'v12')
    P.e('v_add_f32', 'v9', 'v9', 'v13')
    P.e('v_mul_f32', 'v8', f2h(1.0 / 576), 'v8')
    P.e('v_mul_f32', 'v9', f2h(1.0 / 576), 'v9')
    P.e('v_fma_f32', 'v9', '-v8', 'v8', 'v9')
    P.e('v_max_f32', 'v9', '0', 'v9')
    P.e('v_add_f32', 'v9', f2h(1e-5), 'v9')
    P.e('v_rsq_f32', 'v9', 'v9')
    P.e('v_mul_f32', 'v8', 'v8', 'v9')
    P.e('v_sub_f32', 'v8', '0', 'v8')
    P.e('s_mov_b32', 's24', '0xffff0000')
    for j in range(36):
        a, b = 10 + 2 * (j % 2), 11 + 2 * (j % 2)
        P.e('v_lshlrev_b32', vr(a), '16', vr(X + j))
        P.e('v_and_b32', vr(b), 's24', vr(X + j))
        P.e('v_fma_f32', vr(a), vr(a), 'v9', 'v8')
        P.e('v_fma_f32', vr(b), vr(b), 'v9', 'v8')
        P.e('v_cvt_pk_bf16_f32', vr(X + j), vr(a), vr(b))
    P.e('v_lshlrev_b32', 'v6', '4', 'v1')
    P.e('s_mul_i32', 's25', 's2', str(18 * 1024))
    P.e('s_mul_i32', 's26', 's20', str(9 * 1024))
    P.e('s_add_u32', 's25', 's25', 's26')
    for t in range(9):
        if t % 4 == 0 and t:
            P.e('s_add_u32', 's25', 's25', '4096')
        P.e('buffer_store_dwordx4', vr(X + 4 * t, 4), 'v6', 's[12:15]', 's25', mods=f'offen offset:{1024 * (t % 4)}')
    tl_end(P, opts, 0)
    hx_slot(P, opts, 5, 'max', False)
    P.raw("  s_endpgm")
    P.label("K0_pack")
    P.vm_q = []; P.lds_q = []
    e = P.e
    e('s_load_dwordx2', 's[4:5]', 's[0:1]', '8')
    e('s_load_dwordx2', 's[6:7]', 's[0:1]', '72')
    e('v_and_b32', 'v1', '63', 'v0'); e('v_lshrrev_b32', 'v2', '6', 'v0')
    e('v_readfirstlane_b32', 's20', 'v2')
    e('s_sub_u32', 's21', 's2', '128'); e('s_lshl_b32', 's21', 's21', '1'); e('s_add_u32', 's21', 's21', 's20')
    P.raw("  s_waitcnt lgkmcnt(0)")
    srd(P, 12, 's4', 's5', 576 * 3456)
    e('s_add_u32', 's6', 's6', str(PQ_OFF)); e('s_addc_u32', 's7', 's7', '0')
    srd(P, 16, 's6', 's7', PQ_SIZE)
    e('v_and_b32', 'v3', '15', 'v1')
    e('v_lshrrev_b32', 'v4', '4', 'v1')
    e('v_lshlrev_b32', 'v9', '4', 'v1')
    for k in range(4):
        e('s_lshl_b32', 's22', 's21', '2'); e('s_add_u32', 's22', 's22', str(k))
        e('s_mul_hi_u32', 's23', 's22', str((2 ** 32 + 143) // 144))
        e('s_mul_i32', 's24', 's23', '144'); e('s_sub_u32', 's24', 's22', 's24')
        e('s_mul_hi_u32', 's25', 's24', str((2 ** 32 + 5) // 6))
        e('s_mul_i32', 's26', 's25', '6'); e('s_sub_u32', 's26', 's24', 's26')
        e('s_lshr_b32', 's27', 's25', '2')
        e('s_and_b32', 's28', 's25', '3')
        e('s_mul_i32', 's29', 's27', '96'); e('s_lshl_b32', 's30', 's26', '4'); e('s_add_u32', 's29', 's29', 's30')
        e('s_lshl_b32', 's30', 's28', '2'); e('s_add_u32', 's29', 's29', 's30')
        e('v_add_u32', 'v5', 's29', 'v4')
        e('s_lshr_b32', 's30', 's28', '1'); e('s_lshl_b32', 's30', 's30', '2')
        e('v_or_b32', 'v6', 's30', 'v4'); e('v_lshrrev_b32', 'v7', '1', 'v3'); e('v_xor_b32', 'v6', 'v6', 'v7')
        e('v_lshlrev_b32', 'v6', '1', 'v6'); e('v_and_b32', 'v7', '1', 'v3'); e('v_or_b32', 'v6', 'v6', 'v7')
        e('v_mul_u32_u24', 'v7', '13', 'v6'); e('v_lshrrev_b32', 'v7', '6', 'v7'); e('v_min_u32', 'v7', '2', 'v7')
        e('v_mul_u32_u24', 'v8', '5', 'v7'); e('v_sub_u32', 'v8', 'v6', 'v8'); e('v_lshlrev_b32', 'v8', '4', 'v8')
        e('v_add_u32', 'v7', '1', 'v7'); e('v_cmp_eq_u32', 'vcc', '3', 'v7'); e('v_mov_b32', 'v10', '0')
        e('v_cndmask_b32', 'v7', 'v7', 'v10', 'vcc')
        e('v_mul_u32_u24', 'v7', '1152', 'v7'); e('v_add_u32', 'v8', 'v8', 'v7')
        e('s_mul_i32', 's30', 's23', '72'); e('v_add_u32', 'v8', 's30', 'v8')
        e('v_mul_u32_u24', 'v5', '3456', 'v5'); e('v_add_u32', 'v5', 'v5', 'v8')
        e('buffer_load_dwordx4', vr(16 + 4 * k, 4), 'v5', 's[12:15]', '0', mods='offen')
    e('s_lshl_b32', 's22', 's21', '12')
    for k in range(4):
        e('buffer_store_dwordx4', vr(16 + 4 * k, 4), 'v9', 's[16:19]', 's22', mods=f'offen offset:{1024 * k}')
    if NCP:
        P.raw("  s_endpgm")
        P.label("K0_code")
        P.raw("  s_getpc_b64 s[4:5]")
        P.raw("K0_pc:")
        P.raw("  s_add_u32 s4, s4, k1_main_kernel-K0_pc")
        P.raw("  s_addc_u32 s5, s5, 0")
        P.raw("  s_mov_b32 s8, s4")
        P.raw("  s_and_b32 s9, s5, 0xffff")
        P.raw("  s_mov_b32 s10, K2_end-k1_main_kernel")
        P.raw("  s_mov_b32 s11, 0x20000")
        P.raw("  v_lshlrev_b32 v1, 4, v0")
        P.raw("  s_mov_b32 s12, 0")
        P.raw("K0_cl:")
        P.raw("  buffer_load_dwordx4 v[4:7], v1, s[8:11], s12 offen")
        P.raw("  s_add_u32 s12, s12, 2048")
        P.raw("  s_cmp_lt_u32 s12, s10")
        P.raw("  s_cbranch_scc1 K0_cl")
    if NTW:
        P.raw("  s_endpgm")
        P.label("K0_touch")
        P.vm_q = []; P.lds_q = []
        e('s_load_dwordx2', 's[4:5]', 's[0:1]', '48')
        e('s_load_dwordx2', 's[6:7]', 's[0:1]', '16')
        e('s_sub_u32', 's21', 's2', str(128 + NPK + NCP))
        e('v_lshlrev_b32', 'v1', '7', 'v0')
        P.raw("  s_waitcnt lgkmcnt(0)")
        e('s_cmp_ge_u32', 's21', '81')
        e('s_cselect_b32', 's8', 's6', 's4'); e('s_cselect_b32', 's9', 's7', 's5')
        e('s_mov_b32', 's12', str(576 * 1152)); e('s_mov_b32', 's13', str(4608 * 1152))
        e('s_cselect_b32', 's10', 's12', 's13')
        e('s_cselect_b32', 's22', '81', '0')
        e('s_and_b32', 's9', 's9', '0xffff'); e('s_mov_b32', 's11', '0x20000')
        e('s_sub_u32', 's21', 's21', 's22'); e('s_lshl_b32', 's21', 's21', '16')
        for k in range(4):
            e('buffer_load_dword', 'v4', 'v1', 's[8:11]', 's21', mods='offen')
            e('s_add_u32', 's21', 's21', '16384')
    P.label("K0_end")
    P.raw("  s_endpgm")
    return P.text(), descriptor(name, 256 if opts.get('hx', 0) else 64, 256 if opts.get('hx', 0) else 64, 102), (name, 128 + NPK + NCP + NTW, 128, 1024)


def gen_k2(opts):
    P = Prog()
    name = "k2_reduce_kernel"
    kernel_begin(P, name)
    K2W = opts.get('k2w', 4)
    NWG = 2304 // K2W
    P.e('s_cmp_ge_u32', 's2', str(NWG))
    P.raw("  s_cbranch_scc1 K2_end")
    tl_start(P, opts)
    hx_slot(P, opts, 3, 'st', True)
    P.e('s_load_dwordx2', 's[4:5]', 's[0:1]', '0')
    P.e('s_load_dwordx2', 's[6:7]', 's[0:1]', '72')
    P.e('s_load_dwordx2', 's[16:17]', 's[0:1]', '56')
    P.e('v_and_b32', 'v1', '63', 'v0')
    P.e('v_lshrrev_b32', 'v2', '6', 'v0')
    P.e('v_and_b32', 'v3', '15', 'v1')
    P.e('v_lshrrev_b32', 'v4', '4', 'v1')
    P.e('v_readfirstlane_b32', 's20', 'v2')
    P.e('v_lshlrev_b32', 'v5', '4', 'v1')
    P.raw("  s_waitcnt lgkmcnt(0)")
    srd(P, 8, 's4', 's5', 2048 * 1152)
    P.e('s_add_u32', 's6', 's6', str(P_OFF)); P.e('s_addc_u32', 's7', 's7', '0')
    srd(P, 12, 's6', 's7', P_SIZE)
    srd(P, 24, 's16', 's17', 2048 * 1152)
    P.e('s_mul_i32', 's21', 's2', str(K2W)); P.e('s_add_u32', 's21', 's21', 's20')
    P.e('s_mul_hi_u32', 's22', 's21', str((2 ** 32 + 143) // 144))
    P.e('s_mul_i32', 's23', 's22', '144'); P.e('s_sub_u32', 's23', 's21', 's23')
    D = 16
    lf = ['', ' nt', ' sc1'][opts.get('ldflag', 0)]
    P.e('s_cmp_ge_u32', 's23', '128')
    P.raw("  s_cbranch_scc1 K2_half")
    for half in (0, 1):
        if half:
            P.label("K2_half")
            P.vm_q = []; P.lds_q = []
        n = 16 if half else 8
        if not half:
            P.e('s_lshl_b32', 's28', 's22', '17'); P.e('s_lshl_b32', 's29', 's23', '10'); P.e('s_add_u32', 's28', 's28', 's29')
            stride = 16 * 131072
        else:
            P.e('s_lshl_b32', 's28', 's22', '14'); P.e('s_sub_u32', 's23', 's23', '128'); P.e('s_lshl_b32', 's29', 's23', '10')
            P.e('s_add_u32', 's28', 's28', 's29'); P.e('s_add_u32', 's28', 's28', str(HP_OFF))
            stride = 16 * 16384
        for s in range(n):
            P.e('buffer_load_dwordx4', vr(D + 4 * s, 4), 'v5', 's[12:15]', 's28', mods='offen' + lf)
            if s < n - 1:
                P.e('s_add_u32', 's28', 's28', str(stride))
        P.e('s_and_b32', 's29', 's23', '3')
        if not half:
            P.e('s_lshr_b32', 's31', 's23', '3'); P.e('s_and_b32', 's31', 's31', '3')
            P.e('s_lshr_b32', 's34', 's31', '1')
            P.e('s_lshr_b32', 's35', 's23', '5'); P.e('s_lshl_b32', 's35', 's35', '7')
            P.e('s_lshl_b32', 's36', 's34', '6'); P.e('s_add_u32', 's35', 's35', 's36')
            P.e('s_lshr_b32', 's36', 's23', '2'); P.e('s_and_b32', 's36', 's36', '1'); P.e('s_lshl_b32', 's36', 's36', '5')
            P.e('s_add_u32', 's35', 's35', 's36')
        else:
            P.e('s_lshr_b32', 's31', 's23', '2')
            P.e('s_lshr_b32', 's34', 's31', '1')
            P.e('s_lshl_b32', 's35', 's34', '5'); P.e('s_add_u32', 's35', 's35', '512')
        P.e('s_and_b32', 's33', 's31', '1')
        P.e('s_lshl_b32', 's37', 's22', '7'); P.e('s_lshl_b32', 's38', 's33', '6'); P.e('s_add_u32', 's37', 's37', 's38')
        P.e('s_lshl_b32', 's38', 's29', '4'); P.e('s_add_u32', 's37', 's37', 's38')
        P.e('v_add_u32', 'v6', 's37', 'v3')
        P.e('v_mul_u32_u24', 'v6', '1152', 'v6')
        P.e('s_lshl_b32', 's40', 's35', '1')
        P.e('v_add_u32', 'v6', 's40', 'v6')
        P.e('v_lshlrev_b32', 'v7', '3', 'v4')
        P.e('v_add_u32', 'v7', 'v6', 'v7')
        P.e('buffer_load_dwordx2', 'v[8:9]', 'v7', 's[8:11]', '0', mods='offen')
        P.e('buffer_load_dwordx2', 'v[10:11]', 'v7', 's[8:11]', '0', mods='offen offset:32')
        P.e('v_and_b32', 'v12', '1', 'v4'); P.e('v_lshlrev_b32', 'v12', '5', 'v12')
        P.e('v_lshrrev_b32', 'v13', '1', 'v4'); P.e('v_lshlrev_b32', 'v13', '4', 'v13')
        P.e('v_add3_u32', 'v6', 'v6', 'v12', 'v13')
        P.e('s_mov_b32', 's41', '0xffff0000')
        ACC = 80
        srcs = [D + 4 * s for s in range(n)] + [8]
        for si, base in enumerate(srcs):
            for j in range(4):
                d = vr(base + j)
                if si == 0:
                    P.e('v_lshlrev_b32', vr(ACC + 2 * j), '16', d)
                    P.e('v_and_b32', vr(ACC + 2 * j + 1), 's41', d)
                else:
                    t0, t1 = 88 + 2 * (j % 2), 89 + 2 * (j % 2)
                    P.e('v_lshlrev_b32', vr(t0), '16', d)
                    P.e('v_and_b32', vr(t1), 's41', d)
                    P.e('v_add_f32', vr(ACC + 2 * j), vr(ACC + 2 * j), vr(t0))
                    P.e('v_add_f32', vr(ACC + 2 * j + 1), vr(ACC + 2 * j + 1), vr(t1))
        for j in range(4):
            P.e('v_cvt_pk_bf16_f32', vr(92 + j), vr(ACC + 2 * j), vr(ACC + 2 * j + 1))
        P.e('v_permlane16_swap_b32', 'v92', 'v94')
        P.e('v_permlane16_swap_b32', 'v93', 'v95')
        P.e('buffer_store_dwordx4', 'v[92:95]', 'v6', 's[24:27]', '0', mods='offen')
        tl_end(P, opts, 2)
        if opts.get('hx', 0):
            P.raw("  s_waitcnt vmcnt(0) lgkmcnt(0)")
            P.raw("  s_memrealtime s[86:87]")
            P.raw("  s_load_dwordx2 s[84:85], s[0:1], 64")
            P.raw("  s_load_dwordx2 s[76:77], s[0:1], 72")
            P.raw("  s_waitcnt lgkmcnt(0)")
            pass
            P.raw("  s_mov_b32 s80, s84"); P.raw("  s_and_b32 s81, s85, 0xffff"); P.raw("  s_mov_b32 s82, 256"); P.raw("  s_mov_b32 s83, 0x20000")
            P.raw("  v_mov_b32 v90, s86"); P.raw("  v_mov_b32 v91, 0")
            P.raw("  v_cmp_eq_u32 vcc, 0, v1"); P.raw("  s_and_saveexec_b64 s[78:79], vcc")
            P.raw("  buffer_atomic_umax v90, v91, s[80:83], 0 offen")
            P.raw("  s_mov_b64 exec, s[78:79]")
            P.raw(f"  s_add_u32 s76, s76, {96 << 20}"); P.raw("  s_addc_u32 s77, s77, 0")
            P.raw("  s_mov_b32 s72, s76"); P.raw("  s_and_b32 s73, s77, 0xffff"); P.raw("  s_mov_b32 s74, 4096"); P.raw("  s_mov_b32 s75, 0x20000")
            P.raw("  v_lshlrev_b32 v91, 2, v1")
            P.raw("  v_cmp_gt_u32 vcc, 6, v1"); P.raw("  s_and_saveexec_b64 s[78:79], vcc")
            P.raw("  buffer_load_dword v90, v91, s[72:75], 0 offen sc1"); P.raw("  s_waitcnt vmcnt(0)")
            P.raw("  buffer_store_dword v90, v91, s[80:83], 0 offen offset:4")
            P.raw("  s_waitcnt vmcnt(0)")
            P.raw("  s_mov_b64 exec, s[78:79]")
        if not half:
            P.raw("  s_endpgm")
    P.label("K2_end")
    P.raw("  s_endpgm")
    return P.text(), descriptor(name, 256 if opts.get('hx', 0) else 96, 256 if opts.get('hx', 0) else 96, 102), (name, NWG, 64 * K2W, 0)


class K1:
    V_LANE, V_C16, V_G, V_T0, V_T1, V_T2, V_T3, V_T4 = 1, 2, 3, 4, 5, 6, 7, 8
    ACC0, ACC1 = 16, 80
    FR = 144
    NFR = 6
    XV = 168
    TQ = 200
    TG = 204
    TH = 208
    TP = 210
    TPH = 214
    DQ = 216
    DG = 219
    DH = 222
    DP = 225
    DPH = 228
    HW = 231
    HWX = 233
    HR = 234
    XR = 236
    SW = 237
    AB = 241
    OW = 242
    PV = 243
    MG = 244
    XA = 245
    TD = 168
    HAL = 248
    HALX = 8

    S_W, S_S, S_I = 20, 21, 22
    S_RG2, S_CH = 23, 24
    S_LDSW = 25
    S_XF = 26
    S_FB = 88
    S_YC = 28
    S_FPB, S_MBO, S_MBP, S_HPB, S_FSH, S_FOFF = 17, 18, 19, 44, 26, 27
    SRD_DBG = 48
    S_TCH = 33
    INC = [176, 180, 184, 188, 192, 196, 248, 252]
    INC2 = [200, 204, 216, 220, 232, 236, 8, 12]
    V_POLL = 4
    S_T0, S_T1, S_T2, S_T3 = 34, 35, 36, 37
    S_SOFF = 38
    S_NLOG2E = 39
    S_AC = 40
    S_PERM0, S_PERM1 = 41, 42
    S_NEG = 43
    S_QC = 44
    S_PO = 45
    S_PO2 = 40
    SRD_XF, SRD_QKV, SRD_GU, SRD_WD, SRD_WO, SRD_P = 48, 52, 56, 60, 64, 68
    S_FB2 = 4
    S_FBR = 9
    S_WOR = 16
    S_XL, S_XH, S_SOFF2 = 17, 18, 19

    def __init__(self, opts):
        self.P = Prog()
        self.o = opts

    def xreg(self, t, mb):
        j = 4 * t + mb
        return ar(4 * j, 4) if j < 64 else vr(self.XV + 4 * (j - 64), 4)

    def hreg(self, k, mb):
        return ar(16 * k + 4 * mb, 4)

    def halo_x(self, t):
        return vr(self.ACC1 + 4 * t, 4) if t < 16 else vr(self.HALX + 4 * (t - 16), 4)

    def prologue(self):
        P = self.P
        e = P.e
        e('s_cmp_ge_u32', 's2', '256')
        P.raw("  s_cbranch_scc1 K1_end")
        tl_start(P, self.o)
        hx_slot(P, self.o, 1, 'st', True)
        if self.o.get('prof', 0):
            P.raw("  s_memtime s[46:47]")
            P.raw("  s_memrealtime s[98:99]")
        e('s_load_dwordx2', 's[14:15]', 's[0:1]', '72')
        e('s_load_dwordx2', 's[6:7]', 's[0:1]', '16')
        e('s_load_dwordx4', 's[8:11]', 's[0:1]', '32')
        e('s_load_dwordx2', 's[12:13]', 's[0:1]', '48')
        L, C16, G = vr(self.V_LANE), vr(self.V_C16), vr(self.V_G)
        e('v_and_b32', L, '63', 'v0')
        e('v_lshrrev_b32', 'v4', '6', 'v0')
        e('v_and_b32', C16, '15', L)
        e('v_lshrrev_b32', G, '4', L)
        e('v_readfirstlane_b32', sr(self.S_W), 'v4')
        e('v_lshlrev_b32', vr(self.PV), '4', L)
        e('s_and_b32', sr(self.S_S), 's2', '3'); e('s_lshl_b32', sr(self.S_S), sr(self.S_S), '2')
        e('s_bfe_u32', sr(self.S_T0), 's2', '0x20003'); e('s_add_u32', sr(self.S_S), sr(self.S_S), sr(self.S_T0))
        e('s_bfe_u32', sr(self.S_I), 's2', '0x10002'); e('s_lshl_b32', sr(self.S_I), sr(self.S_I), '3')
        e('s_lshr_b32', sr(self.S_T0), 's2', '5'); e('s_add_u32', sr(self.S_I), sr(self.S_I), sr(self.S_T0))
        e('s_and_b32', sr(self.S_RG2), sr(self.S_W), '1'); e('s_lshr_b32', sr(self.S_CH), sr(self.S_W), '1')
        e('s_mul_i32', sr(self.S_LDSW), sr(self.S_W), '6144')
        e('s_lshl_b32', sr(self.S_T0), sr(self.S_I), '3'); e('s_lshl_b32', sr(self.S_T1), sr(self.S_W), '1')
        e('s_add_u32', sr(self.S_T0), sr(self.S_T0), sr(self.S_T1))
        e('s_mul_i32', sr(self.S_XF), sr(self.S_T0), '18432')
        e('s_lshr_b32', sr(self.S_T0), sr(self.S_W), '1'); e('s_mul_i32', sr(self.S_XL), sr(self.S_T0), '36864')
        e('s_and_b32', sr(self.S_T0), sr(self.S_W), '1'); e('s_mul_i32', sr(self.S_T0), sr(self.S_T0), '6144')
        e('s_add_u32', sr(self.S_XL), sr(self.S_XL), sr(self.S_T0))
        e('s_min_u32', sr(self.S_T1), sr(self.S_W), '2'); e('s_lshl_b32', sr(self.S_XH), sr(self.S_T1), '10')
        e('s_lshl_b32', sr(self.S_T0), sr(self.S_I), '3'); e('s_sub_u32', sr(self.S_T0), sr(self.S_T0), '1')
        e('s_mul_i32', sr(self.S_T0), sr(self.S_T0), '18432'); e('s_add_u32', sr(self.S_T0), sr(self.S_T0), sr(self.S_XH))
        e('s_cmp_eq_u32', sr(self.S_I), '0'); e('s_cselect_b32', sr(self.S_XF + 1), '0x7f000000', sr(self.S_T0))
        e('s_mul_i32', sr(self.S_T2), sr(self.S_S), '147456'); e('s_add_u32', sr(self.S_T2), sr(self.S_T2), str(PQ_OFF))
        P.raw("  s_waitcnt lgkmcnt(0)")
        e('s_add_u32', sr(self.S_T0), 's14', str(XF_OFF)); e('s_addc_u32', sr(self.S_T1), 's15', '0')
        srd(P, self.SRD_XF, sr(self.S_T0), sr(self.S_T1), XF_SIZE)
        e('s_add_u32', sr(self.S_T0), 's14', sr(self.S_T2)); e('s_addc_u32', sr(self.S_T1), 's15', '0')
        srd(P, self.SRD_QKV, sr(self.S_T0), sr(self.S_T1), 147456)

    def scalars_late(self, e, srd_):
        srd_(self.SRD_WO, 's6', 's7', 576 * 1152)
        e('s_cmp_ge_u32', sr(self.S_W), '2')
        e('s_cselect_b32', sr(self.S_T0), 's10', 's8'); e('s_cselect_b32', sr(self.S_T1), 's11', 's9')
        srd_(self.SRD_GU, sr(self.S_T0), sr(self.S_T1), 576 * 9216)
        srd_(self.SRD_WD, 's12', 's13', 4608 * 1152)
        e('s_add_u32', sr(self.S_T0), 's14', str(P_OFF)); e('s_addc_u32', sr(self.S_T1), 's15', '0')
        srd_(self.SRD_P, sr(self.S_T0), sr(self.S_T1), P_SIZE)
        e('s_mul_i32', sr(self.S_T0), sr(self.S_S), '288')
        e('s_and_b32', sr(self.S_T1), sr(self.S_S), '1')
        e('s_lshl_b32', sr(self.S_T2), sr(self.S_T1), '5'); e('s_add_u32', sr(self.S_T2), sr(self.S_T2), sr(self.S_T0))
        for j in range(4):
            e('s_add_u32', sr(self.S_T3), sr(self.S_I), str(j)); e('s_and_b32', sr(self.S_T3), sr(self.S_T3), '3')
            e('s_lshl_b32', sr(self.S_T3), sr(self.S_T3), '6'); e('s_add_u32', sr(self.S_FB + j), sr(self.S_T2), sr(self.S_T3))
        e('s_cmp_eq_u32', sr(self.S_T1), '1'); e('s_cselect_b32', sr(self.S_T3), '0', '256')
        e('s_add_u32', sr(self.S_FB + 4), sr(self.S_T0), sr(self.S_T3))
        for j in range(5):
            e('s_lshl_b32', sr(self.S_FB2 + j), sr(self.S_FB + j), '1')
            e('s_mul_i32', sr(self.S_FBR + j), sr(self.S_FB + j), '1152')
        e('s_mul_i32', sr(self.S_WOR), sr(self.S_S), str(36 * 1152))
        e('s_and_b32', sr(self.S_T0), sr(self.S_S), '1'); e('s_lshl_b32', sr(self.S_T0), sr(self.S_T0), '1')
        for k in range(4):
            e('s_add_u32', sr(self.S_T1), sr(self.S_T0), str(k)); e('s_and_b32', sr(self.S_T1), sr(self.S_T1), '3')
            e('s_lshl_b32', sr(self.S_YC + k), sr(self.S_T1), '8')
        e('s_mov_b32', sr(self.S_NLOG2E), f2h(-LOG2E))
        e('s_mov_b32', sr(self.S_AC), f2h(LOG2E / math.sqrt(18.0)))
        e('s_mov_b32', sr(self.S_PERM0), '0x05040100'); e('s_mov_b32', sr(self.S_PERM1), '0x07060302')
        e('s_mov_b32', sr(self.S_NEG), f2h(-1e30))

    TA, TB, TC, TDm = 'v4', 'v5', 'v6', 'v7'
    TR, TCC8, TG1, TG2 = 'v247', 'v244', 'v242', 'v241'

    def addr_first(self, e):
        L, C16, G = vr(self.V_LANE), vr(self.V_C16), vr(self.V_G)
        a, b, c = self.TA, self.TB, self.TC
        r, cc8, g1, g2 = self.TR, self.TCC8, self.TG1, self.TG2
        W, RG2 = sr(self.S_W), sr(self.S_RG2)
        T0, T1, T2, T3 = sr(self.S_T0), sr(self.S_T1), sr(self.S_T2), sr(self.S_T3)
        e('v_lshrrev_b32', r, '2', C16)
        e('v_and_b32', cc8, '3', C16); e('v_lshlrev_b32', cc8, '3', cc8)
        e('v_and_b32', g1, '1', G)
        e('v_lshrrev_b32', g2, '1', G)
        e('v_mul_u32_u24', a, '12288', g1)
        e('v_lshl_add_u32', a, g2, '10', a)
        e('v_lshl_add_u32', a, r, '8', a)
        e('v_add_u32', a, a, cc8)
        e('v_lshl_or_b32', b, g1, '2', r)
        e('s_mov_b32', T0, '0x10525210'); e('s_mov_b32', T1, '0x63747463')
        e('s_lshl_b32', T2, W, '4')
        e('s_lshr_b64', sr(self.S_T0, 2), sr(self.S_T0, 2), T2)
        e('s_mov_b32', sr(self.S_QC), T0)
        for u in range(4):
            e('s_bfe_u32', T2, T0, hex((4 << 16) | (4 * u)))
            e('v_xor_b32', c, T2, b); e('v_lshl_add_u32', vr(self.TQ + u), c, '5', a)
        e('s_mul_i32', T0, RG2, '36864'); e('s_add_u32', T0, T0, str(HB))
        e('v_add_u32', vr(self.XA), T0, vr(self.PV))
        e('v_add_u32', vr(self.XA + 1), str(HB + 73728), vr(self.PV))

    def addr_late(self, e):
        L, C16, G = vr(self.V_LANE), vr(self.V_C16), vr(self.V_G)
        a, b, c, d = self.TA, self.TB, self.TC, self.TDm
        r, cc8, g1, g2 = self.TR, self.TCC8, self.TG1, self.TG2
        W, CH, RG2 = sr(self.S_W), sr(self.S_CH), sr(self.S_RG2)
        T0, T1, T2, T3 = sr(self.S_T0), sr(self.S_T1), sr(self.S_T2), sr(self.S_T3)
        e('v_lshrrev_b32', b, '3', L)
        e('v_bfe_u32', a, b, '1', '1')
        e('s_and_b32', T0, W, '1'); e('s_lshl_b32', T1, T0, '1')
        e('v_or_b32', a, T1, a)
        e('v_bfe_u32', c, L, '1', '2')
        e('v_xor_b32', a, a, c); e('v_lshlrev_b32', a, '1', a)
        e('v_and_b32', c, '1', L); e('v_or_b32', a, a, c)
        e('s_lshl_b32', T1, T0, '3')
        e('v_add_u32', c, T1, b)
        e('v_mul_u32_u24', c, '9216', c)
        e('v_lshl_add_u32', vr(self.DG), a, '4', c)
        for j in (1, 2):
            e('v_add_u32', vr(self.DG + j), str(j * (16 * 9216 - 1024)), vr(self.DG))
        e('s_lshl_b32', T1, W, '3')
        e('v_add_u32', c, T1, b)
        e('v_mul_u32_u24', c, '1152', c)
        e('v_lshl_add_u32', vr(self.DPH), a, '4', c)
        for j in (1, 2):
            e('v_add_u32', vr(self.DPH + j), str(j * (32 * 1152 - 1024)), vr(self.DPH))
        e('v_lshrrev_b32', b, '2', L)
        e('v_lshrrev_b32', a, '3', b); e('v_lshlrev_b32', a, '1', a)
        e('v_and_b32', c, '3', L); e('v_xor_b32', a, a, c)
        e('s_lshl_b32', T1, T0, '4')
        e('v_add_u32', c, T1, b)
        e('v_mul_u32_u24', c, '9216', c)
        e('v_lshl_add_u32', vr(self.DH), a, '4', c)
        for j in (1, 2):
            e('v_add_u32', vr(self.DH + j), str(j * (32 * 9216 - 1024)), vr(self.DH))
        e('s_lshr_b32', T0, W, '1'); e('s_lshl_b32', T0, T0, '2')
        e('v_or_b32', a, T0, G)
        e('v_lshrrev_b32', b, '1', C16)
        e('v_xor_b32', a, a, b)
        e('v_lshlrev_b32', a, '1', a)
        e('v_and_b32', b, '1', C16)
        e('v_or_b32', a, a, b)
        e('s_lshl_b32', T1, W, '2')
        e('v_add_u32', b, T1, G)
        e('v_mul_u32_u24', c, '1152', b)
        e('v_lshl_add_u32', vr(self.DP), a, '4', c)
        for j in (1, 2):
            e('v_add_u32', vr(self.DP + j), str(j * (16 * 1152 - 1024)), vr(self.DP))
        e('v_mul_u32_u24', a, '6144', g1)
        e('v_lshl_add_u32', a, g2, '10', a)
        e('v_lshl_add_u32', a, r, '7', a)
        e('v_add_u32', a, a, cc8)
        e('v_lshrrev_b32', b, '1', r); e('v_lshl_or_b32', b, g1, '1', b)
        for bb in range(2):
            e('s_lshl_b32', T2, CH, '1'); e('s_add_u32', T2, T2, str(bb))
            e('v_xor_b32', c, T2, b); e('v_lshl_add_u32', vr(self.TG + bb), c, '5', a)
            e('v_add_u32', vr(self.TG + 2 + bb), '12288', vr(self.TG + bb))
        e('v_mul_u32_u24', a, '6144', G)
        e('v_lshl_add_u32', a, r, '7', a)
        e('v_add_u32', a, a, cc8)
        for bb in range(2):
            e('s_lshl_b32', T2, CH, '1'); e('s_add_u32', T2, T2, str(bb))
            e('v_xor_b32', c, T2, b); e('v_lshl_add_u32', vr(self.TPH + bb), c, '5', a)
        e('v_mul_u32_u24', a, '6144', g2)
        e('v_lshl_add_u32', c, g1, '3', r); e('v_lshl_add_u32', a, c, '6', a)
        e('v_add_u32', a, a, cc8)
        e('v_xor_b32', c, CH, g1); e('v_lshl_add_u32', vr(self.TH), c, '5', a)
        e('v_add_u32', vr(self.TH + 1), '12288', vr(self.TH))
        e('v_mul_u32_u24', a, '12288', g1)
        e('v_lshl_add_u32', a, g2, '10', a)
        e('v_lshl_add_u32', a, r, '8', a)
        e('v_add_u32', a, a, cc8)
        e('v_lshl_or_b32', b, g1, '2', r)
        for u in range(4):
            e('s_lshl_b32', T2, CH, '2'); e('s_add_u32', T2, T2, str(u))
            e('v_xor_b32', c, T2, b); e('v_lshl_add_u32', vr(self.TP + u), c, '5', a)
        e('s_lshl_b32', T3, RG2, '6'); e('s_add_u32', T3, T3, '16')
        e('v_add_u32', c, T3, C16); e('v_mul_u32_u24', c, str(SPITCH), c)
        e('v_lshl_add_u32', c, G, '3', c)
        for u in range(4):
            e('s_bfe_u32', T2, sr(self.S_QC), hex((4 << 16) | (4 * u)))
            e('s_lshl_b32', T2, T2, '5'); e('s_add_u32', T2, T2, str(SB))
            e('v_add_u32', vr(self.SW + u), T2, c)
        e('s_lshl_b32', T2, RG2, '6'); e('v_add_u32', a, T2, C16)
        e('s_lshl_b32', T3, CH, '2'); e('v_add_u32', b, T3, g2)
        e('v_and_b32', c, '7', C16); e('v_xor_b32', b, b, c)
        e('v_lshlrev_b32', b, '4', b); e('v_lshl_add_u32', b, g1, '3', b)
        e('v_lshl_add_u32', b, a, '7', b)
        e('v_add_u32', vr(self.HW), str(HB), b)
        e('v_xor_b32', vr(self.HW + 1), '32', vr(self.HW))
        e('v_xor_b32', b, G, c); e('v_lshlrev_b32', b, '4', b); e('v_lshl_add_u32', b, a, '7', b)
        e('v_add_u32', vr(self.HR), str(HB), b)
        e('v_xor_b32', vr(self.HR + 1), '64', vr(self.HR))
        e('v_mul_u32_u24', b, str(XPITCH), a)
        e('v_add_u32', b, str(XB), b)
        e('v_lshl_add_u32', vr(self.XR), G, '4', b)
        e('s_lshl_b32', T3, CH, '5')
        e('v_lshl_add_u32', c, G, '3', b); e('v_add_u32', vr(self.HWX), T3, c)
        e('v_and_b32', a, '31', L); e('v_lshrrev_b32', b, '5', L)
        e('s_lshl_b32', T2, W, '5')
        e('v_add_u32', a, T2, a)
        e('s_lshl_b32', T3, sr(self.S_I), '7'); e('v_add_u32', vr(self.MG), T3, a)
        e('v_add_u32', c, '2', a); e('v_mul_u32_u24', c, str(SPITCH), c)
        e('v_lshl_add_u32', c, b, '5', c); e('v_add_u32', vr(self.AB), str(SB), c)
        e('v_mul_u32_u24', c, str(XPITCH), a); e('v_lshl_add_u32', c, b, '5', c)
        e('v_add_u32', vr(self.OW), str(XB + 64), c)

    def task_late_setup(self):
        T = []
        e = lambda op, *a, **k: T.append(I(op, *a, **k))

        def srd_(d, lo, hi, size):
            e('s_mov_b32', sr(d), lo); e('s_and_b32', sr(d + 1), hi, '0xffff'); e('s_mov_b32', sr(d + 2), str(size)); e('s_mov_b32', sr(d + 3), '0x20000')
        self.scalars_late(e, srd_)
        S = list(T)
        T.clear()
        self.addr_late(e)
        return [S] + T

    def build(self):
        self.stages = []
        self.ksteps = []
        strips = []

        def add_stage(dml):
            self.stages.append(dml)
            return len(self.stages) - 1

        def strip_generic(name, nk, ks_per_stage, nfrag, dma_fn, tr_fn, mf_fn):
            st = dict(name=name, ks=[])
            for t in range(nk):
                tl = t % ks_per_stage
                if tl == 0:
                    n_in = min(ks_per_stage, nk - t)
                    dml = []
                    for tt in range(n_in):
                        dml += dma_fn(t + tt, tt)
                    sid = add_stage(dml)
                frs = [tr_fn(t, tl, u) for u in range(nfrag)]
                st['ks'].append(dict(t=t, stage=sid, frags=frs, mf=[mf_fn(t, u) for u in range(nfrag)], last_in_stage=(tl == ks_per_stage - 1 or t == nk - 1)))
            strips.append(st)
            return st

        A0, A1 = self.ACC0, self.ACC1
        acc = lambda buf, u, mb: vr(buf + 16 * u + 4 * mb, 4)

        def dq(t, tt):
            r = t // 3
            return [(self.SRD_QKV, ('pq', 0), (r * 24 + 2 * tt + e) * 1024, self.PV, 1024, 2 * tt + e) for e in range(2)]

        def trq(t, tl, u):
            return (self.TQ + u, tl * 2048, 6144)

        def mfq(t, u):
            L = [(acc(A0, u, mb), self.xreg(t, mb)) for mb in range(4)]
            if u < 2:
                L.append((vr(self.HAL + 4 * u, 4), self.halo_x(t)))
            return L
        strip_generic('QKV', 18, 3, 4, dq, trq, mfq)

        def ffn(j, buf):
            def dg(t, tt):
                return [(self.SRD_GU, ('fb2', j), (32 * t + 16 * e) * 9216, self.DG, 16 * 9216, 2 * tt + e) for e in range(2)]

            def trg(t, tl, u):
                return (self.TG + u, tl * 2048, 512)

            def mfg(t, u):
                return [(acc(buf, u, mb), self.xreg(t, mb)) for mb in range(4)]
            return strip_generic(f'F{j}', 18, 3, 4, dg, trg, mfg)
        ffn(0, A1); ffn(1, A0); ffn(2, A1); ffn(3, A0)

        def dh(t, tt):
            return [(self.SRD_GU, ('fb2', 4), (32 * t) * 9216, self.DH, 32 * 9216, tt)]

        def trh(t, tl, u):
            return (self.TH + u, tl * 1024, 256)

        def mfh(t, u):
            return [(acc(A1, u, mb), self.xreg(t, mb)) for mb in range(4)]
        strip_generic('F4h', 18, 6, 2, dh, trh, mfh)

        self.kmap = [('F', 0, 0), ('F', 0, 1), ('F', 1, 0), ('F', 1, 1), ('F', 2, 0), ('F', 2, 1), ('O', 0, 0), ('O', 0, 1), ('F', 3, 0), ('F', 3, 1), ('X', 4, 0)]

        def p2rows(k):
            kind, j, tt = self.kmap[k]
            if kind == 'O':
                return self.SRD_WO, ('wo', 0), 32 * tt
            return self.SRD_WD, ('fbr', j), 32 * tt

        def p2full(Y, buf):
            def dp(t, tt):
                s_, b_, r0 = p2rows(t)
                return [(s_, b_ + ('y', Y), (r0 + 16 * e) * 1152, self.DP, 16 * 1152, 2 * tt + e) for e in range(2)]

            def trp(t, tl, u):
                return (self.TP + u, tl * 2048, 6144)

            def mfp(t, u):
                return [(acc(buf, u, mb), self.hreg(t, mb)) for mb in range(4)]
            return strip_generic(f'P{Y}', 11, 3, 4, dp, trp, mfp)
        def dph(t, tt):
            s_, b_, r0 = p2rows(t)
            return [(s_, b_, r0 * 1152 + 1024, self.DPH, 32 * 1152, tt)]

        def trph(t, tl, u):
            return (self.TPH + u, tl * 1024, 512)

        def mfph(t, u):
            return [(acc(A0, u, mb), self.hreg(t, mb)) for mb in range(4)]
        p2full(0, A0); p2full(1, A1)
        strip_generic('P4h', 11, 6, 2, dph, trph, mfph)
        p2full(2, A1); p2full(3, A0)
        self.strips = strips
        x0 = [st for st in strips if st['name'] == 'P0'][0]['ks'][9]['stage']
        first_deep = x0
        self.first_deep = first_deep
        self.slot = {}
        nst = len(self.stages)
        for sid in range(nst):
            if sid < first_deep or not self.o.get('deep', 1):
                self.slot[sid] = sid % 3
        if self.o.get('deep', 1):
            order = [3, 4, (x0 - 3) % 3, (x0 - 2) % 3, 5, (x0 - 1) % 3]
            for k, sid in enumerate(range(first_deep, nst)):
                self.slot[sid] = order[k % 6]

    def slot_base(self, sid):
        sl = self.slot[sid]
        return sl * SLOT if sl < 3 else HB + (sl - 3) * SLOT

    def dma_items(self, sid):
        sbase = self.slot_base(sid)
        items = []
        prev = None
        for (srd_, base, goff, vbase, qdelta, q) in self.stages[sid]:
            share = False
            lin = base is not None and base[0] == 'pq'
            if prev is not None:
                psrd, pbase, pgoff, pq, pj = prev
                j = pj + 1
                if psrd == srd_ and pbase == base and j <= (3 if lin else 2) and q == pq + 1 and goff == pgoff + qdelta:
                    share = True
            pre = []
            if not share:
                j = 0
                pre.append(I('s_add_u32', 'm0', sr(self.S_LDSW), str(sbase + q * 1024)))
                so = sr(self.S_SOFF)
                if lin:
                    pre.append(I('s_add_u32', so, sr(self.S_LDSW), str(goff)))
                elif base[0] == 'fb2':
                    pre.append(I('s_add_u32', so, sr(self.S_FB2 + base[1]), str(goff)))
                elif base[0] == 'fbr':
                    pre.append(I('s_add_u32', so, sr(self.S_FBR + base[1]), str(goff)))
                elif base[0] == 'wo':
                    pre.append(I('s_add_u32', so, sr(self.S_WOR), str(goff)))
                if base[-2] == 'y':
                    pre.append(I('s_add_u32', so, so, sr(self.S_YC + base[-1])))
            if pre:
                cur = pre
            items.append((cur, I('buffer_load_dwordx4', vr(vbase if lin else vbase + j), sr(srd_, 4), sr(self.S_SOFF),
                                 mods=f'offen offset:{1024 * j} lds' if j else 'offen lds', tag=('st', sid))))
            prev = (srd_, base, goff, q, j)
        return items

    def task_qkv_epi(self):
        T = []
        A0 = self.ACC0
        T.append(I('v_mov_b32', 'v4', '0')); T.append(I('v_mov_b32', 'v5', '0'))
        T.append(I('v_and_b32', 'v6', '127', 'v0')); T.append(I('v_mul_u32_u24', 'v6', str(XPITCH), 'v6'))
        T.append(I('v_add_u32', 'v6', str(XB + 136), 'v6'))
        T.append(I('ds_write_b64', 'v6', 'v[4:5]', flag='bar'))
        for u in range(4):
            for mb in range(4):
                a = A0 + 16 * u + 4 * mb
                T.append(I('v_cvt_pk_bf16_f32', vr(a), vr(a), vr(a + 1)))
                T.append(I('v_cvt_pk_bf16_f32', vr(a + 1), vr(a + 2), vr(a + 3)))
                T.append(I('ds_write_b64', vr(self.SW + u), vr(a, 2), mods=f'offset:{mb * 16 * SPITCH}', flag='bar'))
        for u in range(2):
            a = self.HAL + 4 * u
            T.append(I('v_cvt_pk_bf16_f32', vr(a), vr(a), vr(a + 1)))
            T.append(I('v_cvt_pk_bf16_f32', vr(a + 1), vr(a + 2), vr(a + 3)))
            T.append(I('s_lshl_b32', sr(self.S_T2), sr(self.S_RG2), '6'))
            T.append(I('s_add_u32', sr(self.S_T2), sr(self.S_T2), '16'))
            T.append(I('s_mul_i32', sr(self.S_T2), sr(self.S_T2), str(SPITCH)))
            T.append(I('v_subrev_u32', vr(a + 2), sr(self.S_T2), vr(self.SW + u)))
            T.append(I('ds_write_b64', vr(a + 2), vr(a, 2), flag='bar'))
        return T

    def task_attn(self):
        T = []
        B = self.ACC0
        Q = B
        KA = [B + 12, B + 24]
        S = B + 36
        O = B + 44
        KB = [O, O + 10]
        TP = [4, 5, 6, 7, 8, 9, 10, 11, 12, 13, 14, 15, 248, 249, 250, 251, 252, 253, 254, 255]
        AB = vr(self.AB)

        def rd(dst, off):
            if dst % 2 == 0 and dst % 4 == 0:
                return [I('ds_read_b128', vr(dst, 4), AB, mods=f'offset:{off}'),
                        I('ds_read_b128', vr(dst + 4, 4), AB, mods=f'offset:{off + 16}'),
                        I('ds_read_b64', vr(dst + 8, 2), AB, mods=f'offset:{off + 32}')]
            return [I('ds_read_b128', vr(dst, 4), AB, mods=f'offset:{off}'),
                    I('ds_read_b128', vr(dst + 4, 4), AB, mods=f'offset:{off + 16}'),
                    I('ds_read_b64', vr(dst + 8, 2), AB, mods=f'offset:{off + 32}')]
        rowoff = lambda w: (14 - 2 * w) * SPITCH
        T += rd(Q, rowoff(0) + 160)
        T += rd(KA[0], rowoff(0)); T += rd(KA[1], rowoff(1))
        T += rd(KB[0], rowoff(2)); T += rd(KB[1], rowoff(3))
        T.append(I('v_mov_b32', vr(S), '0'))
        T.append([I('v_cmp_gt_u32', 'vcc', '32', vr(self.V_LANE)),
                  I('v_cndmask_b32', vr(Q + 9), vr(Q + 9), vr(S), 'vcc'),
                  I('v_cndmask_b32', vr(Q + 0), vr(S), vr(Q + 0), 'vcc')])
        for w in range(0, 8, 2):
            bufs = KA if (w // 2) % 2 == 0 else KB
            burst = []
            for ww, kb in ((w, bufs[0]), (w + 1, bufs[1])):
                burst.append(I('v_dot2_f32_bf16', vr(S + ww), vr(Q), vr(kb), '0'))
            for j in range(1, 10):
                for ww, kb in ((w, bufs[0]), (w + 1, bufs[1])):
                    burst.append(I('v_dot2_f32_bf16', vr(S + ww), vr(Q + j), vr(kb + j), vr(S + ww)))
            T.append(burst)
            if w + 4 < 8:
                T += rd(bufs[0], rowoff(w + 4)); T += rd(bufs[1], rowoff(w + 5))
            elif w == 4:
                T += rd(KA[0], rowoff(0) + 80); T += rd(KA[1], rowoff(1) + 80)
        NEG = vr(Q + 10)
        T.append(I('v_mov_b32', NEG, sr(self.S_NEG)))
        for w in range(1, 8):
            T.append([I('v_cmp_le_u32', 'vcc', str(2 * w), vr(self.MG)), I('s_nop', '1'),
                      I('v_cndmask_b32', vr(S + w), NEG, vr(S + w), 'vcc')])
        MX = vr(Q + 11)
        T.append(I('v_max3_f32', MX, vr(S), vr(S + 1), vr(S + 2)))
        T.append(I('v_max3_f32', MX, MX, vr(S + 3), vr(S + 4)))
        T.append(I('v_max3_f32', MX, MX, vr(S + 5), vr(S + 6)))
        T.append(I('v_max_f32', MX, MX, vr(S + 7)))
        T.append(I('v_mul_f32', MX, sr(self.S_AC), MX))
        for w in range(8):
            T.append(I('v_fma_f32', vr(S + w), vr(S + w), sr(self.S_AC), '-' + MX))
        for w in range(8):
            T.append(I('v_exp_f32', vr(S + w), vr(S + w)))
        SUM = vr(Q + 10)
        T.append(I('v_add_f32', SUM, vr(S), vr(S + 1)))
        for w in range(2, 8):
            T.append(I('v_add_f32', SUM, SUM, vr(S + w)))
        T.append(I('v_rcp_f32', SUM, SUM))
        for w in range(8):
            T.append(I('v_mul_f32', vr(S + w), vr(S + w), SUM))
        for pp in range(4):
            T.append(I('v_cvt_pk_bf16_f32', vr(Q + pp), vr(S + 2 * pp), vr(S + 2 * pp + 1)))
        K0_, K1_ = KA
        for pp in range(4):
            burst = []
            for j in range(10):
                a, b = TP[2 * j], TP[2 * j + 1]
                T.append(I('v_perm_b32', vr(a), vr(K1_ + j), vr(K0_ + j), sr(self.S_PERM0)))
                T.append(I('v_perm_b32', vr(b), vr(K1_ + j), vr(K0_ + j), sr(self.S_PERM1)))
                burst.append(I('v_dot2_f32_bf16', vr(O + 2 * j), vr(a), vr(Q + pp), '0' if pp == 0 else vr(O + 2 * j)))
                burst.append(I('v_dot2_f32_bf16', vr(O + 2 * j + 1), vr(b), vr(Q + pp), '0' if pp == 0 else vr(O + 2 * j + 1)))
            if pp < 3:
                T += rd(K0_, rowoff(2 * pp + 2) + 80)
                T += rd(K1_, rowoff(2 * pp + 3) + 80)
            T.append(burst)
        OP = K0_
        for j in range(10):
            T.append(I('v_cvt_pk_bf16_f32', vr(OP + j), vr(O + 2 * j), vr(O + 2 * j + 1)))
        OW = vr(self.OW)
        for j in range(1, 9, 2):
            T.append(I('ds_write2_b32', OW, vr(OP + j), vr(OP + j + 1), mods=f'offset0:{j} offset1:{j + 1}', flag='bar'))
        t0 = TP[0]
        T.append(I('v_add_u32', vr(t0), '36', OW))
        T.append([I('v_cmp_gt_u32', 'vcc', '32', vr(self.V_LANE)), I('s_nop', '1'),
                  I('v_cndmask_b32', vr(OP), vr(OP + 9), vr(OP), 'vcc'),
                  I('v_cndmask_b32', vr(t0), vr(t0), OW, 'vcc')])
        T.append(I('ds_write_b32', vr(t0), vr(OP), flag='bar'))
        return T

    def task_silu(self, buf, j):
        T = []
        NL = sr(self.S_NLOG2E)
        chains = []
        for bb in range(2):
            for mb in range(4):
                g = buf + 16 * bb + 4 * mb
                u = buf + 16 * (2 + bb) + 4 * mb
                c = []
                for r in range(4):
                    c.append(I('v_mul_f32', vr(u + r), vr(g + r), vr(u + r)))
                for r in range(4):
                    c.append(I('v_mul_f32', vr(g + r), NL, vr(g + r)))
                for r in range(4):
                    c.append(I('v_exp_f32', vr(g + r), vr(g + r)))
                for r in range(4):
                    c.append(I('v_add_f32', vr(g + r), '1.0', vr(g + r)))
                for r in range(4):
                    c.append(I('v_rcp_f32', vr(g + r), vr(g + r)))
                for r in range(4):
                    c.append(I('v_mul_f32', vr(u + r), vr(g + r), vr(u + r)))
                c.append(I('v_cvt_pk_bf16_f32', vr(g), vr(u), vr(u + 1)))
                c.append(I('v_cvt_pk_bf16_f32', vr(g + 1), vr(u + 2), vr(u + 3)))
                if j < 4:
                    c.append(I('ds_write_b64', vr(self.HW + bb), vr(g, 2), mods=f'offset:{j * 16384 + mb * 2048}', flag='bar'))
                chains.append(c)
        Ta, Tb = [], []
        for k, c in enumerate(chains):
            (Ta if k % 2 == 0 else Tb).extend(c)
        return Ta, Tb

    def task_silu_h(self, buf):
        TT = ([], [])
        NL = sr(self.S_NLOG2E)
        for mb in range(4):
            T = TT[mb % 2]
            g = buf + 4 * mb
            u = buf + 16 + 4 * mb
            for r in range(4):
                T.append(I('v_mul_f32', vr(u + r), vr(g + r), vr(u + r)))
            for r in range(4):
                T.append(I('v_mul_f32', vr(g + r), NL, vr(g + r)))
            for r in range(4):
                T.append(I('v_exp_f32', vr(g + r), vr(g + r)))
            for r in range(4):
                T.append(I('v_add_f32', vr(g + r), '1.0', vr(g + r)))
            for r in range(4):
                T.append(I('v_rcp_f32', vr(g + r), vr(g + r)))
            for r in range(4):
                T.append(I('v_mul_f32', vr(u + r), vr(g + r), vr(u + r)))
            T.append(I('v_cvt_pk_bf16_f32', vr(g), vr(u), vr(u + 1)))
            T.append(I('v_cvt_pk_bf16_f32', vr(g + 1), vr(u + 2), vr(u + 3)))
            T.append(I('ds_write_b64', vr(self.HWX), vr(g, 2), mods=f'offset:{mb * 16 * XPITCH}', flag='bar'))
        return TT

    def task_hload(self, k):
        kind, j, tt = self.kmap[k]
        T = []
        for mb in range(4):
            d = self.hreg(k, mb)
            if kind == 'F':
                T.append(I('ds_read_b128', d, vr(self.HR + tt), mods=f'offset:{j * 16384 + mb * 2048}', flag='bar', tag=('h', k, mb)))
            elif kind == 'X':
                T.append(I('ds_read_b128', d, vr(self.XR), mods=f'offset:{mb * 16 * XPITCH}', flag='bar', tag=('h', k, mb)))
            elif tt == 0:
                T.append(I('ds_read_b128', d, vr(self.XR), mods=f'offset:{mb * 16 * XPITCH + 64}', flag='bar', tag=('h', k, mb)))
        if kind == 'O' and tt == 1:
            for mb in range(4):
                for r in range(4):
                    T.append(I('v_accvgpr_write_b32', ar(16 * k + 4 * mb + r), '0'))
            grp = [I('s_mov_b64', 'exec', '0xffff')]
            for mb in range(4):
                grp.append(I('ds_read_b128', self.hreg(k, mb), vr(self.XR), mods=f'offset:{mb * 16 * XPITCH + 128}', flag='bar', tag=('h', k, mb)))
            grp.append(I('s_mov_b64', 'exec', '-1'))
            T.append(grp)
        return T

    def touch_ld(self, vaddr, srd_):
        x = I('buffer_load_dword', 'v7', vaddr, sr(srd_, 4), sr(self.S_TCH), mods='offen')
        x.writes = []
        return x

    def task_touch(self):
        T = []
        T0, T1 = sr(self.S_T0), sr(self.S_T1)
        S = [I('s_and_b32', T0, sr(self.S_I), '7'), I('s_mul_i32', T0, T0, '41472'), I('s_mul_i32', T1, sr(self.S_S), str(288 * 1152)),
             I('s_add_u32', T0, T0, T1), I('s_mul_i32', T1, sr(self.S_W), '10368'), I('s_add_u32', sr(self.S_TCH), T0, T1)]
        T.append(S)
        T.append(I('v_lshlrev_b32', 'v247', '7', vr(self.V_LANE)))
        T.append(self.touch_ld('v247', self.SRD_WD))
        T.append([I('s_add_u32', sr(self.S_TCH), sr(self.S_TCH), str(17 * 128))])
        T.append(self.touch_ld('v247', self.SRD_WD))
        S = [I('s_and_b32', T0, sr(self.S_I), '7'), I('s_mul_i32', T0, T0, '5184'), I('s_add_u32', T0, T0, sr(self.S_WOR)),
             I('s_mul_i32', T1, sr(self.S_W), '1296'), I('s_add_u32', sr(self.S_TCH), T0, T1)]
        T.append(S)
        T.append([I('s_mov_b64', 'exec', '0xfff'), self.touch_ld('v247', self.SRD_WO), I('s_mov_b64', 'exec', '-1')])
        return T

    def task_touch_gu(self):
        T = []
        T0, T1 = sr(self.S_T0), sr(self.S_T1)
        L = vr(self.V_LANE)
        T.append(I('v_mul_u32_u24', 'v6', '205', L)); T.append(I('v_lshrrev_b32', 'v6', '10', 'v6'))
        T.append(I('v_mul_u32_u24', 'v7', '5', 'v6')); T.append(I('v_sub_u32', 'v7', L, 'v7'))
        T.append(I('v_mul_u32_u24', 'v6', '9216', 'v6')); T.append(I('v_lshl_add_u32', 'v6', 'v7', '7', 'v6'))
        S = [I('s_and_b32', T0, sr(self.S_I), '7'), I('s_mul_i32', T0, T0, '72'), I('s_and_b32', T1, sr(self.S_W), '1'), I('s_mul_i32', T1, T1, '36'),
             I('s_add_u32', T0, T0, T1), I('s_mul_i32', T0, T0, '9216'), I('s_mul_i32', T1, sr(self.S_S), '576'), I('s_and_b32', T1, T1, '0xffffff80'),
             I('s_add_u32', sr(self.S_TCH), T0, T1)]
        T.append(S)
        for j in range(3):
            T.append(self.touch_ld('v6', self.SRD_GU))
            if j < 2:
                T.append([I('s_add_u32', sr(self.S_TCH), sr(self.S_TCH), str(12 * 9216))])
        return T

    def emit_k2_code_touch(self):
        P = self.P
        P.raw("  s_getpc_b64 s[48:49]")
        P.raw("K1_pc:")
        P.raw("  s_add_u32 s48, s48, k2_reduce_kernel-K1_pc")
        P.raw("  s_addc_u32 s49, s49, 0")
        P.raw("  s_and_b32 s49, s49, 0xffff")
        P.raw("  s_mov_b32 s50, K2_end-k2_reduce_kernel")
        P.raw("  s_mov_b32 s51, 0x20000")
        P.e('v_lshlrev_b32', 'v5', '6', vr(self.V_LANE))
        x = I('buffer_load_dword', 'v6', 'v5', 's[48:51]', '0', mods='offen'); x.writes = []
        P.emit(x)

    def task_p2setup(self):
        T = []
        T0, T1 = sr(self.S_T0), sr(self.S_T1)
        S, II, W = sr(self.S_S), sr(self.S_I), sr(self.S_W)
        T += [I('s_lshl_b32', T0, S, '4'), I('s_add_u32', T0, T0, II)]
        T += [I('s_lshl_b32', T1, W, '13')]
        T += [I('s_lshl_b32', sr(self.S_MBO), T0, '16'), I('s_add_u32', sr(self.S_MBO), sr(self.S_MBO), T1),
              I('s_add_u32', sr(self.S_MBO), sr(self.S_MBO), str(MB_OFF))]
        T += [I('s_xor_b32', sr(self.S_MBP), sr(self.S_MBO), str(16 << 16))]
        T += [I('s_lshl_b32', sr(self.S_HPB), T0, '14'), I('s_lshl_b32', T1, W, '12'), I('s_add_u32', sr(self.S_HPB), sr(self.S_HPB), T1),
              I('s_add_u32', sr(self.S_HPB), sr(self.S_HPB), str(HP_OFF))]
        T += [I('s_lshr_b32', T0, S, '1'), I('s_lshl_b32', T0, T0, '4'), I('s_add_u32', T0, T0, II), I('s_lshl_b32', sr(self.S_FPB), T0, '17'),
              I('s_lshl_b32', T1, W, '13'), I('s_add_u32', sr(self.S_FPB), sr(self.S_FPB), T1)]
        T += [I('s_lshl_b32', sr(self.S_FOFF), 's2', '7'), I('s_add_u32', sr(self.S_FOFF), sr(self.S_FOFF), str(FL_OFF)),
              I('s_xor_b32', sr(self.S_FSH), sr(self.S_FOFF), str(8 << 7))]
        T += [I('s_lshl_b32', T1, W, '2'), I('s_add_u32', sr(self.S_FOFF), sr(self.S_FOFF), T1)]
        T += [I('s_mov_b32', sr(self.S_NEG), '0xffff0000')]
        return T

    def _pack_store(self, T, buf, pair, mb, soff_reg, first, flags, tag=None):
        a = buf + 16 * (2 * pair) + 4 * mb
        b = buf + 16 * (2 * pair + 1) + 4 * mb
        T.append(I('v_cvt_pk_bf16_f32', vr(a), vr(a), vr(a + 1)))
        T.append(I('v_cvt_pk_bf16_f32', vr(a + 1), vr(a + 2), vr(a + 3)))
        T.append(I('v_cvt_pk_bf16_f32', vr(a + 2), vr(b), vr(b + 1)))
        T.append(I('v_cvt_pk_bf16_f32', vr(a + 3), vr(b + 2), vr(b + 3)))
        T += first
        T.append(I('buffer_store_dwordx4', vr(a, 4), vr(self.PV), sr(self.SRD_P, 4), sr(self.S_PO),
                   mods=(f'offen offset:{1024 * mb}' if mb else 'offen') + flags, tag=tag))

    def task_send(self, buf, k):
        T = []
        for pair in range(2):
            for mb in range(4):
                first = [I('s_add_u32', sr(self.S_PO), sr(self.S_MBO), str(k * 32768 + pair * 4096))] if mb == 0 else []
                self._pack_store(T, buf, pair, mb, None, first, ' sc1', tag=('mb', k))
        return T

    def item_signal(self, k):
        return ('signal', k)

    def task_keep(self, buf, k):
        T = []
        M = sr(self.S_PERM0 + 2)
        for pair in range(2):
            for mb in range(4):
                a = buf + 16 * (2 * pair) + 4 * mb
                b = buf + 16 * (2 * pair + 1) + 4 * mb
                q = (self.INC if k == 2 else self.INC2)[pair * 4 + mb]
                t0, t1 = 244, 245
                for half, r in ((0, a), (1, b)):
                    for d in range(2):
                        src = vr(q + 2 * half + d)
                        T.append(I('v_lshlrev_b32', vr(t0), '16', src))
                        T.append(I('v_and_b32', vr(t1), M, src))
                        T.append(I('v_add_f32', vr(r + 2 * d), vr(r + 2 * d), vr(t0)))
                        T.append(I('v_add_f32', vr(r + 2 * d + 1), vr(r + 2 * d + 1), vr(t1)))
                        t0, t1 = (246, 247) if t0 == 244 else (244, 245)
                first = []
                if mb == 0:
                    first = [I('s_lshl_b32', sr(self.S_PO), sr(self.S_YC + k), '7'),
                             I('s_add_u32', sr(self.S_PO), sr(self.S_PO), sr(self.S_FPB)),
                             I('s_add_u32', sr(self.S_PO), sr(self.S_PO), str(pair * 4096))]
                self._pack_store(T, buf, pair, mb, None, first, ['', ' nt', ' sc1'][self.o.get('stflag', 2)])
        return T

    def addinc_quad(self, buf, p):
        u, mb = divmod(p, 4)
        pair, half = divmod(u, 2)
        q = self.INC2[pair * 4 + mb]
        r = buf + 16 * u + 4 * mb
        M = sr(self.S_NEG)
        T = []
        for d, (t0, t1) in enumerate(((244, 245), (246, 247))):
            src = vr(q + 2 * half + d)
            T.append(I('v_lshlrev_b32', vr(t0), '16', src)); T.append(I('v_and_b32', vr(t1), M, src))
            T.append(I('v_add_f32', vr(r + 2 * d), vr(r + 2 * d), vr(t0))); T.append(I('v_add_f32', vr(r + 2 * d + 1), vr(r + 2 * d + 1), vr(t1)))
        return T

    def task_final(self, buf, k):
        T = []
        for pair in range(2):
            for mb in range(4):
                first = []
                if mb == 0:
                    first = [I('s_lshl_b32', sr(self.S_PO), sr(self.S_YC + k), '7'), I('s_add_u32', sr(self.S_PO), sr(self.S_PO), sr(self.S_FPB)),
                             I('s_add_u32', sr(self.S_PO), sr(self.S_PO), str(pair * 4096))]
                self._pack_store(T, buf, pair, mb, None, first, ['', ' nt', ' sc1'][self.o.get('stflag', 2)])
        return T

    def items_incoming(self, k):
        T = []
        for pair in range(2):
            for mb in range(4):
                if mb == 0:
                    T.append(I('s_add_u32', sr(self.S_PO2), sr(self.S_MBP), str((k - 2) * 32768 + pair * 4096)))
                T.append(I('buffer_load_dwordx4', vr((self.INC if k == 2 else self.INC2)[pair * 4 + mb], 4), vr(self.PV), sr(self.SRD_P, 4), sr(self.S_PO2),
                           mods=(f'offen offset:{1024 * mb}' if mb else 'offen') + ' sc1'))
        return T

    def task_half(self, buf):
        T = []
        for mb in range(4):
            first = [I('s_mov_b32', sr(self.S_PO), sr(self.S_HPB))] if mb == 0 else []
            self._pack_store(T, buf, 0, mb, None, first, ['', ' nt', ' sc1'][self.o.get('stflag', 2)])
        return T

    def emit_signal(self, k):
        P = self.P
        P.wait_vm_tag(('mb', k))
        P.e('v_mov_b32', 'v9', '1')
        P.e('v_mov_b32', 'v10', str(16 * k))
        P.e('s_mov_b64', 'exec', '1')
        P.e('buffer_store_dword', 'v9', 'v10', sr(self.SRD_P, 4), sr(self.S_FOFF), mods='offen sc1')
        P.e('s_mov_b64', 'exec', '-1')

    def poll_issue(self, k):
        return [I('v_mov_b32', 'v11', str(16 * (k - 2))),
                I('buffer_load_dwordx4', vr(self.V_POLL, 4), 'v11', sr(self.SRD_P, 4), sr(self.S_FSH), mods='offen sc1')]

    def emit_poll_check(self, lab):
        P = self.P
        T2 = sr(self.S_T2)
        V = self.V_POLL
        P.e('v_and_b32', vr(V), vr(V), vr(V + 1)); P.e('v_and_b32', vr(V + 2), vr(V + 2), vr(V + 3)); P.e('v_and_b32', vr(V), vr(V), vr(V + 2))
        P.e('v_readfirstlane_b32', T2, vr(V))
        P.e('s_cmp_eq_u32', T2, '1')
        P.raw(f"  s_cbranch_scc1 {lab}_ok")
        P.label(f"{lab}_spin")
        P.raw("  s_sleep 1")
        P.raw(f"  buffer_load_dwordx4 v[{V}:{V + 3}], v11, s[{self.SRD_P}:{self.SRD_P + 3}], {sr(self.S_FSH)} offen sc1")
        P.raw("  s_waitcnt vmcnt(0)")
        P.raw(f"  v_and_b32 v{V}, v{V}, v{V + 1}")
        P.raw(f"  v_and_b32 v{V + 2}, v{V + 2}, v{V + 3}")
        P.raw(f"  v_and_b32 v{V}, v{V}, v{V + 2}")
        P.raw("  s_nop 1")
        P.raw(f"  v_readfirstlane_b32 {T2}, v{V}")
        P.raw("  s_nop 3")
        P.raw(f"  s_cmp_eq_u32 {T2}, 1")
        P.raw(f"  s_cbranch_scc0 {lab}_spin")
        P.label(f"{lab}_ok")

    def check_b(self, g):
        ins = g['inst']
        b = ins.ops[2]
        want = g['btag']
        got = self.P.regtag.get(regs_of(b)[0])
        assert got == want, (g['ks']['strip'], g['ks']['t'], b, want, got)

    def emit_setup(self, it):
        pre, ins = it
        if self.o.get('nodma', 0) and ins.tag[0] == 'st' and ins.tag[1] >= 2:
            return
        if self.cur_setup is not pre:
            self.P.emit(pre)
            self.cur_setup = pre

    def emit_dma(self, it):
        pre, ins = it
        if self.o.get('nodma', 0) and ins.tag[0] == 'st' and ins.tag[1] >= 2:
            return
        if self.cur_setup is not pre:
            self.P.emit(pre)
            self.cur_setup = pre
        self.P.emit(ins)

    XSLOT = 27 * 1024

    def xf_dma(self, r):
        items = []
        tag = ('st', r)
        for mm in range(2):
            pre = [I('s_add_u32', 'm0', sr(self.S_XL), str(HB + (r % 3) * 12288 + mm * 3072)),
                   I('s_add_u32', sr(self.S_SOFF2), sr(self.S_XF), str((mm * 18 + 3 * r) * 1024))]
            for k in range(3):
                items.append((pre, I('buffer_load_dwordx4', vr(self.PV), sr(self.SRD_XF, 4), sr(self.S_SOFF2),
                                     mods=(f'offen offset:{1024 * k} lds' if k else 'offen lds'), tag=tag)))
        pre = [I('s_add_u32', 'm0', sr(self.S_XH), str(HB + 73728 + (r % 3) * 3072)),
               I('s_add_u32', sr(self.S_SOFF2), sr(self.S_XF + 1), str(3 * r * 1024))]
        items.append((pre, I('buffer_load_dwordx4', vr(self.PV), sr(self.SRD_XF, 4), sr(self.S_SOFF2), mods='offen lds', tag=tag)))
        return items

    def xf_reads(self, t):
        T = []
        r, tt = divmod(t, 3)
        for mb in range(4):
            T.append(I('ds_read_b128', self.xreg(t, mb), vr(self.XA), mods=f'offset:{(r % 3) * 12288 + (mb * 3 + tt) * 1024}', flag='bar', tag=('x', t, mb)))
        T.append(I('ds_read_b128', self.halo_x(t), vr(self.XA + 1), mods=f'offset:{(r % 3) * 3072 + tt * 1024}', flag='bar', tag=('x', t, 4)))
        return T

    def stage_dma(self, sid):
        a = self.dma_items(sid)
        if sid < 6:
            b = self.xf_dma(sid)
            out = []
            out = b[:3] + a[:3] + b[3:] + a[3:]
            return out
        return a

    def emit_all(self):
        P = self.P
        e = P.e
        o = self.o
        self.prologue()
        self.build()
        self.cur_setup = None
        pst = []

        def pstamp():
            if o.get('prof', 0) == 3:
                r = 72 + 2 * len(pst)
                P.raw(f"  s_memtime s[{r}:{r + 1}]")
                pst.append(r)
        pstamp()
        for it in self.stage_dma(0):
            self.emit_dma(it)
        pstamp()
        for it in self.stage_dma(1):
            self.emit_dma(it)
        pstamp()
        if o.get('touch', 1) == 2:
            T0, T1 = sr(self.S_T0), sr(self.S_T1)
            srd(P, self.SRD_WO, 's6', 's7', 576 * 1152)
            srd(P, self.SRD_WD, 's12', 's13', 4608 * 1152)
            e('s_mul_i32', sr(self.S_WOR), sr(self.S_S), str(36 * 1152))
            P.emit(self.task_touch())
        self.addr_first(e)
        pstamp()

        frags = []
        KS = []
        for st in self.strips:
            for ks in st['ks']:
                ks['strip'] = st['name']
                KS.append(ks)
                for u in range(len(ks['frags'])):
                    frags.append((ks, u))
        NQ = len(frags)
        NFR = self.NFR
        DIST = NFR - 1
        fr = lambda q: self.FR + 4 * (q % NFR)

        def frag_reads(q):
            ks, u = frags[q]
            areg, off, hd = ks['frags'][u]
            slot = self.slot[ks['stage']]
            if slot >= 3:
                areg = self.TD + (areg - self.TP)
                slot -= 3
            return [I('ds_read_b64_tr_b16', vr(fr(q) + 2 * h, 2), vr(areg), mods=f'offset:{slot * SLOT + off + h * hd}', flag='bar') for h in range(2)]

        gaps = []
        qi = 0
        for ks in KS:
            for u in range(len(ks['frags'])):
                mfs = ks['mf'][u]
                for mi, (accr, breg) in enumerate(mfs):
                    first = ks['t'] == 0
                    btag = ('h', ks['t'], mi) if ks['strip'][0] == 'P' else ('x', ks['t'], mi)
                    gaps.append(dict(q=qi, ks=ks, u=u, mi=mi, n=len(mfs), btag=btag,
                                     inst=I('v_mfma_f32_16x16x32_bf16', accr, vr(fr(qi), 4), breg, '0' if first else accr)))
                qi += 1
        NG = len(gaps)
        sf, sl, frag_first, ks_first = {}, {}, {}, {}
        for gi, g in enumerate(gaps):
            sf.setdefault(g['ks']['strip'], gi)
            sl[g['ks']['strip']] = gi
            frag_first.setdefault(g['q'], gi)
            ks_first.setdefault((g['ks']['strip'], g['ks']['t']), gi)
        fstage = [frags[q][0]['stage'] for q in range(NQ)]
        NST = len(self.stages)
        first_frag_of_stage = {}
        for q in range(NQ):
            first_frag_of_stage.setdefault(fstage[q], q)
        stage_of0 = lambda name, k: [st for st in self.strips if st['name'] == name][0]['ks'][k]['stage']
        read_pos, bar_pos = {}, {}
        LAG = o.get('barlag', 2)
        for q in range(NQ):
            s = fstage[q]
            p = q - DIST
            if s > 0:
                lastq_prev = first_frag_of_stage[s] - 1
                bp = read_pos[lastq_prev] + LAG
                bar_pos[s - 1] = bp
                p = max(p, bp)
            read_pos[q] = p
            assert p < q or q == 0, (q, p)
            assert p >= q - NFR + 1
        bars_at = {}
        for s, p in bar_pos.items():
            bars_at.setdefault(p, []).append(s)
        bar_gap = {s: frag_first[p] for s, p in bar_pos.items()}
        rq = []
        for q in range(NQ):
            if read_pos[q] < 0:
                continue
            for h, ins in enumerate(frag_reads(q)):
                rq.append((frag_first[read_pos[q]], frag_first[q] - o.get('minlead', 7), ins, frag_first[read_pos[q]] + 2 * h))

        self.hfree_bar = None
        dq = []
        b_hfree = bar_gap[stage_of0('P0', 9)]
        b_h6 = bar_gap[stage_of0('P0', 0)]
        prev_user = {}
        last_issue = 0
        for sid in range(NST):
            sl_ = self.slot[sid]
            pu = prev_user.get(sl_)
            prev_user[sl_] = sid
            if sid < 2:
                continue
            if pu is not None:
                lo = bar_gap[pu]
            elif sl_ == 5:
                lo = b_hfree
            elif sl_ >= 3:
                lo = b_h6
            else:
                lo = 0
            hi = bar_gap[sid - 1]
            items = self.stage_dma(sid)
            n = len(items)
            lo = max(lo, last_issue)
            nb = min(b for b in list(bar_gap.values()) + [NG] if b > lo)
            span = max(n, int((nb - lo - 2) * (o.get('dmaspan', 60) if sid >= 8 else 95) / 100))
            step = max(o.get('dmastep', 5) if sid >= 8 else 4, span // n) if sl_ < 3 or sid < self.first_deep else o.get('dmastep', 5)
            if sid >= self.first_deep:
                step = o.get('dmastep', 4)
            for k, it in enumerate(items):
                gi_ = lo + 1 + k * step
                assert gi_ < hi, (sid, gi_, hi)
                dq.append((gi_, it))
            last_issue = lo + 1 + (n - 1) * step
        dq.sort(key=lambda x: x[0])

        LAT = 10
        names0 = ['QKV', 'F0', 'F1', 'F2', 'F3', 'F4h']
        strip = lambda name: [st for st in self.strips if st['name'] == name][0]
        stage_of = lambda name, k: strip(name)['ks'][k]['stage']

        def next_bar(gi):
            return min(b for b in bar_gap.values() if b > gi)
        tasks = []

        def add(st_, en_, lst):
            if isinstance(lst, tuple):
                for l in lst:
                    tasks.append([st_, en_, l, 0])
            else:
                tasks.append([st_, en_, lst, 0])
        late_end = o.get('lateend', 60)
        add(2, late_end, self.task_late_setup())
        rq2 = []
        for t in range(3, 18):
            r = t // 3
            dl = ks_first[('QKV', t)] - 8
            for ins in self.xf_reads(t):
                rq2.append((bar_gap[r - 1] + 1, dl, ins))
        bq = bar_gap[stage_of('F0', 0)] if o.get('qkvbar', 1) == 0 else bar_gap[stage_of('F0', 3)]
        add(sf['F0'] + LAT, bq - 1, self.task_qkv_epi())
        add(bq + 1, sl['F0'], self.task_attn())
        add(sf['F1'] + LAT, sl['F1'], self.task_silu(self.ACC1, 0))
        add(sf['F2'] + LAT, sl['F2'], self.task_silu(self.ACC0, 1))
        add(sf['F3'] + LAT, sl['F3'], self.task_silu(self.ACC1, 2))
        add(sf['F4h'] + LAT, sl['F4h'], self.task_silu(self.ACC0, 3))
        b_f4h = bar_gap[stage_of('P0', 3)]
        add(sf['P0'] + LAT, b_f4h - 1, self.task_silu_h(self.ACC1))
        bF2 = next_bar(sl['F3'])
        bF3 = next_bar(sl['F4h'])
        for k in range(11):
            if k < 8:
                st_ = ks_first[('F4h', k + 1)] + 1
                if k in (4, 5):
                    st_ = max(st_, bF2 + 1)
            elif k < 10:
                st_ = max(bF3 + 1, ks_first[('F4h', k + 1)] + 1)
            else:
                st_ = b_f4h + 1
            dl = ks_first[('P0', k)] - 8
            if k < 6:
                dl = min(dl, bar_gap[stage_of('P0', 0)] - 10)
            assert st_ < dl, (k, st_, dl)
            for ins in self.task_hload(k):
                rq2.append((st_, dl, ins))
        rq2.sort(key=lambda x: x[1])
        if o.get('deep', 1):
            add(sf['P0'] + 2, sf['P0'] + 30, [I('v_add_u32', vr(self.TD + k), str(HB), vr(self.TP + k)) for k in range(6)])
        actions = {}
        prebar = {}
        if o.get('touchgu', 0):
            ta = late_end + 1 + o.get('guoff', 0)
            add(ta, ta + 12, self.task_touch_gu())
        if o.get('touch', 1) == 1:
            ta = sf['F2'] + o.get('touchoff', 170)
            add(ta, ta + 8, self.task_touch())
        add(sf['F4h'] + 2, sf['F4h'] + 6, self.task_p2setup())
        add(sf['P1'] + 40, sf['P1'] + 85, self.task_send(self.ACC0, 0))
        actions[sf['P4h'] + o.get('sig0', 50)] = lambda: self.emit_signal(0)
        inl = {}
        if o.get('k2pf', 1):
            actions[sf['P3'] + 140] = lambda: self.emit_k2_code_touch()
        add(sf['P4h'] + LAT, sf['P4h'] + 80, self.task_send(self.ACC1, 1))
        actions[sf['P2'] + o.get('sig1', 130)] = lambda: self.emit_signal(1)
        add(sf['P2'] + LAT, sf['P2'] + 60, self.task_half(self.ACC0))
        for k, nm, pa, kb in ((2, 'P2', 20, 6), (3, 'P3', 20, o.get('kb3', 3))):
            add(sf[nm] + pa, sf[nm] + pa + 2, self.poll_issue(k))
            sb = stage_of(nm, kb)
            prebar[sb] = (lambda kk=k: self.emit_poll_check(f"K1_poll{kk}"))
            add(bar_gap[sb] + 1, bar_gap[sb] + 30, self.items_incoming(k))
        add(sf['P3'] + o.get('keepat', 50), sl['P3'], self.task_keep(self.ACC1, 2))

        if o.get('notask', 0):
            tasks = []; actions = {}; prebar = {}; inl = {}
        PROF = o.get('prof', 0)
        names = ['QKV', 'F0', 'F1', 'F2', 'F3', 'F4h', 'P0', 'P1', 'P4h', 'P2', 'P3']
        pfrom = names[o.get('pfrom', 0)]
        stamps = list(pst)

        def stamp():
            if PROF:
                r = 72 + 2 * len(stamps)
                P.raw(f"  s_memtime s[{r}:{r + 1}]")
                stamps.append(r)

        P.wait_lds_flagged()
        P.wait_vm_tag(('st', 0))
        if PROF == 3:
            stamp()
        P.barrier()
        if PROF == 3:
            stamp()
        P.emit(self.xf_reads(0))
        for q in range(NQ):
            if read_pos[q] < 0:
                P.emit(frag_reads(q))
        P.emit(self.xf_reads(1))
        P.emit(self.xf_reads(2))
        stamp()

        def icost(x):
            if isinstance(x, list):
                if x[0].op.startswith('v_dot'):
                    return 100
                return sum(y.cost for y in x)
            return x.cost

        def kind(x):
            return x[-1].kind if isinstance(x, list) else x.kind
        SLACK = o.get('slack', 5)
        LEAD = o.get('lead', 4)
        ri = 0
        di = 0
        last_ds_gap = -10
        for gi, g in enumerate(gaps):
            if PROF == 1 and gi in sf.values() and gi > 0:
                stamp()
            if g['mi'] == 0:
                p = g['q']
                if PROF in (2, 3) and len(stamps) < 12 and gi >= sf[pfrom] and bars_at.get(p):
                    stamp()
                for s in bars_at.get(p, []):
                    p4 = PROF == 4 and gi >= sf[pfrom] and len(stamps) < 11
                    if s in prebar:
                        prebar[s]()
                    if p4: stamp()
                    if not o.get('nolgkm', 0):
                        P.wait_lds_flagged()
                    if p4: stamp()
                    P.wait_vm_tag(('st', s + 1))
                    if p4: stamp()
                    if not o.get('nobar', 0):
                        P.barrier()
                    if p4: stamp()
            self.check_b(g)
            if not o.get('nomfma', 0):
                P.emit(g['inst'])
            cap = 8
            ds = False
            while ri < len(rq) and rq[ri][3] <= gi:
                urgent = rq[ri][1] <= gi
                if ds and not urgent:
                    break
                P.emit(rq[ri][2]); ri += 1
                cap -= 4; ds = True
            while True:
                el = [x for x in rq2 if x[0] <= gi]
                if not el:
                    break
                x = el[0]
                isds = kind(x[2]) in ('ldsr',) or isinstance(x[2], list)
                urgent = x[1] - 2 * len([y for y in el if y[1] == x[1]]) <= gi
                if urgent or (isds and not ds and cap >= 4) or (not isds and cap >= 4):
                    P.emit(x[2]); rq2.remove(x); cap -= 4
                    if isds:
                        ds = True
                    if not urgent:
                        break
                else:
                    break
            if di < len(dq) and dq[di][0] <= gi and (cap == 8 or dq[di][0] <= gi - 3):
                self.emit_dma(dq[di][1]); di += 1; cap = 0
                if di < len(dq) and o.get('hoist', 1):
                    self.emit_setup(dq[di][1])
            if gi in inl:
                P.emit(inl[gi]); cap -= 8
            progress = True
            while progress:
                progress = False
                for t_ in tasks:
                    st_, en_, lst, idx = t_
                    if gi < st_ or idx >= len(lst):
                        continue
                    force = gi >= en_
                    target = len(lst) if force else len(lst) * (gi - st_ + 1) / (en_ - st_ + 1)
                    x = lst[idx]
                    c = icost(x); k = kind(x)
                    behind = idx < target - SLACK
                    if not force and idx >= target + LEAD:
                        continue
                    if k in ('ldsr', 'ldsw'):
                        fit = (not ds) and cap >= c
                    elif c >= 100:
                        fit = cap == 8 and idx < target
                    else:
                        fit = cap >= c
                    if fit or force or (behind and cap > 0):
                        P.emit(x); cap -= c; t_[3] = idx + 1
                        if k in ('ldsr', 'ldsw'):
                            ds = True
                        progress = True
            if gi in actions:
                actions[gi]()
        assert ri == len(rq) and di == len(dq) and not rq2, (ri, len(rq), di, len(dq), len(rq2))
        for t_ in tasks:
            assert t_[3] == len(t_[2])
        while PROF >= 2 and len(stamps) < 12:
            stamp()
        stamp()
        if not o.get('notask', 0):
            P.emit(self.task_keep(self.ACC0, 3))
        if PROF:
            P.wait_vm(0)
            stamp()
            P.raw("  s_memrealtime s[100:101]")
            P.raw("  s_waitcnt lgkmcnt(0)")
            e('s_add_u32', 's4', 's14', str(64 << 20)); e('s_addc_u32', 's5', 's15', '0')
            srd(P, 8, 's4', 's5', 1 << 20)
            e('s_lshl_b32', 's6', 's2', '2'); e('s_add_u32', 's6', 's6', sr(self.S_W)); e('s_lshl_b32', 's6', 's6', '7')
            e('v_mov_b32', 'v4', '0')
            allst = [46] + stamps + [100, 98]
            for k, r in enumerate(allst):
                e('v_mov_b32', 'v5', sr(r))
                e('buffer_store_dword', 'v5', 'v4', 's[8:11]', 's6', mods=f'offen offset:{4 * k}')
        tl_end(P, self.o, 1)
        hx_slot(P, self.o, 2, 'max', False)
        P.label("K1_end")
        P.raw("  s_endpgm")


def gen_k1(opts):
    k = K1(opts)
    name = "k1_main_kernel"
    kernel_begin(k.P, name)
    k.emit_all()
    print("K1 stats", k.P.stats, file=sys.stderr)
    return k.P.text(), descriptor(name, 512, 256, 102), (name, 256, 256, LDS_TOTAL)


def main():
    out = sys.argv[1]
    opts = {}
    for a in sys.argv[2:]:
        kk, v = a.split('='); opts[kk] = int(v)
    parts = [gen_k0(opts), gen_k1(opts), gen_k2(opts)]
    txt = header_comments([p[2] for p in parts])
    for p in parts:
        txt += p[0]
    txt += '.section .rodata,"a"\n'
    for p in parts:
        txt += p[1]
    open(out, 'w').write(txt)


if __name__ == "__main__":
    main()
```

```python
import sys, math
from asmlib import *

KN = "parallel_sum__sliding_local_dilated__swiglu_ffn__prompt"

XF_OFF = 0
XF_SIZE = 128 * 18 * 1024
PQ_OFF = 5 << 19
PQ_SIZE = 16 * 147456
P_OFF = 6 << 20
P_TILE = 144 * 1024
FP_OFF = 0
HP_OFF = 8 * 16 * 131072
MB_OFF = HP_OFF + 256 * 16384
FL_OFF = MB_OFF + 256 * 65536
P_SIZE = FL_OFF + 256 * 128

SLOT = 24576
RING = 0
HB = 3 * SLOT
SB = HB + 16384
SPITCH = 272
XB = HB + 4 * 16384
XPITCH = 144
LDS_TOTAL = XB + 128 * XPITCH

LOG2E = 1.4426950408889634


def f2h(x):
    import struct
    return "0x%08x" % struct.unpack('<I', struct.pack('<f', x))[0]


def header_comments(launches):
    L = []
    L.append(";   0 A_x, 8 A_wqkv, 16 A_wo, 24 B_x, 32 B_w_gate, 40 B_w_up, 48 B_w_down, 56 d_out, 64 d_debug, 72 d_ws")
    L.append("; Generated by a hand-written python generator (work/gen.py).")
    for (k, g, b, lds) in launches:
        L.append(f"; @launch kernel={k} grid=({g},1,1) block=({b},1,1) lds={lds}")
    L.append('.amdgcn_target "amdgcn-amd-amdhsa--gfx950"')
    L.append(".text")
    return "\n".join(L) + "\n"


def kernel_begin(P, name):
    P.raw(f".globl {name}")
    P.raw(".p2align 8")
    P.raw(f".type {name},@function")
    P.raw(f"{name}:")


def descriptor(name, vgpr, accum, sgpr=102):
    return "\n".join([
        ".p2align 6", f".amdhsa_kernel {name}",
        f"  .amdhsa_next_free_vgpr {vgpr}", f"  .amdhsa_next_free_sgpr {sgpr}", f"  .amdhsa_accum_offset {accum}",
        "  .amdhsa_group_segment_fixed_size 0", "  .amdhsa_kernarg_size 80", "  .amdhsa_user_sgpr_count 2",
        "  .amdhsa_user_sgpr_kernarg_segment_ptr 1", "  .amdhsa_system_sgpr_workgroup_id_x 1", ".end_amdhsa_kernel"]) + "\n"


def tl_start(P, opts):
    if opts.get('tl', 0):
        P.raw("  s_memrealtime s[96:97]")


def tl_end(P, opts, kidx, wsreg_lo=None):
    if not opts.get('tl', 0):
        return
    P.raw("  s_waitcnt vmcnt(0)")
    P.raw("  s_memrealtime s[98:99]")
    P.raw("  s_load_dwordx2 s[94:95], s[0:1], 72")
    P.raw("  s_waitcnt lgkmcnt(0)")
    P.raw(f"  s_add_u32 s94, s94, {(80 << 20) + kidx * 65536}")
    P.raw("  s_addc_u32 s95, s95, 0")
    P.raw("  s_mov_b32 s88, s94")
    P.raw("  s_and_b32 s89, s95, 0xffff")
    P.raw("  s_mov_b32 s90, 65536")
    P.raw("  s_mov_b32 s91, 0x20000")
    P.raw("  s_lshl_b32 s92, s2, 3")
    P.raw("  v_mov_b32 v2, s96")
    P.raw("  v_mov_b32 v3, s98")
    P.raw("  v_mov_b32 v4, 0")
    P.raw("  v_cmp_eq_u32 vcc, 0, v0")
    P.raw("  s_and_saveexec_b64 s[86:87], vcc")
    P.raw("  buffer_store_dwordx2 v[2:3], v4, s[88:91], s92 offen")
    P.raw("  s_mov_b64 exec, s[86:87]")


def hx_slot(P, opts, slot, op, only_wg0, final=False):
    if not opts.get('hx', 0):
        return
    lab = f"HX_{slot}_{op}_{len(P.lines)}"
    P.raw("  s_waitcnt vmcnt(0) lgkmcnt(0)")
    P.raw("  s_memrealtime s[86:87]")
    P.raw("  s_load_dwordx2 s[84:85], s[0:1], 72")
    P.raw("  s_waitcnt lgkmcnt(0)")
    P.raw(f"  s_add_u32 s84, s84, {96 << 20}")
    P.raw("  s_addc_u32 s85, s85, 0")
    P.raw("  s_mov_b32 s80, s84"); P.raw("  s_and_b32 s81, s85, 0xffff"); P.raw("  s_mov_b32 s82, 4096"); P.raw("  s_mov_b32 s83, 0x20000")
    if only_wg0:
        P.raw("  s_cmp_lg_u32 s2, 0"); P.raw(f"  s_cbranch_scc1 {lab}")
    P.raw("  v_mov_b32 v250, s86"); P.raw(f"  v_mov_b32 v251, {slot * 4}")
    P.raw("  v_cmp_eq_u32 vcc, 0, v0"); P.raw("  s_and_saveexec_b64 s[78:79], vcc")
    if op == 'st':
        P.raw("  buffer_store_dword v250, v251, s[80:83], 0 offen sc1")
    else:
        P.raw("  buffer_atomic_umax v250, v251, s[80:83], 0 offen")
    P.raw("  s_waitcnt vmcnt(0)")
    P.raw("  s_mov_b64 exec, s[78:79]")
    P.raw(f"{lab}:")


def srd(P, d, lo, hi, size):
    P.e('s_mov_b32', sr(d), lo)
    P.e('s_and_b32', sr(d + 1), hi, '0xffff')
    P.e('s_mov_b32', sr(d + 2), str(size))
    P.e('s_mov_b32', sr(d + 3), '0x20000')


def gen_k0(opts):
    P = Prog()
    name = "k0_ln_kernel"
    kernel_begin(P, name)
    NPK = 288
    NCP = 8 if opts.get('codepf', 1) else 0
    NTW = 96 if opts.get('k0touch', 0) else 0
    P.e('s_cmp_ge_u32', 's2', str(128 + NPK + NCP + NTW))
    P.raw("  s_cbranch_scc1 K0_end")
    tl_start(P, opts)
    hx_slot(P, opts, 0, 'st', True)
    if opts.get('hx', 0):
        P.raw("  s_cmp_lg_u32 s2, 0"); P.raw("  s_cbranch_scc1 HX_z")
        P.raw("  v_mov_b32 v250, 0"); P.raw("  v_mov_b32 v251, 8"); P.raw("  buffer_store_dword v250, v251, s[80:83], 0 offen sc1")
        P.raw("  v_mov_b32 v251, 16"); P.raw("  buffer_store_dword v250, v251, s[80:83], 0 offen sc1"); P.raw("  v_mov_b32 v251, 20"); P.raw("  buffer_store_dword v250, v251, s[80:83], 0 offen sc1")
        P.raw("HX_z:")
    if NTW:
        P.e('s_cmp_ge_u32', 's2', str(128 + NPK + NCP))
        P.raw("  s_cbranch_scc1 K0_touch")
    if NCP:
        P.e('s_cmp_ge_u32', 's2', str(128 + NPK))
        P.raw("  s_cbranch_scc1 K0_code")
    P.e('s_cmp_ge_u32', 's2', '128')
    P.raw("  s_cbranch_scc1 K0_pack")
    P.e('s_load_dwordx2', 's[4:5]', 's[0:1]', '0')
    P.e('s_load_dwordx2', 's[6:7]', 's[0:1]', '72')
    P.e('v_and_b32', 'v1', '63', 'v0')
    P.e('v_lshrrev_b32', 'v2', '6', 'v0')
    P.e('v_and_b32', 'v3', '15', 'v1')
    P.e('v_lshrrev_b32', 'v4', '4', 'v1')
    P.e('v_readfirstlane_b32', 's20', 'v2')
    P.raw("  s_waitcnt lgkmcnt(0)")
    srd(P, 8, 's4', 's5', 2048 * 1152)
    srd(P, 12, 's6', 's7', XF_OFF + XF_SIZE)
    P.e('s_lshl_b32', 's21', 's2', '4')
    P.e('v_add_u32', 'v5', 's21', 'v3')
    P.e('s_movk_i32', 's22', '1152')
    P.e('v_mul_lo_u32', 'v5', 'v5', 's22')
    P.e('v_lshlrev_b32', 'v6', '4', 'v4')
    P.e('v_add_u32', 'v5', 'v5', 'v6')
    P.e('s_mul_i32', 's23', 's20', '576')
    X = 16
    for t in range(9):
        P.e('buffer_load_dwordx4', vr(X + 4 * t, 4), 'v5', 's[8:11]', 's23', mods=f'offen offset:{64 * t}')
    P.e('s_add_u32', 's28', 's6', str(P_OFF + FL_OFF)); P.e('s_addc_u32', 's29', 's7', '0')
    srd(P, 32, 's28', 's29', 256 * 128)
    P.e('v_mov_b32', 'v60', '0'); P.e('v_mov_b32', 'v61', '0'); P.e('v_mov_b32', 'v62', '0'); P.e('v_mov_b32', 'v63', '0')
    P.e('v_lshlrev_b32', 'v59', '4', 'v0')
    P.e('s_lshl_b32', 's30', 's2', '8')
    P.e('v_cmp_gt_u32', 'vcc', '16', 'v0')
    P.e('s_and_saveexec_b64', 's[36:37]', 'vcc')
    P.raw("  s_cbranch_execz K0_nz")
    P.raw("  buffer_store_dwordx4 v[60:63], v59, s[32:35], s30 offen")
    P.label("K0_nz")
    P.e('s_mov_b64', 'exec', 's[36:37]')
    P.e('v_mov_b32', 'v7', '0x3f803f80')
    P.e('v_mov_b32', 'v8', '0'); P.e('v_mov_b32', 'v9', '0'); P.e('v_mov_b32', 'v10', '0'); P.e('v_mov_b32', 'v11', '0')
    for j in range(36):
        P.e('v_dot2c_f32_bf16', 'v8' if j % 2 == 0 else 'v10', vr(X + j), 'v7')
        P.e('v_dot2c_f32_bf16', 'v9' if j % 2 == 0 else 'v11', vr(X + j), vr(X + j))
    P.e('v_add_f32', 'v8', 'v8', 'v10')
    P.e('v_add_f32', 'v9', 'v9', 'v11')
    for sw in ('v_permlane32_swap_b32', 'v_permlane16_swap_b32'):
        P.e('v_mov_b32', 'v10', 'v8'); P.e('v_mov_b32', 'v11', 'v9')
        P.e('v_mov_b32', 'v12', 'v8'); P.e('v_mov_b32', 'v13', 'v9')
        P.e(sw, 'v10', 'v12'); P.e(sw, 'v11', 'v13')
        P.e('v_add_f32', 'v8', 'v10', 'v12'); P.e('v_add_f32', 'v9', 'v11', 'v13')
    P.e('v_lshlrev_b32', 'v10', '3', 'v0')
    P.e('ds_write_b64', 'v10', 'v[8:9]')
    P.e('v_xor_b32', 'v11', '512', 'v10')
    P.wait_lgkm(0)
    P.barrier()
    P.e('ds_read_b64', 'v[12:13]', 'v11')
    P.e('v_add_f32', 'v8', 'v8', 'v12')
    P.e('v_add_f32', 'v9', 'v9', 'v13')
    P.e('v_mul_f32', 'v8', f2h(1.0 / 576), 'v8')
    P.e('v_mul_f32', 'v9', f2h(1.0 / 576), 'v9')
    P.e('v_fma_f32', 'v9', '-v8', 'v8', 'v9')
    P.e('v_max_f32', 'v9', '0', 'v9')
    P.e('v_add_f32', 'v9', f2h(1e-5), 'v9')
    P.e('v_rsq_f32', 'v9', 'v9')
    P.e('v_mul_f32', 'v8', 'v8', 'v9')
    P.e('v_sub_f32', 'v8', '0', 'v8')
    P.e('s_mov_b32', 's24', '0xffff0000')
    for j in range(36):
        a, b = 10 + 2 * (j % 2), 11 + 2 * (j % 2)
        P.e('v_lshlrev_b32', vr(a), '16', vr(X + j))
        P.e('v_and_b32', vr(b), 's24', vr(X + j))
        P.e('v_fma_f32', vr(a), vr(a), 'v9', 'v8')
        P.e('v_fma_f32', vr(b), vr(b), 'v9', 'v8')
        P.e('v_cvt_pk_bf16_f32', vr(X + j), vr(a), vr(b))
    P.e('v_lshlrev_b32', 'v6', '4', 'v1')
    P.e('s_mul_i32', 's25', 's2', str(18 * 1024))
    P.e('s_mul_i32', 's26', 's20', str(9 * 1024))
    P.e('s_add_u32', 's25', 's25', 's26')
    for t in range(9):
        if t % 4 == 0 and t:
            P.e('s_add_u32', 's25', 's25', '4096')
        P.e('buffer_store_dwordx4', vr(X + 4 * t, 4), 'v6', 's[12:15]', 's25', mods=f'offen offset:{1024 * (t % 4)}')
    tl_end(P, opts, 0)
    hx_slot(P, opts, 5, 'max', False)
    P.raw("  s_endpgm")
    P.label("K0_pack")
    P.vm_q = []; P.lds_q = []
    e = P.e
    e('s_load_dwordx2', 's[4:5]', 's[0:1]', '8')
    e('s_load_dwordx2', 's[6:7]', 's[0:1]', '72')
    e('v_and_b32', 'v1', '63', 'v0'); e('v_lshrrev_b32', 'v2', '6', 'v0')
    e('v_readfirstlane_b32', 's20', 'v2')
    e('s_sub_u32', 's21', 's2', '128'); e('s_lshl_b32', 's21', 's21', '1'); e('s_add_u32', 's21', 's21', 's20')
    P.raw("  s_waitcnt lgkmcnt(0)")
    srd(P, 12, 's4', 's5', 576 * 3456)
    e('s_add_u32', 's6', 's6', str(PQ_OFF)); e('s_addc_u32', 's7', 's7', '0')
    srd(P, 16, 's6', 's7', PQ_SIZE)
    e('v_and_b32', 'v3', '15', 'v1')
    e('v_lshrrev_b32', 'v4', '4', 'v1')
    e('v_lshlrev_b32', 'v9', '4', 'v1')
    for k in range(4):
        e('s_lshl_b32', 's22', 's21', '2'); e('s_add_u32', 's22', 's22', str(k))
        e('s_mul_hi_u32', 's23', 's22', str((2 ** 32 + 143) // 144))
        e('s_mul_i32', 's24', 's23', '144'); e('s_sub_u32', 's24', 's22', 's24')
        e('s_mul_hi_u32', 's25', 's24', str((2 ** 32 + 5) // 6))
        e('s_mul_i32', 's26', 's25', '6'); e('s_sub_u32', 's26', 's24', 's26')
        e('s_lshr_b32', 's27', 's25', '2')
        e('s_and_b32', 's28', 's25', '3')
        e('s_mul_i32', 's29', 's27', '96'); e('s_lshl_b32', 's30', 's26', '4'); e('s_add_u32', 's29', 's29', 's30')
        e('s_lshl_b32', 's30', 's28', '2'); e('s_add_u32', 's29', 's29', 's30')
        e('v_add_u32', 'v5', 's29', 'v4')
        e('s_lshr_b32', 's30', 's28', '1'); e('s_lshl_b32', 's30', 's30', '2')
        e('v_or_b32', 'v6', 's30', 'v4'); e('v_lshrrev_b32', 'v7', '1', 'v3'); e('v_xor_b32', 'v6', 'v6', 'v7')
        e('v_lshlrev_b32', 'v6', '1', 'v6'); e('v_and_b32', 'v7', '1', 'v3'); e('v_or_b32', 'v6', 'v6', 'v7')
        e('v_mul_u32_u24', 'v7', '13', 'v6'); e('v_lshrrev_b32', 'v7', '6', 'v7'); e('v_min_u32', 'v7', '2', 'v7')
        e('v_mul_u32_u24', 'v8', '5', 'v7'); e('v_sub_u32', 'v8', 'v6', 'v8'); e('v_lshlrev_b32', 'v8', '4', 'v8')
        e('v_add_u32', 'v7', '1', 'v7'); e('v_cmp_eq_u32', 'vcc', '3', 'v7'); e('v_mov_b32', 'v10', '0')
        e('v_cndmask_b32', 'v7', 'v7', 'v10', 'vcc')
        e('v_mul_u32_u24', 'v7', '1152', 'v7'); e('v_add_u32', 'v8', 'v8', 'v7')
        e('s_mul_i32', 's30', 's23', '72'); e('v_add_u32', 'v8', 's30', 'v8')
        e('v_mul_u32_u24', 'v5', '3456', 'v5'); e('v_add_u32', 'v5', 'v5', 'v8')
        e('buffer_load_dwordx4', vr(16 + 4 * k, 4), 'v5', 's[12:15]', '0', mods='offen')
    e('s_lshl_b32', 's22', 's21', '12')
    for k in range(4):
        e('buffer_store_dwordx4', vr(16 + 4 * k, 4), 'v9', 's[16:19]', 's22', mods=f'offen offset:{1024 * k}')
    if NCP:
        P.raw("  s_endpgm")
        P.label("K0_code")
        P.raw("  s_getpc_b64 s[4:5]")
        P.raw("K0_pc:")
        P.raw("  s_add_u32 s4, s4, k1_main_kernel-K0_pc")
        P.raw("  s_addc_u32 s5, s5, 0")
        P.raw("  s_mov_b32 s8, s4")
        P.raw("  s_and_b32 s9, s5, 0xffff")
        P.raw("  s_mov_b32 s10, K2_end-k1_main_kernel")
        P.raw("  s_mov_b32 s11, 0x20000")
        P.raw("  v_lshlrev_b32 v1, 4, v0")
        P.raw("  s_mov_b32 s12, 0")
        P.raw("K0_cl:")
        P.raw("  buffer_load_dwordx4 v[4:7], v1, s[8:11], s12 offen")
        P.raw("  s_add_u32 s12, s12, 2048")
        P.raw("  s_cmp_lt_u32 s12, s10")
        P.raw("  s_cbranch_scc1 K0_cl")
    if NTW:
        P.raw("  s_endpgm")
        P.label("K0_touch")
        P.vm_q = []; P.lds_q = []
        e('s_load_dwordx2', 's[4:5]', 's[0:1]', '48')
        e('s_load_dwordx2', 's[6:7]', 's[0:1]', '16')
        e('s_sub_u32', 's21', 's2', str(128 + NPK + NCP))
        e('v_lshlrev_b32', 'v1', '7', 'v0')
        P.raw("  s_waitcnt lgkmcnt(0)")
        e('s_cmp_ge_u32', 's21', '81')
        e('s_cselect_b32', 's8', 's6', 's4'); e('s_cselect_b32', 's9', 's7', 's5')
        e('s_mov_b32', 's12', str(576 * 1152)); e('s_mov_b32', 's13', str(4608 * 1152))
        e('s_cselect_b32', 's10', 's12', 's13')
        e('s_cselect_b32', 's22', '81', '0')
        e('s_and_b32', 's9', 's9', '0xffff'); e('s_mov_b32', 's11', '0x20000')
        e('s_sub_u32', 's21', 's21', 's22'); e('s_lshl_b32', 's21', 's21', '16')
        for k in range(4):
            e('buffer_load_dword', 'v4', 'v1', 's[8:11]', 's21', mods='offen')
            e('s_add_u32', 's21', 's21', '16384')
    P.label("K0_end")
    P.raw("  s_endpgm")
    return P.text(), descriptor(name, 256 if opts.get('hx', 0) else 64, 256 if opts.get('hx', 0) else 64, 102), (name, 128 + NPK + NCP + NTW, 128, 1024)


def gen_k2(opts):
    P = Prog()
    name = "k2_reduce_kernel"
    kernel_begin(P, name)
    K2W = opts.get('k2w', 4)
    NWG = 2304 // K2W
    P.e('s_cmp_ge_u32', 's2', str(NWG))
    P.raw("  s_cbranch_scc1 K2_end")
    tl_start(P, opts)
    hx_slot(P, opts, 3, 'st', True)
    P.e('s_load_dwordx2', 's[4:5]', 's[0:1]', '0')
    P.e('s_load_dwordx2', 's[6:7]', 's[0:1]', '72')
    P.e('s_load_dwordx2', 's[16:17]', 's[0:1]', '56')
    P.e('v_and_b32', 'v1', '63', 'v0')
    P.e('v_lshrrev_b32', 'v2', '6', 'v0')
    P.e('v_and_b32', 'v3', '15', 'v1')
    P.e('v_lshrrev_b32', 'v4', '4', 'v1')
    P.e('v_readfirstlane_b32', 's20', 'v2')
    P.e('v_lshlrev_b32', 'v5', '4', 'v1')
    P.raw("  s_waitcnt lgkmcnt(0)")
    srd(P, 8, 's4', 's5', 2048 * 1152)
    P.e('s_add_u32', 's6', 's6', str(P_OFF)); P.e('s_addc_u32', 's7', 's7', '0')
    srd(P, 12, 's6', 's7', P_SIZE)
    srd(P, 24, 's16', 's17', 2048 * 1152)
    P.e('s_mul_i32', 's21', 's2', str(K2W)); P.e('s_add_u32', 's21', 's21', 's20')
    P.e('s_mul_hi_u32', 's22', 's21', str((2 ** 32 + 143) // 144))
    P.e('s_mul_i32', 's23', 's22', '144'); P.e('s_sub_u32', 's23', 's21', 's23')
    D = 16
    lf = ['', ' nt', ' sc1'][opts.get('ldflag', 0)]
    P.e('s_cmp_ge_u32', 's23', '128')
    P.raw("  s_cbranch_scc1 K2_half")
    for half in (0, 1):
        if half:
            P.label("K2_half")
            P.vm_q = []; P.lds_q = []
        n = 16 if half else 8
        if not half:
            P.e('s_lshl_b32', 's28', 's22', '17'); P.e('s_lshl_b32', 's29', 's23', '10'); P.e('s_add_u32', 's28', 's28', 's29')
            stride = 16 * 131072
        else:
            P.e('s_lshl_b32', 's28', 's22', '14'); P.e('s_sub_u32', 's23', 's23', '128'); P.e('s_lshl_b32', 's29', 's23', '10')
            P.e('s_add_u32', 's28', 's28', 's29'); P.e('s_add_u32', 's28', 's28', str(HP_OFF))
            stride = 16 * 16384
        for s in range(n):
            P.e('buffer_load_dwordx4', vr(D + 4 * s, 4), 'v5', 's[12:15]', 's28', mods='offen' + lf)
            if s < n - 1:
                P.e('s_add_u32', 's28', 's28', str(stride))
        P.e('s_and_b32', 's29', 's23', '3')
        if not half:
            P.e('s_lshr_b32', 's31', 's23', '3'); P.e('s_and_b32', 's31', 's31', '3')
            P.e('s_lshr_b32', 's34', 's31', '1')
            P.e('s_lshr_b32', 's35', 's23', '5'); P.e('s_lshl_b32', 's35', 's35', '7')
            P.e('s_lshl_b32', 's36', 's34', '6'); P.e('s_add_u32', 's35', 's35', 's36')
            P.e('s_lshr_b32', 's36', 's23', '2'); P.e('s_and_b32', 's36', 's36', '1'); P.e('s_lshl_b32', 's36', 's36', '5')
            P.e('s_add_u32', 's35', 's35', 's36')
        else:
            P.e('s_lshr_b32', 's31', 's23', '2')
            P.e('s_lshr_b32', 's34', 's31', '1')
            P.e('s_lshl_b32', 's35', 's34', '5'); P.e('s_add_u32', 's35', 's35', '512')
        P.e('s_and_b32', 's33', 's31', '1')
        P.e('s_lshl_b32', 's37', 's22', '7'); P.e('s_lshl_b32', 's38', 's33', '6'); P.e('s_add_u32', 's37', 's37', 's38')
        P.e('s_lshl_b32', 's38', 's29', '4'); P.e('s_add_u32', 's37', 's37', 's38')
        P.e('v_add_u32', 'v6', 's37', 'v3')
        P.e('v_mul_u32_u24', 'v6', '1152', 'v6')
        P.e('s_lshl_b32', 's40', 's35', '1')
        P.e('v_add_u32', 'v6', 's40', 'v6')
        P.e('v_lshlrev_b32', 'v7', '3', 'v4')
        P.e('v_add_u32', 'v7', 'v6', 'v7')
        P.e('buffer_load_dwordx2', 'v[8:9]', 'v7', 's[8:11]', '0', mods='offen')
        P.e('buffer_load_dwordx2', 'v[10:11]', 'v7', 's[8:11]', '0', mods='offen offset:32')
        P.e('v_and_b32', 'v12', '1', 'v4'); P.e('v_lshlrev_b32', 'v12', '5', 'v12')
        P.e('v_lshrrev_b32', 'v13', '1', 'v4'); P.e('v_lshlrev_b32', 'v13', '4', 'v13')
        P.e('v_add3_u32', 'v6', 'v6', 'v12', 'v13')
        P.e('s_mov_b32', 's41', '0xffff0000')
        ACC = 80
        srcs = [D + 4 * s for s in range(n)] + [8]
        for si, base in enumerate(srcs):
            for j in range(4):
                d = vr(base + j)
                if si == 0:
                    P.e('v_lshlrev_b32', vr(ACC + 2 * j), '16', d)
                    P.e('v_and_b32', vr(ACC + 2 * j + 1), 's41', d)
                else:
                    t0, t1 = 88 + 2 * (j % 2), 89 + 2 * (j % 2)
                    P.e('v_lshlrev_b32', vr(t0), '16', d)
                    P.e('v_and_b32', vr(t1), 's41', d)
                    P.e('v_add_f32', vr(ACC + 2 * j), vr(ACC + 2 * j), vr(t0))
                    P.e('v_add_f32', vr(ACC + 2 * j + 1), vr(ACC + 2 * j + 1), vr(t1))
        for j in range(4):
            P.e('v_cvt_pk_bf16_f32', vr(92 + j), vr(ACC + 2 * j), vr(ACC + 2 * j + 1))
        P.e('v_permlane16_swap_b32', 'v92', 'v94')
        P.e('v_permlane16_swap_b32', 'v93', 'v95')
        P.e('buffer_store_dwordx4', 'v[92:95]', 'v6', 's[24:27]', '0', mods='offen')
        tl_end(P, opts, 2)
        if opts.get('hx', 0):
            P.raw("  s_waitcnt vmcnt(0) lgkmcnt(0)")
            P.raw("  s_memrealtime s[86:87]")
            P.raw("  s_load_dwordx2 s[84:85], s[0:1], 64")
            P.raw("  s_load_dwordx2 s[76:77], s[0:1], 72")
            P.raw("  s_waitcnt lgkmcnt(0)")
            pass
            P.raw("  s_mov_b32 s80, s84"); P.raw("  s_and_b32 s81, s85, 0xffff"); P.raw("  s_mov_b32 s82, 256"); P.raw("  s_mov_b32 s83, 0x20000")
            P.raw("  v_mov_b32 v90, s86"); P.raw("  v_mov_b32 v91, 0")
            P.raw("  v_cmp_eq_u32 vcc, 0, v1"); P.raw("  s_and_saveexec_b64 s[78:79], vcc")
            P.raw("  buffer_atomic_umax v90, v91, s[80:83], 0 offen")
            P.raw("  s_mov_b64 exec, s[78:79]")
            P.raw(f"  s_add_u32 s76, s76, {96 << 20}"); P.raw("  s_addc_u32 s77, s77, 0")
            P.raw("  s_mov_b32 s72, s76"); P.raw("  s_and_b32 s73, s77, 0xffff"); P.raw("  s_mov_b32 s74, 4096"); P.raw("  s_mov_b32 s75, 0x20000")
            P.raw("  v_lshlrev_b32 v91, 2, v1")
            P.raw("  v_cmp_gt_u32 vcc, 6, v1"); P.raw("  s_and_saveexec_b64 s[78:79], vcc")
            P.raw("  buffer_load_dword v90, v91, s[72:75], 0 offen sc1"); P.raw("  s_waitcnt vmcnt(0)")
            P.raw("  buffer_store_dword v90, v91, s[80:83], 0 offen offset:4")
            P.raw("  s_waitcnt vmcnt(0)")
            P.raw("  s_mov_b64 exec, s[78:79]")
        if not half:
            P.raw("  s_endpgm")
    P.label("K2_end")
    P.raw("  s_endpgm")
    return P.text(), descriptor(name, 256 if opts.get('hx', 0) else 96, 256 if opts.get('hx', 0) else 96, 102), (name, NWG, 64 * K2W, 0)


class K1:
    V_LANE, V_C16, V_G, V_T0, V_T1, V_T2, V_T3, V_T4 = 1, 2, 3, 4, 5, 6, 7, 8
    ACC0, ACC1 = 16, 80
    FR = 144
    NFR = 6
    XV = 168
    TQ = 200
    TG = 204
    TH = 208
    TP = 210
    TPH = 214
    DQ = 216
    DG = 219
    DH = 222
    DP = 225
    DPH = 228
    HW = 231
    HWX = 233
    HR = 234
    XR = 236
    SW = 237
    AB = 241
    OW = 242
    PV = 243
    MG = 244
    XA = 245
    TD = 168
    HAL = 248
    HALX = 8

    S_W, S_S, S_I = 20, 21, 22
    S_RG2, S_CH = 23, 24
    S_LDSW = 25
    S_XF = 26
    S_FB = 88
    S_YC = 28
    S_FPB, S_MBO, S_MBP, S_HPB, S_FSH, S_FOFF = 17, 18, 19, 44, 26, 27
    SRD_DBG = 48
    S_TCH = 33
    INC = [176, 180, 184, 188, 192, 196, 248, 252]
    INC2 = [200, 204, 216, 220, 232, 236, 8, 12]
    V_POLL = 4
    S_T0, S_T1, S_T2, S_T3 = 34, 35, 36, 37
    S_SOFF = 38
    S_NLOG2E = 39
    S_AC = 40
    S_PERM0, S_PERM1 = 41, 42
    S_NEG = 43
    S_QC = 44
    S_PO = 45
    S_PO2 = 40
    SRD_XF, SRD_QKV, SRD_GU, SRD_WD, SRD_WO, SRD_P = 48, 52, 56, 60, 64, 68
    S_FB2 = 4
    S_FBR = 9
    S_WOR = 16
    S_XL, S_XH, S_SOFF2 = 17, 18, 19

    def __init__(self, opts):
        self.P = Prog()
        self.o = opts

    def xreg(self, t, mb):
        j = 4 * t + mb
        return ar(4 * j, 4) if j < 64 else vr(self.XV + 4 * (j - 64), 4)

    def hreg(self, k, mb):
        return ar(16 * k + 4 * mb, 4)

    def halo_x(self, t):
        return vr(self.ACC1 + 4 * t, 4) if t < 16 else vr(self.HALX + 4 * (t - 16), 4)

    def prologue(self):
        P = self.P
        e = P.e
        e('s_cmp_ge_u32', 's2', '256')
        P.raw("  s_cbranch_scc1 K1_end")
        tl_start(P, self.o)
        hx_slot(P, self.o, 1, 'st', True)
        if self.o.get('prof', 0):
            P.raw("  s_memtime s[46:47]")
            P.raw("  s_memrealtime s[98:99]")
        e('s_load_dwordx2', 's[14:15]', 's[0:1]', '72')
        e('s_load_dwordx2', 's[6:7]', 's[0:1]', '16')
        e('s_load_dwordx4', 's[8:11]', 's[0:1]', '32')
        e('s_load_dwordx2', 's[12:13]', 's[0:1]', '48')
        L, C16, G = vr(self.V_LANE), vr(self.V_C16), vr(self.V_G)
        e('v_and_b32', L, '63', 'v0')
        e('v_lshrrev_b32', 'v4', '6', 'v0')
        e('v_and_b32', C16, '15', L)
        e('v_lshrrev_b32', G, '4', L)
        e('v_readfirstlane_b32', sr(self.S_W), 'v4')
        e('v_lshlrev_b32', vr(self.PV), '4', L)
        e('s_and_b32', sr(self.S_S), 's2', '3'); e('s_lshl_b32', sr(self.S_S), sr(self.S_S), '2')
        e('s_bfe_u32', sr(self.S_T0), 's2', '0x20003'); e('s_add_u32', sr(self.S_S), sr(self.S_S), sr(self.S_T0))
        e('s_bfe_u32', sr(self.S_I), 's2', '0x10002'); e('s_lshl_b32', sr(self.S_I), sr(self.S_I), '3')
        e('s_lshr_b32', sr(self.S_T0), 's2', '5'); e('s_add_u32', sr(self.S_I), sr(self.S_I), sr(self.S_T0))
        e('s_and_b32', sr(self.S_RG2), sr(self.S_W), '1'); e('s_lshr_b32', sr(self.S_CH), sr(self.S_W), '1')
        e('s_mul_i32', sr(self.S_LDSW), sr(self.S_W), '6144')
        e('s_lshl_b32', sr(self.S_T0), sr(self.S_I), '3'); e('s_lshl_b32', sr(self.S_T1), sr(self.S_W), '1')
        e('s_add_u32', sr(self.S_T0), sr(self.S_T0), sr(self.S_T1))
        e('s_mul_i32', sr(self.S_XF), sr(self.S_T0), '18432')
        e('s_lshr_b32', sr(self.S_T0), sr(self.S_W), '1'); e('s_mul_i32', sr(self.S_XL), sr(self.S_T0), '36864')
        e('s_and_b32', sr(self.S_T0), sr(self.S_W), '1'); e('s_mul_i32', sr(self.S_T0), sr(self.S_T0), '6144')
        e('s_add_u32', sr(self.S_XL), sr(self.S_XL), sr(self.S_T0))
        e('s_min_u32', sr(self.S_T1), sr(self.S_W), '2'); e('s_lshl_b32', sr(self.S_XH), sr(self.S_T1), '10')
        e('s_lshl_b32', sr(self.S_T0), sr(self.S_I), '3'); e('s_sub_u32', sr(self.S_T0), sr(self.S_T0), '1')
        e('s_mul_i32', sr(self.S_T0), sr(self.S_T0), '18432'); e('s_add_u32', sr(self.S_T0), sr(self.S_T0), sr(self.S_XH))
        e('s_cmp_eq_u32', sr(self.S_I), '0'); e('s_cselect_b32', sr(self.S_XF + 1), '0x7f000000', sr(self.S_T0))
        e('s_mul_i32', sr(self.S_T2), sr(self.S_S), '147456'); e('s_add_u32', sr(self.S_T2), sr(self.S_T2), str(PQ_OFF))
        P.raw("  s_waitcnt lgkmcnt(0)")
        e('s_add_u32', sr(self.S_T0), 's14', str(XF_OFF)); e('s_addc_u32', sr(self.S_T1), 's15', '0')
        srd(P, self.SRD_XF, sr(self.S_T0), sr(self.S_T1), XF_SIZE)
        e('s_add_u32', sr(self.S_T0), 's14', sr(self.S_T2)); e('s_addc_u32', sr(self.S_T1), 's15', '0')
        srd(P, self.SRD_QKV, sr(self.S_T0), sr(self.S_T1), 147456)

    def scalars_late(self, e, srd_):
        srd_(self.SRD_WO, 's6', 's7', 576 * 1152)
        e('s_cmp_ge_u32', sr(self.S_W), '2')
        e('s_cselect_b32', sr(self.S_T0), 's10', 's8'); e('s_cselect_b32', sr(self.S_T1), 's11', 's9')
        srd_(self.SRD_GU, sr(self.S_T0), sr(self.S_T1), 576 * 9216)
        srd_(self.SRD_WD, 's12', 's13', 4608 * 1152)
        e('s_add_u32', sr(self.S_T0), 's14', str(P_OFF)); e('s_addc_u32', sr(self.S_T1), 's15', '0')
        srd_(self.SRD_P, sr(self.S_T0), sr(self.S_T1), P_SIZE)
        e('s_mul_i32', sr(self.S_T0), sr(self.S_S), '288')
        e('s_and_b32', sr(self.S_T1), sr(self.S_S), '1')
        e('s_lshl_b32', sr(self.S_T2), sr(self.S_T1), '5'); e('s_add_u32', sr(self.S_T2), sr(self.S_T2), sr(self.S_T0))
        for j in range(4):
            e('s_add_u32', sr(self.S_T3), sr(self.S_I), str(j)); e('s_and_b32', sr(self.S_T3), sr(self.S_T3), '3')
            e('s_lshl_b32', sr(self.S_T3), sr(self.S_T3), '6'); e('s_add_u32', sr(self.S_FB + j), sr(self.S_T2), sr(self.S_T3))
        e('s_cmp_eq_u32', sr(self.S_T1), '1'); e('s_cselect_b32', sr(self.S_T3), '0', '256')
        e('s_add_u32', sr(self.S_FB + 4), sr(self.S_T0), sr(self.S_T3))
        for j in range(5):
            e('s_lshl_b32', sr(self.S_FB2 + j), sr(self.S_FB + j), '1')
            e('s_mul_i32', sr(self.S_FBR + j), sr(self.S_FB + j), '1152')
        e('s_mul_i32', sr(self.S_WOR), sr(self.S_S), str(36 * 1152))
        e('s_and_b32', sr(self.S_T0), sr(self.S_S), '1'); e('s_lshl_b32', sr(self.S_T0), sr(self.S_T0), '1')
        for k in range(4):
            e('s_add_u32', sr(self.S_T1), sr(self.S_T0), str(k)); e('s_and_b32', sr(self.S_T1), sr(self.S_T1), '3')
            e('s_lshl_b32', sr(self.S_YC + k), sr(self.S_T1), '8')
        e('s_mov_b32', sr(self.S_NLOG2E), f2h(-LOG2E))
        e('s_mov_b32', sr(self.S_AC), f2h(LOG2E / math.sqrt(18.0)))
        e('s_mov_b32', sr(self.S_PERM0), '0x05040100'); e('s_mov_b32', sr(self.S_PERM1), '0x07060302')
        e('s_mov_b32', sr(self.S_NEG), f2h(-1e30))

    TA, TB, TC, TDm = 'v4', 'v5', 'v6', 'v7'
    TR, TCC8, TG1, TG2 = 'v247', 'v244', 'v242', 'v241'

    def addr_first(self, e):
        L, C16, G = vr(self.V_LANE), vr(self.V_C16), vr(self.V_G)
        a, b, c = self.TA, self.TB, self.TC
        r, cc8, g1, g2 = self.TR, self.TCC8, self.TG1, self.TG2
        W, RG2 = sr(self.S_W), sr(self.S_RG2)
        T0, T1, T2, T3 = sr(self.S_T0), sr(self.S_T1), sr(self.S_T2), sr(self.S_T3)
        e('v_lshrrev_b32', r, '2', C16)
        e('v_and_b32', cc8, '3', C16); e('v_lshlrev_b32', cc8, '3', cc8)
        e('v_and_b32', g1, '1', G)
        e('v_lshrrev_b32', g2, '1', G)
        e('v_mul_u32_u24', a, '12288', g1)
        e('v_lshl_add_u32', a, g2, '10', a)
        e('v_lshl_add_u32', a, r, '8', a)
        e('v_add_u32', a, a, cc8)
        e('v_lshl_or_b32', b, g1, '2', r)
        e('s_mov_b32', T0, '0x10525210'); e('s_mov_b32', T1, '0x63747463')
        e('s_lshl_b32', T2, W, '4')
        e('s_lshr_b64', sr(self.S_T0, 2), sr(self.S_T0, 2), T2)
        e('s_mov_b32', sr(self.S_QC), T0)
        for u in range(4):
            e('s_bfe_u32', T2, T0, hex((4 << 16) | (4 * u)))
            e('v_xor_b32', c, T2, b); e('v_lshl_add_u32', vr(self.TQ + u), c, '5', a)
        e('s_mul_i32', T0, RG2, '36864'); e('s_add_u32', T0, T0, str(HB))
        e('v_add_u32', vr(self.XA), T0, vr(self.PV))
        e('v_add_u32', vr(self.XA + 1), str(HB + 73728), vr(self.PV))

    def addr_late(self, e):
        L, C16, G = vr(self.V_LANE), vr(self.V_C16), vr(self.V_G)
        a, b, c, d = self.TA, self.TB, self.TC, self.TDm
        r, cc8, g1, g2 = self.TR, self.TCC8, self.TG1, self.TG2
        W, CH, RG2 = sr(self.S_W), sr(self.S_CH), sr(self.S_RG2)
        T0, T1, T2, T3 = sr(self.S_T0), sr(self.S_T1), sr(self.S_T2), sr(self.S_T3)
        e('v_lshrrev_b32', b, '3', L)
        e('v_bfe_u32', a, b, '1', '1')
        e('s_and_b32', T0, W, '1'); e('s_lshl_b32', T1, T0, '1')
        e('v_or_b32', a, T1, a)
        e('v_bfe_u32', c, L, '1', '2')
        e('v_xor_b32', a, a, c); e('v_lshlrev_b32', a, '1', a)
        e('v_and_b32', c, '1', L); e('v_or_b32', a, a, c)
        e('s_lshl_b32', T1, T0, '3')
        e('v_add_u32', c, T1, b)
        e('v_mul_u32_u24', c, '9216', c)
        e('v_lshl_add_u32', vr(self.DG), a, '4', c)
        for j in (1, 2):
            e('v_add_u32', vr(self.DG + j), str(j * (16 * 9216 - 1024)), vr(self.DG))
        e('s_lshl_b32', T1, W, '3')
        e('v_add_u32', c, T1, b)
        e('v_mul_u32_u24', c, '1152', c)
        e('v_lshl_add_u32', vr(self.DPH), a, '4', c)
        for j in (1, 2):
            e('v_add_u32', vr(self.DPH + j), str(j * (32 * 1152 - 1024)), vr(self.DPH))
        e('v_lshrrev_b32', b, '2', L)
        e('v_lshrrev_b32', a, '3', b); e('v_lshlrev_b32', a, '1', a)
        e('v_and_b32', c, '3', L); e('v_xor_b32', a, a, c)
        e('s_lshl_b32', T1, T0, '4')
        e('v_add_u32', c, T1, b)
        e('v_mul_u32_u24', c, '9216', c)
        e('v_lshl_add_u32', vr(self.DH), a, '4', c)
        for j in (1, 2):
            e('v_add_u32', vr(self.DH + j), str(j * (32 * 9216 - 1024)), vr(self.DH))
        e('s_lshr_b32', T0, W, '1'); e('s_lshl_b32', T0, T0, '2')
        e('v_or_b32', a, T0, G)
        e('v_lshrrev_b32', b, '1', C16)
        e('v_xor_b32', a, a, b)
        e('v_lshlrev_b32', a, '1', a)
        e('v_and_b32', b, '1', C16)
        e('v_or_b32', a, a, b)
        e('s_lshl_b32', T1, W, '2')
        e('v_add_u32', b, T1, G)
        e('v_mul_u32_u24', c, '1152', b)
        e('v_lshl_add_u32', vr(self.DP), a, '4', c)
        for j in (1, 2):
            e('v_add_u32', vr(self.DP + j), str(j * (16 * 1152 - 1024)), vr(self.DP))
        e('v_mul_u32_u24', a, '6144', g1)
        e('v_lshl_add_u32', a, g2, '10', a)
        e('v_lshl_add_u32', a, r, '7', a)
        e('v_add_u32', a, a, cc8)
        e('v_lshrrev_b32', b, '1', r); e('v_lshl_or_b32', b, g1, '1', b)
        for bb in range(2):
            e('s_lshl_b32', T2, CH, '1'); e('s_add_u32', T2, T2, str(bb))
            e('v_xor_b32', c, T2, b); e('v_lshl_add_u32', vr(self.TG + bb), c, '5', a)
            e('v_add_u32', vr(self.TG + 2 + bb), '12288', vr(self.TG + bb))
        e('v_mul_u32_u24', a, '6144', G)
        e('v_lshl_add_u32', a, r, '7', a)
        e('v_add_u32', a, a, cc8)
        for bb in range(2):
            e('s_lshl_b32', T2, CH, '1'); e('s_add_u32', T2, T2, str(bb))
            e('v_xor_b32', c, T2, b); e('v_lshl_add_u32', vr(self.TPH + bb), c, '5', a)
        e('v_mul_u32_u24', a, '6144', g2)
        e('v_lshl_add_u32', c, g1, '3', r); e('v_lshl_add_u32', a, c, '6', a)
        e('v_add_u32', a, a, cc8)
        e('v_xor_b32', c, CH, g1); e('v_lshl_add_u32', vr(self.TH), c, '5', a)
        e('v_add_u32', vr(self.TH + 1), '12288', vr(self.TH))
        e('v_mul_u32_u24', a, '12288', g1)
        e('v_lshl_add_u32', a, g2, '10', a)
        e('v_lshl_add_u32', a, r, '8', a)
        e('v_add_u32', a, a, cc8)
        e('v_lshl_or_b32', b, g1, '2', r)
        for u in range(4):
            e('s_lshl_b32', T2, CH, '2'); e('s_add_u32', T2, T2, str(u))
            e('v_xor_b32', c, T2, b); e('v_lshl_add_u32', vr(self.TP + u), c, '5', a)
        e('s_lshl_b32', T3, RG2, '6'); e('s_add_u32', T3, T3, '16')
        e('v_add_u32', c, T3, C16); e('v_mul_u32_u24', c, str(SPITCH), c)
        e('v_lshl_add_u32', c, G, '3', c)
        for u in range(4):
            e('s_bfe_u32', T2, sr(self.S_QC), hex((4 << 16) | (4 * u)))
            e('s_lshl_b32', T2, T2, '5'); e('s_add_u32', T2, T2, str(SB))
            e('v_add_u32', vr(self.SW + u), T2, c)
        e('s_lshl_b32', T2, RG2, '6'); e('v_add_u32', a, T2, C16)
        e('s_lshl_b32', T3, CH, '2'); e('v_add_u32', b, T3, g2)
        e('v_and_b32', c, '7', C16); e('v_xor_b32', b, b, c)
        e('v_lshlrev_b32', b, '4', b); e('v_lshl_add_u32', b, g1, '3', b)
        e('v_lshl_add_u32', b, a, '7', b)
        e('v_add_u32', vr(self.HW), str(HB), b)
        e('v_xor_b32', vr(self.HW + 1), '32', vr(self.HW))
        e('v_xor_b32', b, G, c); e('v_lshlrev_b32', b, '4', b); e('v_lshl_add_u32', b, a, '7', b)
        e('v_add_u32', vr(self.HR), str(HB), b)
        e('v_xor_b32', vr(self.HR + 1), '64', vr(self.HR))
        e('v_mul_u32_u24', b, str(XPITCH), a)
        e('v_add_u32', b, str(XB), b)
        e('v_lshl_add_u32', vr(self.XR), G, '4', b)
        e('s_lshl_b32', T3, CH, '5')
        e('v_lshl_add_u32', c, G, '3', b); e('v_add_u32', vr(self.HWX), T3, c)
        e('v_and_b32', a, '31', L); e('v_lshrrev_b32', b, '5', L)
        e('s_lshl_b32', T2, W, '5')
        e('v_add_u32', a, T2, a)
        e('s_lshl_b32', T3, sr(self.S_I), '7'); e('v_add_u32', vr(self.MG), T3, a)
        e('v_add_u32', c, '2', a); e('v_mul_u32_u24', c, str(SPITCH), c)
        e('v_lshl_add_u32', c, b, '5', c); e('v_add_u32', vr(self.AB), str(SB), c)
        e('v_mul_u32_u24', c, str(XPITCH), a); e('v_lshl_add_u32', c, b, '5', c)
        e('v_add_u32', vr(self.OW), str(XB + 64), c)

    def task_late_setup(self):
        T = []
        e = lambda op, *a, **k: T.append(I(op, *a, **k))

        def srd_(d, lo, hi, size):
            e('s_mov_b32', sr(d), lo); e('s_and_b32', sr(d + 1), hi, '0xffff'); e('s_mov_b32', sr(d + 2), str(size)); e('s_mov_b32', sr(d + 3), '0x20000')
        self.scalars_late(e, srd_)
        S = list(T)
        T.clear()
        self.addr_late(e)
        return [S] + T

    def build(self):
        self.stages = []
        self.ksteps = []
        strips = []

        def add_stage(dml):
            self.stages.append(dml)
            return len(self.stages) - 1

        def strip_generic(name, nk, ks_per_stage, nfrag, dma_fn, tr_fn, mf_fn):
            st = dict(name=name, ks=[])
            for t in range(nk):
                tl = t % ks_per_stage
                if tl == 0:
                    n_in = min(ks_per_stage, nk - t)
                    dml = []
                    for tt in range(n_in):
                        dml += dma_fn(t + tt, tt)
                    sid = add_stage(dml)
                frs = [tr_fn(t, tl, u) for u in range(nfrag)]
                st['ks'].append(dict(t=t, stage=sid, frags=frs, mf=[mf_fn(t, u) for u in range(nfrag)], last_in_stage=(tl == ks_per_stage - 1 or t == nk - 1)))
            strips.append(st)
            return st

        A0, A1 = self.ACC0, self.ACC1
        acc = lambda buf, u, mb: vr(buf + 16 * u + 4 * mb, 4)

        def dq(t, tt):
            r = t // 3
            return [(self.SRD_QKV, ('pq', 0), (r * 24 + 2 * tt + e) * 1024, self.PV, 1024, 2 * tt + e) for e in range(2)]

        def trq(t, tl, u):
            return (self.TQ + u, tl * 2048, 6144)

        def mfq(t, u):
            L = [(acc(A0, u, mb), self.xreg(t, mb)) for mb in range(4)]
            if u < 2:
                L.append((vr(self.HAL + 4 * u, 4), self.halo_x(t)))
            return L
        strip_generic('QKV', 18, 3, 4, dq, trq, mfq)

        def ffn(j, buf):
            def dg(t, tt):
                return [(self.SRD_GU, ('fb2', j), (32 * t + 16 * e) * 9216, self.DG, 16 * 9216, 2 * tt + e) for e in range(2)]

            def trg(t, tl, u):
                return (self.TG + u, tl * 2048, 512)

            def mfg(t, u):
                return [(acc(buf, u, mb), self.xreg(t, mb)) for mb in range(4)]
            return strip_generic(f'F{j}', 18, 3, 4, dg, trg, mfg)
        ffn(0, A1); ffn(1, A0); ffn(2, A1); ffn(3, A0)

        def dh(t, tt):
            return [(self.SRD_GU, ('fb2', 4), (32 * t) * 9216, self.DH, 32 * 9216, tt)]

        def trh(t, tl, u):
            return (self.TH + u, tl * 1024, 256)

        def mfh(t, u):
            return [(acc(A1, u, mb), self.xreg(t, mb)) for mb in range(4)]
        strip_generic('F4h', 18, 6, 2, dh, trh, mfh)

        self.kmap = [('F', 0, 0), ('F', 0, 1), ('F', 1, 0), ('F', 1, 1), ('F', 2, 0), ('F', 2, 1), ('O', 0, 0), ('O', 0, 1), ('F', 3, 0), ('F', 3, 1), ('X', 4, 0)]

        def p2rows(k):
            kind, j, tt = self.kmap[k]
            if kind == 'O':
                return self.SRD_WO, ('wo', 0), 32 * tt
            return self.SRD_WD, ('fbr', j), 32 * tt

        def p2full(Y, buf):
            def dp(t, tt):
                s_, b_, r0 = p2rows(t)
                return [(s_, b_ + ('y', Y), (r0 + 16 * e) * 1152, self.DP, 16 * 1152, 2 * tt + e) for e in range(2)]

            def trp(t, tl, u):
                return (self.TP + u, tl * 2048, 6144)

            def mfp(t, u):
                return [(acc(buf, u, mb), self.hreg(t, mb)) for mb in range(4)]
            return strip_generic(f'P{Y}', 11, 3, 4, dp, trp, mfp)
        def dph(t, tt):
            s_, b_, r0 = p2rows(t)
            return [(s_, b_, r0 * 1152 + 1024, self.DPH, 32 * 1152, tt)]

        def trph(t, tl, u):
            return (self.TPH + u, tl * 1024, 512)

        def mfph(t, u):
            return [(acc(A0, u, mb), self.hreg(t, mb)) for mb in range(4)]
        p2full(0, A0); p2full(1, A1)
        strip_generic('P4h', 11, 6, 2, dph, trph, mfph)
        p2full(2, A1); p2full(3, A0)
        self.strips = strips
        x0 = [st for st in strips if st['name'] == 'P0'][0]['ks'][9]['stage']
        first_deep = x0
        self.first_deep = first_deep
        self.slot = {}
        nst = len(self.stages)
        for sid in range(nst):
            if sid < first_deep or not self.o.get('deep', 1):
                self.slot[sid] = sid % 3
        if self.o.get('deep', 1):
            order = [3, 4, (x0 - 3) % 3, (x0 - 2) % 3, 5, (x0 - 1) % 3]
            for k, sid in enumerate(range(first_deep, nst)):
                self.slot[sid] = order[k % 6]

    def slot_base(self, sid):
        sl = self.slot[sid]
        return sl * SLOT if sl < 3 else HB + (sl - 3) * SLOT

    def dma_items(self, sid):
        sbase = self.slot_base(sid)
        items = []
        prev = None
        for (srd_, base, goff, vbase, qdelta, q) in self.stages[sid]:
            share = False
            lin = base is not None and base[0] == 'pq'
            if prev is not None:
                psrd, pbase, pgoff, pq, pj = prev
                j = pj + 1
                if psrd == srd_ and pbase == base and j <= (3 if lin else 2) and q == pq + 1 and goff == pgoff + qdelta:
                    share = True
            pre = []
            if not share:
                j = 0
                pre.append(I('s_add_u32', 'm0', sr(self.S_LDSW), str(sbase + q * 1024)))
                so = sr(self.S_SOFF)
                if lin:
                    pre.append(I('s_add_u32', so, sr(self.S_LDSW), str(goff)))
                elif base[0] == 'fb2':
                    pre.append(I('s_add_u32', so, sr(self.S_FB2 + base[1]), str(goff)))
                elif base[0] == 'fbr':
                    pre.append(I('s_add_u32', so, sr(self.S_FBR + base[1]), str(goff)))
                elif base[0] == 'wo':
                    pre.append(I('s_add_u32', so, sr(self.S_WOR), str(goff)))
                if base[-2] == 'y':
                    pre.append(I('s_add_u32', so, so, sr(self.S_YC + base[-1])))
            if pre:
                cur = pre
            items.append((cur, I('buffer_load_dwordx4', vr(vbase if lin else vbase + j), sr(srd_, 4), sr(self.S_SOFF),
                                 mods=f'offen offset:{1024 * j} lds' if j else 'offen lds', tag=('st', sid))))
            prev = (srd_, base, goff, q, j)
        return items

    def task_qkv_epi(self):
        T = []
        A0 = self.ACC0
        T.append(I('v_mov_b32', 'v4', '0')); T.append(I('v_mov_b32', 'v5', '0'))
        T.append(I('v_and_b32', 'v6', '127', 'v0')); T.append(I('v_mul_u32_u24', 'v6', str(XPITCH), 'v6'))
        T.append(I('v_add_u32', 'v6', str(XB + 136), 'v6'))
        T.append(I('ds_write_b64', 'v6', 'v[4:5]', flag='bar'))
        for u in range(4):
            for mb in range(4):
                a = A0 + 16 * u + 4 * mb
                T.append(I('v_cvt_pk_bf16_f32', vr(a), vr(a), vr(a + 1)))
                T.append(I('v_cvt_pk_bf16_f32', vr(a + 1), vr(a + 2), vr(a + 3)))
                T.append(I('ds_write_b64', vr(self.SW + u), vr(a, 2), mods=f'offset:{mb * 16 * SPITCH}', flag='bar'))
        for u in range(2):
            a = self.HAL + 4 * u
            T.append(I('v_cvt_pk_bf16_f32', vr(a), vr(a), vr(a + 1)))
            T.append(I('v_cvt_pk_bf16_f32', vr(a + 1), vr(a + 2), vr(a + 3)))
            T.append(I('s_lshl_b32', sr(self.S_T2), sr(self.S_RG2), '6'))
            T.append(I('s_add_u32', sr(self.S_T2), sr(self.S_T2), '16'))
            T.append(I('s_mul_i32', sr(self.S_T2), sr(self.S_T2), str(SPITCH)))
            T.append(I('v_subrev_u32', vr(a + 2), sr(self.S_T2), vr(self.SW + u)))
            T.append(I('ds_write_b64', vr(a + 2), vr(a, 2), flag='bar'))
        return T

    def task_attn(self):
        T = []
        B = self.ACC0
        Q = B
        KA = [B + 12, B + 24]
        S = B + 36
        O = B + 44
        KB = [O, O + 10]
        TP = [4, 5, 6, 7, 8, 9, 10, 11, 12, 13, 14, 15, 248, 249, 250, 251, 252, 253, 254, 255]
        AB = vr(self.AB)

        def rd(dst, off):
            if dst % 2 == 0 and dst % 4 == 0:
                return [I('ds_read_b128', vr(dst, 4), AB, mods=f'offset:{off}'),
                        I('ds_read_b128', vr(dst + 4, 4), AB, mods=f'offset:{off + 16}'),
                        I('ds_read_b64', vr(dst + 8, 2), AB, mods=f'offset:{off + 32}')]
            return [I('ds_read_b128', vr(dst, 4), AB, mods=f'offset:{off}'),
                    I('ds_read_b128', vr(dst + 4, 4), AB, mods=f'offset:{off + 16}'),
                    I('ds_read_b64', vr(dst + 8, 2), AB, mods=f'offset:{off + 32}')]
        rowoff = lambda w: (14 - 2 * w) * SPITCH
        T += rd(Q, rowoff(0) + 160)
        T += rd(KA[0], rowoff(0)); T += rd(KA[1], rowoff(1))
        T += rd(KB[0], rowoff(2)); T += rd(KB[1], rowoff(3))
        T.append(I('v_mov_b32', vr(S), '0'))
        T.append([I('v_cmp_gt_u32', 'vcc', '32', vr(self.V_LANE)),
                  I('v_cndmask_b32', vr(Q + 9), vr(Q + 9), vr(S), 'vcc'),
                  I('v_cndmask_b32', vr(Q + 0), vr(S), vr(Q + 0), 'vcc')])
        for w in range(0, 8, 2):
            bufs = KA if (w // 2) % 2 == 0 else KB
            burst = []
            for ww, kb in ((w, bufs[0]), (w + 1, bufs[1])):
                burst.append(I('v_dot2_f32_bf16', vr(S + ww), vr(Q), vr(kb), '0'))
            for j in range(1, 10):
                for ww, kb in ((w, bufs[0]), (w + 1, bufs[1])):
                    burst.append(I('v_dot2_f32_bf16', vr(S + ww), vr(Q + j), vr(kb + j), vr(S + ww)))
            T.append(burst)
            if w + 4 < 8:
                T += rd(bufs[0], rowoff(w + 4)); T += rd(bufs[1], rowoff(w + 5))
            elif w == 4:
                T += rd(KA[0], rowoff(0) + 80); T += rd(KA[1], rowoff(1) + 80)
        NEG = vr(Q + 10)
        T.append(I('v_mov_b32', NEG, sr(self.S_NEG)))
        for w in range(1, 8):
            T.append([I('v_cmp_le_u32', 'vcc', str(2 * w), vr(self.MG)), I('s_nop', '1'),
                      I('v_cndmask_b32', vr(S + w), NEG, vr(S + w), 'vcc')])
        MX = vr(Q + 11)
        T.append(I('v_max3_f32', MX, vr(S), vr(S + 1), vr(S + 2)))
        T.append(I('v_max3_f32', MX, MX, vr(S + 3), vr(S + 4)))
        T.append(I('v_max3_f32', MX, MX, vr(S + 5), vr(S + 6)))
        T.append(I('v_max_f32', MX, MX, vr(S + 7)))
        T.append(I('v_mul_f32', MX, sr(self.S_AC), MX))
        for w in range(8):
            T.append(I('v_fma_f32', vr(S + w), vr(S + w), sr(self.S_AC), '-' + MX))
        for w in range(8):
            T.append(I('v_exp_f32', vr(S + w), vr(S + w)))
        SUM = vr(Q + 10)
        T.append(I('v_add_f32', SUM, vr(S), vr(S + 1)))
        for w in range(2, 8):
            T.append(I('v_add_f32', SUM, SUM, vr(S + w)))
        T.append(I('v_rcp_f32', SUM, SUM))
        for w in range(8):
            T.append(I('v_mul_f32', vr(S + w), vr(S + w), SUM))
        for pp in range(4):
            T.append(I('v_cvt_pk_bf16_f32', vr(Q + pp), vr(S + 2 * pp), vr(S + 2 * pp + 1)))
        K0_, K1_ = KA
        for pp in range(4):
            burst = []
            for j in range(10):
                a, b = TP[2 * j], TP[2 * j + 1]
                T.append(I('v_perm_b32', vr(a), vr(K1_ + j), vr(K0_ + j), sr(self.S_PERM0)))
                T.append(I('v_perm_b32', vr(b), vr(K1_ + j), vr(K0_ + j), sr(self.S_PERM1)))
                burst.append(I('v_dot2_f32_bf16', vr(O + 2 * j), vr(a), vr(Q + pp), '0' if pp == 0 else vr(O + 2 * j)))
                burst.append(I('v_dot2_f32_bf16', vr(O + 2 * j + 1), vr(b), vr(Q + pp), '0' if pp == 0 else vr(O + 2 * j + 1)))
            if pp < 3:
                T += rd(K0_, rowoff(2 * pp + 2) + 80)
                T += rd(K1_, rowoff(2 * pp + 3) + 80)
            T.append(burst)
        OP = K0_
        for j in range(10):
            T.append(I('v_cvt_pk_bf16_f32', vr(OP + j), vr(O + 2 * j), vr(O + 2 * j + 1)))
        OW = vr(self.OW)
        for j in range(1, 9, 2):
            T.append(I('ds_write2_b32', OW, vr(OP + j), vr(OP + j + 1), mods=f'offset0:{j} offset1:{j + 1}', flag='bar'))
        t0 = TP[0]
        T.append(I('v_add_u32', vr(t0), '36', OW))
        T.append([I('v_cmp_gt_u32', 'vcc', '32', vr(self.V_LANE)), I('s_nop', '1'),
                  I('v_cndmask_b32', vr(OP), vr(OP + 9), vr(OP), 'vcc'),
                  I('v_cndmask_b32', vr(t0), vr(t0), OW, 'vcc')])
        T.append(I('ds_write_b32', vr(t0), vr(OP), flag='bar'))
        return T

    def task_silu(self, buf, j):
        T = []
        NL = sr(self.S_NLOG2E)
        chains = []
        for bb in range(2):
            for mb in range(4):
                g = buf + 16 * bb + 4 * mb
                u = buf + 16 * (2 + bb) + 4 * mb
                c = []
                for r in range(4):
                    c.append(I('v_mul_f32', vr(u + r), vr(g + r), vr(u + r)))
                for r in range(4):
                    c.append(I('v_mul_f32', vr(g + r), NL, vr(g + r)))
                for r in range(4):
                    c.append(I('v_exp_f32', vr(g + r), vr(g + r)))
                for r in range(4):
                    c.append(I('v_add_f32', vr(g + r), '1.0', vr(g + r)))
                for r in range(4):
                    c.append(I('v_rcp_f32', vr(g + r), vr(g + r)))
                for r in range(4):
                    c.append(I('v_mul_f32', vr(u + r), vr(g + r), vr(u + r)))
                c.append(I('v_cvt_pk_bf16_f32', vr(g), vr(u), vr(u + 1)))
                c.append(I('v_cvt_pk_bf16_f32', vr(g + 1), vr(u + 2), vr(u + 3)))
                if j < 4:
                    c.append(I('ds_write_b64', vr(self.HW + bb), vr(g, 2), mods=f'offset:{j * 16384 + mb * 2048}', flag='bar'))
                chains.append(c)
        Ta, Tb = [], []
        for k, c in enumerate(chains):
            (Ta if k % 2 == 0 else Tb).extend(c)
        return Ta, Tb

    def task_silu_h(self, buf):
        TT = ([], [])
        NL = sr(self.S_NLOG2E)
        for mb in range(4):
            T = TT[mb % 2]
            g = buf + 4 * mb
            u = buf + 16 + 4 * mb
            for r in range(4):
                T.append(I('v_mul_f32', vr(u + r), vr(g + r), vr(u + r)))
            for r in range(4):
                T.append(I('v_mul_f32', vr(g + r), NL, vr(g + r)))
            for r in range(4):
                T.append(I('v_exp_f32', vr(g + r), vr(g + r)))
            for r in range(4):
                T.append(I('v_add_f32', vr(g + r), '1.0', vr(g + r)))
            for r in range(4):
                T.append(I('v_rcp_f32', vr(g + r), vr(g + r)))
            for r in range(4):
                T.append(I('v_mul_f32', vr(u + r), vr(g + r), vr(u + r)))
            T.append(I('v_cvt_pk_bf16_f32', vr(g), vr(u), vr(u + 1)))
            T.append(I('v_cvt_pk_bf16_f32', vr(g + 1), vr(u + 2), vr(u + 3)))
            T.append(I('ds_write_b64', vr(self.HWX), vr(g, 2), mods=f'offset:{mb * 16 * XPITCH}', flag='bar'))
        return TT

    def task_hload(self, k):
        kind, j, tt = self.kmap[k]
        T = []
        for mb in range(4):
            d = self.hreg(k, mb)
            if kind == 'F':
                T.append(I('ds_read_b128', d, vr(self.HR + tt), mods=f'offset:{j * 16384 + mb * 2048}', flag='bar', tag=('h', k, mb)))
            elif kind == 'X':
                T.append(I('ds_read_b128', d, vr(self.XR), mods=f'offset:{mb * 16 * XPITCH}', flag='bar', tag=('h', k, mb)))
            elif tt == 0:
                T.append(I('ds_read_b128', d, vr(self.XR), mods=f'offset:{mb * 16 * XPITCH + 64}', flag='bar', tag=('h', k, mb)))
        if kind == 'O' and tt == 1:
            for mb in range(4):
                for r in range(4):
                    T.append(I('v_accvgpr_write_b32', ar(16 * k + 4 * mb + r), '0'))
            grp = [I('s_mov_b64', 'exec', '0xffff')]
            for mb in range(4):
                grp.append(I('ds_read_b128', self.hreg(k, mb), vr(self.XR), mods=f'offset:{mb * 16 * XPITCH + 128}', flag='bar', tag=('h', k, mb)))
            grp.append(I('s_mov_b64', 'exec', '-1'))
            T.append(grp)
        return T

    def touch_ld(self, vaddr, srd_):
        x = I('buffer_load_dword', 'v7', vaddr, sr(srd_, 4), sr(self.S_TCH), mods='offen')
        x.writes = []
        return x

    def task_touch(self):
        T = []
        T0, T1 = sr(self.S_T0), sr(self.S_T1)
        S = [I('s_and_b32', T0, sr(self.S_I), '7'), I('s_mul_i32', T0, T0, '41472'), I('s_mul_i32', T1, sr(self.S_S), str(288 * 1152)),
             I('s_add_u32', T0, T0, T1), I('s_mul_i32', T1, sr(self.S_W), '10368'), I('s_add_u32', sr(self.S_TCH), T0, T1)]
        T.append(S)
        T.append(I('v_lshlrev_b32', 'v247', '7', vr(self.V_LANE)))
        T.append(self.touch_ld('v247', self.SRD_WD))
        T.append([I('s_add_u32', sr(self.S_TCH), sr(self.S_TCH), str(17 * 128))])
        T.append(self.touch_ld('v247', self.SRD_WD))
        S = [I('s_and_b32', T0, sr(self.S_I), '7'), I('s_mul_i32', T0, T0, '5184'), I('s_add_u32', T0, T0, sr(self.S_WOR)),
             I('s_mul_i32', T1, sr(self.S_W), '1296'), I('s_add_u32', sr(self.S_TCH), T0, T1)]
        T.append(S)
        T.append([I('s_mov_b64', 'exec', '0xfff'), self.touch_ld('v247', self.SRD_WO), I('s_mov_b64', 'exec', '-1')])
        return T

    def task_touch_gu(self):
        T = []
        T0, T1 = sr(self.S_T0), sr(self.S_T1)
        L = vr(self.V_LANE)
        T.append(I('v_mul_u32_u24', 'v6', '205', L)); T.append(I('v_lshrrev_b32', 'v6', '10', 'v6'))
        T.append(I('v_mul_u32_u24', 'v7', '5', 'v6')); T.append(I('v_sub_u32', 'v7', L, 'v7'))
        T.append(I('v_mul_u32_u24', 'v6', '9216', 'v6')); T.append(I('v_lshl_add_u32', 'v6', 'v7', '7', 'v6'))
        S = [I('s_and_b32', T0, sr(self.S_I), '7'), I('s_mul_i32', T0, T0, '72'), I('s_and_b32', T1, sr(self.S_W), '1'), I('s_mul_i32', T1, T1, '36'),
             I('s_add_u32', T0, T0, T1), I('s_mul_i32', T0, T0, '9216'), I('s_mul_i32', T1, sr(self.S_S), '576'), I('s_and_b32', T1, T1, '0xffffff80'),
             I('s_add_u32', sr(self.S_TCH), T0, T1)]
        T.append(S)
        for j in range(3):
            T.append(self.touch_ld('v6', self.SRD_GU))
            if j < 2:
                T.append([I('s_add_u32', sr(self.S_TCH), sr(self.S_TCH), str(12 * 9216))])
        return T

    def emit_k2_code_touch(self):
        P = self.P
        P.raw("  s_getpc_b64 s[48:49]")
        P.raw("K1_pc:")
        P.raw("  s_add_u32 s48, s48, k2_reduce_kernel-K1_pc")
        P.raw("  s_addc_u32 s49, s49, 0")
        P.raw("  s_and_b32 s49, s49, 0xffff")
        P.raw("  s_mov_b32 s50, K2_end-k2_reduce_kernel")
        P.raw("  s_mov_b32 s51, 0x20000")
        P.e('v_lshlrev_b32', 'v5', '6', vr(self.V_LANE))
        x = I('buffer_load_dword', 'v6', 'v5', 's[48:51]', '0', mods='offen'); x.writes = []
        P.emit(x)

    def task_tlb(self):
        T = []
        T0, T1 = sr(self.S_T0), sr(self.S_T1)
        S, II = sr(self.S_S), sr(self.S_I)
        S_ = [I('s_lshl_b32', T0, S, '4'), I('s_add_u32', T0, T0, II)]
        T.append(S_)
        T.append(I('v_mov_b32', 'v5', str(FL_OFF)))
        T.append([I('s_lshl_b32', T1, T0, '16'), I('s_add_u32', T1, T1, str(MB_OFF))])
        T.append(I('v_writelane_b32', 'v5', T1, '2'))
        T.append([I('s_xor_b32', T1, T1, str(16 << 16))])
        T.append(I('v_writelane_b32', 'v5', T1, '3'))
        T.append([I('s_lshl_b32', T1, T0, '14'), I('s_add_u32', T1, T1, str(HP_OFF))])
        T.append(I('v_writelane_b32', 'v5', T1, '1'))
        T.append([I('s_lshr_b32', T1, S, '1'), I('s_lshl_b32', T1, T1, '4'), I('s_add_u32', T1, T1, II), I('s_lshl_b32', T1, T1, '17')])
        T.append(I('v_writelane_b32', 'v5', T1, '0'))
        x = I('buffer_load_dword', 'v7', 'v5', sr(self.SRD_P, 4), '0', mods='offen'); x.writes = []
        T.append([I('s_mov_b64', 'exec', '0x1f'), x, I('s_mov_b64', 'exec', '-1')])
        return T

    def task_p2setup(self):
        T = []
        T0, T1 = sr(self.S_T0), sr(self.S_T1)
        S, II, W = sr(self.S_S), sr(self.S_I), sr(self.S_W)
        T += [I('s_lshl_b32', T0, S, '4'), I('s_add_u32', T0, T0, II)]
        T += [I('s_lshl_b32', T1, W, '13')]
        T += [I('s_lshl_b32', sr(self.S_MBO), T0, '16'), I('s_add_u32', sr(self.S_MBO), sr(self.S_MBO), T1),
              I('s_add_u32', sr(self.S_MBO), sr(self.S_MBO), str(MB_OFF))]
        T += [I('s_xor_b32', sr(self.S_MBP), sr(self.S_MBO), str(16 << 16))]
        T += [I('s_lshl_b32', sr(self.S_HPB), T0, '14'), I('s_lshl_b32', T1, W, '12'), I('s_add_u32', sr(self.S_HPB), sr(self.S_HPB), T1),
              I('s_add_u32', sr(self.S_HPB), sr(self.S_HPB), str(HP_OFF))]
        T += [I('s_lshr_b32', T0, S, '1'), I('s_lshl_b32', T0, T0, '4'), I('s_add_u32', T0, T0, II), I('s_lshl_b32', sr(self.S_FPB), T0, '17'),
              I('s_lshl_b32', T1, W, '13'), I('s_add_u32', sr(self.S_FPB), sr(self.S_FPB), T1)]
        T += [I('s_lshl_b32', sr(self.S_FOFF), 's2', '7'), I('s_add_u32', sr(self.S_FOFF), sr(self.S_FOFF), str(FL_OFF)),
              I('s_xor_b32', sr(self.S_FSH), sr(self.S_FOFF), str(8 << 7))]
        T += [I('s_lshl_b32', T1, W, '2'), I('s_add_u32', sr(self.S_FOFF), sr(self.S_FOFF), T1)]
        T += [I('s_mov_b32', sr(self.S_NEG), '0xffff0000')]
        return T

    def _pack_store(self, T, buf, pair, mb, soff_reg, first, flags, tag=None):
        a = buf + 16 * (2 * pair) + 4 * mb
        b = buf + 16 * (2 * pair + 1) + 4 * mb
        T.append(I('v_cvt_pk_bf16_f32', vr(a), vr(a), vr(a + 1)))
        T.append(I('v_cvt_pk_bf16_f32', vr(a + 1), vr(a + 2), vr(a + 3)))
        T.append(I('v_cvt_pk_bf16_f32', vr(a + 2), vr(b), vr(b + 1)))
        T.append(I('v_cvt_pk_bf16_f32', vr(a + 3), vr(b + 2), vr(b + 3)))
        T += first
        T.append(I('buffer_store_dwordx4', vr(a, 4), vr(self.PV), sr(self.SRD_P, 4), sr(self.S_PO),
                   mods=(f'offen offset:{1024 * mb}' if mb else 'offen') + flags, tag=tag))

    def task_send(self, buf, k):
        T = []
        for pair in range(2):
            for mb in range(4):
                first = [I('s_add_u32', sr(self.S_PO), sr(self.S_MBO), str(k * 32768 + pair * 4096))] if mb == 0 else []
                self._pack_store(T, buf, pair, mb, None, first, ' sc1', tag=('mb', k))
        return T

    def item_signal(self, k):
        return ('signal', k)

    def task_keep(self, buf, k):
        T = []
        M = sr(self.S_PERM0 + 2)
        for pair in range(2):
            for mb in range(4):
                a = buf + 16 * (2 * pair) + 4 * mb
                b = buf + 16 * (2 * pair + 1) + 4 * mb
                q = (self.INC if k == 2 else self.INC2)[pair * 4 + mb]
                t0, t1 = 244, 245
                for half, r in ((0, a), (1, b)):
                    for d in range(2):
                        src = vr(q + 2 * half + d)
                        T.append(I('v_lshlrev_b32', vr(t0), '16', src))
                        T.append(I('v_and_b32', vr(t1), M, src))
                        T.append(I('v_add_f32', vr(r + 2 * d), vr(r + 2 * d), vr(t0)))
                        T.append(I('v_add_f32', vr(r + 2 * d + 1), vr(r + 2 * d + 1), vr(t1)))
                        t0, t1 = (246, 247) if t0 == 244 else (244, 245)
                first = []
                if mb == 0:
                    first = [I('s_lshl_b32', sr(self.S_PO), sr(self.S_YC + k), '7'),
                             I('s_add_u32', sr(self.S_PO), sr(self.S_PO), sr(self.S_FPB)),
                             I('s_add_u32', sr(self.S_PO), sr(self.S_PO), str(pair * 4096))]
                self._pack_store(T, buf, pair, mb, None, first, ['', ' nt', ' sc1'][self.o.get('stflag', 2)])
        return T

    def addinc_quad(self, buf, p):
        u, mb = divmod(p, 4)
        pair, half = divmod(u, 2)
        q = self.INC2[pair * 4 + mb]
        r = buf + 16 * u + 4 * mb
        M = sr(self.S_NEG)
        T = []
        for d, (t0, t1) in enumerate(((244, 245), (246, 247))):
            src = vr(q + 2 * half + d)
            T.append(I('v_lshlrev_b32', vr(t0), '16', src)); T.append(I('v_and_b32', vr(t1), M, src))
            T.append(I('v_add_f32', vr(r + 2 * d), vr(r + 2 * d), vr(t0))); T.append(I('v_add_f32', vr(r + 2 * d + 1), vr(r + 2 * d + 1), vr(t1)))
        return T

    def task_final(self, buf, k):
        T = []
        for pair in range(2):
            for mb in range(4):
                first = []
                if mb == 0:
                    first = [I('s_lshl_b32', sr(self.S_PO), sr(self.S_YC + k), '7'), I('s_add_u32', sr(self.S_PO), sr(self.S_PO), sr(self.S_FPB)),
                             I('s_add_u32', sr(self.S_PO), sr(self.S_PO), str(pair * 4096))]
                self._pack_store(T, buf, pair, mb, None, first, ['', ' nt', ' sc1'][self.o.get('stflag', 2)])
        return T

    def items_incoming(self, k):
        T = []
        for pair in range(2):
            for mb in range(4):
                if mb == 0:
                    T.append(I('s_add_u32', sr(self.S_PO2), sr(self.S_MBP), str((k - 2) * 32768 + pair * 4096)))
                T.append(I('buffer_load_dwordx4', vr((self.INC if k == 2 else self.INC2)[pair * 4 + mb], 4), vr(self.PV), sr(self.SRD_P, 4), sr(self.S_PO2),
                           mods=(f'offen offset:{1024 * mb}' if mb else 'offen') + ' sc1'))
        return T

    def task_half(self, buf):
        T = []
        for mb in range(4):
            first = [I('s_mov_b32', sr(self.S_PO), sr(self.S_HPB))] if mb == 0 else []
            self._pack_store(T, buf, 0, mb, None, first, ['', ' nt', ' sc1'][self.o.get('stflag', 2)])
        return T

    def emit_signal(self, k):
        P = self.P
        P.wait_vm_tag(('mb', k))
        P.e('v_mov_b32', 'v9', '1')
        P.e('v_mov_b32', 'v10', str(16 * k))
        P.e('s_mov_b64', 'exec', '1')
        P.e('buffer_store_dword', 'v9', 'v10', sr(self.SRD_P, 4), sr(self.S_FOFF), mods='offen sc1')
        P.e('s_mov_b64', 'exec', '-1')

    def poll_issue(self, k):
        return [I('v_mov_b32', 'v11', str(16 * (k - 2))),
                I('buffer_load_dwordx4', vr(self.V_POLL, 4), 'v11', sr(self.SRD_P, 4), sr(self.S_FSH), mods='offen sc1')]

    def emit_poll_check(self, lab):
        P = self.P
        T2 = sr(self.S_T2)
        V = self.V_POLL
        P.e('v_and_b32', vr(V), vr(V), vr(V + 1)); P.e('v_and_b32', vr(V + 2), vr(V + 2), vr(V + 3)); P.e('v_and_b32', vr(V), vr(V), vr(V + 2))
        P.e('v_readfirstlane_b32', T2, vr(V))
        P.e('s_cmp_eq_u32', T2, '1')
        P.raw(f"  s_cbranch_scc1 {lab}_ok")
        P.label(f"{lab}_spin")
        P.raw("  s_sleep 1")
        P.raw(f"  buffer_load_dwordx4 v[{V}:{V + 3}], v11, s[{self.SRD_P}:{self.SRD_P + 3}], {sr(self.S_FSH)} offen sc1")
        P.raw("  s_waitcnt vmcnt(0)")
        P.raw(f"  v_and_b32 v{V}, v{V}, v{V + 1}")
        P.raw(f"  v_and_b32 v{V + 2}, v{V + 2}, v{V + 3}")
        P.raw(f"  v_and_b32 v{V}, v{V}, v{V + 2}")
        P.raw("  s_nop 1")
        P.raw(f"  v_readfirstlane_b32 {T2}, v{V}")
        P.raw("  s_nop 3")
        P.raw(f"  s_cmp_eq_u32 {T2}, 1")
        P.raw(f"  s_cbranch_scc0 {lab}_spin")
        P.label(f"{lab}_ok")

    def check_b(self, g):
        ins = g['inst']
        b = ins.ops[2]
        want = g['btag']
        got = self.P.regtag.get(regs_of(b)[0])
        assert got == want, (g['ks']['strip'], g['ks']['t'], b, want, got)

    def emit_setup(self, it):
        pre, ins = it
        if self.o.get('nodma', 0) and ins.tag[0] == 'st' and ins.tag[1] >= 2:
            return
        if self.cur_setup is not pre:
            self.P.emit(pre)
            self.cur_setup = pre

    def emit_dma(self, it):
        pre, ins = it
        if self.o.get('nodma', 0) and ins.tag[0] == 'st' and ins.tag[1] >= 2:
            return
        if self.cur_setup is not pre:
            self.P.emit(pre)
            self.cur_setup = pre
        self.P.emit(ins)

    XSLOT = 27 * 1024

    def xf_dma(self, r):
        items = []
        tag = ('st', r)
        for mm in range(2):
            pre = [I('s_add_u32', 'm0', sr(self.S_XL), str(HB + (r % 3) * 12288 + mm * 3072)),
                   I('s_add_u32', sr(self.S_SOFF2), sr(self.S_XF), str((mm * 18 + 3 * r) * 1024))]
            for k in range(3):
                items.append((pre, I('buffer_load_dwordx4', vr(self.PV), sr(self.SRD_XF, 4), sr(self.S_SOFF2),
                                     mods=(f'offen offset:{1024 * k} lds' if k else 'offen lds'), tag=tag)))
        pre = [I('s_add_u32', 'm0', sr(self.S_XH), str(HB + 73728 + (r % 3) * 3072)),
               I('s_add_u32', sr(self.S_SOFF2), sr(self.S_XF + 1), str(3 * r * 1024))]
        items.append((pre, I('buffer_load_dwordx4', vr(self.PV), sr(self.SRD_XF, 4), sr(self.S_SOFF2), mods='offen lds', tag=tag)))
        return items

    def xf_reads(self, t):
        T = []
        r, tt = divmod(t, 3)
        for mb in range(4):
            T.append(I('ds_read_b128', self.xreg(t, mb), vr(self.XA), mods=f'offset:{(r % 3) * 12288 + (mb * 3 + tt) * 1024}', flag='bar', tag=('x', t, mb)))
        T.append(I('ds_read_b128', self.halo_x(t), vr(self.XA + 1), mods=f'offset:{(r % 3) * 3072 + tt * 1024}', flag='bar', tag=('x', t, 4)))
        return T

    def stage_dma(self, sid):
        a = self.dma_items(sid)
        if sid < 6:
            b = self.xf_dma(sid)
            out = []
            out = b[:3] + a[:3] + b[3:] + a[3:]
            return out
        return a

    def emit_all(self):
        P = self.P
        e = P.e
        o = self.o
        self.prologue()
        self.build()
        self.cur_setup = None
        pst = []

        def pstamp():
            if o.get('prof', 0) == 3:
                r = 72 + 2 * len(pst)
                P.raw(f"  s_memtime s[{r}:{r + 1}]")
                pst.append(r)
        pstamp()
        for it in self.stage_dma(0):
            self.emit_dma(it)
        pstamp()
        for it in self.stage_dma(1):
            self.emit_dma(it)
        pstamp()
        if o.get('touch', 1) == 2:
            T0, T1 = sr(self.S_T0), sr(self.S_T1)
            srd(P, self.SRD_WO, 's6', 's7', 576 * 1152)
            srd(P, self.SRD_WD, 's12', 's13', 4608 * 1152)
            e('s_mul_i32', sr(self.S_WOR), sr(self.S_S), str(36 * 1152))
            P.emit(self.task_touch())
        self.addr_first(e)
        pstamp()

        frags = []
        KS = []
        for st in self.strips:
            for ks in st['ks']:
                ks['strip'] = st['name']
                KS.append(ks)
                for u in range(len(ks['frags'])):
                    frags.append((ks, u))
        NQ = len(frags)
        NFR = self.NFR
        DIST = NFR - 1
        fr = lambda q: self.FR + 4 * (q % NFR)

        def frag_reads(q):
            ks, u = frags[q]
            areg, off, hd = ks['frags'][u]
            slot = self.slot[ks['stage']]
            if slot >= 3:
                areg = self.TD + (areg - self.TP)
                slot -= 3
            return [I('ds_read_b64_tr_b16', vr(fr(q) + 2 * h, 2), vr(areg), mods=f'offset:{slot * SLOT + off + h * hd}', flag='bar') for h in range(2)]

        gaps = []
        qi = 0
        for ks in KS:
            for u in range(len(ks['frags'])):
                mfs = ks['mf'][u]
                for mi, (accr, breg) in enumerate(mfs):
                    first = ks['t'] == 0
                    btag = ('h', ks['t'], mi) if ks['strip'][0] == 'P' else ('x', ks['t'], mi)
                    gaps.append(dict(q=qi, ks=ks, u=u, mi=mi, n=len(mfs), btag=btag,
                                     inst=I('v_mfma_f32_16x16x32_bf16', accr, vr(fr(qi), 4), breg, '0' if first else accr)))
                qi += 1
        NG = len(gaps)
        sf, sl, frag_first, ks_first = {}, {}, {}, {}
        for gi, g in enumerate(gaps):
            sf.setdefault(g['ks']['strip'], gi)
            sl[g['ks']['strip']] = gi
            frag_first.setdefault(g['q'], gi)
            ks_first.setdefault((g['ks']['strip'], g['ks']['t']), gi)
        fstage = [frags[q][0]['stage'] for q in range(NQ)]
        NST = len(self.stages)
        first_frag_of_stage = {}
        for q in range(NQ):
            first_frag_of_stage.setdefault(fstage[q], q)
        stage_of0 = lambda name, k: [st for st in self.strips if st['name'] == name][0]['ks'][k]['stage']
        read_pos, bar_pos = {}, {}
        LAG = o.get('barlag', 2)
        for q in range(NQ):
            s = fstage[q]
            p = q - DIST
            if s > 0:
                lastq_prev = first_frag_of_stage[s] - 1
                bp = read_pos[lastq_prev] + LAG
                bar_pos[s - 1] = bp
                p = max(p, bp)
            read_pos[q] = p
            assert p < q or q == 0, (q, p)
            assert p >= q - NFR + 1
        bars_at = {}
        for s, p in bar_pos.items():
            bars_at.setdefault(p, []).append(s)
        bar_gap = {s: frag_first[p] for s, p in bar_pos.items()}
        rq = []
        for q in range(NQ):
            if read_pos[q] < 0:
                continue
            for h, ins in enumerate(frag_reads(q)):
                rq.append((frag_first[read_pos[q]], frag_first[q] - o.get('minlead', 7), ins, frag_first[read_pos[q]] + 2 * h))

        self.hfree_bar = None
        dq = []
        b_hfree = bar_gap[stage_of0('P0', 9)]
        b_h6 = bar_gap[stage_of0('P0', 0)]
        prev_user = {}
        last_issue = 0
        for sid in range(NST):
            sl_ = self.slot[sid]
            pu = prev_user.get(sl_)
            prev_user[sl_] = sid
            if sid < 2:
                continue
            if pu is not None:
                lo = bar_gap[pu]
            elif sl_ == 5:
                lo = b_hfree
            elif sl_ >= 3:
                lo = b_h6
            else:
                lo = 0
            hi = bar_gap[sid - 1]
            items = self.stage_dma(sid)
            n = len(items)
            lo = max(lo, last_issue)
            nb = min(b for b in list(bar_gap.values()) + [NG] if b > lo)
            span = max(n, int((nb - lo - 2) * (o.get('dmaspan', 60) if sid >= 8 else 95) / 100))
            step = max(o.get('dmastep', 5) if sid >= 8 else 4, span // n) if sl_ < 3 or sid < self.first_deep else o.get('dmastep', 5)
            if sid >= self.first_deep:
                step = o.get('dmastep', 4)
            for k, it in enumerate(items):
                gi_ = lo + 1 + k * step
                assert gi_ < hi, (sid, gi_, hi)
                dq.append((gi_, it))
            last_issue = lo + 1 + (n - 1) * step
        dq.sort(key=lambda x: x[0])

        LAT = 10
        names0 = ['QKV', 'F0', 'F1', 'F2', 'F3', 'F4h']
        strip = lambda name: [st for st in self.strips if st['name'] == name][0]
        stage_of = lambda name, k: strip(name)['ks'][k]['stage']

        def next_bar(gi):
            return min(b for b in bar_gap.values() if b > gi)
        tasks = []

        def add(st_, en_, lst):
            if isinstance(lst, tuple):
                for l in lst:
                    tasks.append([st_, en_, l, 0])
            else:
                tasks.append([st_, en_, lst, 0])
        late_end = o.get('lateend', 60)
        add(2, late_end, self.task_late_setup())
        rq2 = []
        for t in range(3, 18):
            r = t // 3
            dl = ks_first[('QKV', t)] - 8
            for ins in self.xf_reads(t):
                rq2.append((bar_gap[r - 1] + 1, dl, ins))
        bq = bar_gap[stage_of('F0', 0)] if o.get('qkvbar', 1) == 0 else bar_gap[stage_of('F0', 3)]
        add(sf['F0'] + LAT, bq - 1, self.task_qkv_epi())
        add(bq + 1, sl['F0'], self.task_attn())
        add(sf['F1'] + LAT, sl['F1'], self.task_silu(self.ACC1, 0))
        add(sf['F2'] + LAT, sl['F2'], self.task_silu(self.ACC0, 1))
        add(sf['F3'] + LAT, sl['F3'], self.task_silu(self.ACC1, 2))
        add(sf['F4h'] + LAT, sl['F4h'], self.task_silu(self.ACC0, 3))
        b_f4h = bar_gap[stage_of('P0', 3)]
        add(sf['P0'] + LAT, b_f4h - 1, self.task_silu_h(self.ACC1))
        bF2 = next_bar(sl['F3'])
        bF3 = next_bar(sl['F4h'])
        for k in range(11):
            if k < 8:
                st_ = ks_first[('F4h', k + 1)] + 1
                if k in (4, 5):
                    st_ = max(st_, bF2 + 1)
            elif k < 10:
                st_ = max(bF3 + 1, ks_first[('F4h', k + 1)] + 1)
            else:
                st_ = b_f4h + 1
            dl = ks_first[('P0', k)] - 8
            if k < 6:
                dl = min(dl, bar_gap[stage_of('P0', 0)] - 10)
            assert st_ < dl, (k, st_, dl)
            for ins in self.task_hload(k):
                rq2.append((st_, dl, ins))
        rq2.sort(key=lambda x: x[1])
        if o.get('deep', 1):
            add(sf['P0'] + 2, sf['P0'] + 30, [I('v_add_u32', vr(self.TD + k), str(HB), vr(self.TP + k)) for k in range(6)])
        actions = {}
        prebar = {}
        if o.get('tlb', 0):
            ta = sf[names0[o.get('tlbat', 2)]] + 30
            add(ta, ta + 10, self.task_tlb())
        if o.get('touchgu', 0):
            ta = late_end + 1 + o.get('guoff', 0)
            add(ta, ta + 12, self.task_touch_gu())
        if o.get('touch', 1) == 1:
            ta = sf['F2'] + o.get('touchoff', 170)
            add(ta, ta + 8, self.task_touch())
        add(sf['F4h'] + 2, sf['F4h'] + 6, self.task_p2setup())
        add(sf['P1'] + 40, sf['P1'] + 85, self.task_send(self.ACC0, 0))
        actions[sf['P4h'] + o.get('sig0', 50)] = lambda: self.emit_signal(0)
        inl = {}
        if o.get('k2pf', 0):
            actions[sf['P3'] + 140] = lambda: self.emit_k2_code_touch()
        add(sf['P4h'] + LAT, sf['P4h'] + 80, self.task_send(self.ACC1, 1))
        actions[sf['P2'] + o.get('sig1', 130)] = lambda: self.emit_signal(1)
        add(sf['P2'] + LAT, sf['P2'] + 60, self.task_half(self.ACC0))
        for k, nm, pa, kb in ((2, 'P2', 20, 6), (3, 'P3', 20, o.get('kb3', 3))):
            add(sf[nm] + pa, sf[nm] + pa + 2, self.poll_issue(k))
            sb = stage_of(nm, kb)
            prebar[sb] = (lambda kk=k: self.emit_poll_check(f"K1_poll{kk}"))
            add(bar_gap[sb] + 1, bar_gap[sb] + 30, self.items_incoming(k))
        add(sf['P3'] + o.get('keepat', 50), sl['P3'], self.task_keep(self.ACC1, 2))

        if o.get('notask', 0):
            tasks = []; actions = {}; prebar = {}; inl = {}
        PROF = o.get('prof', 0)
        names = ['QKV', 'F0', 'F1', 'F2', 'F3', 'F4h', 'P0', 'P1', 'P4h', 'P2', 'P3']
        pfrom = names[o.get('pfrom', 0)]
        stamps = list(pst)

        def stamp():
            if PROF:
                r = 72 + 2 * len(stamps)
                P.raw(f"  s_memtime s[{r}:{r + 1}]")
                stamps.append(r)

        P.wait_lds_flagged()
        P.wait_vm_tag(('st', 0))
        if PROF == 3:
            stamp()
        P.barrier()
        if PROF == 3:
            stamp()
        P.emit(self.xf_reads(0))
        for q in range(NQ):
            if read_pos[q] < 0:
                P.emit(frag_reads(q))
        P.emit(self.xf_reads(1))
        P.emit(self.xf_reads(2))
        stamp()

        def icost(x):
            if isinstance(x, list):
                if x[0].op.startswith('v_dot'):
                    return 100
                return sum(y.cost for y in x)
            return x.cost

        def kind(x):
            return x[-1].kind if isinstance(x, list) else x.kind
        SLACK = o.get('slack', 5)
        LEAD = o.get('lead', 4)
        ri = 0
        di = 0
        last_ds_gap = -10
        for gi, g in enumerate(gaps):
            if PROF == 1 and gi in sf.values() and gi > 0:
                stamp()
            if g['mi'] == 0:
                p = g['q']
                if PROF in (2, 3) and len(stamps) < 12 and gi >= sf[pfrom] and bars_at.get(p):
                    stamp()
                for s in bars_at.get(p, []):
                    p4 = PROF == 4 and gi >= sf[pfrom] and len(stamps) < 11
                    if s in prebar:
                        prebar[s]()
                    if p4: stamp()
                    if not o.get('nolgkm', 0):
                        P.wait_lds_flagged()
                    if p4: stamp()
                    P.wait_vm_tag(('st', s + 1))
                    if p4: stamp()
                    if not o.get('nobar', 0):
                        P.barrier()
                    if p4: stamp()
            self.check_b(g)
            if not o.get('nomfma', 0):
                P.emit(g['inst'])
            cap = 8
            ds = False
            while ri < len(rq) and rq[ri][3] <= gi:
                urgent = rq[ri][1] <= gi
                if ds and not urgent:
                    break
                P.emit(rq[ri][2]); ri += 1
                cap -= 4; ds = True
            while True:
                el = [x for x in rq2 if x[0] <= gi]
                if not el:
                    break
                x = el[0]
                isds = kind(x[2]) in ('ldsr',) or isinstance(x[2], list)
                urgent = x[1] - 2 * len([y for y in el if y[1] == x[1]]) <= gi
                if urgent or (isds and not ds and cap >= 4) or (not isds and cap >= 4):
                    P.emit(x[2]); rq2.remove(x); cap -= 4
                    if isds:
                        ds = True
                    if not urgent:
                        break
                else:
                    break
            if di < len(dq) and dq[di][0] <= gi and (cap == 8 or dq[di][0] <= gi - 3):
                self.emit_dma(dq[di][1]); di += 1; cap = 0
                if di < len(dq) and o.get('hoist', 1):
                    self.emit_setup(dq[di][1])
            if gi in inl:
                P.emit(inl[gi]); cap -= 8
            progress = True
            while progress:
                progress = False
                for t_ in tasks:
                    st_, en_, lst, idx = t_
                    if gi < st_ or idx >= len(lst):
                        continue
                    force = gi >= en_
                    target = len(lst) if force else len(lst) * (gi - st_ + 1) / (en_ - st_ + 1)
                    x = lst[idx]
                    c = icost(x); k = kind(x)
                    behind = idx < target - SLACK
                    if not force and idx >= target + LEAD:
                        continue
                    if k in ('ldsr', 'ldsw'):
                        fit = (not ds) and cap >= c
                    elif c >= 100:
                        fit = cap == 8 and idx < target
                    else:
                        fit = cap >= c
                    if fit or force or (behind and cap > 0):
                        P.emit(x); cap -= c; t_[3] = idx + 1
                        if k in ('ldsr', 'ldsw'):
                            ds = True
                        progress = True
            if gi in actions:
                actions[gi]()
        assert ri == len(rq) and di == len(dq) and not rq2, (ri, len(rq), di, len(dq), len(rq2))
        for t_ in tasks:
            assert t_[3] == len(t_[2])
        while PROF >= 2 and len(stamps) < 12:
            stamp()
        stamp()
        if not o.get('notask', 0):
            P.emit(self.task_keep(self.ACC0, 3))
        if PROF:
            P.wait_vm(0)
            stamp()
            P.raw("  s_memrealtime s[100:101]")
            P.raw("  s_waitcnt lgkmcnt(0)")
            e('s_add_u32', 's4', 's14', str(64 << 20)); e('s_addc_u32', 's5', 's15', '0')
            srd(P, 8, 's4', 's5', 1 << 20)
            e('s_lshl_b32', 's6', 's2', '2'); e('s_add_u32', 's6', 's6', sr(self.S_W)); e('s_lshl_b32', 's6', 's6', '7')
            e('v_mov_b32', 'v4', '0')
            allst = [46] + stamps + [100, 98]
            for k, r in enumerate(allst):
                e('v_mov_b32', 'v5', sr(r))
                e('buffer_store_dword', 'v5', 'v4', 's[8:11]', 's6', mods=f'offen offset:{4 * k}')
        tl_end(P, self.o, 1)
        hx_slot(P, self.o, 2, 'max', False)
        P.label("K1_end")
        P.raw("  s_endpgm")


def gen_k1(opts):
    k = K1(opts)
    name = "k1_main_kernel"
    kernel_begin(k.P, name)
    k.emit_all()
    print("K1 stats", k.P.stats, file=sys.stderr)
    return k.P.text(), descriptor(name, 512, 256, 102), (name, 256, 256, LDS_TOTAL)


def main():
    out = sys.argv[1]
    opts = {}
    for a in sys.argv[2:]:
        kk, v = a.split('='); opts[kk] = int(v)
    parts = [gen_k0(opts), gen_k1(opts), gen_k2(opts)]
    txt = header_comments([p[2] for p in parts])
    for p in parts:
        txt += p[0]
    txt += '.section .rodata,"a"\n'
    for p in parts:
        txt += p[1]
    open(out, 'w').write(txt)


if __name__ == "__main__":
    main()
```

```python
import sys, math
from asmlib import *

KN = "parallel_sum__sliding_local_dilated__swiglu_ffn__prompt"

XF_OFF = 0
XF_SIZE = 128 * 18 * 1024
PQ_OFF = 5 << 19
PQ_SIZE = 16 * 147456
P_OFF = 6 << 20
P_TILE = 144 * 1024
FP_OFF = 0
HP_OFF = 8 * 16 * 131072
MB_OFF = HP_OFF + 256 * 16384
FL_OFF = MB_OFF + 256 * 65536
P_SIZE = FL_OFF + 256 * 128

SLOT = 24576
RING = 0
HB = 3 * SLOT
SB = HB + 16384
SPITCH = 272
XB = HB + 4 * 16384
XPITCH = 144
LDS_TOTAL = XB + 128 * XPITCH

LOG2E = 1.4426950408889634


def f2h(x):
    import struct
    return "0x%08x" % struct.unpack('<I', struct.pack('<f', x))[0]


def header_comments(launches):
    L = []
    L.append(";   0 A_x, 8 A_wqkv, 16 A_wo, 24 B_x, 32 B_w_gate, 40 B_w_up, 48 B_w_down, 56 d_out, 64 d_debug, 72 d_ws")
    L.append("; Generated by a hand-written python generator (work/gen.py).")
    for (k, g, b, lds) in launches:
        L.append(f"; @launch kernel={k} grid=({g},1,1) block=({b},1,1) lds={lds}")
    L.append('.amdgcn_target "amdgcn-amd-amdhsa--gfx950"')
    L.append(".text")
    return "\n".join(L) + "\n"


def kernel_begin(P, name):
    P.raw(f".globl {name}")
    P.raw(".p2align 8")
    P.raw(f".type {name},@function")
    P.raw(f"{name}:")


def descriptor(name, vgpr, accum, sgpr=102):
    return "\n".join([
        ".p2align 6", f".amdhsa_kernel {name}",
        f"  .amdhsa_next_free_vgpr {vgpr}", f"  .amdhsa_next_free_sgpr {sgpr}", f"  .amdhsa_accum_offset {accum}",
        "  .amdhsa_group_segment_fixed_size 0", "  .amdhsa_kernarg_size 80", "  .amdhsa_user_sgpr_count 2",
        "  .amdhsa_user_sgpr_kernarg_segment_ptr 1", "  .amdhsa_system_sgpr_workgroup_id_x 1", ".end_amdhsa_kernel"]) + "\n"


def tl_start(P, opts):
    if opts.get('tl', 0):
        P.raw("  s_memrealtime s[96:97]")


def tl_end(P, opts, kidx, wsreg_lo=None):
    if not opts.get('tl', 0):
        return
    P.raw("  s_waitcnt vmcnt(0)")
    P.raw("  s_memrealtime s[98:99]")
    P.raw("  s_load_dwordx2 s[94:95], s[0:1], 72")
    P.raw("  s_waitcnt lgkmcnt(0)")
    P.raw(f"  s_add_u32 s94, s94, {(80 << 20) + kidx * 65536}")
    P.raw("  s_addc_u32 s95, s95, 0")
    P.raw("  s_mov_b32 s88, s94")
    P.raw("  s_and_b32 s89, s95, 0xffff")
    P.raw("  s_mov_b32 s90, 65536")
    P.raw("  s_mov_b32 s91, 0x20000")
    P.raw("  s_lshl_b32 s92, s2, 3")
    P.raw("  v_mov_b32 v2, s96")
    P.raw("  v_mov_b32 v3, s98")
    P.raw("  v_mov_b32 v4, 0")
    P.raw("  v_cmp_eq_u32 vcc, 0, v0")
    P.raw("  s_and_saveexec_b64 s[86:87], vcc")
    P.raw("  buffer_store_dwordx2 v[2:3], v4, s[88:91], s92 offen")
    P.raw("  s_mov_b64 exec, s[86:87]")


def hx_slot(P, opts, slot, op, only_wg0, final=False):
    if not opts.get('hx', 0):
        return
    lab = f"HX_{slot}_{op}_{len(P.lines)}"
    P.raw("  s_waitcnt vmcnt(0) lgkmcnt(0)")
    P.raw("  s_memrealtime s[86:87]")
    P.raw("  s_load_dwordx2 s[84:85], s[0:1], 72")
    P.raw("  s_waitcnt lgkmcnt(0)")
    P.raw(f"  s_add_u32 s84, s84, {96 << 20}")
    P.raw("  s_addc_u32 s85, s85, 0")
    P.raw("  s_mov_b32 s80, s84"); P.raw("  s_and_b32 s81, s85, 0xffff"); P.raw("  s_mov_b32 s82, 4096"); P.raw("  s_mov_b32 s83, 0x20000")
    if only_wg0:
        P.raw("  s_cmp_lg_u32 s2, 0"); P.raw(f"  s_cbranch_scc1 {lab}")
    else:
        P.raw("  s_and_b32 s77, s2, 7"); P.raw("  s_cmp_lg_u32 s77, 5"); P.raw(f"  s_cbranch_scc1 {lab}")
    P.raw("  v_mov_b32 v250, s86"); P.raw(f"  v_mov_b32 v251, {slot * 4}")
    P.raw("  v_cmp_eq_u32 vcc, 0, v0"); P.raw("  s_and_saveexec_b64 s[78:79], vcc")
    if op == 'st':
        P.raw("  buffer_store_dword v250, v251, s[80:83], 0 offen sc1")
    else:
        P.raw("  buffer_atomic_umax v250, v251, s[80:83], 0 offen")
    P.raw("  s_waitcnt vmcnt(0)")
    P.raw("  s_mov_b64 exec, s[78:79]")
    P.raw(f"{lab}:")


def srd(P, d, lo, hi, size):
    P.e('s_mov_b32', sr(d), lo)
    P.e('s_and_b32', sr(d + 1), hi, '0xffff')
    P.e('s_mov_b32', sr(d + 2), str(size))
    P.e('s_mov_b32', sr(d + 3), '0x20000')


def gen_k0(opts):
    P = Prog()
    name = "k0_ln_kernel"
    kernel_begin(P, name)
    NPK = 288
    NCP = 8 if opts.get('codepf', 1) else 0
    NTW = 96 if opts.get('k0touch', 0) else 0
    P.e('s_cmp_ge_u32', 's2', str(128 + NPK + NCP + NTW))
    P.raw("  s_cbranch_scc1 K0_end")
    tl_start(P, opts)
    hx_slot(P, opts, 0, 'st', True)
    if opts.get('hx', 0):
        P.raw("  s_cmp_lg_u32 s2, 0"); P.raw("  s_cbranch_scc1 HX_z")
        P.raw("  v_mov_b32 v250, 0"); P.raw("  v_mov_b32 v251, 8"); P.raw("  buffer_store_dword v250, v251, s[80:83], 0 offen sc1")
        P.raw("  v_mov_b32 v251, 16"); P.raw("  buffer_store_dword v250, v251, s[80:83], 0 offen sc1"); P.raw("  v_mov_b32 v251, 20"); P.raw("  buffer_store_dword v250, v251, s[80:83], 0 offen sc1")
        P.raw("HX_z:")
    if NTW:
        P.e('s_cmp_ge_u32', 's2', str(128 + NPK + NCP))
        P.raw("  s_cbranch_scc1 K0_touch")
    if NCP:
        P.e('s_cmp_ge_u32', 's2', str(128 + NPK))
        P.raw("  s_cbranch_scc1 K0_code")
    P.e('s_cmp_ge_u32', 's2', '128')
    P.raw("  s_cbranch_scc1 K0_pack")
    P.e('s_load_dwordx2', 's[4:5]', 's[0:1]', '0')
    P.e('s_load_dwordx2', 's[6:7]', 's[0:1]', '72')
    P.e('v_and_b32', 'v1', '63', 'v0')
    P.e('v_lshrrev_b32', 'v2', '6', 'v0')
    P.e('v_and_b32', 'v3', '15', 'v1')
    P.e('v_lshrrev_b32', 'v4', '4', 'v1')
    P.e('v_readfirstlane_b32', 's20', 'v2')
    P.raw("  s_waitcnt lgkmcnt(0)")
    srd(P, 8, 's4', 's5', 2048 * 1152)
    srd(P, 12, 's6', 's7', XF_OFF + XF_SIZE)
    P.e('s_lshl_b32', 's21', 's2', '4')
    P.e('v_add_u32', 'v5', 's21', 'v3')
    P.e('s_movk_i32', 's22', '1152')
    P.e('v_mul_lo_u32', 'v5', 'v5', 's22')
    P.e('v_lshlrev_b32', 'v6', '4', 'v4')
    P.e('v_add_u32', 'v5', 'v5', 'v6')
    P.e('s_mul_i32', 's23', 's20', '576')
    X = 16
    for t in range(9):
        P.e('buffer_load_dwordx4', vr(X + 4 * t, 4), 'v5', 's[8:11]', 's23', mods=f'offen offset:{64 * t}')
    P.e('s_add_u32', 's28', 's6', str(P_OFF + FL_OFF)); P.e('s_addc_u32', 's29', 's7', '0')
    srd(P, 32, 's28', 's29', 256 * 128)
    P.e('v_mov_b32', 'v60', '0'); P.e('v_mov_b32', 'v61', '0'); P.e('v_mov_b32', 'v62', '0'); P.e('v_mov_b32', 'v63', '0')
    P.e('v_lshlrev_b32', 'v59', '4', 'v0')
    P.e('s_lshl_b32', 's30', 's2', '8')
    P.e('v_cmp_gt_u32', 'vcc', '16', 'v0')
    P.e('s_and_saveexec_b64', 's[36:37]', 'vcc')
    P.raw("  s_cbranch_execz K0_nz")
    P.raw("  buffer_store_dwordx4 v[60:63], v59, s[32:35], s30 offen")
    P.label("K0_nz")
    P.e('s_mov_b64', 'exec', 's[36:37]')
    P.e('v_mov_b32', 'v7', '0x3f803f80')
    P.e('v_mov_b32', 'v8', '0'); P.e('v_mov_b32', 'v9', '0'); P.e('v_mov_b32', 'v10', '0'); P.e('v_mov_b32', 'v11', '0')
    for j in range(36):
        P.e('v_dot2c_f32_bf16', 'v8' if j % 2 == 0 else 'v10', vr(X + j), 'v7')
        P.e('v_dot2c_f32_bf16', 'v9' if j % 2 == 0 else 'v11', vr(X + j), vr(X + j))
    P.e('v_add_f32', 'v8', 'v8', 'v10')
    P.e('v_add_f32', 'v9', 'v9', 'v11')
    for sw in ('v_permlane32_swap_b32', 'v_permlane16_swap_b32'):
        P.e('v_mov_b32', 'v10', 'v8'); P.e('v_mov_b32', 'v11', 'v9')
        P.e('v_mov_b32', 'v12', 'v8'); P.e('v_mov_b32', 'v13', 'v9')
        P.e(sw, 'v10', 'v12'); P.e(sw, 'v11', 'v13')
        P.e('v_add_f32', 'v8', 'v10', 'v12'); P.e('v_add_f32', 'v9', 'v11', 'v13')
    P.e('v_lshlrev_b32', 'v10', '3', 'v0')
    P.e('ds_write_b64', 'v10', 'v[8:9]')
    P.e('v_xor_b32', 'v11', '512', 'v10')
    P.wait_lgkm(0)
    P.barrier()
    P.e('ds_read_b64', 'v[12:13]', 'v11')
    P.e('v_add_f32', 'v8', 'v8', 'v12')
    P.e('v_add_f32', 'v9', 'v9', 'v13')
    P.e('v_mul_f32', 'v8', f2h(1.0 / 576), 'v8')
    P.e('v_mul_f32', 'v9', f2h(1.0 / 576), 'v9')
    P.e('v_fma_f32', 'v9', '-v8', 'v8', 'v9')
    P.e('v_max_f32', 'v9', '0', 'v9')
    P.e('v_add_f32', 'v9', f2h(1e-5), 'v9')
    P.e('v_rsq_f32', 'v9', 'v9')
    P.e('v_mul_f32', 'v8', 'v8', 'v9')
    P.e('v_sub_f32', 'v8', '0', 'v8')
    P.e('s_mov_b32', 's24', '0xffff0000')
    for j in range(36):
        a, b = 10 + 2 * (j % 2), 11 + 2 * (j % 2)
        P.e('v_lshlrev_b32', vr(a), '16', vr(X + j))
        P.e('v_and_b32', vr(b), 's24', vr(X + j))
        P.e('v_fma_f32', vr(a), vr(a), 'v9', 'v8')
        P.e('v_fma_f32', vr(b), vr(b), 'v9', 'v8')
        P.e('v_cvt_pk_bf16_f32', vr(X + j), vr(a), vr(b))
    P.e('v_lshlrev_b32', 'v6', '4', 'v1')
    P.e('s_mul_i32', 's25', 's2', str(18 * 1024))
    P.e('s_mul_i32', 's26', 's20', str(9 * 1024))
    P.e('s_add_u32', 's25', 's25', 's26')
    for t in range(9):
        if t % 4 == 0 and t:
            P.e('s_add_u32', 's25', 's25', '4096')
        P.e('buffer_store_dwordx4', vr(X + 4 * t, 4), 'v6', 's[12:15]', 's25', mods=f'offen offset:{1024 * (t % 4)}')
    tl_end(P, opts, 0)
    hx_slot(P, opts, 5, 'max', False)
    P.raw("  s_endpgm")
    P.label("K0_pack")
    P.vm_q = []; P.lds_q = []
    e = P.e
    e('s_load_dwordx2', 's[4:5]', 's[0:1]', '8')
    e('s_load_dwordx2', 's[6:7]', 's[0:1]', '72')
    e('v_and_b32', 'v1', '63', 'v0'); e('v_lshrrev_b32', 'v2', '6', 'v0')
    e('v_readfirstlane_b32', 's20', 'v2')
    e('s_sub_u32', 's21', 's2', '128'); e('s_lshl_b32', 's21', 's21', '1'); e('s_add_u32', 's21', 's21', 's20')
    P.raw("  s_waitcnt lgkmcnt(0)")
    srd(P, 12, 's4', 's5', 576 * 3456)
    e('s_add_u32', 's6', 's6', str(PQ_OFF)); e('s_addc_u32', 's7', 's7', '0')
    srd(P, 16, 's6', 's7', PQ_SIZE)
    e('v_and_b32', 'v3', '15', 'v1')
    e('v_lshrrev_b32', 'v4', '4', 'v1')
    e('v_lshlrev_b32', 'v9', '4', 'v1')
    for k in range(4):
        e('s_lshl_b32', 's22', 's21', '2'); e('s_add_u32', 's22', 's22', str(k))
        e('s_mul_hi_u32', 's23', 's22', str((2 ** 32 + 143) // 144))
        e('s_mul_i32', 's24', 's23', '144'); e('s_sub_u32', 's24', 's22', 's24')
        e('s_mul_hi_u32', 's25', 's24', str((2 ** 32 + 5) // 6))
        e('s_mul_i32', 's26', 's25', '6'); e('s_sub_u32', 's26', 's24', 's26')
        e('s_lshr_b32', 's27', 's25', '2')
        e('s_and_b32', 's28', 's25', '3')
        e('s_mul_i32', 's29', 's27', '96'); e('s_lshl_b32', 's30', 's26', '4'); e('s_add_u32', 's29', 's29', 's30')
        e('s_lshl_b32', 's30', 's28', '2'); e('s_add_u32', 's29', 's29', 's30')
        e('v_add_u32', 'v5', 's29', 'v4')
        e('s_lshr_b32', 's30', 's28', '1'); e('s_lshl_b32', 's30', 's30', '2')
        e('v_or_b32', 'v6', 's30', 'v4'); e('v_lshrrev_b32', 'v7', '1', 'v3'); e('v_xor_b32', 'v6', 'v6', 'v7')
        e('v_lshlrev_b32', 'v6', '1', 'v6'); e('v_and_b32', 'v7', '1', 'v3'); e('v_or_b32', 'v6', 'v6', 'v7')
        e('v_mul_u32_u24', 'v7', '13', 'v6'); e('v_lshrrev_b32', 'v7', '6', 'v7'); e('v_min_u32', 'v7', '2', 'v7')
        e('v_mul_u32_u24', 'v8', '5', 'v7'); e('v_sub_u32', 'v8', 'v6', 'v8'); e('v_lshlrev_b32', 'v8', '4', 'v8')
        e('v_add_u32', 'v7', '1', 'v7'); e('v_cmp_eq_u32', 'vcc', '3', 'v7'); e('v_mov_b32', 'v10', '0')
        e('v_cndmask_b32', 'v7', 'v7', 'v10', 'vcc')
        e('v_mul_u32_u24', 'v7', '1152', 'v7'); e('v_add_u32', 'v8', 'v8', 'v7')
        e('s_mul_i32', 's30', 's23', '72'); e('v_add_u32', 'v8', 's30', 'v8')
        e('v_mul_u32_u24', 'v5', '3456', 'v5'); e('v_add_u32', 'v5', 'v5', 'v8')
        e('buffer_load_dwordx4', vr(16 + 4 * k, 4), 'v5', 's[12:15]', '0', mods='offen')
    e('s_lshl_b32', 's22', 's21', '12')
    for k in range(4):
        e('buffer_store_dwordx4', vr(16 + 4 * k, 4), 'v9', 's[16:19]', 's22', mods=f'offen offset:{1024 * k}')
    if NCP:
        P.raw("  s_endpgm")
        P.label("K0_code")
        P.raw("  s_getpc_b64 s[4:5]")
        P.raw("K0_pc:")
        P.raw("  s_add_u32 s4, s4, k1_main_kernel-K0_pc")
        P.raw("  s_addc_u32 s5, s5, 0")
        P.raw("  s_mov_b32 s8, s4")
        P.raw("  s_and_b32 s9, s5, 0xffff")
        P.raw("  s_mov_b32 s10, K2_end-k1_main_kernel")
        P.raw("  s_mov_b32 s11, 0x20000")
        P.raw("  v_lshlrev_b32 v1, 4, v0")
        P.raw("  s_mov_b32 s12, 0")
        P.raw("K0_cl:")
        P.raw("  buffer_load_dwordx4 v[4:7], v1, s[8:11], s12 offen")
        P.raw("  s_add_u32 s12, s12, 2048")
        P.raw("  s_cmp_lt_u32 s12, s10")
        P.raw("  s_cbranch_scc1 K0_cl")
    if NTW:
        P.raw("  s_endpgm")
        P.label("K0_touch")
        P.vm_q = []; P.lds_q = []
        e('s_load_dwordx2', 's[4:5]', 's[0:1]', '48')
        e('s_load_dwordx2', 's[6:7]', 's[0:1]', '16')
        e('s_sub_u32', 's21', 's2', str(128 + NPK + NCP))
        e('v_lshlrev_b32', 'v1', '7', 'v0')
        P.raw("  s_waitcnt lgkmcnt(0)")
        e('s_cmp_ge_u32', 's21', '81')
        e('s_cselect_b32', 's8', 's6', 's4'); e('s_cselect_b32', 's9', 's7', 's5')
        e('s_mov_b32', 's12', str(576 * 1152)); e('s_mov_b32', 's13', str(4608 * 1152))
        e('s_cselect_b32', 's10', 's12', 's13')
        e('s_cselect_b32', 's22', '81', '0')
        e('s_and_b32', 's9', 's9', '0xffff'); e('s_mov_b32', 's11', '0x20000')
        e('s_sub_u32', 's21', 's21', 's22'); e('s_lshl_b32', 's21', 's21', '16')
        for k in range(4):
            e('buffer_load_dword', 'v4', 'v1', 's[8:11]', 's21', mods='offen')
            e('s_add_u32', 's21', 's21', '16384')
    P.label("K0_end")
    P.raw("  s_endpgm")
    return P.text(), descriptor(name, 256 if opts.get('hx', 0) else 64, 256 if opts.get('hx', 0) else 64, 102), (name, 128 + NPK + NCP + NTW, 128, 1024)


def gen_k2(opts):
    P = Prog()
    name = "k2_reduce_kernel"
    kernel_begin(P, name)
    K2W = opts.get('k2w', 4)
    NWG = 2304 // K2W
    P.e('s_cmp_ge_u32', 's2', str(NWG))
    P.raw("  s_cbranch_scc1 K2_end")
    tl_start(P, opts)
    hx_slot(P, opts, 3, 'st', True)
    P.e('s_load_dwordx2', 's[4:5]', 's[0:1]', '0')
    P.e('s_load_dwordx2', 's[6:7]', 's[0:1]', '72')
    P.e('s_load_dwordx2', 's[16:17]', 's[0:1]', '56')
    P.e('v_and_b32', 'v1', '63', 'v0')
    P.e('v_lshrrev_b32', 'v2', '6', 'v0')
    P.e('v_and_b32', 'v3', '15', 'v1')
    P.e('v_lshrrev_b32', 'v4', '4', 'v1')
    P.e('v_readfirstlane_b32', 's20', 'v2')
    P.e('v_lshlrev_b32', 'v5', '4', 'v1')
    P.raw("  s_waitcnt lgkmcnt(0)")
    srd(P, 8, 's4', 's5', 2048 * 1152)
    P.e('s_add_u32', 's6', 's6', str(P_OFF)); P.e('s_addc_u32', 's7', 's7', '0')
    srd(P, 12, 's6', 's7', P_SIZE)
    srd(P, 24, 's16', 's17', 2048 * 1152)
    P.e('s_mul_i32', 's21', 's2', str(K2W)); P.e('s_add_u32', 's21', 's21', 's20')
    P.e('s_mul_hi_u32', 's22', 's21', str((2 ** 32 + 143) // 144))
    P.e('s_mul_i32', 's23', 's22', '144'); P.e('s_sub_u32', 's23', 's21', 's23')
    D = 16
    lf = ['', ' nt', ' sc1'][opts.get('ldflag', 0)]
    P.e('s_cmp_ge_u32', 's23', '128')
    P.raw("  s_cbranch_scc1 K2_half")
    for half in (0, 1):
        if half:
            P.label("K2_half")
            P.vm_q = []; P.lds_q = []
        n = 16 if half else 8
        if not half:
            P.e('s_lshl_b32', 's28', 's22', '17'); P.e('s_lshl_b32', 's29', 's23', '10'); P.e('s_add_u32', 's28', 's28', 's29')
            stride = 16 * 131072
        else:
            P.e('s_lshl_b32', 's28', 's22', '14'); P.e('s_sub_u32', 's23', 's23', '128'); P.e('s_lshl_b32', 's29', 's23', '10')
            P.e('s_add_u32', 's28', 's28', 's29'); P.e('s_add_u32', 's28', 's28', str(HP_OFF))
            stride = 16 * 16384
        for s in range(n):
            P.e('buffer_load_dwordx4', vr(D + 4 * s, 4), 'v5', 's[12:15]', 's28', mods='offen' + lf)
            if s < n - 1:
                P.e('s_add_u32', 's28', 's28', str(stride))
        P.e('s_and_b32', 's29', 's23', '3')
        if not half:
            P.e('s_lshr_b32', 's31', 's23', '3'); P.e('s_and_b32', 's31', 's31', '3')
            P.e('s_lshr_b32', 's34', 's31', '1')
            P.e('s_lshr_b32', 's35', 's23', '5'); P.e('s_lshl_b32', 's35', 's35', '7')
            P.e('s_lshl_b32', 's36', 's34', '6'); P.e('s_add_u32', 's35', 's35', 's36')
            P.e('s_lshr_b32', 's36', 's23', '2'); P.e('s_and_b32', 's36', 's36', '1'); P.e('s_lshl_b32', 's36', 's36', '5')
            P.e('s_add_u32', 's35', 's35', 's36')
        else:
            P.e('s_lshr_b32', 's31', 's23', '2')
            P.e('s_lshr_b32', 's34', 's31', '1')
            P.e('s_lshl_b32', 's35', 's34', '5'); P.e('s_add_u32', 's35', 's35', '512')
        P.e('s_and_b32', 's33', 's31', '1')
        P.e('s_lshl_b32', 's37', 's22', '7'); P.e('s_lshl_b32', 's38', 's33', '6'); P.e('s_add_u32', 's37', 's37', 's38')
        P.e('s_lshl_b32', 's38', 's29', '4'); P.e('s_add_u32', 's37', 's37', 's38')
        P.e('v_add_u32', 'v6', 's37', 'v3')
        P.e('v_mul_u32_u24', 'v6', '1152', 'v6')
        P.e('s_lshl_b32', 's40', 's35', '1')
        P.e('v_add_u32', 'v6', 's40', 'v6')
        P.e('v_lshlrev_b32', 'v7', '3', 'v4')
        P.e('v_add_u32', 'v7', 'v6', 'v7')
        P.e('buffer_load_dwordx2', 'v[8:9]', 'v7', 's[8:11]', '0', mods='offen')
        P.e('buffer_load_dwordx2', 'v[10:11]', 'v7', 's[8:11]', '0', mods='offen offset:32')
        P.e('v_and_b32', 'v12', '1', 'v4'); P.e('v_lshlrev_b32', 'v12', '5', 'v12')
        P.e('v_lshrrev_b32', 'v13', '1', 'v4'); P.e('v_lshlrev_b32', 'v13', '4', 'v13')
        P.e('v_add3_u32', 'v6', 'v6', 'v12', 'v13')
        P.e('s_mov_b32', 's41', '0xffff0000')
        ACC = 80
        srcs = [D + 4 * s for s in range(n)] + [8]
        for si, base in enumerate(srcs):
            for j in range(4):
                d = vr(base + j)
                if si == 0:
                    P.e('v_lshlrev_b32', vr(ACC + 2 * j), '16', d)
                    P.e('v_and_b32', vr(ACC + 2 * j + 1), 's41', d)
                else:
                    t0, t1 = 88 + 2 * (j % 2), 89 + 2 * (j % 2)
                    P.e('v_lshlrev_b32', vr(t0), '16', d)
                    P.e('v_and_b32', vr(t1), 's41', d)
                    P.e('v_add_f32', vr(ACC + 2 * j), vr(ACC + 2 * j), vr(t0))
                    P.e('v_add_f32', vr(ACC + 2 * j + 1), vr(ACC + 2 * j + 1), vr(t1))
        for j in range(4):
            P.e('v_cvt_pk_bf16_f32', vr(92 + j), vr(ACC + 2 * j), vr(ACC + 2 * j + 1))
        P.e('v_permlane16_swap_b32', 'v92', 'v94')
        P.e('v_permlane16_swap_b32', 'v93', 'v95')
        P.e('buffer_store_dwordx4', 'v[92:95]', 'v6', 's[24:27]', '0', mods='offen')
        tl_end(P, opts, 2)
        if opts.get('hx', 0):
            P.raw("  s_waitcnt vmcnt(0) lgkmcnt(0)")
            P.raw("  s_memrealtime s[86:87]")
            P.raw("  s_load_dwordx2 s[84:85], s[0:1], 64")
            P.raw("  s_load_dwordx2 s[76:77], s[0:1], 72")
            P.raw("  s_waitcnt lgkmcnt(0)")
            pass
            P.raw("  s_mov_b32 s80, s84"); P.raw("  s_and_b32 s81, s85, 0xffff"); P.raw("  s_mov_b32 s82, 256"); P.raw("  s_mov_b32 s83, 0x20000")
            P.raw(f"  s_and_b32 s70, s2, 15"); P.raw("  s_cmp_lg_u32 s70, 5"); P.raw(f"  s_cbranch_scc1 HXK2_{half}")
            P.raw("  v_mov_b32 v90, s86"); P.raw("  v_mov_b32 v91, 0")
            P.raw("  v_cmp_eq_u32 vcc, 0, v0"); P.raw("  s_and_saveexec_b64 s[78:79], vcc")
            P.raw("  buffer_atomic_umax v90, v91, s[80:83], 0 offen")
            P.raw("  s_mov_b64 exec, s[78:79]")
            P.raw(f"  s_add_u32 s76, s76, {96 << 20}"); P.raw("  s_addc_u32 s77, s77, 0")
            P.raw("  s_mov_b32 s72, s76"); P.raw("  s_and_b32 s73, s77, 0xffff"); P.raw("  s_mov_b32 s74, 4096"); P.raw("  s_mov_b32 s75, 0x20000")
            P.raw("  v_lshlrev_b32 v91, 2, v1")
            P.raw("  v_cmp_gt_u32 vcc, 6, v1"); P.raw("  s_and_saveexec_b64 s[78:79], vcc")
            P.raw("  buffer_load_dword v90, v91, s[72:75], 0 offen sc1"); P.raw("  s_waitcnt vmcnt(0)")
            P.raw("  buffer_store_dword v90, v91, s[80:83], 0 offen offset:4")
            P.raw("  s_waitcnt vmcnt(0)")
            P.raw("  s_mov_b64 exec, s[78:79]")
            P.raw(f"HXK2_{half}:")
        if not half:
            P.raw("  s_endpgm")
    P.label("K2_end")
    P.raw("  s_endpgm")
    return P.text(), descriptor(name, 256 if opts.get('hx', 0) else 96, 256 if opts.get('hx', 0) else 96, 102), (name, NWG, 64 * K2W, 0)


class K1:
    V_LANE, V_C16, V_G, V_T0, V_T1, V_T2, V_T3, V_T4 = 1, 2, 3, 4, 5, 6, 7, 8
    ACC0, ACC1 = 16, 80
    FR = 144
    NFR = 6
    XV = 168
    TQ = 200
    TG = 204
    TH = 208
    TP = 210
    TPH = 214
    DQ = 216
    DG = 219
    DH = 222
    DP = 225
    DPH = 228
    HW = 231
    HWX = 233
    HR = 234
    XR = 236
    SW = 237
    AB = 241
    OW = 242
    PV = 243
    MG = 244
    XA = 245
    TD = 168
    HAL = 248
    HALX = 8

    S_W, S_S, S_I = 20, 21, 22
    S_RG2, S_CH = 23, 24
    S_LDSW = 25
    S_XF = 26
    S_FB = 88
    S_YC = 28
    S_FPB, S_MBO, S_MBP, S_HPB, S_FSH, S_FOFF = 17, 18, 19, 44, 26, 27
    SRD_DBG = 48
    S_TCH = 33
    INC = [176, 180, 184, 188, 192, 196, 248, 252]
    INC2 = [200, 204, 216, 220, 232, 236, 8, 12]
    V_POLL = 4
    S_T0, S_T1, S_T2, S_T3 = 34, 35, 36, 37
    S_SOFF = 38
    S_NLOG2E = 39
    S_AC = 40
    S_PERM0, S_PERM1 = 41, 42
    S_NEG = 43
    S_QC = 44
    S_PO = 45
    S_PO2 = 40
    SRD_XF, SRD_QKV, SRD_GU, SRD_WD, SRD_WO, SRD_P = 48, 52, 56, 60, 64, 68
    S_FB2 = 4
    S_FBR = 9
    S_WOR = 16
    S_XL, S_XH, S_SOFF2 = 17, 18, 19

    def __init__(self, opts):
        self.P = Prog()
        self.o = opts

    def xreg(self, t, mb):
        j = 4 * t + mb
        return ar(4 * j, 4) if j < 64 else vr(self.XV + 4 * (j - 64), 4)

    def hreg(self, k, mb):
        return ar(16 * k + 4 * mb, 4)

    def halo_x(self, t):
        return vr(self.ACC1 + 4 * t, 4) if t < 16 else vr(self.HALX + 4 * (t - 16), 4)

    def prologue(self):
        P = self.P
        e = P.e
        e('s_cmp_ge_u32', 's2', '256')
        P.raw("  s_cbranch_scc1 K1_end")
        tl_start(P, self.o)
        hx_slot(P, self.o, 1, 'st', True)
        if self.o.get('prof', 0):
            P.raw("  s_memtime s[46:47]")
            P.raw("  s_memrealtime s[98:99]")
        e('s_load_dwordx2', 's[14:15]', 's[0:1]', '72')
        e('s_load_dwordx2', 's[6:7]', 's[0:1]', '16')
        e('s_load_dwordx4', 's[8:11]', 's[0:1]', '32')
        e('s_load_dwordx2', 's[12:13]', 's[0:1]', '48')
        L, C16, G = vr(self.V_LANE), vr(self.V_C16), vr(self.V_G)
        e('v_and_b32', L, '63', 'v0')
        e('v_lshrrev_b32', 'v4', '6', 'v0')
        e('v_and_b32', C16, '15', L)
        e('v_lshrrev_b32', G, '4', L)
        e('v_readfirstlane_b32', sr(self.S_W), 'v4')
        e('v_lshlrev_b32', vr(self.PV), '4', L)
        e('s_and_b32', sr(self.S_S), 's2', '3'); e('s_lshl_b32', sr(self.S_S), sr(self.S_S), '2')
        e('s_bfe_u32', sr(self.S_T0), 's2', '0x20003'); e('s_add_u32', sr(self.S_S), sr(self.S_S), sr(self.S_T0))
        e('s_bfe_u32', sr(self.S_I), 's2', '0x10002'); e('s_lshl_b32', sr(self.S_I), sr(self.S_I), '3')
        e('s_lshr_b32', sr(self.S_T0), 's2', '5'); e('s_add_u32', sr(self.S_I), sr(self.S_I), sr(self.S_T0))
        e('s_and_b32', sr(self.S_RG2), sr(self.S_W), '1'); e('s_lshr_b32', sr(self.S_CH), sr(self.S_W), '1')
        e('s_mul_i32', sr(self.S_LDSW), sr(self.S_W), '6144')
        e('s_lshl_b32', sr(self.S_T0), sr(self.S_I), '3'); e('s_lshl_b32', sr(self.S_T1), sr(self.S_W), '1')
        e('s_add_u32', sr(self.S_T0), sr(self.S_T0), sr(self.S_T1))
        e('s_mul_i32', sr(self.S_XF), sr(self.S_T0), '18432')
        e('s_lshr_b32', sr(self.S_T0), sr(self.S_W), '1'); e('s_mul_i32', sr(self.S_XL), sr(self.S_T0), '36864')
        e('s_and_b32', sr(self.S_T0), sr(self.S_W), '1'); e('s_mul_i32', sr(self.S_T0), sr(self.S_T0), '6144')
        e('s_add_u32', sr(self.S_XL), sr(self.S_XL), sr(self.S_T0))
        e('s_min_u32', sr(self.S_T1), sr(self.S_W), '2'); e('s_lshl_b32', sr(self.S_XH), sr(self.S_T1), '10')
        e('s_lshl_b32', sr(self.S_T0), sr(self.S_I), '3'); e('s_sub_u32', sr(self.S_T0), sr(self.S_T0), '1')
        e('s_mul_i32', sr(self.S_T0), sr(self.S_T0), '18432'); e('s_add_u32', sr(self.S_T0), sr(self.S_T0), sr(self.S_XH))
        e('s_cmp_eq_u32', sr(self.S_I), '0'); e('s_cselect_b32', sr(self.S_XF + 1), '0x7f000000', sr(self.S_T0))
        e('s_mul_i32', sr(self.S_T2), sr(self.S_S), '147456'); e('s_add_u32', sr(self.S_T2), sr(self.S_T2), str(PQ_OFF))
        P.raw("  s_waitcnt lgkmcnt(0)")
        e('s_add_u32', sr(self.S_T0), 's14', str(XF_OFF)); e('s_addc_u32', sr(self.S_T1), 's15', '0')
        srd(P, self.SRD_XF, sr(self.S_T0), sr(self.S_T1), XF_SIZE)
        e('s_add_u32', sr(self.S_T0), 's14', sr(self.S_T2)); e('s_addc_u32', sr(self.S_T1), 's15', '0')
        srd(P, self.SRD_QKV, sr(self.S_T0), sr(self.S_T1), 147456)

    def scalars_late(self, e, srd_):
        srd_(self.SRD_WO, 's6', 's7', 576 * 1152)
        e('s_cmp_ge_u32', sr(self.S_W), '2')
        e('s_cselect_b32', sr(self.S_T0), 's10', 's8'); e('s_cselect_b32', sr(self.S_T1), 's11', 's9')
        srd_(self.SRD_GU, sr(self.S_T0), sr(self.S_T1), 576 * 9216)
        srd_(self.SRD_WD, 's12', 's13', 4608 * 1152)
        e('s_add_u32', sr(self.S_T0), 's14', str(P_OFF)); e('s_addc_u32', sr(self.S_T1), 's15', '0')
        srd_(self.SRD_P, sr(self.S_T0), sr(self.S_T1), P_SIZE)
        e('s_mul_i32', sr(self.S_T0), sr(self.S_S), '288')
        e('s_and_b32', sr(self.S_T1), sr(self.S_S), '1')
        e('s_lshl_b32', sr(self.S_T2), sr(self.S_T1), '5'); e('s_add_u32', sr(self.S_T2), sr(self.S_T2), sr(self.S_T0))
        for j in range(4):
            e('s_add_u32', sr(self.S_T3), sr(self.S_I), str(j)); e('s_and_b32', sr(self.S_T3), sr(self.S_T3), '3')
            e('s_lshl_b32', sr(self.S_T3), sr(self.S_T3), '6'); e('s_add_u32', sr(self.S_FB + j), sr(self.S_T2), sr(self.S_T3))
        e('s_cmp_eq_u32', sr(self.S_T1), '1'); e('s_cselect_b32', sr(self.S_T3), '0', '256')
        e('s_add_u32', sr(self.S_FB + 4), sr(self.S_T0), sr(self.S_T3))
        for j in range(5):
            e('s_lshl_b32', sr(self.S_FB2 + j), sr(self.S_FB + j), '1')
            e('s_mul_i32', sr(self.S_FBR + j), sr(self.S_FB + j), '1152')
        e('s_mul_i32', sr(self.S_WOR), sr(self.S_S), str(36 * 1152))
        e('s_and_b32', sr(self.S_T0), sr(self.S_S), '1'); e('s_lshl_b32', sr(self.S_T0), sr(self.S_T0), '1')
        for k in range(4):
            e('s_add_u32', sr(self.S_T1), sr(self.S_T0), str(k)); e('s_and_b32', sr(self.S_T1), sr(self.S_T1), '3')
            e('s_lshl_b32', sr(self.S_YC + k), sr(self.S_T1), '8')
        e('s_mov_b32', sr(self.S_NLOG2E), f2h(-LOG2E))
        e('s_mov_b32', sr(self.S_AC), f2h(LOG2E / math.sqrt(18.0)))
        e('s_mov_b32', sr(self.S_PERM0), '0x05040100'); e('s_mov_b32', sr(self.S_PERM1), '0x07060302')
        e('s_mov_b32', sr(self.S_NEG), f2h(-1e30))

    TA, TB, TC, TDm = 'v4', 'v5', 'v6', 'v7'
    TR, TCC8, TG1, TG2 = 'v247', 'v244', 'v242', 'v241'

    def addr_first(self, e):
        L, C16, G = vr(self.V_LANE), vr(self.V_C16), vr(self.V_G)
        a, b, c = self.TA, self.TB, self.TC
        r, cc8, g1, g2 = self.TR, self.TCC8, self.TG1, self.TG2
        W, RG2 = sr(self.S_W), sr(self.S_RG2)
        T0, T1, T2, T3 = sr(self.S_T0), sr(self.S_T1), sr(self.S_T2), sr(self.S_T3)
        e('v_lshrrev_b32', r, '2', C16)
        e('v_and_b32', cc8, '3', C16); e('v_lshlrev_b32', cc8, '3', cc8)
        e('v_and_b32', g1, '1', G)
        e('v_lshrrev_b32', g2, '1', G)
        e('v_mul_u32_u24', a, '12288', g1)
        e('v_lshl_add_u32', a, g2, '10', a)
        e('v_lshl_add_u32', a, r, '8', a)
        e('v_add_u32', a, a, cc8)
        e('v_lshl_or_b32', b, g1, '2', r)
        e('s_mov_b32', T0, '0x10525210'); e('s_mov_b32', T1, '0x63747463')
        e('s_lshl_b32', T2, W, '4')
        e('s_lshr_b64', sr(self.S_T0, 2), sr(self.S_T0, 2), T2)
        e('s_mov_b32', sr(self.S_QC), T0)
        for u in range(4):
            e('s_bfe_u32', T2, T0, hex((4 << 16) | (4 * u)))
            e('v_xor_b32', c, T2, b); e('v_lshl_add_u32', vr(self.TQ + u), c, '5', a)
        e('s_mul_i32', T0, RG2, '36864'); e('s_add_u32', T0, T0, str(HB))
        e('v_add_u32', vr(self.XA), T0, vr(self.PV))
        e('v_add_u32', vr(self.XA + 1), str(HB + 73728), vr(self.PV))

    def addr_late(self, e):
        L, C16, G = vr(self.V_LANE), vr(self.V_C16), vr(self.V_G)
        a, b, c, d = self.TA, self.TB, self.TC, self.TDm
        r, cc8, g1, g2 = self.TR, self.TCC8, self.TG1, self.TG2
        W, CH, RG2 = sr(self.S_W), sr(self.S_CH), sr(self.S_RG2)
        T0, T1, T2, T3 = sr(self.S_T0), sr(self.S_T1), sr(self.S_T2), sr(self.S_T3)
        e('v_lshrrev_b32', b, '3', L)
        e('v_bfe_u32', a, b, '1', '1')
        e('s_and_b32', T0, W, '1'); e('s_lshl_b32', T1, T0, '1')
        e('v_or_b32', a, T1, a)
        e('v_bfe_u32', c, L, '1', '2')
        e('v_xor_b32', a, a, c); e('v_lshlrev_b32', a, '1', a)
        e('v_and_b32', c, '1', L); e('v_or_b32', a, a, c)
        e('s_lshl_b32', T1, T0, '3')
        e('v_add_u32', c, T1, b)
        e('v_mul_u32_u24', c, '9216', c)
        e('v_lshl_add_u32', vr(self.DG), a, '4', c)
        for j in (1, 2):
            e('v_add_u32', vr(self.DG + j), str(j * (16 * 9216 - 1024)), vr(self.DG))
        e('s_lshl_b32', T1, W, '3')
        e('v_add_u32', c, T1, b)
        e('v_mul_u32_u24', c, '1152', c)
        e('v_lshl_add_u32', vr(self.DPH), a, '4', c)
        for j in (1, 2):
            e('v_add_u32', vr(self.DPH + j), str(j * (32 * 1152 - 1024)), vr(self.DPH))
        e('v_lshrrev_b32', b, '2', L)
        e('v_lshrrev_b32', a, '3', b); e('v_lshlrev_b32', a, '1', a)
        e('v_and_b32', c, '3', L); e('v_xor_b32', a, a, c)
        e('s_lshl_b32', T1, T0, '4')
        e('v_add_u32', c, T1, b)
        e('v_mul_u32_u24', c, '9216', c)
        e('v_lshl_add_u32', vr(self.DH), a, '4', c)
        for j in (1, 2):
            e('v_add_u32', vr(self.DH + j), str(j * (32 * 9216 - 1024)), vr(self.DH))
        e('s_lshr_b32', T0, W, '1'); e('s_lshl_b32', T0, T0, '2')
        e('v_or_b32', a, T0, G)
        e('v_lshrrev_b32', b, '1', C16)
        e('v_xor_b32', a, a, b)
        e('v_lshlrev_b32', a, '1', a)
        e('v_and_b32', b, '1', C16)
        e('v_or_b32', a, a, b)
        e('s_lshl_b32', T1, W, '2')
        e('v_add_u32', b, T1, G)
        e('v_mul_u32_u24', c, '1152', b)
        e('v_lshl_add_u32', vr(self.DP), a, '4', c)
        for j in (1, 2):
            e('v_add_u32', vr(self.DP + j), str(j * (16 * 1152 - 1024)), vr(self.DP))
        e('v_mul_u32_u24', a, '6144', g1)
        e('v_lshl_add_u32', a, g2, '10', a)
        e('v_lshl_add_u32', a, r, '7', a)
        e('v_add_u32', a, a, cc8)
        e('v_lshrrev_b32', b, '1', r); e('v_lshl_or_b32', b, g1, '1', b)
        for bb in range(2):
            e('s_lshl_b32', T2, CH, '1'); e('s_add_u32', T2, T2, str(bb))
            e('v_xor_b32', c, T2, b); e('v_lshl_add_u32', vr(self.TG + bb), c, '5', a)
            e('v_add_u32', vr(self.TG + 2 + bb), '12288', vr(self.TG + bb))
        e('v_mul_u32_u24', a, '6144', G)
        e('v_lshl_add_u32', a, r, '7', a)
        e('v_add_u32', a, a, cc8)
        for bb in range(2):
            e('s_lshl_b32', T2, CH, '1'); e('s_add_u32', T2, T2, str(bb))
            e('v_xor_b32', c, T2, b); e('v_lshl_add_u32', vr(self.TPH + bb), c, '5', a)
        e('v_mul_u32_u24', a, '6144', g2)
        e('v_lshl_add_u32', c, g1, '3', r); e('v_lshl_add_u32', a, c, '6', a)
        e('v_add_u32', a, a, cc8)
        e('v_xor_b32', c, CH, g1); e('v_lshl_add_u32', vr(self.TH), c, '5', a)
        e('v_add_u32', vr(self.TH + 1), '12288', vr(self.TH))
        e('v_mul_u32_u24', a, '12288', g1)
        e('v_lshl_add_u32', a, g2, '10', a)
        e('v_lshl_add_u32', a, r, '8', a)
        e('v_add_u32', a, a, cc8)
        e('v_lshl_or_b32', b, g1, '2', r)
        for u in range(4):
            e('s_lshl_b32', T2, CH, '2'); e('s_add_u32', T2, T2, str(u))
            e('v_xor_b32', c, T2, b); e('v_lshl_add_u32', vr(self.TP + u), c, '5', a)
        e('s_lshl_b32', T3, RG2, '6'); e('s_add_u32', T3, T3, '16')
        e('v_add_u32', c, T3, C16); e('v_mul_u32_u24', c, str(SPITCH), c)
        e('v_lshl_add_u32', c, G, '3', c)
        for u in range(4):
            e('s_bfe_u32', T2, sr(self.S_QC), hex((4 << 16) | (4 * u)))
            e('s_lshl_b32', T2, T2, '5'); e('s_add_u32', T2, T2, str(SB))
            e('v_add_u32', vr(self.SW + u), T2, c)
        e('s_lshl_b32', T2, RG2, '6'); e('v_add_u32', a, T2, C16)
        e('s_lshl_b32', T3, CH, '2'); e('v_add_u32', b, T3, g2)
        e('v_and_b32', c, '7', C16); e('v_xor_b32', b, b, c)
        e('v_lshlrev_b32', b, '4', b); e('v_lshl_add_u32', b, g1, '3', b)
        e('v_lshl_add_u32', b, a, '7', b)
        e('v_add_u32', vr(self.HW), str(HB), b)
        e('v_xor_b32', vr(self.HW + 1), '32', vr(self.HW))
        e('v_xor_b32', b, G, c); e('v_lshlrev_b32', b, '4', b); e('v_lshl_add_u32', b, a, '7', b)
        e('v_add_u32', vr(self.HR), str(HB), b)
        e('v_xor_b32', vr(self.HR + 1), '64', vr(self.HR))
        e('v_mul_u32_u24', b, str(XPITCH), a)
        e('v_add_u32', b, str(XB), b)
        e('v_lshl_add_u32', vr(self.XR), G, '4', b)
        e('s_lshl_b32', T3, CH, '5')
        e('v_lshl_add_u32', c, G, '3', b); e('v_add_u32', vr(self.HWX), T3, c)
        e('v_and_b32', a, '31', L); e('v_lshrrev_b32', b, '5', L)
        e('s_lshl_b32', T2, W, '5')
        e('v_add_u32', a, T2, a)
        e('s_lshl_b32', T3, sr(self.S_I), '7'); e('v_add_u32', vr(self.MG), T3, a)
        e('v_add_u32', c, '2', a); e('v_mul_u32_u24', c, str(SPITCH), c)
        e('v_lshl_add_u32', c, b, '5', c); e('v_add_u32', vr(self.AB), str(SB), c)
        e('v_mul_u32_u24', c, str(XPITCH), a); e('v_lshl_add_u32', c, b, '5', c)
        e('v_add_u32', vr(self.OW), str(XB + 64), c)

    def task_late_setup(self):
        T = []
        e = lambda op, *a, **k: T.append(I(op, *a, **k))

        def srd_(d, lo, hi, size):
            e('s_mov_b32', sr(d), lo); e('s_and_b32', sr(d + 1), hi, '0xffff'); e('s_mov_b32', sr(d + 2), str(size)); e('s_mov_b32', sr(d + 3), '0x20000')
        self.scalars_late(e, srd_)
        S = list(T)
        T.clear()
        self.addr_late(e)
        return [S] + T

    def build(self):
        self.stages = []
        self.ksteps = []
        strips = []

        def add_stage(dml):
            self.stages.append(dml)
            return len(self.stages) - 1

        def strip_generic(name, nk, ks_per_stage, nfrag, dma_fn, tr_fn, mf_fn):
            st = dict(name=name, ks=[])
            for t in range(nk):
                tl = t % ks_per_stage
                if tl == 0:
                    n_in = min(ks_per_stage, nk - t)
                    dml = []
                    for tt in range(n_in):
                        dml += dma_fn(t + tt, tt)
                    sid = add_stage(dml)
                frs = [tr_fn(t, tl, u) for u in range(nfrag)]
                st['ks'].append(dict(t=t, stage=sid, frags=frs, mf=[mf_fn(t, u) for u in range(nfrag)], last_in_stage=(tl == ks_per_stage - 1 or t == nk - 1)))
            strips.append(st)
            return st

        A0, A1 = self.ACC0, self.ACC1
        acc = lambda buf, u, mb: vr(buf + 16 * u + 4 * mb, 4)

        def dq(t, tt):
            r = t // 3
            return [(self.SRD_QKV, ('pq', 0), (r * 24 + 2 * tt + e) * 1024, self.PV, 1024, 2 * tt + e) for e in range(2)]

        def trq(t, tl, u):
            return (self.TQ + u, tl * 2048, 6144)

        def mfq(t, u):
            L = [(acc(A0, u, mb), self.xreg(t, mb)) for mb in range(4)]
            if u < 2:
                L.append((vr(self.HAL + 4 * u, 4), self.halo_x(t)))
            return L
        strip_generic('QKV', 18, 3, 4, dq, trq, mfq)

        def ffn(j, buf):
            def dg(t, tt):
                return [(self.SRD_GU, ('fb2', j), (32 * t + 16 * e) * 9216, self.DG, 16 * 9216, 2 * tt + e) for e in range(2)]

            def trg(t, tl, u):
                return (self.TG + u, tl * 2048, 512)

            def mfg(t, u):
                return [(acc(buf, u, mb), self.xreg(t, mb)) for mb in range(4)]
            return strip_generic(f'F{j}', 18, 3, 4, dg, trg, mfg)
        ffn(0, A1); ffn(1, A0); ffn(2, A1); ffn(3, A0)

        def dh(t, tt):
            return [(self.SRD_GU, ('fb2', 4), (32 * t) * 9216, self.DH, 32 * 9216, tt)]

        def trh(t, tl, u):
            return (self.TH + u, tl * 1024, 256)

        def mfh(t, u):
            return [(acc(A1, u, mb), self.xreg(t, mb)) for mb in range(4)]
        strip_generic('F4h', 18, 6, 2, dh, trh, mfh)

        self.kmap = [('F', 0, 0), ('F', 0, 1), ('F', 1, 0), ('F', 1, 1), ('F', 2, 0), ('F', 2, 1), ('O', 0, 0), ('O', 0, 1), ('F', 3, 0), ('F', 3, 1), ('X', 4, 0)]

        def p2rows(k):
            kind, j, tt = self.kmap[k]
            if kind == 'O':
                return self.SRD_WO, ('wo', 0), 32 * tt
            return self.SRD_WD, ('fbr', j), 32 * tt

        def p2full(Y, buf):
            def dp(t, tt):
                s_, b_, r0 = p2rows(t)
                return [(s_, b_ + ('y', Y), (r0 + 16 * e) * 1152, self.DP, 16 * 1152, 2 * tt + e) for e in range(2)]

            def trp(t, tl, u):
                return (self.TP + u, tl * 2048, 6144)

            def mfp(t, u):
                return [(acc(buf, u, mb), self.hreg(t, mb)) for mb in range(4)]
            return strip_generic(f'P{Y}', 11, 3, 4, dp, trp, mfp)
        def dph(t, tt):
            s_, b_, r0 = p2rows(t)
            return [(s_, b_, r0 * 1152 + 1024, self.DPH, 32 * 1152, tt)]

        def trph(t, tl, u):
            return (self.TPH + u, tl * 1024, 512)

        def mfph(t, u):
            return [(acc(A0, u, mb), self.hreg(t, mb)) for mb in range(4)]
        p2full(0, A0); p2full(1, A1)
        strip_generic('P4h', 11, 6, 2, dph, trph, mfph)
        p2full(2, A1); p2full(3, A0)
        self.strips = strips
        x0 = [st for st in strips if st['name'] == 'P0'][0]['ks'][9]['stage']
        first_deep = x0
        self.first_deep = first_deep
        self.slot = {}
        nst = len(self.stages)
        for sid in range(nst):
            if sid < first_deep or not self.o.get('deep', 1):
                self.slot[sid] = sid % 3
        if self.o.get('deep', 1):
            order = [3, 4, (x0 - 3) % 3, (x0 - 2) % 3, 5, (x0 - 1) % 3]
            for k, sid in enumerate(range(first_deep, nst)):
                self.slot[sid] = order[k % 6]

    def slot_base(self, sid):
        sl = self.slot[sid]
        return sl * SLOT if sl < 3 else HB + (sl - 3) * SLOT

    def dma_items(self, sid):
        sbase = self.slot_base(sid)
        items = []
        prev = None
        for (srd_, base, goff, vbase, qdelta, q) in self.stages[sid]:
            share = False
            lin = base is not None and base[0] == 'pq'
            if prev is not None:
                psrd, pbase, pgoff, pq, pj = prev
                j = pj + 1
                if psrd == srd_ and pbase == base and j <= (3 if lin else 2) and q == pq + 1 and goff == pgoff + qdelta:
                    share = True
            pre = []
            if not share:
                j = 0
                pre.append(I('s_add_u32', 'm0', sr(self.S_LDSW), str(sbase + q * 1024)))
                so = sr(self.S_SOFF)
                if lin:
                    pre.append(I('s_add_u32', so, sr(self.S_LDSW), str(goff)))
                elif base[0] == 'fb2':
                    pre.append(I('s_add_u32', so, sr(self.S_FB2 + base[1]), str(goff)))
                elif base[0] == 'fbr':
                    pre.append(I('s_add_u32', so, sr(self.S_FBR + base[1]), str(goff)))
                elif base[0] == 'wo':
                    pre.append(I('s_add_u32', so, sr(self.S_WOR), str(goff)))
                if base[-2] == 'y':
                    pre.append(I('s_add_u32', so, so, sr(self.S_YC + base[-1])))
            if pre:
                cur = pre
            items.append((cur, I('buffer_load_dwordx4', vr(vbase if lin else vbase + j), sr(srd_, 4), sr(self.S_SOFF),
                                 mods=f'offen offset:{1024 * j} lds' if j else 'offen lds', tag=('st', sid))))
            prev = (srd_, base, goff, q, j)
        return items

    def task_qkv_epi(self):
        T = []
        A0 = self.ACC0
        T.append(I('v_mov_b32', 'v4', '0')); T.append(I('v_mov_b32', 'v5', '0'))
        T.append(I('v_and_b32', 'v6', '127', 'v0')); T.append(I('v_mul_u32_u24', 'v6', str(XPITCH), 'v6'))
        T.append(I('v_add_u32', 'v6', str(XB + 136), 'v6'))
        T.append(I('ds_write_b64', 'v6', 'v[4:5]', flag='bar'))
        for u in range(4):
            for mb in range(4):
                a = A0 + 16 * u + 4 * mb
                T.append(I('v_cvt_pk_bf16_f32', vr(a), vr(a), vr(a + 1)))
                T.append(I('v_cvt_pk_bf16_f32', vr(a + 1), vr(a + 2), vr(a + 3)))
                T.append(I('ds_write_b64', vr(self.SW + u), vr(a, 2), mods=f'offset:{mb * 16 * SPITCH}', flag='bar'))
        for u in range(2):
            a = self.HAL + 4 * u
            T.append(I('v_cvt_pk_bf16_f32', vr(a), vr(a), vr(a + 1)))
            T.append(I('v_cvt_pk_bf16_f32', vr(a + 1), vr(a + 2), vr(a + 3)))
            T.append(I('s_lshl_b32', sr(self.S_T2), sr(self.S_RG2), '6'))
            T.append(I('s_add_u32', sr(self.S_T2), sr(self.S_T2), '16'))
            T.append(I('s_mul_i32', sr(self.S_T2), sr(self.S_T2), str(SPITCH)))
            T.append(I('v_subrev_u32', vr(a + 2), sr(self.S_T2), vr(self.SW + u)))
            T.append(I('ds_write_b64', vr(a + 2), vr(a, 2), flag='bar'))
        return T

    def task_attn(self):
        T = []
        B = self.ACC0
        Q = B
        KA = [B + 12, B + 24]
        S = B + 36
        O = B + 44
        KB = [O, O + 10]
        TP = [4, 5, 6, 7, 8, 9, 10, 11, 12, 13, 14, 15, 248, 249, 250, 251, 252, 253, 254, 255]
        AB = vr(self.AB)

        def rd(dst, off):
            if dst % 2 == 0 and dst % 4 == 0:
                return [I('ds_read_b128', vr(dst, 4), AB, mods=f'offset:{off}'),
                        I('ds_read_b128', vr(dst + 4, 4), AB, mods=f'offset:{off + 16}'),
                        I('ds_read_b64', vr(dst + 8, 2), AB, mods=f'offset:{off + 32}')]
            return [I('ds_read_b128', vr(dst, 4), AB, mods=f'offset:{off}'),
                    I('ds_read_b128', vr(dst + 4, 4), AB, mods=f'offset:{off + 16}'),
                    I('ds_read_b64', vr(dst + 8, 2), AB, mods=f'offset:{off + 32}')]
        rowoff = lambda w: (14 - 2 * w) * SPITCH
        T += rd(Q, rowoff(0) + 160)
        T += rd(KA[0], rowoff(0)); T += rd(KA[1], rowoff(1))
        T += rd(KB[0], rowoff(2)); T += rd(KB[1], rowoff(3))
        T.append(I('v_mov_b32', vr(S), '0'))
        T.append([I('v_cmp_gt_u32', 'vcc', '32', vr(self.V_LANE)),
                  I('v_cndmask_b32', vr(Q + 9), vr(Q + 9), vr(S), 'vcc'),
                  I('v_cndmask_b32', vr(Q + 0), vr(S), vr(Q + 0), 'vcc')])
        for w in range(0, 8, 2):
            bufs = KA if (w // 2) % 2 == 0 else KB
            burst = []
            for ww, kb in ((w, bufs[0]), (w + 1, bufs[1])):
                burst.append(I('v_dot2_f32_bf16', vr(S + ww), vr(Q), vr(kb), '0'))
            for j in range(1, 10):
                for ww, kb in ((w, bufs[0]), (w + 1, bufs[1])):
                    burst.append(I('v_dot2_f32_bf16', vr(S + ww), vr(Q + j), vr(kb + j), vr(S + ww)))
            T.append(burst)
            if w + 4 < 8:
                T += rd(bufs[0], rowoff(w + 4)); T += rd(bufs[1], rowoff(w + 5))
            elif w == 4:
                T += rd(KA[0], rowoff(0) + 80); T += rd(KA[1], rowoff(1) + 80)
        NEG = vr(Q + 10)
        T.append(I('v_mov_b32', NEG, sr(self.S_NEG)))
        for w in range(1, 8):
            T.append([I('v_cmp_le_u32', 'vcc', str(2 * w), vr(self.MG)), I('s_nop', '1'),
                      I('v_cndmask_b32', vr(S + w), NEG, vr(S + w), 'vcc')])
        MX = vr(Q + 11)
        T.append(I('v_max3_f32', MX, vr(S), vr(S + 1), vr(S + 2)))
        T.append(I('v_max3_f32', MX, MX, vr(S + 3), vr(S + 4)))
        T.append(I('v_max3_f32', MX, MX, vr(S + 5), vr(S + 6)))
        T.append(I('v_max_f32', MX, MX, vr(S + 7)))
        T.append(I('v_mul_f32', MX, sr(self.S_AC), MX))
        for w in range(8):
            T.append(I('v_fma_f32', vr(S + w), vr(S + w), sr(self.S_AC), '-' + MX))
        for w in range(8):
            T.append(I('v_exp_f32', vr(S + w), vr(S + w)))
        SUM = vr(Q + 10)
        T.append(I('v_add_f32', SUM, vr(S), vr(S + 1)))
        for w in range(2, 8):
            T.append(I('v_add_f32', SUM, SUM, vr(S + w)))
        T.append(I('v_rcp_f32', SUM, SUM))
        for w in range(8):
            T.append(I('v_mul_f32', vr(S + w), vr(S + w), SUM))
        for pp in range(4):
            T.append(I('v_cvt_pk_bf16_f32', vr(Q + pp), vr(S + 2 * pp), vr(S + 2 * pp + 1)))
        K0_, K1_ = KA
        for pp in range(4):
            burst = []
            for j in range(10):
                a, b = TP[2 * j], TP[2 * j + 1]
                T.append(I('v_perm_b32', vr(a), vr(K1_ + j), vr(K0_ + j), sr(self.S_PERM0)))
                T.append(I('v_perm_b32', vr(b), vr(K1_ + j), vr(K0_ + j), sr(self.S_PERM1)))
                burst.append(I('v_dot2_f32_bf16', vr(O + 2 * j), vr(a), vr(Q + pp), '0' if pp == 0 else vr(O + 2 * j)))
                burst.append(I('v_dot2_f32_bf16', vr(O + 2 * j + 1), vr(b), vr(Q + pp), '0' if pp == 0 else vr(O + 2 * j + 1)))
            if pp < 3:
                T += rd(K0_, rowoff(2 * pp + 2) + 80)
                T += rd(K1_, rowoff(2 * pp + 3) + 80)
            T.append(burst)
        OP = K0_
        for j in range(10):
            T.append(I('v_cvt_pk_bf16_f32', vr(OP + j), vr(O + 2 * j), vr(O + 2 * j + 1)))
        OW = vr(self.OW)
        for j in range(1, 9, 2):
            T.append(I('ds_write2_b32', OW, vr(OP + j), vr(OP + j + 1), mods=f'offset0:{j} offset1:{j + 1}', flag='bar'))
        t0 = TP[0]
        T.append(I('v_add_u32', vr(t0), '36', OW))
        T.append([I('v_cmp_gt_u32', 'vcc', '32', vr(self.V_LANE)), I('s_nop', '1'),
                  I('v_cndmask_b32', vr(OP), vr(OP + 9), vr(OP), 'vcc'),
                  I('v_cndmask_b32', vr(t0), vr(t0), OW, 'vcc')])
        T.append(I('ds_write_b32', vr(t0), vr(OP), flag='bar'))
        return T

    def task_silu(self, buf, j):
        T = []
        NL = sr(self.S_NLOG2E)
        chains = []
        for bb in range(2):
            for mb in range(4):
                g = buf + 16 * bb + 4 * mb
                u = buf + 16 * (2 + bb) + 4 * mb
                c = []
                for r in range(4):
                    c.append(I('v_mul_f32', vr(u + r), vr(g + r), vr(u + r)))
                for r in range(4):
                    c.append(I('v_mul_f32', vr(g + r), NL, vr(g + r)))
                for r in range(4):
                    c.append(I('v_exp_f32', vr(g + r), vr(g + r)))
                for r in range(4):
                    c.append(I('v_add_f32', vr(g + r), '1.0', vr(g + r)))
                for r in range(4):
                    c.append(I('v_rcp_f32', vr(g + r), vr(g + r)))
                for r in range(4):
                    c.append(I('v_mul_f32', vr(u + r), vr(g + r), vr(u + r)))
                c.append(I('v_cvt_pk_bf16_f32', vr(g), vr(u), vr(u + 1)))
                c.append(I('v_cvt_pk_bf16_f32', vr(g + 1), vr(u + 2), vr(u + 3)))
                if j < 4:
                    c.append(I('ds_write_b64', vr(self.HW + bb), vr(g, 2), mods=f'offset:{j * 16384 + mb * 2048}', flag='bar'))
                chains.append(c)
        Ta, Tb = [], []
        for k, c in enumerate(chains):
            (Ta if k % 2 == 0 else Tb).extend(c)
        return Ta, Tb

    def task_silu_h(self, buf):
        TT = ([], [])
        NL = sr(self.S_NLOG2E)
        for mb in range(4):
            T = TT[mb % 2]
            g = buf + 4 * mb
            u = buf + 16 + 4 * mb
            for r in range(4):
                T.append(I('v_mul_f32', vr(u + r), vr(g + r), vr(u + r)))
            for r in range(4):
                T.append(I('v_mul_f32', vr(g + r), NL, vr(g + r)))
            for r in range(4):
                T.append(I('v_exp_f32', vr(g + r), vr(g + r)))
            for r in range(4):
                T.append(I('v_add_f32', vr(g + r), '1.0', vr(g + r)))
            for r in range(4):
                T.append(I('v_rcp_f32', vr(g + r), vr(g + r)))
            for r in range(4):
                T.append(I('v_mul_f32', vr(u + r), vr(g + r), vr(u + r)))
            T.append(I('v_cvt_pk_bf16_f32', vr(g), vr(u), vr(u + 1)))
            T.append(I('v_cvt_pk_bf16_f32', vr(g + 1), vr(u + 2), vr(u + 3)))
            T.append(I('ds_write_b64', vr(self.HWX), vr(g, 2), mods=f'offset:{mb * 16 * XPITCH}', flag='bar'))
        return TT

    def task_hload(self, k):
        kind, j, tt = self.kmap[k]
        T = []
        for mb in range(4):
            d = self.hreg(k, mb)
            if kind == 'F':
                T.append(I('ds_read_b128', d, vr(self.HR + tt), mods=f'offset:{j * 16384 + mb * 2048}', flag='bar', tag=('h', k, mb)))
            elif kind == 'X':
                T.append(I('ds_read_b128', d, vr(self.XR), mods=f'offset:{mb * 16 * XPITCH}', flag='bar', tag=('h', k, mb)))
            elif tt == 0:
                T.append(I('ds_read_b128', d, vr(self.XR), mods=f'offset:{mb * 16 * XPITCH + 64}', flag='bar', tag=('h', k, mb)))
        if kind == 'O' and tt == 1:
            for mb in range(4):
                for r in range(4):
                    T.append(I('v_accvgpr_write_b32', ar(16 * k + 4 * mb + r), '0'))
            grp = [I('s_mov_b64', 'exec', '0xffff')]
            for mb in range(4):
                grp.append(I('ds_read_b128', self.hreg(k, mb), vr(self.XR), mods=f'offset:{mb * 16 * XPITCH + 128}', flag='bar', tag=('h', k, mb)))
            grp.append(I('s_mov_b64', 'exec', '-1'))
            T.append(grp)
        return T

    def touch_ld(self, vaddr, srd_):
        x = I('buffer_load_dword', 'v7', vaddr, sr(srd_, 4), sr(self.S_TCH), mods='offen')
        x.writes = []
        return x

    def task_touch(self):
        T = []
        T0, T1 = sr(self.S_T0), sr(self.S_T1)
        S = [I('s_and_b32', T0, sr(self.S_I), '7'), I('s_mul_i32', T0, T0, '41472'), I('s_mul_i32', T1, sr(self.S_S), str(288 * 1152)),
             I('s_add_u32', T0, T0, T1), I('s_mul_i32', T1, sr(self.S_W), '10368'), I('s_add_u32', sr(self.S_TCH), T0, T1)]
        T.append(S)
        T.append(I('v_lshlrev_b32', 'v247', '7', vr(self.V_LANE)))
        T.append(self.touch_ld('v247', self.SRD_WD))
        T.append([I('s_add_u32', sr(self.S_TCH), sr(self.S_TCH), str(17 * 128))])
        T.append(self.touch_ld('v247', self.SRD_WD))
        S = [I('s_and_b32', T0, sr(self.S_I), '7'), I('s_mul_i32', T0, T0, '5184'), I('s_add_u32', T0, T0, sr(self.S_WOR)),
             I('s_mul_i32', T1, sr(self.S_W), '1296'), I('s_add_u32', sr(self.S_TCH), T0, T1)]
        T.append(S)
        T.append([I('s_mov_b64', 'exec', '0xfff'), self.touch_ld('v247', self.SRD_WO), I('s_mov_b64', 'exec', '-1')])
        return T

    def task_touch_gu(self):
        T = []
        T0, T1 = sr(self.S_T0), sr(self.S_T1)
        L = vr(self.V_LANE)
        T.append(I('v_mul_u32_u24', 'v6', '205', L)); T.append(I('v_lshrrev_b32', 'v6', '10', 'v6'))
        T.append(I('v_mul_u32_u24', 'v7', '5', 'v6')); T.append(I('v_sub_u32', 'v7', L, 'v7'))
        T.append(I('v_mul_u32_u24', 'v6', '9216', 'v6')); T.append(I('v_lshl_add_u32', 'v6', 'v7', '7', 'v6'))
        S = [I('s_and_b32', T0, sr(self.S_I), '7'), I('s_mul_i32', T0, T0, '72'), I('s_and_b32', T1, sr(self.S_W), '1'), I('s_mul_i32', T1, T1, '36'),
             I('s_add_u32', T0, T0, T1), I('s_mul_i32', T0, T0, '9216'), I('s_mul_i32', T1, sr(self.S_S), '576'), I('s_and_b32', T1, T1, '0xffffff80'),
             I('s_add_u32', sr(self.S_TCH), T0, T1)]
        T.append(S)
        for j in range(3):
            T.append(self.touch_ld('v6', self.SRD_GU))
            if j < 2:
                T.append([I('s_add_u32', sr(self.S_TCH), sr(self.S_TCH), str(12 * 9216))])
        return T

    def emit_k2_code_touch(self):
        P = self.P
        P.raw("  s_getpc_b64 s[48:49]")
        P.raw("K1_pc:")
        P.raw("  s_add_u32 s48, s48, k2_reduce_kernel-K1_pc")
        P.raw("  s_addc_u32 s49, s49, 0")
        P.raw("  s_and_b32 s49, s49, 0xffff")
        P.raw("  s_mov_b32 s50, K2_end-k2_reduce_kernel")
        P.raw("  s_mov_b32 s51, 0x20000")
        P.e('v_lshlrev_b32', 'v5', '6', vr(self.V_LANE))
        x = I('buffer_load_dword', 'v6', 'v5', 's[48:51]', '0', mods='offen'); x.writes = []
        P.emit(x)

    def task_tlb(self):
        T = []
        T0, T1 = sr(self.S_T0), sr(self.S_T1)
        S, II = sr(self.S_S), sr(self.S_I)
        S_ = [I('s_lshl_b32', T0, S, '4'), I('s_add_u32', T0, T0, II)]
        T.append(S_)
        T.append(I('v_mov_b32', 'v5', str(FL_OFF)))
        T.append([I('s_lshl_b32', T1, T0, '16'), I('s_add_u32', T1, T1, str(MB_OFF))])
        T.append(I('v_writelane_b32', 'v5', T1, '2'))
        T.append([I('s_xor_b32', T1, T1, str(16 << 16))])
        T.append(I('v_writelane_b32', 'v5', T1, '3'))
        T.append([I('s_lshl_b32', T1, T0, '14'), I('s_add_u32', T1, T1, str(HP_OFF))])
        T.append(I('v_writelane_b32', 'v5', T1, '1'))
        T.append([I('s_lshr_b32', T1, S, '1'), I('s_lshl_b32', T1, T1, '4'), I('s_add_u32', T1, T1, II), I('s_lshl_b32', T1, T1, '17')])
        T.append(I('v_writelane_b32', 'v5', T1, '0'))
        x = I('buffer_load_dword', 'v7', 'v5', sr(self.SRD_P, 4), '0', mods='offen'); x.writes = []
        T.append([I('s_mov_b64', 'exec', '0x1f'), x, I('s_mov_b64', 'exec', '-1')])
        return T

    def task_p2setup(self):
        T = []
        T0, T1 = sr(self.S_T0), sr(self.S_T1)
        S, II, W = sr(self.S_S), sr(self.S_I), sr(self.S_W)
        T += [I('s_lshl_b32', T0, S, '4'), I('s_add_u32', T0, T0, II)]
        T += [I('s_lshl_b32', T1, W, '13')]
        T += [I('s_lshl_b32', sr(self.S_MBO), T0, '16'), I('s_add_u32', sr(self.S_MBO), sr(self.S_MBO), T1),
              I('s_add_u32', sr(self.S_MBO), sr(self.S_MBO), str(MB_OFF))]
        T += [I('s_xor_b32', sr(self.S_MBP), sr(self.S_MBO), str(16 << 16))]
        T += [I('s_lshl_b32', sr(self.S_HPB), T0, '14'), I('s_lshl_b32', T1, W, '12'), I('s_add_u32', sr(self.S_HPB), sr(self.S_HPB), T1),
              I('s_add_u32', sr(self.S_HPB), sr(self.S_HPB), str(HP_OFF))]
        T += [I('s_lshr_b32', T0, S, '1'), I('s_lshl_b32', T0, T0, '4'), I('s_add_u32', T0, T0, II), I('s_lshl_b32', sr(self.S_FPB), T0, '17'),
              I('s_lshl_b32', T1, W, '13'), I('s_add_u32', sr(self.S_FPB), sr(self.S_FPB), T1)]
        T += [I('s_lshl_b32', sr(self.S_FOFF), 's2', '7'), I('s_add_u32', sr(self.S_FOFF), sr(self.S_FOFF), str(FL_OFF)),
              I('s_xor_b32', sr(self.S_FSH), sr(self.S_FOFF), str(8 << 7))]
        T += [I('s_lshl_b32', T1, W, '2'), I('s_add_u32', sr(self.S_FOFF), sr(self.S_FOFF), T1)]
        T += [I('s_mov_b32', sr(self.S_NEG), '0xffff0000')]
        return T

    def _pack_store(self, T, buf, pair, mb, soff_reg, first, flags, tag=None):
        a = buf + 16 * (2 * pair) + 4 * mb
        b = buf + 16 * (2 * pair + 1) + 4 * mb
        T.append(I('v_cvt_pk_bf16_f32', vr(a), vr(a), vr(a + 1)))
        T.append(I('v_cvt_pk_bf16_f32', vr(a + 1), vr(a + 2), vr(a + 3)))
        T.append(I('v_cvt_pk_bf16_f32', vr(a + 2), vr(b), vr(b + 1)))
        T.append(I('v_cvt_pk_bf16_f32', vr(a + 3), vr(b + 2), vr(b + 3)))
        T += first
        T.append(I('buffer_store_dwordx4', vr(a, 4), vr(self.PV), sr(self.SRD_P, 4), sr(self.S_PO),
                   mods=(f'offen offset:{1024 * mb}' if mb else 'offen') + flags, tag=tag))

    def task_send(self, buf, k):
        T = []
        for pair in range(2):
            for mb in range(4):
                first = [I('s_add_u32', sr(self.S_PO), sr(self.S_MBO), str(k * 32768 + pair * 4096))] if mb == 0 else []
                self._pack_store(T, buf, pair, mb, None, first, ' sc1', tag=('mb', k))
        return T

    def item_signal(self, k):
        return ('signal', k)

    def task_keep(self, buf, k):
        T = []
        M = sr(self.S_PERM0 + 2)
        for pair in range(2):
            for mb in range(4):
                a = buf + 16 * (2 * pair) + 4 * mb
                b = buf + 16 * (2 * pair + 1) + 4 * mb
                q = (self.INC if k == 2 else self.INC2)[pair * 4 + mb]
                t0, t1 = 244, 245
                for half, r in ((0, a), (1, b)):
                    for d in range(2):
                        src = vr(q + 2 * half + d)
                        T.append(I('v_lshlrev_b32', vr(t0), '16', src))
                        T.append(I('v_and_b32', vr(t1), M, src))
                        T.append(I('v_add_f32', vr(r + 2 * d), vr(r + 2 * d), vr(t0)))
                        T.append(I('v_add_f32', vr(r + 2 * d + 1), vr(r + 2 * d + 1), vr(t1)))
                        t0, t1 = (246, 247) if t0 == 244 else (244, 245)
                first = []
                if mb == 0:
                    first = [I('s_lshl_b32', sr(self.S_PO), sr(self.S_YC + k), '7'),
                             I('s_add_u32', sr(self.S_PO), sr(self.S_PO), sr(self.S_FPB)),
                             I('s_add_u32', sr(self.S_PO), sr(self.S_PO), str(pair * 4096))]
                self._pack_store(T, buf, pair, mb, None, first, ['', ' nt', ' sc1'][self.o.get('stflag', 2)])
        return T

    def addinc_quad(self, buf, p):
        u, mb = divmod(p, 4)
        pair, half = divmod(u, 2)
        q = self.INC2[pair * 4 + mb]
        r = buf + 16 * u + 4 * mb
        M = sr(self.S_NEG)
        T = []
        for d, (t0, t1) in enumerate(((244, 245), (246, 247))):
            src = vr(q + 2 * half + d)
            T.append(I('v_lshlrev_b32', vr(t0), '16', src)); T.append(I('v_and_b32', vr(t1), M, src))
            T.append(I('v_add_f32', vr(r + 2 * d), vr(r + 2 * d), vr(t0))); T.append(I('v_add_f32', vr(r + 2 * d + 1), vr(r + 2 * d + 1), vr(t1)))
        return T

    def task_final(self, buf, k):
        T = []
        for pair in range(2):
            for mb in range(4):
                first = []
                if mb == 0:
                    first = [I('s_lshl_b32', sr(self.S_PO), sr(self.S_YC + k), '7'), I('s_add_u32', sr(self.S_PO), sr(self.S_PO), sr(self.S_FPB)),
                             I('s_add_u32', sr(self.S_PO), sr(self.S_PO), str(pair * 4096))]
                self._pack_store(T, buf, pair, mb, None, first, ['', ' nt', ' sc1'][self.o.get('stflag', 2)])
        return T

    def items_incoming(self, k):
        T = []
        for pair in range(2):
            for mb in range(4):
                if mb == 0:
                    T.append(I('s_add_u32', sr(self.S_PO2), sr(self.S_MBP), str((k - 2) * 32768 + pair * 4096)))
                T.append(I('buffer_load_dwordx4', vr((self.INC if k == 2 else self.INC2)[pair * 4 + mb], 4), vr(self.PV), sr(self.SRD_P, 4), sr(self.S_PO2),
                           mods=(f'offen offset:{1024 * mb}' if mb else 'offen') + ' sc1'))
        return T

    def task_half(self, buf):
        T = []
        for mb in range(4):
            first = [I('s_mov_b32', sr(self.S_PO), sr(self.S_HPB))] if mb == 0 else []
            self._pack_store(T, buf, 0, mb, None, first, ['', ' nt', ' sc1'][self.o.get('stflag', 2)])
        return T

    def emit_signal(self, k):
        P = self.P
        P.wait_vm_tag(('mb', k))
        P.e('v_mov_b32', 'v9', '1')
        P.e('v_mov_b32', 'v10', str(16 * k))
        P.e('s_mov_b64', 'exec', '1')
        P.e('buffer_store_dword', 'v9', 'v10', sr(self.SRD_P, 4), sr(self.S_FOFF), mods='offen sc1')
        P.e('s_mov_b64', 'exec', '-1')

    def poll_issue(self, k):
        return [I('v_mov_b32', 'v11', str(16 * (k - 2))),
                I('buffer_load_dwordx4', vr(self.V_POLL, 4), 'v11', sr(self.SRD_P, 4), sr(self.S_FSH), mods='offen sc1')]

    def emit_poll_check(self, lab):
        P = self.P
        T2 = sr(self.S_T2)
        V = self.V_POLL
        P.e('v_and_b32', vr(V), vr(V), vr(V + 1)); P.e('v_and_b32', vr(V + 2), vr(V + 2), vr(V + 3)); P.e('v_and_b32', vr(V), vr(V), vr(V + 2))
        P.e('v_readfirstlane_b32', T2, vr(V))
        P.e('s_cmp_eq_u32', T2, '1')
        P.raw(f"  s_cbranch_scc1 {lab}_ok")
        P.label(f"{lab}_spin")
        P.raw("  s_sleep 1")
        P.raw(f"  buffer_load_dwordx4 v[{V}:{V + 3}], v11, s[{self.SRD_P}:{self.SRD_P + 3}], {sr(self.S_FSH)} offen sc1")
        P.raw("  s_waitcnt vmcnt(0)")
        P.raw(f"  v_and_b32 v{V}, v{V}, v{V + 1}")
        P.raw(f"  v_and_b32 v{V + 2}, v{V + 2}, v{V + 3}")
        P.raw(f"  v_and_b32 v{V}, v{V}, v{V + 2}")
        P.raw("  s_nop 1")
        P.raw(f"  v_readfirstlane_b32 {T2}, v{V}")
        P.raw("  s_nop 3")
        P.raw(f"  s_cmp_eq_u32 {T2}, 1")
        P.raw(f"  s_cbranch_scc0 {lab}_spin")
        P.label(f"{lab}_ok")

    def check_b(self, g):
        ins = g['inst']
        b = ins.ops[2]
        want = g['btag']
        got = self.P.regtag.get(regs_of(b)[0])
        assert got == want, (g['ks']['strip'], g['ks']['t'], b, want, got)

    def emit_setup(self, it):
        pre, ins = it
        if self.o.get('nodma', 0) and ins.tag[0] == 'st' and ins.tag[1] >= 2:
            return
        if self.cur_setup is not pre:
            self.P.emit(pre)
            self.cur_setup = pre

    def emit_dma(self, it):
        pre, ins = it
        if self.o.get('nodma', 0) and ins.tag[0] == 'st' and ins.tag[1] >= 2:
            return
        if self.cur_setup is not pre:
            self.P.emit(pre)
            self.cur_setup = pre
        self.P.emit(ins)

    XSLOT = 27 * 1024

    def xf_dma(self, r):
        items = []
        tag = ('st', r)
        for mm in range(2):
            pre = [I('s_add_u32', 'm0', sr(self.S_XL), str(HB + (r % 3) * 12288 + mm * 3072)),
                   I('s_add_u32', sr(self.S_SOFF2), sr(self.S_XF), str((mm * 18 + 3 * r) * 1024))]
            for k in range(3):
                items.append((pre, I('buffer_load_dwordx4', vr(self.PV), sr(self.SRD_XF, 4), sr(self.S_SOFF2),
                                     mods=(f'offen offset:{1024 * k} lds' if k else 'offen lds'), tag=tag)))
        pre = [I('s_add_u32', 'm0', sr(self.S_XH), str(HB + 73728 + (r % 3) * 3072)),
               I('s_add_u32', sr(self.S_SOFF2), sr(self.S_XF + 1), str(3 * r * 1024))]
        items.append((pre, I('buffer_load_dwordx4', vr(self.PV), sr(self.SRD_XF, 4), sr(self.S_SOFF2), mods='offen lds', tag=tag)))
        return items

    def xf_reads(self, t):
        T = []
        r, tt = divmod(t, 3)
        for mb in range(4):
            T.append(I('ds_read_b128', self.xreg(t, mb), vr(self.XA), mods=f'offset:{(r % 3) * 12288 + (mb * 3 + tt) * 1024}', flag='bar', tag=('x', t, mb)))
        T.append(I('ds_read_b128', self.halo_x(t), vr(self.XA + 1), mods=f'offset:{(r % 3) * 3072 + tt * 1024}', flag='bar', tag=('x', t, 4)))
        return T

    def stage_dma(self, sid):
        a = self.dma_items(sid)
        if sid < 6:
            b = self.xf_dma(sid)
            out = []
            out = b[:3] + a[:3] + b[3:] + a[3:]
            return out
        return a

    def emit_all(self):
        P = self.P
        e = P.e
        o = self.o
        self.prologue()
        self.build()
        self.cur_setup = None
        pst = []

        def pstamp():
            if o.get('prof', 0) == 3:
                r = 72 + 2 * len(pst)
                P.raw(f"  s_memtime s[{r}:{r + 1}]")
                pst.append(r)
        pstamp()
        for it in self.stage_dma(0):
            self.emit_dma(it)
        pstamp()
        for it in self.stage_dma(1):
            self.emit_dma(it)
        pstamp()
        if o.get('touch', 1) == 2:
            T0, T1 = sr(self.S_T0), sr(self.S_T1)
            srd(P, self.SRD_WO, 's6', 's7', 576 * 1152)
            srd(P, self.SRD_WD, 's12', 's13', 4608 * 1152)
            e('s_mul_i32', sr(self.S_WOR), sr(self.S_S), str(36 * 1152))
            P.emit(self.task_touch())
        self.addr_first(e)
        pstamp()

        frags = []
        KS = []
        for st in self.strips:
            for ks in st['ks']:
                ks['strip'] = st['name']
                KS.append(ks)
                for u in range(len(ks['frags'])):
                    frags.append((ks, u))
        NQ = len(frags)
        NFR = self.NFR
        DIST = NFR - 1
        fr = lambda q: self.FR + 4 * (q % NFR)

        def frag_reads(q):
            ks, u = frags[q]
            areg, off, hd = ks['frags'][u]
            slot = self.slot[ks['stage']]
            if slot >= 3:
                areg = self.TD + (areg - self.TP)
                slot -= 3
            return [I('ds_read_b64_tr_b16', vr(fr(q) + 2 * h, 2), vr(areg), mods=f'offset:{slot * SLOT + off + h * hd}', flag='bar') for h in range(2)]

        gaps = []
        qi = 0
        for ks in KS:
            for u in range(len(ks['frags'])):
                mfs = ks['mf'][u]
                for mi, (accr, breg) in enumerate(mfs):
                    first = ks['t'] == 0
                    btag = ('h', ks['t'], mi) if ks['strip'][0] == 'P' else ('x', ks['t'], mi)
                    gaps.append(dict(q=qi, ks=ks, u=u, mi=mi, n=len(mfs), btag=btag,
                                     inst=I('v_mfma_f32_16x16x32_bf16', accr, vr(fr(qi), 4), breg, '0' if first else accr)))
                qi += 1
        NG = len(gaps)
        sf, sl, frag_first, ks_first = {}, {}, {}, {}
        for gi, g in enumerate(gaps):
            sf.setdefault(g['ks']['strip'], gi)
            sl[g['ks']['strip']] = gi
            frag_first.setdefault(g['q'], gi)
            ks_first.setdefault((g['ks']['strip'], g['ks']['t']), gi)
        fstage = [frags[q][0]['stage'] for q in range(NQ)]
        NST = len(self.stages)
        first_frag_of_stage = {}
        for q in range(NQ):
            first_frag_of_stage.setdefault(fstage[q], q)
        stage_of0 = lambda name, k: [st for st in self.strips if st['name'] == name][0]['ks'][k]['stage']
        read_pos, bar_pos = {}, {}
        LAG = o.get('barlag', 2)
        for q in range(NQ):
            s = fstage[q]
            p = q - DIST
            if s > 0:
                lastq_prev = first_frag_of_stage[s] - 1
                bp = read_pos[lastq_prev] + LAG
                bar_pos[s - 1] = bp
                p = max(p, bp)
            read_pos[q] = p
            assert p < q or q == 0, (q, p)
            assert p >= q - NFR + 1
        bars_at = {}
        for s, p in bar_pos.items():
            bars_at.setdefault(p, []).append(s)
        bar_gap = {s: frag_first[p] for s, p in bar_pos.items()}
        rq = []
        for q in range(NQ):
            if read_pos[q] < 0:
                continue
            for h, ins in enumerate(frag_reads(q)):
                rq.append((frag_first[read_pos[q]], frag_first[q] - o.get('minlead', 7), ins, frag_first[read_pos[q]] + 2 * h))

        self.hfree_bar = None
        dq = []
        b_hfree = bar_gap[stage_of0('P0', 9)]
        b_h6 = bar_gap[stage_of0('P0', 0)]
        prev_user = {}
        last_issue = 0
        for sid in range(NST):
            sl_ = self.slot[sid]
            pu = prev_user.get(sl_)
            prev_user[sl_] = sid
            if sid < 2:
                continue
            if pu is not None:
                lo = bar_gap[pu]
            elif sl_ == 5:
                lo = b_hfree
            elif sl_ >= 3:
                lo = b_h6
            else:
                lo = 0
            hi = bar_gap[sid - 1]
            items = self.stage_dma(sid)
            n = len(items)
            lo = max(lo, last_issue)
            nb = min(b for b in list(bar_gap.values()) + [NG] if b > lo)
            span = max(n, int((nb - lo - 2) * (o.get('dmaspan', 60) if sid >= 8 else 95) / 100))
            step = max(o.get('dmastep', 5) if sid >= 8 else 4, span // n) if sl_ < 3 or sid < self.first_deep else o.get('dmastep', 5)
            if sid >= self.first_deep:
                step = o.get('dmastep', 4)
            for k, it in enumerate(items):
                gi_ = lo + 1 + k * step
                assert gi_ < hi, (sid, gi_, hi)
                dq.append((gi_, it))
            last_issue = lo + 1 + (n - 1) * step
        dq.sort(key=lambda x: x[0])

        LAT = 10
        names0 = ['QKV', 'F0', 'F1', 'F2', 'F3', 'F4h']
        strip = lambda name: [st for st in self.strips if st['name'] == name][0]
        stage_of = lambda name, k: strip(name)['ks'][k]['stage']

        def next_bar(gi):
            return min(b for b in bar_gap.values() if b > gi)
        tasks = []

        def add(st_, en_, lst):
            if isinstance(lst, tuple):
                for l in lst:
                    tasks.append([st_, en_, l, 0])
            else:
                tasks.append([st_, en_, lst, 0])
        late_end = o.get('lateend', 60)
        add(2, late_end, self.task_late_setup())
        rq2 = []
        for t in range(3, 18):
            r = t // 3
            dl = ks_first[('QKV', t)] - 8
            for ins in self.xf_reads(t):
                rq2.append((bar_gap[r - 1] + 1, dl, ins))
        bq = bar_gap[stage_of('F0', 0)] if o.get('qkvbar', 1) == 0 else bar_gap[stage_of('F0', 3)]
        add(sf['F0'] + LAT, bq - 1, self.task_qkv_epi())
        add(bq + 1, sl['F0'], self.task_attn())
        add(sf['F1'] + LAT, sl['F1'], self.task_silu(self.ACC1, 0))
        add(sf['F2'] + LAT, sl['F2'], self.task_silu(self.ACC0, 1))
        add(sf['F3'] + LAT, sl['F3'], self.task_silu(self.ACC1, 2))
        add(sf['F4h'] + LAT, sl['F4h'], self.task_silu(self.ACC0, 3))
        b_f4h = bar_gap[stage_of('P0', 3)]
        add(sf['P0'] + LAT, b_f4h - 1, self.task_silu_h(self.ACC1))
        bF2 = next_bar(sl['F3'])
        bF3 = next_bar(sl['F4h'])
        for k in range(11):
            if k < 8:
                st_ = ks_first[('F4h', k + 1)] + 1
                if k in (4, 5):
                    st_ = max(st_, bF2 + 1)
            elif k < 10:
                st_ = max(bF3 + 1, ks_first[('F4h', k + 1)] + 1)
            else:
                st_ = b_f4h + 1
            dl = ks_first[('P0', k)] - 8
            if k < 6:
                dl = min(dl, bar_gap[stage_of('P0', 0)] - 10)
            assert st_ < dl, (k, st_, dl)
            for ins in self.task_hload(k):
                rq2.append((st_, dl, ins))
        rq2.sort(key=lambda x: x[1])
        if o.get('deep', 1):
            add(sf['P0'] + 2, sf['P0'] + 30, [I('v_add_u32', vr(self.TD + k), str(HB), vr(self.TP + k)) for k in range(6)])
        actions = {}
        prebar = {}
        if o.get('tlb', 0):
            ta = sf[names0[o.get('tlbat', 2)]] + 30
            add(ta, ta + 10, self.task_tlb())
        if o.get('touchgu', 0):
            ta = late_end + 1 + o.get('guoff', 0)
            add(ta, ta + 12, self.task_touch_gu())
        if o.get('touch', 1) == 1:
            ta = sf['F2'] + o.get('touchoff', 170)
            add(ta, ta + 8, self.task_touch())
        add(sf['F4h'] + 2, sf['F4h'] + 6, self.task_p2setup())
        add(sf['P1'] + 40, sf['P1'] + 85, self.task_send(self.ACC0, 0))
        actions[sf['P4h'] + o.get('sig0', 50)] = lambda: self.emit_signal(0)
        inl = {}
        if o.get('k2pf', 0):
            actions[sf['P3'] + 140] = lambda: self.emit_k2_code_touch()
        add(sf['P4h'] + LAT, sf['P4h'] + 80, self.task_send(self.ACC1, 1))
        actions[sf['P2'] + o.get('sig1', 130)] = lambda: self.emit_signal(1)
        add(sf['P2'] + LAT, sf['P2'] + 60, self.task_half(self.ACC0))
        for k, nm, pa, kb in ((2, 'P2', 20, 6), (3, 'P3', 20, o.get('kb3', 3))):
            add(sf[nm] + pa, sf[nm] + pa + 2, self.poll_issue(k))
            sb = stage_of(nm, kb)
            prebar[sb] = (lambda kk=k: self.emit_poll_check(f"K1_poll{kk}"))
            add(bar_gap[sb] + 1, bar_gap[sb] + 30, self.items_incoming(k))
        add(sf['P3'] + o.get('keepat', 50), sl['P3'], self.task_keep(self.ACC1, 2))

        if o.get('notask', 0):
            tasks = []; actions = {}; prebar = {}; inl = {}
        PROF = o.get('prof', 0)
        names = ['QKV', 'F0', 'F1', 'F2', 'F3', 'F4h', 'P0', 'P1', 'P4h', 'P2', 'P3']
        pfrom = names[o.get('pfrom', 0)]
        stamps = list(pst)

        def stamp():
            if PROF:
                r = 72 + 2 * len(stamps)
                P.raw(f"  s_memtime s[{r}:{r + 1}]")
                stamps.append(r)

        P.wait_lds_flagged()
        P.wait_vm_tag(('st', 0))
        if PROF == 3:
            stamp()
        P.barrier()
        if PROF == 3:
            stamp()
        P.emit(self.xf_reads(0))
        for q in range(NQ):
            if read_pos[q] < 0:
                P.emit(frag_reads(q))
        P.emit(self.xf_reads(1))
        P.emit(self.xf_reads(2))
        stamp()

        def icost(x):
            if isinstance(x, list):
                if x[0].op.startswith('v_dot'):
                    return 100
                return sum(y.cost for y in x)
            return x.cost

        def kind(x):
            return x[-1].kind if isinstance(x, list) else x.kind
        SLACK = o.get('slack', 5)
        LEAD = o.get('lead', 4)
        ri = 0
        di = 0
        last_ds_gap = -10
        for gi, g in enumerate(gaps):
            if PROF == 1 and gi in sf.values() and gi > 0:
                stamp()
            if g['mi'] == 0:
                p = g['q']
                if PROF in (2, 3) and len(stamps) < 12 and gi >= sf[pfrom] and bars_at.get(p):
                    stamp()
                for s in bars_at.get(p, []):
                    p4 = PROF == 4 and gi >= sf[pfrom] and len(stamps) < 11
                    if s in prebar:
                        prebar[s]()
                    if p4: stamp()
                    if not o.get('nolgkm', 0):
                        P.wait_lds_flagged()
                    if p4: stamp()
                    P.wait_vm_tag(('st', s + 1))
                    if p4: stamp()
                    if not o.get('nobar', 0):
                        P.barrier()
                    if p4: stamp()
            self.check_b(g)
            if not o.get('nomfma', 0):
                P.emit(g['inst'])
            cap = 8
            ds = False
            while ri < len(rq) and rq[ri][3] <= gi:
                urgent = rq[ri][1] <= gi
                if ds and not urgent:
                    break
                P.emit(rq[ri][2]); ri += 1
                cap -= 4; ds = True
            while True:
                el = [x for x in rq2 if x[0] <= gi]
                if not el:
                    break
                x = el[0]
                isds = kind(x[2]) in ('ldsr',) or isinstance(x[2], list)
                urgent = x[1] - 2 * len([y for y in el if y[1] == x[1]]) <= gi
                if urgent or (isds and not ds and cap >= 4) or (not isds and cap >= 4):
                    P.emit(x[2]); rq2.remove(x); cap -= 4
                    if isds:
                        ds = True
                    if not urgent:
                        break
                else:
                    break
            if di < len(dq) and dq[di][0] <= gi and (cap == 8 or dq[di][0] <= gi - 3):
                self.emit_dma(dq[di][1]); di += 1; cap = 0
                if di < len(dq) and o.get('hoist', 1):
                    self.emit_setup(dq[di][1])
            if gi in inl:
                P.emit(inl[gi]); cap -= 8
            progress = True
            while progress:
                progress = False
                for t_ in tasks:
                    st_, en_, lst, idx = t_
                    if gi < st_ or idx >= len(lst):
                        continue
                    force = gi >= en_
                    target = len(lst) if force else len(lst) * (gi - st_ + 1) / (en_ - st_ + 1)
                    x = lst[idx]
                    c = icost(x); k = kind(x)
                    behind = idx < target - SLACK
                    if not force and idx >= target + LEAD:
                        continue
                    if k in ('ldsr', 'ldsw'):
                        fit = (not ds) and cap >= c
                    elif c >= 100:
                        fit = cap == 8 and idx < target
                    else:
                        fit = cap >= c
                    if fit or force or (behind and cap > 0):
                        P.emit(x); cap -= c; t_[3] = idx + 1
                        if k in ('ldsr', 'ldsw'):
                            ds = True
                        progress = True
            if gi in actions:
                actions[gi]()
        assert ri == len(rq) and di == len(dq) and not rq2, (ri, len(rq), di, len(dq), len(rq2))
        for t_ in tasks:
            assert t_[3] == len(t_[2])
        while PROF >= 2 and len(stamps) < 12:
            stamp()
        stamp()
        if not o.get('notask', 0):
            P.emit(self.task_keep(self.ACC0, 3))
        if PROF:
            P.wait_vm(0)
            stamp()
            P.raw("  s_memrealtime s[100:101]")
            P.raw("  s_waitcnt lgkmcnt(0)")
            e('s_add_u32', 's4', 's14', str(64 << 20)); e('s_addc_u32', 's5', 's15', '0')
            srd(P, 8, 's4', 's5', 1 << 20)
            e('s_lshl_b32', 's6', 's2', '2'); e('s_add_u32', 's6', 's6', sr(self.S_W)); e('s_lshl_b32', 's6', 's6', '7')
            e('v_mov_b32', 'v4', '0')
            allst = [46] + stamps + [100, 98]
            for k, r in enumerate(allst):
                e('v_mov_b32', 'v5', sr(r))
                e('buffer_store_dword', 'v5', 'v4', 's[8:11]', 's6', mods=f'offen offset:{4 * k}')
        tl_end(P, self.o, 1)
        hx_slot(P, self.o, 2, 'max', False)
        P.label("K1_end")
        P.raw("  s_endpgm")


def gen_k1(opts):
    k = K1(opts)
    name = "k1_main_kernel"
    kernel_begin(k.P, name)
    k.emit_all()
    print("K1 stats", k.P.stats, file=sys.stderr)
    return k.P.text(), descriptor(name, 512, 256, 102), (name, 256, 256, LDS_TOTAL)


def main():
    out = sys.argv[1]
    opts = {}
    for a in sys.argv[2:]:
        kk, v = a.split('='); opts[kk] = int(v)
    parts = [gen_k0(opts), gen_k1(opts), gen_k2(opts)]
    txt = header_comments([p[2] for p in parts])
    for p in parts:
        txt += p[0]
    txt += '.section .rodata,"a"\n'
    for p in parts:
        txt += p[1]
    open(out, 'w').write(txt)


if __name__ == "__main__":
    main()
```

```python
import sys, math
from asmlib import *

KN = "parallel_sum__sliding_local_dilated__swiglu_ffn__prompt"

XF_OFF = 0
XF_SIZE = 128 * 18 * 1024
PQ_OFF = 5 << 19
PQ_SIZE = 16 * 147456
P_OFF = 6 << 20
P_TILE = 144 * 1024
FP_OFF = 0
HP_OFF = 8 * 16 * 131072
MB_OFF = HP_OFF + 256 * 16384
FL_OFF = MB_OFF + 256 * 65536
P_SIZE = FL_OFF + 256 * 128

SLOT = 24576
RING = 0
HB = 3 * SLOT
SB = HB + 16384
SPITCH = 272
XB = HB + 4 * 16384
XPITCH = 144
LDS_TOTAL = XB + 128 * XPITCH

LOG2E = 1.4426950408889634


def f2h(x):
    import struct
    return "0x%08x" % struct.unpack('<I', struct.pack('<f', x))[0]


def header_comments(launches):
    L = []
    L.append(";   0 A_x, 8 A_wqkv, 16 A_wo, 24 B_x, 32 B_w_gate, 40 B_w_up, 48 B_w_down, 56 d_out, 64 d_debug, 72 d_ws")
    L.append("; Generated by a hand-written python generator (work/gen.py).")
    for (k, g, b, lds) in launches:
        L.append(f"; @launch kernel={k} grid=({g},1,1) block=({b},1,1) lds={lds}")
    L.append('.amdgcn_target "amdgcn-amd-amdhsa--gfx950"')
    L.append(".text")
    return "\n".join(L) + "\n"


def kernel_begin(P, name):
    P.raw(f".globl {name}")
    P.raw(".p2align 8")
    P.raw(f".type {name},@function")
    P.raw(f"{name}:")


def descriptor(name, vgpr, accum, sgpr=102):
    return "\n".join([
        ".p2align 6", f".amdhsa_kernel {name}",
        f"  .amdhsa_next_free_vgpr {vgpr}", f"  .amdhsa_next_free_sgpr {sgpr}", f"  .amdhsa_accum_offset {accum}",
        "  .amdhsa_group_segment_fixed_size 0", "  .amdhsa_kernarg_size 80", "  .amdhsa_user_sgpr_count 2",
        "  .amdhsa_user_sgpr_kernarg_segment_ptr 1", "  .amdhsa_system_sgpr_workgroup_id_x 1", ".end_amdhsa_kernel"]) + "\n"


def tl_start(P, opts):
    if opts.get('tl', 0):
        P.raw("  s_memrealtime s[96:97]")


def tl_end(P, opts, kidx, wsreg_lo=None):
    if not opts.get('tl', 0):
        return
    P.raw("  s_waitcnt vmcnt(0)")
    P.raw("  s_memrealtime s[98:99]")
    P.raw("  s_load_dwordx2 s[94:95], s[0:1], 72")
    P.raw("  s_waitcnt lgkmcnt(0)")
    P.raw(f"  s_add_u32 s94, s94, {(80 << 20) + kidx * 65536}")
    P.raw("  s_addc_u32 s95, s95, 0")
    P.raw("  s_mov_b32 s88, s94")
    P.raw("  s_and_b32 s89, s95, 0xffff")
    P.raw("  s_mov_b32 s90, 65536")
    P.raw("  s_mov_b32 s91, 0x20000")
    P.raw("  s_lshl_b32 s92, s2, 3")
    P.raw("  v_mov_b32 v2, s96")
    P.raw("  v_mov_b32 v3, s98")
    P.raw("  v_mov_b32 v4, 0")
    P.raw("  v_cmp_eq_u32 vcc, 0, v0")
    P.raw("  s_and_saveexec_b64 s[86:87], vcc")
    P.raw("  buffer_store_dwordx2 v[2:3], v4, s[88:91], s92 offen")
    P.raw("  s_mov_b64 exec, s[86:87]")


def hx_slot(P, opts, slot, op, only_wg0, final=False):
    if not opts.get('hx', 0):
        return
    lab = f"HX_{slot}_{op}_{len(P.lines)}"
    P.raw("  s_waitcnt vmcnt(0) lgkmcnt(0)")
    P.raw("  s_memrealtime s[86:87]")
    P.raw("  s_load_dwordx2 s[84:85], s[0:1], 72")
    P.raw("  s_waitcnt lgkmcnt(0)")
    P.raw(f"  s_add_u32 s84, s84, {96 << 20}")
    P.raw("  s_addc_u32 s85, s85, 0")
    P.raw("  s_mov_b32 s80, s84"); P.raw("  s_and_b32 s81, s85, 0xffff"); P.raw("  s_mov_b32 s82, 4096"); P.raw("  s_mov_b32 s83, 0x20000")
    if only_wg0:
        P.raw("  s_cmp_lg_u32 s2, 0"); P.raw(f"  s_cbranch_scc1 {lab}")
    else:
        P.raw("  s_and_b32 s77, s2, 7"); P.raw("  s_cmp_lg_u32 s77, 5"); P.raw(f"  s_cbranch_scc1 {lab}")
    P.raw("  v_mov_b32 v250, s86"); P.raw(f"  v_mov_b32 v251, {slot * 4}")
    P.raw("  v_cmp_eq_u32 vcc, 0, v0"); P.raw("  s_and_saveexec_b64 s[78:79], vcc")
    if op == 'st':
        P.raw("  buffer_store_dword v250, v251, s[80:83], 0 offen sc1")
    else:
        P.raw("  buffer_atomic_umax v250, v251, s[80:83], 0 offen")
    P.raw("  s_waitcnt vmcnt(0)")
    P.raw("  s_mov_b64 exec, s[78:79]")
    P.raw(f"{lab}:")


def srd(P, d, lo, hi, size):
    P.e('s_mov_b32', sr(d), lo)
    P.e('s_and_b32', sr(d + 1), hi, '0xffff')
    P.e('s_mov_b32', sr(d + 2), str(size))
    P.e('s_mov_b32', sr(d + 3), '0x20000')


def gen_k0(opts):
    P = Prog()
    name = "k0_ln_kernel"
    kernel_begin(P, name)
    NPK = 288
    NCP = 8 if opts.get('codepf', 1) else 0
    NTW = 96 if opts.get('k0touch', 0) else 0
    P.e('s_cmp_ge_u32', 's2', str(128 + NPK + NCP + NTW))
    P.raw("  s_cbranch_scc1 K0_end")
    tl_start(P, opts)
    hx_slot(P, opts, 0, 'st', True)
    if opts.get('hx', 0):
        P.raw("  s_cmp_lg_u32 s2, 0"); P.raw("  s_cbranch_scc1 HX_z")
        P.raw("  v_mov_b32 v250, 0"); P.raw("  v_mov_b32 v251, 8"); P.raw("  buffer_store_dword v250, v251, s[80:83], 0 offen sc1")
        P.raw("  v_mov_b32 v251, 16"); P.raw("  buffer_store_dword v250, v251, s[80:83], 0 offen sc1"); P.raw("  v_mov_b32 v251, 20"); P.raw("  buffer_store_dword v250, v251, s[80:83], 0 offen sc1")
        P.raw("HX_z:")
    if NTW:
        P.e('s_cmp_ge_u32', 's2', str(128 + NPK + NCP))
        P.raw("  s_cbranch_scc1 K0_touch")
    if NCP:
        P.e('s_cmp_ge_u32', 's2', str(128 + NPK))
        P.raw("  s_cbranch_scc1 K0_code")
    P.e('s_cmp_ge_u32', 's2', '128')
    P.raw("  s_cbranch_scc1 K0_pack")
    P.e('s_load_dwordx2', 's[4:5]', 's[0:1]', '0')
    P.e('s_load_dwordx2', 's[6:7]', 's[0:1]', '72')
    P.e('v_and_b32', 'v1', '63', 'v0')
    P.e('v_lshrrev_b32', 'v2', '6', 'v0')
    P.e('v_and_b32', 'v3', '15', 'v1')
    P.e('v_lshrrev_b32', 'v4', '4', 'v1')
    P.e('v_readfirstlane_b32', 's20', 'v2')
    P.raw("  s_waitcnt lgkmcnt(0)")
    srd(P, 8, 's4', 's5', 2048 * 1152)
    srd(P, 12, 's6', 's7', XF_OFF + XF_SIZE)
    P.e('s_lshl_b32', 's21', 's2', '4')
    P.e('v_add_u32', 'v5', 's21', 'v3')
    P.e('s_movk_i32', 's22', '1152')
    P.e('v_mul_lo_u32', 'v5', 'v5', 's22')
    P.e('v_lshlrev_b32', 'v6', '4', 'v4')
    P.e('v_add_u32', 'v5', 'v5', 'v6')
    P.e('s_mul_i32', 's23', 's20', '576')
    X = 16
    for t in range(9):
        P.e('buffer_load_dwordx4', vr(X + 4 * t, 4), 'v5', 's[8:11]', 's23', mods=f'offen offset:{64 * t}')
    P.e('s_add_u32', 's28', 's6', str(P_OFF + FL_OFF)); P.e('s_addc_u32', 's29', 's7', '0')
    srd(P, 32, 's28', 's29', 256 * 128)
    P.e('v_mov_b32', 'v60', '0'); P.e('v_mov_b32', 'v61', '0'); P.e('v_mov_b32', 'v62', '0'); P.e('v_mov_b32', 'v63', '0')
    P.e('v_lshlrev_b32', 'v59', '4', 'v0')
    P.e('s_lshl_b32', 's30', 's2', '8')
    P.e('v_cmp_gt_u32', 'vcc', '16', 'v0')
    P.e('s_and_saveexec_b64', 's[36:37]', 'vcc')
    P.raw("  s_cbranch_execz K0_nz")
    P.raw("  buffer_store_dwordx4 v[60:63], v59, s[32:35], s30 offen")
    P.label("K0_nz")
    P.e('s_mov_b64', 'exec', 's[36:37]')
    P.e('v_mov_b32', 'v7', '0x3f803f80')
    P.e('v_mov_b32', 'v8', '0'); P.e('v_mov_b32', 'v9', '0'); P.e('v_mov_b32', 'v10', '0'); P.e('v_mov_b32', 'v11', '0')
    for j in range(36):
        P.e('v_dot2c_f32_bf16', 'v8' if j % 2 == 0 else 'v10', vr(X + j), 'v7')
        P.e('v_dot2c_f32_bf16', 'v9' if j % 2 == 0 else 'v11', vr(X + j), vr(X + j))
    P.e('v_add_f32', 'v8', 'v8', 'v10')
    P.e('v_add_f32', 'v9', 'v9', 'v11')
    for sw in ('v_permlane32_swap_b32', 'v_permlane16_swap_b32'):
        P.e('v_mov_b32', 'v10', 'v8'); P.e('v_mov_b32', 'v11', 'v9')
        P.e('v_mov_b32', 'v12', 'v8'); P.e('v_mov_b32', 'v13', 'v9')
        P.e(sw, 'v10', 'v12'); P.e(sw, 'v11', 'v13')
        P.e('v_add_f32', 'v8', 'v10', 'v12'); P.e('v_add_f32', 'v9', 'v11', 'v13')
    P.e('v_lshlrev_b32', 'v10', '3', 'v0')
    P.e('ds_write_b64', 'v10', 'v[8:9]')
    P.e('v_xor_b32', 'v11', '512', 'v10')
    P.wait_lgkm(0)
    P.barrier()
    P.e('ds_read_b64', 'v[12:13]', 'v11')
    P.e('v_add_f32', 'v8', 'v8', 'v12')
    P.e('v_add_f32', 'v9', 'v9', 'v13')
    P.e('v_mul_f32', 'v8', f2h(1.0 / 576), 'v8')
    P.e('v_mul_f32', 'v9', f2h(1.0 / 576), 'v9')
    P.e('v_fma_f32', 'v9', '-v8', 'v8', 'v9')
    P.e('v_max_f32', 'v9', '0', 'v9')
    P.e('v_add_f32', 'v9', f2h(1e-5), 'v9')
    P.e('v_rsq_f32', 'v9', 'v9')
    P.e('v_mul_f32', 'v9', f2h(LOG2E), 'v9')
    P.e('v_mul_f32', 'v8', 'v8', 'v9')
    P.e('v_sub_f32', 'v8', '0', 'v8')
    P.e('s_mov_b32', 's24', '0xffff0000')
    for j in range(36):
        a, b = 10 + 2 * (j % 2), 11 + 2 * (j % 2)
        P.e('v_lshlrev_b32', vr(a), '16', vr(X + j))
        P.e('v_and_b32', vr(b), 's24', vr(X + j))
        P.e('v_fma_f32', vr(a), vr(a), 'v9', 'v8')
        P.e('v_fma_f32', vr(b), vr(b), 'v9', 'v8')
        P.e('v_cvt_pk_bf16_f32', vr(X + j), vr(a), vr(b))
    P.e('v_lshlrev_b32', 'v6', '4', 'v1')
    P.e('s_mul_i32', 's25', 's2', str(18 * 1024))
    P.e('s_mul_i32', 's26', 's20', str(9 * 1024))
    P.e('s_add_u32', 's25', 's25', 's26')
    for t in range(9):
        if t % 4 == 0 and t:
            P.e('s_add_u32', 's25', 's25', '4096')
        P.e('buffer_store_dwordx4', vr(X + 4 * t, 4), 'v6', 's[12:15]', 's25', mods=f'offen offset:{1024 * (t % 4)}')
    tl_end(P, opts, 0)
    hx_slot(P, opts, 5, 'max', False)
    P.raw("  s_endpgm")
    P.label("K0_pack")
    P.vm_q = []; P.lds_q = []
    e = P.e
    e('s_load_dwordx2', 's[4:5]', 's[0:1]', '8')
    e('s_load_dwordx2', 's[6:7]', 's[0:1]', '72')
    e('v_and_b32', 'v1', '63', 'v0'); e('v_lshrrev_b32', 'v2', '6', 'v0')
    e('v_readfirstlane_b32', 's20', 'v2')
    e('s_sub_u32', 's21', 's2', '128'); e('s_lshl_b32', 's21', 's21', '1'); e('s_add_u32', 's21', 's21', 's20')
    P.raw("  s_waitcnt lgkmcnt(0)")
    srd(P, 12, 's4', 's5', 576 * 3456)
    e('s_add_u32', 's6', 's6', str(PQ_OFF)); e('s_addc_u32', 's7', 's7', '0')
    srd(P, 16, 's6', 's7', PQ_SIZE)
    e('v_and_b32', 'v3', '15', 'v1')
    e('v_lshrrev_b32', 'v4', '4', 'v1')
    e('v_lshlrev_b32', 'v9', '4', 'v1')
    for k in range(4):
        e('s_lshl_b32', 's22', 's21', '2'); e('s_add_u32', 's22', 's22', str(k))
        e('s_mul_hi_u32', 's23', 's22', str((2 ** 32 + 143) // 144))
        e('s_mul_i32', 's24', 's23', '144'); e('s_sub_u32', 's24', 's22', 's24')
        e('s_mul_hi_u32', 's25', 's24', str((2 ** 32 + 5) // 6))
        e('s_mul_i32', 's26', 's25', '6'); e('s_sub_u32', 's26', 's24', 's26')
        e('s_lshr_b32', 's27', 's25', '2')
        e('s_and_b32', 's28', 's25', '3')
        e('s_mul_i32', 's29', 's27', '96'); e('s_lshl_b32', 's30', 's26', '4'); e('s_add_u32', 's29', 's29', 's30')
        e('s_lshl_b32', 's30', 's28', '2'); e('s_add_u32', 's29', 's29', 's30')
        e('v_add_u32', 'v5', 's29', 'v4')
        e('s_lshr_b32', 's30', 's28', '1'); e('s_lshl_b32', 's30', 's30', '2')
        e('v_or_b32', 'v6', 's30', 'v4'); e('v_lshrrev_b32', 'v7', '1', 'v3'); e('v_xor_b32', 'v6', 'v6', 'v7')
        e('v_lshlrev_b32', 'v6', '1', 'v6'); e('v_and_b32', 'v7', '1', 'v3'); e('v_or_b32', 'v6', 'v6', 'v7')
        e('v_mul_u32_u24', 'v7', '13', 'v6'); e('v_lshrrev_b32', 'v7', '6', 'v7'); e('v_min_u32', 'v7', '2', 'v7')
        e('v_mul_u32_u24', 'v8', '5', 'v7'); e('v_sub_u32', 'v8', 'v6', 'v8'); e('v_lshlrev_b32', 'v8', '4', 'v8')
        e('v_add_u32', 'v7', '1', 'v7'); e('v_cmp_eq_u32', 'vcc', '3', 'v7'); e('v_mov_b32', 'v10', '0')
        e('v_cndmask_b32', 'v7', 'v7', 'v10', 'vcc')
        e('v_mul_u32_u24', 'v7', '1152', 'v7'); e('v_add_u32', 'v8', 'v8', 'v7')
        e('s_mul_i32', 's30', 's23', '72'); e('v_add_u32', 'v8', 's30', 'v8')
        e('v_mul_u32_u24', 'v5', '3456', 'v5'); e('v_add_u32', 'v5', 'v5', 'v8')
        e('buffer_load_dwordx4', vr(16 + 4 * k, 4), 'v5', 's[12:15]', '0', mods='offen')
    e('s_lshl_b32', 's22', 's21', '12')
    for k in range(4):
        e('buffer_store_dwordx4', vr(16 + 4 * k, 4), 'v9', 's[16:19]', 's22', mods=f'offen offset:{1024 * k}')
    if NCP:
        P.raw("  s_endpgm")
        P.label("K0_code")
        P.raw("  s_getpc_b64 s[4:5]")
        P.raw("K0_pc:")
        P.raw("  s_add_u32 s4, s4, k1_main_kernel-K0_pc")
        P.raw("  s_addc_u32 s5, s5, 0")
        P.raw("  s_mov_b32 s8, s4")
        P.raw("  s_and_b32 s9, s5, 0xffff")
        P.raw("  s_mov_b32 s10, K2_end-k1_main_kernel")
        P.raw("  s_mov_b32 s11, 0x20000")
        P.raw("  v_lshlrev_b32 v1, 4, v0")
        P.raw("  s_mov_b32 s12, 0")
        P.raw("K0_cl:")
        P.raw("  buffer_load_dwordx4 v[4:7], v1, s[8:11], s12 offen")
        P.raw("  s_add_u32 s12, s12, 2048")
        P.raw("  s_cmp_lt_u32 s12, s10")
        P.raw("  s_cbranch_scc1 K0_cl")
    if NTW:
        P.raw("  s_endpgm")
        P.label("K0_touch")
        P.vm_q = []; P.lds_q = []
        e('s_load_dwordx2', 's[4:5]', 's[0:1]', '48')
        e('s_load_dwordx2', 's[6:7]', 's[0:1]', '16')
        e('s_sub_u32', 's21', 's2', str(128 + NPK + NCP))
        e('v_lshlrev_b32', 'v1', '7', 'v0')
        P.raw("  s_waitcnt lgkmcnt(0)")
        e('s_cmp_ge_u32', 's21', '81')
        e('s_cselect_b32', 's8', 's6', 's4'); e('s_cselect_b32', 's9', 's7', 's5')
        e('s_mov_b32', 's12', str(576 * 1152)); e('s_mov_b32', 's13', str(4608 * 1152))
        e('s_cselect_b32', 's10', 's12', 's13')
        e('s_cselect_b32', 's22', '81', '0')
        e('s_and_b32', 's9', 's9', '0xffff'); e('s_mov_b32', 's11', '0x20000')
        e('s_sub_u32', 's21', 's21', 's22'); e('s_lshl_b32', 's21', 's21', '16')
        for k in range(4):
            e('buffer_load_dword', 'v4', 'v1', 's[8:11]', 's21', mods='offen')
            e('s_add_u32', 's21', 's21', '16384')
    P.label("K0_end")
    P.raw("  s_endpgm")
    return P.text(), descriptor(name, 256 if opts.get('hx', 0) else 64, 256 if opts.get('hx', 0) else 64, 102), (name, 128 + NPK + NCP + NTW, 128, 1024)


def gen_k2(opts):
    P = Prog()
    name = "k2_reduce_kernel"
    kernel_begin(P, name)
    K2W = opts.get('k2w', 4)
    NWG = 2304 // K2W
    P.e('s_cmp_ge_u32', 's2', str(NWG))
    P.raw("  s_cbranch_scc1 K2_end")
    tl_start(P, opts)
    hx_slot(P, opts, 3, 'st', True)
    P.e('s_load_dwordx2', 's[4:5]', 's[0:1]', '0')
    P.e('s_load_dwordx2', 's[6:7]', 's[0:1]', '72')
    P.e('s_load_dwordx2', 's[16:17]', 's[0:1]', '56')
    P.e('v_and_b32', 'v1', '63', 'v0')
    P.e('v_lshrrev_b32', 'v2', '6', 'v0')
    P.e('v_and_b32', 'v3', '15', 'v1')
    P.e('v_lshrrev_b32', 'v4', '4', 'v1')
    P.e('v_readfirstlane_b32', 's20', 'v2')
    P.e('v_lshlrev_b32', 'v5', '4', 'v1')
    P.raw("  s_waitcnt lgkmcnt(0)")
    srd(P, 8, 's4', 's5', 2048 * 1152)
    P.e('s_add_u32', 's6', 's6', str(P_OFF)); P.e('s_addc_u32', 's7', 's7', '0')
    srd(P, 12, 's6', 's7', P_SIZE)
    srd(P, 24, 's16', 's17', 2048 * 1152)
    P.e('s_mul_i32', 's21', 's2', str(K2W)); P.e('s_add_u32', 's21', 's21', 's20')
    P.e('s_mul_hi_u32', 's22', 's21', str((2 ** 32 + 143) // 144))
    P.e('s_mul_i32', 's23', 's22', '144'); P.e('s_sub_u32', 's23', 's21', 's23')
    D = 16
    lf = ['', ' nt', ' sc1'][opts.get('ldflag', 0)]
    P.e('s_cmp_ge_u32', 's23', '128')
    P.raw("  s_cbranch_scc1 K2_half")
    for half in (0, 1):
        if half:
            P.label("K2_half")
            P.vm_q = []; P.lds_q = []
        n = 16 if half else 8
        if not half:
            P.e('s_lshl_b32', 's28', 's22', '17'); P.e('s_lshl_b32', 's29', 's23', '10'); P.e('s_add_u32', 's28', 's28', 's29')
            stride = 16 * 131072
        else:
            P.e('s_lshl_b32', 's28', 's22', '14'); P.e('s_sub_u32', 's23', 's23', '128'); P.e('s_lshl_b32', 's29', 's23', '10')
            P.e('s_add_u32', 's28', 's28', 's29'); P.e('s_add_u32', 's28', 's28', str(HP_OFF))
            stride = 16 * 16384
        for s in range(n):
            P.e('buffer_load_dwordx4', vr(D + 4 * s, 4), 'v5', 's[12:15]', 's28', mods='offen' + lf)
            if s < n - 1:
                P.e('s_add_u32', 's28', 's28', str(stride))
        P.e('s_and_b32', 's29', 's23', '3')
        if not half:
            P.e('s_lshr_b32', 's31', 's23', '3'); P.e('s_and_b32', 's31', 's31', '3')
            P.e('s_lshr_b32', 's34', 's31', '1')
            P.e('s_lshr_b32', 's35', 's23', '5'); P.e('s_lshl_b32', 's35', 's35', '7')
            P.e('s_lshl_b32', 's36', 's34', '6'); P.e('s_add_u32', 's35', 's35', 's36')
            P.e('s_lshr_b32', 's36', 's23', '2'); P.e('s_and_b32', 's36', 's36', '1'); P.e('s_lshl_b32', 's36', 's36', '5')
            P.e('s_add_u32', 's35', 's35', 's36')
        else:
            P.e('s_lshr_b32', 's31', 's23', '2')
            P.e('s_lshr_b32', 's34', 's31', '1')
            P.e('s_lshl_b32', 's35', 's34', '5'); P.e('s_add_u32', 's35', 's35', '512')
        P.e('s_and_b32', 's33', 's31', '1')
        P.e('s_lshl_b32', 's37', 's22', '7'); P.e('s_lshl_b32', 's38', 's33', '6'); P.e('s_add_u32', 's37', 's37', 's38')
        P.e('s_lshl_b32', 's38', 's29', '4'); P.e('s_add_u32', 's37', 's37', 's38')
        P.e('v_add_u32', 'v6', 's37', 'v3')
        P.e('v_mul_u32_u24', 'v6', '1152', 'v6')
        P.e('s_lshl_b32', 's40', 's35', '1')
        P.e('v_add_u32', 'v6', 's40', 'v6')
        P.e('v_lshlrev_b32', 'v7', '3', 'v4')
        P.e('v_add_u32', 'v7', 'v6', 'v7')
        P.e('buffer_load_dwordx2', 'v[8:9]', 'v7', 's[8:11]', '0', mods='offen')
        P.e('buffer_load_dwordx2', 'v[10:11]', 'v7', 's[8:11]', '0', mods='offen offset:32')
        P.e('v_and_b32', 'v12', '1', 'v4'); P.e('v_lshlrev_b32', 'v12', '5', 'v12')
        P.e('v_lshrrev_b32', 'v13', '1', 'v4'); P.e('v_lshlrev_b32', 'v13', '4', 'v13')
        P.e('v_add3_u32', 'v6', 'v6', 'v12', 'v13')
        P.e('s_mov_b32', 's41', '0xffff0000')
        ACC = 80
        srcs = [D + 4 * s for s in range(n)]
        for si, base in enumerate(srcs):
            for j in range(4):
                d = vr(base + j)
                if si == 0:
                    P.e('v_lshlrev_b32', vr(ACC + 2 * j), '16', d)
                    P.e('v_and_b32', vr(ACC + 2 * j + 1), 's41', d)
                else:
                    t0, t1 = 88 + 2 * (j % 2), 89 + 2 * (j % 2)
                    P.e('v_lshlrev_b32', vr(t0), '16', d)
                    P.e('v_and_b32', vr(t1), 's41', d)
                    P.e('v_add_f32', vr(ACC + 2 * j), vr(ACC + 2 * j), vr(t0))
                    P.e('v_add_f32', vr(ACC + 2 * j + 1), vr(ACC + 2 * j + 1), vr(t1))
        P.e('s_mov_b32', 's42', f2h(1.0 / (LOG2E * LOG2E)))
        for j in range(4):
            d = vr(8 + j)
            t0, t1 = 88 + 2 * (j % 2), 89 + 2 * (j % 2)
            P.e('v_lshlrev_b32', vr(t0), '16', d)
            P.e('v_and_b32', vr(t1), 's41', d)
            P.e('v_fma_f32', vr(ACC + 2 * j), vr(ACC + 2 * j), 's42', vr(t0))
            P.e('v_fma_f32', vr(ACC + 2 * j + 1), vr(ACC + 2 * j + 1), 's42', vr(t1))
        for j in range(4):
            P.e('v_cvt_pk_bf16_f32', vr(92 + j), vr(ACC + 2 * j), vr(ACC + 2 * j + 1))
        P.e('v_permlane16_swap_b32', 'v92', 'v94')
        P.e('v_permlane16_swap_b32', 'v93', 'v95')
        P.e('buffer_store_dwordx4', 'v[92:95]', 'v6', 's[24:27]', '0', mods='offen')
        tl_end(P, opts, 2)
        if opts.get('hx', 0):
            P.raw("  s_waitcnt vmcnt(0) lgkmcnt(0)")
            P.raw("  s_memrealtime s[86:87]")
            P.raw("  s_load_dwordx2 s[84:85], s[0:1], 64")
            P.raw("  s_load_dwordx2 s[76:77], s[0:1], 72")
            P.raw("  s_waitcnt lgkmcnt(0)")
            pass
            P.raw("  s_mov_b32 s80, s84"); P.raw("  s_and_b32 s81, s85, 0xffff"); P.raw("  s_mov_b32 s82, 256"); P.raw("  s_mov_b32 s83, 0x20000")
            P.raw(f"  s_and_b32 s70, s2, 15"); P.raw("  s_cmp_lg_u32 s70, 5"); P.raw(f"  s_cbranch_scc1 HXK2_{half}")
            P.raw("  v_mov_b32 v90, s86"); P.raw("  v_mov_b32 v91, 0")
            P.raw("  v_cmp_eq_u32 vcc, 0, v0"); P.raw("  s_and_saveexec_b64 s[78:79], vcc")
            P.raw("  buffer_atomic_umax v90, v91, s[80:83], 0 offen")
            P.raw("  s_mov_b64 exec, s[78:79]")
            P.raw(f"  s_add_u32 s76, s76, {96 << 20}"); P.raw("  s_addc_u32 s77, s77, 0")
            P.raw("  s_mov_b32 s72, s76"); P.raw("  s_and_b32 s73, s77, 0xffff"); P.raw("  s_mov_b32 s74, 4096"); P.raw("  s_mov_b32 s75, 0x20000")
            P.raw("  v_lshlrev_b32 v91, 2, v1")
            P.raw("  v_cmp_gt_u32 vcc, 6, v1"); P.raw("  s_and_saveexec_b64 s[78:79], vcc")
            P.raw("  buffer_load_dword v90, v91, s[72:75], 0 offen sc1"); P.raw("  s_waitcnt vmcnt(0)")
            P.raw("  buffer_store_dword v90, v91, s[80:83], 0 offen offset:4")
            P.raw("  s_waitcnt vmcnt(0)")
            P.raw("  s_mov_b64 exec, s[78:79]")
            P.raw(f"HXK2_{half}:")
        if not half:
            P.raw("  s_endpgm")
    P.label("K2_end")
    P.raw("  s_endpgm")
    return P.text(), descriptor(name, 256 if opts.get('hx', 0) else 96, 256 if opts.get('hx', 0) else 96, 102), (name, NWG, 64 * K2W, 0)


class K1:
    V_LANE, V_C16, V_G, V_T0, V_T1, V_T2, V_T3, V_T4 = 1, 2, 3, 4, 5, 6, 7, 8
    ACC0, ACC1 = 16, 80
    FR = 144
    NFR = 6
    XV = 168
    TQ = 200
    TG = 204
    TH = 208
    TP = 210
    TPH = 214
    DQ = 216
    DG = 219
    DH = 222
    DP = 225
    DPH = 228
    HW = 231
    HWX = 233
    HR = 234
    XR = 236
    SW = 237
    AB = 241
    OW = 242
    PV = 243
    MG = 244
    XA = 245
    TD = 168
    HAL = 248
    HALX = 8

    S_W, S_S, S_I = 20, 21, 22
    S_RG2, S_CH = 23, 24
    S_LDSW = 25
    S_XF = 26
    S_FB = 88
    S_YC = 28
    S_FPB, S_MBO, S_MBP, S_HPB, S_FSH, S_FOFF = 17, 18, 19, 44, 26, 27
    SRD_DBG = 48
    S_TCH = 33
    INC = [176, 180, 184, 188, 192, 196, 248, 252]
    INC2 = [200, 204, 216, 220, 232, 236, 8, 12]
    V_POLL = 4
    S_T0, S_T1, S_T2, S_T3 = 34, 35, 36, 37
    S_SOFF = 38
    S_NLOG2E = 39
    S_AC = 40
    S_PERM0, S_PERM1 = 41, 42
    S_NEG = 43
    S_QC = 44
    S_PO = 45
    S_PO2 = 40
    SRD_XF, SRD_QKV, SRD_GU, SRD_WD, SRD_WO, SRD_P = 48, 52, 56, 60, 64, 68
    S_FB2 = 4
    S_FBR = 9
    S_WOR = 16
    S_XL, S_XH, S_SOFF2 = 17, 18, 19

    def __init__(self, opts):
        self.P = Prog()
        self.o = opts

    def xreg(self, t, mb):
        j = 4 * t + mb
        return ar(4 * j, 4) if j < 64 else vr(self.XV + 4 * (j - 64), 4)

    def hreg(self, k, mb):
        return ar(16 * k + 4 * mb, 4)

    def halo_x(self, t):
        return vr(self.ACC1 + 4 * t, 4) if t < 16 else vr(self.HALX + 4 * (t - 16), 4)

    def prologue(self):
        P = self.P
        e = P.e
        e('s_cmp_ge_u32', 's2', '256')
        P.raw("  s_cbranch_scc1 K1_end")
        tl_start(P, self.o)
        hx_slot(P, self.o, 1, 'st', True)
        if self.o.get('prof', 0):
            P.raw("  s_memtime s[46:47]")
            P.raw("  s_memrealtime s[98:99]")
        e('s_load_dwordx2', 's[14:15]', 's[0:1]', '72')
        e('s_load_dwordx2', 's[6:7]', 's[0:1]', '16')
        e('s_load_dwordx4', 's[8:11]', 's[0:1]', '32')
        e('s_load_dwordx2', 's[12:13]', 's[0:1]', '48')
        L, C16, G = vr(self.V_LANE), vr(self.V_C16), vr(self.V_G)
        e('v_and_b32', L, '63', 'v0')
        e('v_lshrrev_b32', 'v4', '6', 'v0')
        e('v_and_b32', C16, '15', L)
        e('v_lshrrev_b32', G, '4', L)
        e('v_readfirstlane_b32', sr(self.S_W), 'v4')
        e('v_lshlrev_b32', vr(self.PV), '4', L)
        e('s_and_b32', sr(self.S_S), 's2', '3'); e('s_lshl_b32', sr(self.S_S), sr(self.S_S), '2')
        e('s_bfe_u32', sr(self.S_T0), 's2', '0x20003'); e('s_add_u32', sr(self.S_S), sr(self.S_S), sr(self.S_T0))
        e('s_bfe_u32', sr(self.S_I), 's2', '0x10002'); e('s_lshl_b32', sr(self.S_I), sr(self.S_I), '3')
        e('s_lshr_b32', sr(self.S_T0), 's2', '5'); e('s_add_u32', sr(self.S_I), sr(self.S_I), sr(self.S_T0))
        e('s_and_b32', sr(self.S_RG2), sr(self.S_W), '1'); e('s_lshr_b32', sr(self.S_CH), sr(self.S_W), '1')
        e('s_mul_i32', sr(self.S_LDSW), sr(self.S_W), '6144')
        e('s_lshl_b32', sr(self.S_T0), sr(self.S_I), '3'); e('s_lshl_b32', sr(self.S_T1), sr(self.S_W), '1')
        e('s_add_u32', sr(self.S_T0), sr(self.S_T0), sr(self.S_T1))
        e('s_mul_i32', sr(self.S_XF), sr(self.S_T0), '18432')
        e('s_lshr_b32', sr(self.S_T0), sr(self.S_W), '1'); e('s_mul_i32', sr(self.S_XL), sr(self.S_T0), '36864')
        e('s_and_b32', sr(self.S_T0), sr(self.S_W), '1'); e('s_mul_i32', sr(self.S_T0), sr(self.S_T0), '6144')
        e('s_add_u32', sr(self.S_XL), sr(self.S_XL), sr(self.S_T0))
        e('s_min_u32', sr(self.S_T1), sr(self.S_W), '2'); e('s_lshl_b32', sr(self.S_XH), sr(self.S_T1), '10')
        e('s_lshl_b32', sr(self.S_T0), sr(self.S_I), '3'); e('s_sub_u32', sr(self.S_T0), sr(self.S_T0), '1')
        e('s_mul_i32', sr(self.S_T0), sr(self.S_T0), '18432'); e('s_add_u32', sr(self.S_T0), sr(self.S_T0), sr(self.S_XH))
        e('s_cmp_eq_u32', sr(self.S_I), '0'); e('s_cselect_b32', sr(self.S_XF + 1), '0x7f000000', sr(self.S_T0))
        e('s_mul_i32', sr(self.S_T2), sr(self.S_S), '147456'); e('s_add_u32', sr(self.S_T2), sr(self.S_T2), str(PQ_OFF))
        P.raw("  s_waitcnt lgkmcnt(0)")
        e('s_add_u32', sr(self.S_T0), 's14', str(XF_OFF)); e('s_addc_u32', sr(self.S_T1), 's15', '0')
        srd(P, self.SRD_XF, sr(self.S_T0), sr(self.S_T1), XF_SIZE)
        e('s_add_u32', sr(self.S_T0), 's14', sr(self.S_T2)); e('s_addc_u32', sr(self.S_T1), 's15', '0')
        srd(P, self.SRD_QKV, sr(self.S_T0), sr(self.S_T1), 147456)

    def scalars_late(self, e, srd_):
        srd_(self.SRD_WO, 's6', 's7', 576 * 1152)
        e('s_cmp_ge_u32', sr(self.S_W), '2')
        e('s_cselect_b32', sr(self.S_T0), 's10', 's8'); e('s_cselect_b32', sr(self.S_T1), 's11', 's9')
        srd_(self.SRD_GU, sr(self.S_T0), sr(self.S_T1), 576 * 9216)
        srd_(self.SRD_WD, 's12', 's13', 4608 * 1152)
        e('s_add_u32', sr(self.S_T0), 's14', str(P_OFF)); e('s_addc_u32', sr(self.S_T1), 's15', '0')
        srd_(self.SRD_P, sr(self.S_T0), sr(self.S_T1), P_SIZE)
        e('s_mul_i32', sr(self.S_T0), sr(self.S_S), '288')
        e('s_and_b32', sr(self.S_T1), sr(self.S_S), '1')
        e('s_lshl_b32', sr(self.S_T2), sr(self.S_T1), '5'); e('s_add_u32', sr(self.S_T2), sr(self.S_T2), sr(self.S_T0))
        for j in range(4):
            e('s_add_u32', sr(self.S_T3), sr(self.S_I), str(j)); e('s_and_b32', sr(self.S_T3), sr(self.S_T3), '3')
            e('s_lshl_b32', sr(self.S_T3), sr(self.S_T3), '6'); e('s_add_u32', sr(self.S_FB + j), sr(self.S_T2), sr(self.S_T3))
        e('s_cmp_eq_u32', sr(self.S_T1), '1'); e('s_cselect_b32', sr(self.S_T3), '0', '256')
        e('s_add_u32', sr(self.S_FB + 4), sr(self.S_T0), sr(self.S_T3))
        for j in range(5):
            e('s_lshl_b32', sr(self.S_FB2 + j), sr(self.S_FB + j), '1')
            e('s_mul_i32', sr(self.S_FBR + j), sr(self.S_FB + j), '1152')
        e('s_mul_i32', sr(self.S_WOR), sr(self.S_S), str(36 * 1152))
        e('s_and_b32', sr(self.S_T0), sr(self.S_S), '1'); e('s_lshl_b32', sr(self.S_T0), sr(self.S_T0), '1')
        for k in range(4):
            e('s_add_u32', sr(self.S_T1), sr(self.S_T0), str(k)); e('s_and_b32', sr(self.S_T1), sr(self.S_T1), '3')
            e('s_lshl_b32', sr(self.S_YC + k), sr(self.S_T1), '8')
        e('s_mov_b32', sr(self.S_NLOG2E), f2h(LOG2E))
        e('s_mov_b32', sr(self.S_AC), f2h(1.0 / (LOG2E * math.sqrt(18.0))))
        e('s_mov_b32', sr(self.S_PERM0), '0x05040100'); e('s_mov_b32', sr(self.S_PERM1), '0x07060302')
        e('s_mov_b32', sr(self.S_NEG), f2h(-1e30))

    TA, TB, TC, TDm = 'v4', 'v5', 'v6', 'v7'
    TR, TCC8, TG1, TG2 = 'v247', 'v244', 'v242', 'v241'

    def addr_first(self, e):
        L, C16, G = vr(self.V_LANE), vr(self.V_C16), vr(self.V_G)
        a, b, c = self.TA, self.TB, self.TC
        r, cc8, g1, g2 = self.TR, self.TCC8, self.TG1, self.TG2
        W, RG2 = sr(self.S_W), sr(self.S_RG2)
        T0, T1, T2, T3 = sr(self.S_T0), sr(self.S_T1), sr(self.S_T2), sr(self.S_T3)
        e('v_lshrrev_b32', r, '2', C16)
        e('v_and_b32', cc8, '3', C16); e('v_lshlrev_b32', cc8, '3', cc8)
        e('v_and_b32', g1, '1', G)
        e('v_lshrrev_b32', g2, '1', G)
        e('v_mul_u32_u24', a, '12288', g1)
        e('v_lshl_add_u32', a, g2, '10', a)
        e('v_lshl_add_u32', a, r, '8', a)
        e('v_add_u32', a, a, cc8)
        e('v_lshl_or_b32', b, g1, '2', r)
        e('s_mov_b32', T0, '0x10525210'); e('s_mov_b32', T1, '0x63747463')
        e('s_lshl_b32', T2, W, '4')
        e('s_lshr_b64', sr(self.S_T0, 2), sr(self.S_T0, 2), T2)
        e('s_mov_b32', sr(self.S_QC), T0)
        for u in range(4):
            e('s_bfe_u32', T2, T0, hex((4 << 16) | (4 * u)))
            e('v_xor_b32', c, T2, b); e('v_lshl_add_u32', vr(self.TQ + u), c, '5', a)
        e('s_mul_i32', T0, RG2, '36864'); e('s_add_u32', T0, T0, str(HB))
        e('v_add_u32', vr(self.XA), T0, vr(self.PV))
        e('v_add_u32', vr(self.XA + 1), str(HB + 73728), vr(self.PV))

    def addr_late(self, e):
        L, C16, G = vr(self.V_LANE), vr(self.V_C16), vr(self.V_G)
        a, b, c, d = self.TA, self.TB, self.TC, self.TDm
        r, cc8, g1, g2 = self.TR, self.TCC8, self.TG1, self.TG2
        W, CH, RG2 = sr(self.S_W), sr(self.S_CH), sr(self.S_RG2)
        T0, T1, T2, T3 = sr(self.S_T0), sr(self.S_T1), sr(self.S_T2), sr(self.S_T3)
        e('v_lshrrev_b32', b, '3', L)
        e('v_bfe_u32', a, b, '1', '1')
        e('s_and_b32', T0, W, '1'); e('s_lshl_b32', T1, T0, '1')
        e('v_or_b32', a, T1, a)
        e('v_bfe_u32', c, L, '1', '2')
        e('v_xor_b32', a, a, c); e('v_lshlrev_b32', a, '1', a)
        e('v_and_b32', c, '1', L); e('v_or_b32', a, a, c)
        e('s_lshl_b32', T1, T0, '3')
        e('v_add_u32', c, T1, b)
        e('v_mul_u32_u24', c, '9216', c)
        e('v_lshl_add_u32', vr(self.DG), a, '4', c)
        for j in (1, 2):
            e('v_add_u32', vr(self.DG + j), str(j * (16 * 9216 - 1024)), vr(self.DG))
        e('s_lshl_b32', T1, W, '3')
        e('v_add_u32', c, T1, b)
        e('v_mul_u32_u24', c, '1152', c)
        e('v_lshl_add_u32', vr(self.DPH), a, '4', c)
        for j in (1, 2):
            e('v_add_u32', vr(self.DPH + j), str(j * (32 * 1152 - 1024)), vr(self.DPH))
        e('v_lshrrev_b32', b, '2', L)
        e('v_lshrrev_b32', a, '3', b); e('v_lshlrev_b32', a, '1', a)
        e('v_and_b32', c, '3', L); e('v_xor_b32', a, a, c)
        e('s_lshl_b32', T1, T0, '4')
        e('v_add_u32', c, T1, b)
        e('v_mul_u32_u24', c, '9216', c)
        e('v_lshl_add_u32', vr(self.DH), a, '4', c)
        for j in (1, 2):
            e('v_add_u32', vr(self.DH + j), str(j * (32 * 9216 - 1024)), vr(self.DH))
        e('s_lshr_b32', T0, W, '1'); e('s_lshl_b32', T0, T0, '2')
        e('v_or_b32', a, T0, G)
        e('v_lshrrev_b32', b, '1', C16)
        e('v_xor_b32', a, a, b)
        e('v_lshlrev_b32', a, '1', a)
        e('v_and_b32', b, '1', C16)
        e('v_or_b32', a, a, b)
        e('s_lshl_b32', T1, W, '2')
        e('v_add_u32', b, T1, G)
        e('v_mul_u32_u24', c, '1152', b)
        e('v_lshl_add_u32', vr(self.DP), a, '4', c)
        for j in (1, 2):
            e('v_add_u32', vr(self.DP + j), str(j * (16 * 1152 - 1024)), vr(self.DP))
        e('v_mul_u32_u24', a, '6144', g1)
        e('v_lshl_add_u32', a, g2, '10', a)
        e('v_lshl_add_u32', a, r, '7', a)
        e('v_add_u32', a, a, cc8)
        e('v_lshrrev_b32', b, '1', r); e('v_lshl_or_b32', b, g1, '1', b)
        for bb in range(2):
            e('s_lshl_b32', T2, CH, '1'); e('s_add_u32', T2, T2, str(bb))
            e('v_xor_b32', c, T2, b); e('v_lshl_add_u32', vr(self.TG + bb), c, '5', a)
            e('v_add_u32', vr(self.TG + 2 + bb), '12288', vr(self.TG + bb))
        e('v_mul_u32_u24', a, '6144', G)
        e('v_lshl_add_u32', a, r, '7', a)
        e('v_add_u32', a, a, cc8)
        for bb in range(2):
            e('s_lshl_b32', T2, CH, '1'); e('s_add_u32', T2, T2, str(bb))
            e('v_xor_b32', c, T2, b); e('v_lshl_add_u32', vr(self.TPH + bb), c, '5', a)
        e('v_mul_u32_u24', a, '6144', g2)
        e('v_lshl_add_u32', c, g1, '3', r); e('v_lshl_add_u32', a, c, '6', a)
        e('v_add_u32', a, a, cc8)
        e('v_xor_b32', c, CH, g1); e('v_lshl_add_u32', vr(self.TH), c, '5', a)
        e('v_add_u32', vr(self.TH + 1), '12288', vr(self.TH))
        e('v_mul_u32_u24', a, '12288', g1)
        e('v_lshl_add_u32', a, g2, '10', a)
        e('v_lshl_add_u32', a, r, '8', a)
        e('v_add_u32', a, a, cc8)
        e('v_lshl_or_b32', b, g1, '2', r)
        for u in range(4):
            e('s_lshl_b32', T2, CH, '2'); e('s_add_u32', T2, T2, str(u))
            e('v_xor_b32', c, T2, b); e('v_lshl_add_u32', vr(self.TP + u), c, '5', a)
        e('s_lshl_b32', T3, RG2, '6'); e('s_add_u32', T3, T3, '16')
        e('v_add_u32', c, T3, C16); e('v_mul_u32_u24', c, str(SPITCH), c)
        e('v_lshl_add_u32', c, G, '3', c)
        for u in range(4):
            e('s_bfe_u32', T2, sr(self.S_QC), hex((4 << 16) | (4 * u)))
            e('s_lshl_b32', T2, T2, '5'); e('s_add_u32', T2, T2, str(SB))
            e('v_add_u32', vr(self.SW + u), T2, c)
        e('s_lshl_b32', T2, RG2, '6'); e('v_add_u32', a, T2, C16)
        e('s_lshl_b32', T3, CH, '2'); e('v_add_u32', b, T3, g2)
        e('v_and_b32', c, '7', C16); e('v_xor_b32', b, b, c)
        e('v_lshlrev_b32', b, '4', b); e('v_lshl_add_u32', b, g1, '3', b)
        e('v_lshl_add_u32', b, a, '7', b)
        e('v_add_u32', vr(self.HW), str(HB), b)
        e('v_xor_b32', vr(self.HW + 1), '32', vr(self.HW))
        e('v_xor_b32', b, G, c); e('v_lshlrev_b32', b, '4', b); e('v_lshl_add_u32', b, a, '7', b)
        e('v_add_u32', vr(self.HR), str(HB), b)
        e('v_xor_b32', vr(self.HR + 1), '64', vr(self.HR))
        e('v_mul_u32_u24', b, str(XPITCH), a)
        e('v_add_u32', b, str(XB), b)
        e('v_lshl_add_u32', vr(self.XR), G, '4', b)
        e('s_lshl_b32', T3, CH, '5')
        e('v_lshl_add_u32', c, G, '3', b); e('v_add_u32', vr(self.HWX), T3, c)
        e('v_and_b32', a, '31', L); e('v_lshrrev_b32', b, '5', L)
        e('s_lshl_b32', T2, W, '5')
        e('v_add_u32', a, T2, a)
        e('s_lshl_b32', T3, sr(self.S_I), '7'); e('v_add_u32', vr(self.MG), T3, a)
        e('v_add_u32', c, '2', a); e('v_mul_u32_u24', c, str(SPITCH), c)
        e('v_lshl_add_u32', c, b, '5', c); e('v_add_u32', vr(self.AB), str(SB), c)
        e('v_mul_u32_u24', c, str(XPITCH), a); e('v_lshl_add_u32', c, b, '5', c)
        e('v_add_u32', vr(self.OW), str(XB + 64), c)

    def task_late_setup(self):
        T = []
        e = lambda op, *a, **k: T.append(I(op, *a, **k))

        def srd_(d, lo, hi, size):
            e('s_mov_b32', sr(d), lo); e('s_and_b32', sr(d + 1), hi, '0xffff'); e('s_mov_b32', sr(d + 2), str(size)); e('s_mov_b32', sr(d + 3), '0x20000')
        self.scalars_late(e, srd_)
        S = list(T)
        T.clear()
        self.addr_late(e)
        return [S] + T

    def build(self):
        self.stages = []
        self.ksteps = []
        strips = []

        def add_stage(dml):
            self.stages.append(dml)
            return len(self.stages) - 1

        def strip_generic(name, nk, ks_per_stage, nfrag, dma_fn, tr_fn, mf_fn):
            st = dict(name=name, ks=[])
            for t in range(nk):
                tl = t % ks_per_stage
                if tl == 0:
                    n_in = min(ks_per_stage, nk - t)
                    dml = []
                    for tt in range(n_in):
                        dml += dma_fn(t + tt, tt)
                    sid = add_stage(dml)
                frs = [tr_fn(t, tl, u) for u in range(nfrag)]
                st['ks'].append(dict(t=t, stage=sid, frags=frs, mf=[mf_fn(t, u) for u in range(nfrag)], last_in_stage=(tl == ks_per_stage - 1 or t == nk - 1)))
            strips.append(st)
            return st

        A0, A1 = self.ACC0, self.ACC1
        acc = lambda buf, u, mb: vr(buf + 16 * u + 4 * mb, 4)

        def dq(t, tt):
            r = t // 3
            return [(self.SRD_QKV, ('pq', 0), (r * 24 + 2 * tt + e) * 1024, self.PV, 1024, 2 * tt + e) for e in range(2)]

        def trq(t, tl, u):
            return (self.TQ + u, tl * 2048, 6144)

        def mfq(t, u):
            L = [(acc(A0, u, mb), self.xreg(t, mb)) for mb in range(4)]
            if u < 2:
                L.append((vr(self.HAL + 4 * u, 4), self.halo_x(t)))
            return L
        strip_generic('QKV', 18, 3, 4, dq, trq, mfq)

        def ffn(j, buf):
            def dg(t, tt):
                return [(self.SRD_GU, ('fb2', j), (32 * t + 16 * e) * 9216, self.DG, 16 * 9216, 2 * tt + e) for e in range(2)]

            def trg(t, tl, u):
                return (self.TG + u, tl * 2048, 512)

            def mfg(t, u):
                return [(acc(buf, u, mb), self.xreg(t, mb)) for mb in range(4)]
            return strip_generic(f'F{j}', 18, 3, 4, dg, trg, mfg)
        ffn(0, A1); ffn(1, A0); ffn(2, A1); ffn(3, A0)

        def dh(t, tt):
            return [(self.SRD_GU, ('fb2', 4), (32 * t) * 9216, self.DH, 32 * 9216, tt)]

        def trh(t, tl, u):
            return (self.TH + u, tl * 1024, 256)

        def mfh(t, u):
            return [(acc(A1, u, mb), self.xreg(t, mb)) for mb in range(4)]
        strip_generic('F4h', 18, 6, 2, dh, trh, mfh)

        self.kmap = [('F', 0, 0), ('F', 0, 1), ('F', 1, 0), ('F', 1, 1), ('F', 2, 0), ('F', 2, 1), ('O', 0, 0), ('O', 0, 1), ('F', 3, 0), ('F', 3, 1), ('X', 4, 0)]

        def p2rows(k):
            kind, j, tt = self.kmap[k]
            if kind == 'O':
                return self.SRD_WO, ('wo', 0), 32 * tt
            return self.SRD_WD, ('fbr', j), 32 * tt

        def p2full(Y, buf):
            def dp(t, tt):
                s_, b_, r0 = p2rows(t)
                return [(s_, b_ + ('y', Y), (r0 + 16 * e) * 1152, self.DP, 16 * 1152, 2 * tt + e) for e in range(2)]

            def trp(t, tl, u):
                return (self.TP + u, tl * 2048, 6144)

            def mfp(t, u):
                return [(acc(buf, u, mb), self.hreg(t, mb)) for mb in range(4)]
            return strip_generic(f'P{Y}', 11, 3, 4, dp, trp, mfp)
        def dph(t, tt):
            s_, b_, r0 = p2rows(t)
            return [(s_, b_, r0 * 1152 + 1024, self.DPH, 32 * 1152, tt)]

        def trph(t, tl, u):
            return (self.TPH + u, tl * 1024, 512)

        def mfph(t, u):
            return [(acc(A0, u, mb), self.hreg(t, mb)) for mb in range(4)]
        p2full(0, A0); p2full(1, A1)
        strip_generic('P4h', 11, 6, 2, dph, trph, mfph)
        p2full(2, A1); p2full(3, A0)
        self.strips = strips
        x0 = [st for st in strips if st['name'] == 'P0'][0]['ks'][9]['stage']
        first_deep = x0
        self.first_deep = first_deep
        self.slot = {}
        nst = len(self.stages)
        for sid in range(nst):
            if sid < first_deep or not self.o.get('deep', 1):
                self.slot[sid] = sid % 3
        if self.o.get('deep', 1):
            order = [3, 4, (x0 - 3) % 3, (x0 - 2) % 3, 5, (x0 - 1) % 3]
            for k, sid in enumerate(range(first_deep, nst)):
                self.slot[sid] = order[k % 6]

    def slot_base(self, sid):
        sl = self.slot[sid]
        return sl * SLOT if sl < 3 else HB + (sl - 3) * SLOT

    def dma_items(self, sid):
        sbase = self.slot_base(sid)
        items = []
        prev = None
        for (srd_, base, goff, vbase, qdelta, q) in self.stages[sid]:
            share = False
            lin = base is not None and base[0] == 'pq'
            if prev is not None:
                psrd, pbase, pgoff, pq, pj = prev
                j = pj + 1
                if psrd == srd_ and pbase == base and j <= (3 if lin else 2) and q == pq + 1 and goff == pgoff + qdelta:
                    share = True
            pre = []
            if not share:
                j = 0
                pre.append(I('s_add_u32', 'm0', sr(self.S_LDSW), str(sbase + q * 1024)))
                so = sr(self.S_SOFF)
                if lin:
                    pre.append(I('s_add_u32', so, sr(self.S_LDSW), str(goff)))
                elif base[0] == 'fb2':
                    pre.append(I('s_add_u32', so, sr(self.S_FB2 + base[1]), str(goff)))
                elif base[0] == 'fbr':
                    pre.append(I('s_add_u32', so, sr(self.S_FBR + base[1]), str(goff)))
                elif base[0] == 'wo':
                    pre.append(I('s_add_u32', so, sr(self.S_WOR), str(goff)))
                if base[-2] == 'y':
                    pre.append(I('s_add_u32', so, so, sr(self.S_YC + base[-1])))
            if pre:
                cur = pre
            items.append((cur, I('buffer_load_dwordx4', vr(vbase if lin else vbase + j), sr(srd_, 4), sr(self.S_SOFF),
                                 mods=f'offen offset:{1024 * j} lds' if j else 'offen lds', tag=('st', sid))))
            prev = (srd_, base, goff, q, j)
        return items

    def task_qkv_epi(self):
        T = []
        A0 = self.ACC0
        T.append(I('v_mov_b32', 'v4', '0')); T.append(I('v_mov_b32', 'v5', '0'))
        T.append(I('v_and_b32', 'v6', '127', 'v0')); T.append(I('v_mul_u32_u24', 'v6', str(XPITCH), 'v6'))
        T.append(I('v_add_u32', 'v6', str(XB + 136), 'v6'))
        T.append(I('ds_write_b64', 'v6', 'v[4:5]', flag='bar'))
        for u in range(4):
            for mb in range(4):
                a = A0 + 16 * u + 4 * mb
                T.append(I('v_cvt_pk_bf16_f32', vr(a), vr(a), vr(a + 1)))
                T.append(I('v_cvt_pk_bf16_f32', vr(a + 1), vr(a + 2), vr(a + 3)))
                T.append(I('ds_write_b64', vr(self.SW + u), vr(a, 2), mods=f'offset:{mb * 16 * SPITCH}', flag='bar'))
        for u in range(2):
            a = self.HAL + 4 * u
            T.append(I('v_cvt_pk_bf16_f32', vr(a), vr(a), vr(a + 1)))
            T.append(I('v_cvt_pk_bf16_f32', vr(a + 1), vr(a + 2), vr(a + 3)))
            T.append(I('s_lshl_b32', sr(self.S_T2), sr(self.S_RG2), '6'))
            T.append(I('s_add_u32', sr(self.S_T2), sr(self.S_T2), '16'))
            T.append(I('s_mul_i32', sr(self.S_T2), sr(self.S_T2), str(SPITCH)))
            T.append(I('v_subrev_u32', vr(a + 2), sr(self.S_T2), vr(self.SW + u)))
            T.append(I('ds_write_b64', vr(a + 2), vr(a, 2), flag='bar'))
        return T

    def task_attn(self):
        T = []
        B = self.ACC0
        Q = B
        KA = [B + 12, B + 24]
        S = B + 36
        O = B + 44
        KB = [O, O + 10]
        TP = [4, 5, 6, 7, 8, 9, 10, 11, 12, 13, 14, 15, 248, 249, 250, 251, 252, 253, 254, 255]
        AB = vr(self.AB)

        def rd(dst, off):
            if dst % 2 == 0 and dst % 4 == 0:
                return [I('ds_read_b128', vr(dst, 4), AB, mods=f'offset:{off}'),
                        I('ds_read_b128', vr(dst + 4, 4), AB, mods=f'offset:{off + 16}'),
                        I('ds_read_b64', vr(dst + 8, 2), AB, mods=f'offset:{off + 32}')]
            return [I('ds_read_b128', vr(dst, 4), AB, mods=f'offset:{off}'),
                    I('ds_read_b128', vr(dst + 4, 4), AB, mods=f'offset:{off + 16}'),
                    I('ds_read_b64', vr(dst + 8, 2), AB, mods=f'offset:{off + 32}')]
        rowoff = lambda w: (14 - 2 * w) * SPITCH
        T += rd(Q, rowoff(0) + 160)
        T += rd(KA[0], rowoff(0)); T += rd(KA[1], rowoff(1))
        T += rd(KB[0], rowoff(2)); T += rd(KB[1], rowoff(3))
        T.append(I('v_mov_b32', vr(S), '0'))
        T.append([I('v_cmp_gt_u32', 'vcc', '32', vr(self.V_LANE)),
                  I('v_cndmask_b32', vr(Q + 9), vr(Q + 9), vr(S), 'vcc'),
                  I('v_cndmask_b32', vr(Q + 0), vr(S), vr(Q + 0), 'vcc')])
        for w in range(0, 8, 2):
            bufs = KA if (w // 2) % 2 == 0 else KB
            burst = []
            for ww, kb in ((w, bufs[0]), (w + 1, bufs[1])):
                burst.append(I('v_dot2_f32_bf16', vr(S + ww), vr(Q), vr(kb), '0'))
            for j in range(1, 10):
                for ww, kb in ((w, bufs[0]), (w + 1, bufs[1])):
                    burst.append(I('v_dot2_f32_bf16', vr(S + ww), vr(Q + j), vr(kb + j), vr(S + ww)))
            T.append(burst)
            if w + 4 < 8:
                T += rd(bufs[0], rowoff(w + 4)); T += rd(bufs[1], rowoff(w + 5))
            elif w == 4:
                T += rd(KA[0], rowoff(0) + 80); T += rd(KA[1], rowoff(1) + 80)
        NEG = vr(Q + 10)
        T.append(I('v_mov_b32', NEG, sr(self.S_NEG)))
        for w in range(1, 8):
            T.append([I('v_cmp_le_u32', 'vcc', str(2 * w), vr(self.MG)), I('s_nop', '1'),
                      I('v_cndmask_b32', vr(S + w), NEG, vr(S + w), 'vcc')])
        MX = vr(Q + 11)
        T.append(I('v_max3_f32', MX, vr(S), vr(S + 1), vr(S + 2)))
        T.append(I('v_max3_f32', MX, MX, vr(S + 3), vr(S + 4)))
        T.append(I('v_max3_f32', MX, MX, vr(S + 5), vr(S + 6)))
        T.append(I('v_max_f32', MX, MX, vr(S + 7)))
        T.append(I('v_mul_f32', MX, sr(self.S_AC), MX))
        for w in range(8):
            T.append(I('v_fma_f32', vr(S + w), vr(S + w), sr(self.S_AC), '-' + MX))
        for w in range(8):
            T.append(I('v_exp_f32', vr(S + w), vr(S + w)))
        SUM = vr(Q + 10)
        T.append(I('v_add_f32', SUM, vr(S), vr(S + 1)))
        for w in range(2, 8):
            T.append(I('v_add_f32', SUM, SUM, vr(S + w)))
        T.append(I('v_rcp_f32', SUM, SUM))
        T.append(I('v_mul_f32', SUM, sr(self.S_NLOG2E), SUM))
        for w in range(8):
            T.append(I('v_mul_f32', vr(S + w), vr(S + w), SUM))
        for pp in range(4):
            T.append(I('v_cvt_pk_bf16_f32', vr(Q + pp), vr(S + 2 * pp), vr(S + 2 * pp + 1)))
        K0_, K1_ = KA
        for pp in range(4):
            burst = []
            for j in range(10):
                a, b = TP[2 * j], TP[2 * j + 1]
                T.append(I('v_perm_b32', vr(a), vr(K1_ + j), vr(K0_ + j), sr(self.S_PERM0)))
                T.append(I('v_perm_b32', vr(b), vr(K1_ + j), vr(K0_ + j), sr(self.S_PERM1)))
                burst.append(I('v_dot2_f32_bf16', vr(O + 2 * j), vr(a), vr(Q + pp), '0' if pp == 0 else vr(O + 2 * j)))
                burst.append(I('v_dot2_f32_bf16', vr(O + 2 * j + 1), vr(b), vr(Q + pp), '0' if pp == 0 else vr(O + 2 * j + 1)))
            if pp < 3:
                T += rd(K0_, rowoff(2 * pp + 2) + 80)
                T += rd(K1_, rowoff(2 * pp + 3) + 80)
            T.append(burst)
        OP = K0_
        for j in range(10):
            T.append(I('v_cvt_pk_bf16_f32', vr(OP + j), vr(O + 2 * j), vr(O + 2 * j + 1)))
        OW = vr(self.OW)
        for j in range(1, 9, 2):
            T.append(I('ds_write2_b32', OW, vr(OP + j), vr(OP + j + 1), mods=f'offset0:{j} offset1:{j + 1}', flag='bar'))
        t0 = TP[0]
        T.append(I('v_add_u32', vr(t0), '36', OW))
        T.append([I('v_cmp_gt_u32', 'vcc', '32', vr(self.V_LANE)), I('s_nop', '1'),
                  I('v_cndmask_b32', vr(OP), vr(OP + 9), vr(OP), 'vcc'),
                  I('v_cndmask_b32', vr(t0), vr(t0), OW, 'vcc')])
        T.append(I('ds_write_b32', vr(t0), vr(OP), flag='bar'))
        return T

    def task_silu(self, buf, j):
        T = []
        NL = sr(self.S_NLOG2E)
        chains = []
        for bb in range(2):
            for mb in range(4):
                g = buf + 16 * bb + 4 * mb
                u = buf + 16 * (2 + bb) + 4 * mb
                c = []
                for r in range(4):
                    c.append(I('v_mul_f32', vr(u + r), vr(g + r), vr(u + r)))
                for r in range(4):
                    c.append(I('v_exp_f32', vr(g + r), '-' + vr(g + r)))
                for r in range(4):
                    c.append(I('v_add_f32', vr(g + r), '1.0', vr(g + r)))
                for r in range(4):
                    c.append(I('v_rcp_f32', vr(g + r), vr(g + r)))
                for r in range(4):
                    c.append(I('v_mul_f32', vr(u + r), vr(g + r), vr(u + r)))
                c.append(I('v_cvt_pk_bf16_f32', vr(g), vr(u), vr(u + 1)))
                c.append(I('v_cvt_pk_bf16_f32', vr(g + 1), vr(u + 2), vr(u + 3)))
                if j < 4:
                    c.append(I('ds_write_b64', vr(self.HW + bb), vr(g, 2), mods=f'offset:{j * 16384 + mb * 2048}', flag='bar'))
                chains.append(c)
        Ta, Tb = [], []
        for k, c in enumerate(chains):
            (Ta if k % 2 == 0 else Tb).extend(c)
        return Ta, Tb

    def task_silu_h(self, buf):
        TT = ([], [])
        NL = sr(self.S_NLOG2E)
        for mb in range(4):
            T = TT[mb % 2]
            g = buf + 4 * mb
            u = buf + 16 + 4 * mb
            for r in range(4):
                T.append(I('v_mul_f32', vr(u + r), vr(g + r), vr(u + r)))
            for r in range(4):
                T.append(I('v_exp_f32', vr(g + r), '-' + vr(g + r)))
            for r in range(4):
                T.append(I('v_add_f32', vr(g + r), '1.0', vr(g + r)))
            for r in range(4):
                T.append(I('v_rcp_f32', vr(g + r), vr(g + r)))
            for r in range(4):
                T.append(I('v_mul_f32', vr(u + r), vr(g + r), vr(u + r)))
            T.append(I('v_cvt_pk_bf16_f32', vr(g), vr(u), vr(u + 1)))
            T.append(I('v_cvt_pk_bf16_f32', vr(g + 1), vr(u + 2), vr(u + 3)))
            T.append(I('ds_write_b64', vr(self.HWX), vr(g, 2), mods=f'offset:{mb * 16 * XPITCH}', flag='bar'))
        return TT

    def task_hload(self, k):
        kind, j, tt = self.kmap[k]
        T = []
        for mb in range(4):
            d = self.hreg(k, mb)
            if kind == 'F':
                T.append(I('ds_read_b128', d, vr(self.HR + tt), mods=f'offset:{j * 16384 + mb * 2048}', flag='bar', tag=('h', k, mb)))
            elif kind == 'X':
                T.append(I('ds_read_b128', d, vr(self.XR), mods=f'offset:{mb * 16 * XPITCH}', flag='bar', tag=('h', k, mb)))
            elif tt == 0:
                T.append(I('ds_read_b128', d, vr(self.XR), mods=f'offset:{mb * 16 * XPITCH + 64}', flag='bar', tag=('h', k, mb)))
        if kind == 'O' and tt == 1:
            for mb in range(4):
                for r in range(4):
                    T.append(I('v_accvgpr_write_b32', ar(16 * k + 4 * mb + r), '0'))
            grp = [I('s_mov_b64', 'exec', '0xffff')]
            for mb in range(4):
                grp.append(I('ds_read_b128', self.hreg(k, mb), vr(self.XR), mods=f'offset:{mb * 16 * XPITCH + 128}', flag='bar', tag=('h', k, mb)))
            grp.append(I('s_mov_b64', 'exec', '-1'))
            T.append(grp)
        return T

    def touch_ld(self, vaddr, srd_):
        x = I('buffer_load_dword', 'v7', vaddr, sr(srd_, 4), sr(self.S_TCH), mods='offen')
        x.writes = []
        return x

    def task_touch(self):
        T = []
        T0, T1 = sr(self.S_T0), sr(self.S_T1)

        def ld(srd_, k):
            x = I('buffer_load_dwordx4', 'v[4:7]', vr(self.PV), sr(srd_, 4), sr(self.S_TCH), mods=f'offen offset:{1024 * k}' if k else 'offen')
            x.writes = []
            return x
        S = [I('s_and_b32', T0, sr(self.S_I), '7'), I('s_mul_i32', T0, T0, '41472'), I('s_mul_i32', T1, sr(self.S_S), str(288 * 1152)),
             I('s_add_u32', T0, T0, T1), I('s_mul_i32', T1, sr(self.S_W), '10368'), I('s_add_u32', sr(self.S_TCH), T0, T1)]
        T.append(S)
        for j in range(11):
            if j and j % 4 == 0:
                T.append([I('s_add_u32', sr(self.S_TCH), sr(self.S_TCH), '4096')])
            T.append(ld(self.SRD_WD, j % 4))
        S = [I('s_and_b32', T0, sr(self.S_I), '7'), I('s_mul_i32', T0, T0, '5184'), I('s_add_u32', T0, T0, sr(self.S_WOR)),
             I('s_mul_i32', T1, sr(self.S_W), '1296'), I('s_add_u32', sr(self.S_TCH), T0, T1)]
        T.append(S)
        T.append(ld(self.SRD_WO, 0)); T.append(ld(self.SRD_WO, 1))
        return T

    def task_touch_gu(self):
        T = []
        T0, T1 = sr(self.S_T0), sr(self.S_T1)
        L = vr(self.V_LANE)
        T.append(I('v_mul_u32_u24', 'v6', '205', L)); T.append(I('v_lshrrev_b32', 'v6', '10', 'v6'))
        T.append(I('v_mul_u32_u24', 'v7', '5', 'v6')); T.append(I('v_sub_u32', 'v7', L, 'v7'))
        T.append(I('v_mul_u32_u24', 'v6', '9216', 'v6')); T.append(I('v_lshl_add_u32', 'v6', 'v7', '7', 'v6'))
        S = [I('s_and_b32', T0, sr(self.S_I), '7'), I('s_mul_i32', T0, T0, '72'), I('s_and_b32', T1, sr(self.S_W), '1'), I('s_mul_i32', T1, T1, '36'),
             I('s_add_u32', T0, T0, T1), I('s_mul_i32', T0, T0, '9216'), I('s_mul_i32', T1, sr(self.S_S), '576'), I('s_and_b32', T1, T1, '0xffffff80'),
             I('s_add_u32', sr(self.S_TCH), T0, T1)]
        T.append(S)
        for j in range(3):
            T.append(self.touch_ld('v6', self.SRD_GU))
            if j < 2:
                T.append([I('s_add_u32', sr(self.S_TCH), sr(self.S_TCH), str(12 * 9216))])
        return T

    def emit_k2_code_touch(self):
        P = self.P
        P.raw("  s_getpc_b64 s[48:49]")
        P.raw("K1_pc:")
        P.raw("  s_add_u32 s48, s48, k2_reduce_kernel-K1_pc")
        P.raw("  s_addc_u32 s49, s49, 0")
        P.raw("  s_and_b32 s49, s49, 0xffff")
        P.raw("  s_mov_b32 s50, K2_end-k2_reduce_kernel")
        P.raw("  s_mov_b32 s51, 0x20000")
        P.e('v_lshlrev_b32', 'v5', '6', vr(self.V_LANE))
        x = I('buffer_load_dword', 'v6', 'v5', 's[48:51]', '0', mods='offen'); x.writes = []
        P.emit(x)

    def task_tlb(self):
        T = []
        T0, T1 = sr(self.S_T0), sr(self.S_T1)
        S, II = sr(self.S_S), sr(self.S_I)
        S_ = [I('s_lshl_b32', T0, S, '4'), I('s_add_u32', T0, T0, II)]
        T.append(S_)
        T.append(I('v_mov_b32', 'v5', str(FL_OFF)))
        T.append([I('s_lshl_b32', T1, T0, '16'), I('s_add_u32', T1, T1, str(MB_OFF))])
        T.append(I('v_writelane_b32', 'v5', T1, '2'))
        T.append([I('s_xor_b32', T1, T1, str(16 << 16))])
        T.append(I('v_writelane_b32', 'v5', T1, '3'))
        T.append([I('s_lshl_b32', T1, T0, '14'), I('s_add_u32', T1, T1, str(HP_OFF))])
        T.append(I('v_writelane_b32', 'v5', T1, '1'))
        T.append([I('s_lshr_b32', T1, S, '1'), I('s_lshl_b32', T1, T1, '4'), I('s_add_u32', T1, T1, II), I('s_lshl_b32', T1, T1, '17')])
        T.append(I('v_writelane_b32', 'v5', T1, '0'))
        x = I('buffer_load_dword', 'v7', 'v5', sr(self.SRD_P, 4), '0', mods='offen'); x.writes = []
        T.append([I('s_mov_b64', 'exec', '0x1f'), x, I('s_mov_b64', 'exec', '-1')])
        return T

    def task_p2setup(self):
        T = []
        T0, T1 = sr(self.S_T0), sr(self.S_T1)
        S, II, W = sr(self.S_S), sr(self.S_I), sr(self.S_W)
        T += [I('s_lshl_b32', T0, S, '4'), I('s_add_u32', T0, T0, II)]
        T += [I('s_lshl_b32', T1, W, '13')]
        T += [I('s_lshl_b32', sr(self.S_MBO), T0, '16'), I('s_add_u32', sr(self.S_MBO), sr(self.S_MBO), T1),
              I('s_add_u32', sr(self.S_MBO), sr(self.S_MBO), str(MB_OFF))]
        T += [I('s_xor_b32', sr(self.S_MBP), sr(self.S_MBO), str(16 << 16))]
        T += [I('s_lshl_b32', sr(self.S_HPB), T0, '14'), I('s_lshl_b32', T1, W, '12'), I('s_add_u32', sr(self.S_HPB), sr(self.S_HPB), T1),
              I('s_add_u32', sr(self.S_HPB), sr(self.S_HPB), str(HP_OFF))]
        T += [I('s_lshr_b32', T0, S, '1'), I('s_lshl_b32', T0, T0, '4'), I('s_add_u32', T0, T0, II), I('s_lshl_b32', sr(self.S_FPB), T0, '17'),
              I('s_lshl_b32', T1, W, '13'), I('s_add_u32', sr(self.S_FPB), sr(self.S_FPB), T1)]
        T += [I('s_lshl_b32', sr(self.S_FOFF), 's2', '7'), I('s_add_u32', sr(self.S_FOFF), sr(self.S_FOFF), str(FL_OFF)),
              I('s_xor_b32', sr(self.S_FSH), sr(self.S_FOFF), str(8 << 7))]
        T += [I('s_lshl_b32', T1, W, '2'), I('s_add_u32', sr(self.S_FOFF), sr(self.S_FOFF), T1)]
        T += [I('s_mov_b32', sr(self.S_NEG), '0xffff0000')]
        return T

    def _pack_store(self, T, buf, pair, mb, soff_reg, first, flags, tag=None):
        a = buf + 16 * (2 * pair) + 4 * mb
        b = buf + 16 * (2 * pair + 1) + 4 * mb
        T.append(I('v_cvt_pk_bf16_f32', vr(a), vr(a), vr(a + 1)))
        T.append(I('v_cvt_pk_bf16_f32', vr(a + 1), vr(a + 2), vr(a + 3)))
        T.append(I('v_cvt_pk_bf16_f32', vr(a + 2), vr(b), vr(b + 1)))
        T.append(I('v_cvt_pk_bf16_f32', vr(a + 3), vr(b + 2), vr(b + 3)))
        T += first
        T.append(I('buffer_store_dwordx4', vr(a, 4), vr(self.PV), sr(self.SRD_P, 4), sr(self.S_PO),
                   mods=(f'offen offset:{1024 * mb}' if mb else 'offen') + flags, tag=tag))

    def task_send(self, buf, k):
        T = []
        for pair in range(2):
            for mb in range(4):
                first = [I('s_add_u32', sr(self.S_PO), sr(self.S_MBO), str(k * 32768 + pair * 4096))] if mb == 0 else []
                self._pack_store(T, buf, pair, mb, None, first, ' sc1', tag=('mb', k))
        return T

    def item_signal(self, k):
        return ('signal', k)

    def task_keep(self, buf, k):
        T = []
        M = sr(self.S_PERM0 + 2)
        for pair in range(2):
            for mb in range(4):
                a = buf + 16 * (2 * pair) + 4 * mb
                b = buf + 16 * (2 * pair + 1) + 4 * mb
                q = (self.INC if k == 2 else self.INC2)[pair * 4 + mb]
                t0, t1 = 244, 245
                for half, r in ((0, a), (1, b)):
                    for d in range(2):
                        src = vr(q + 2 * half + d)
                        T.append(I('v_lshlrev_b32', vr(t0), '16', src))
                        T.append(I('v_and_b32', vr(t1), M, src))
                        T.append(I('v_add_f32', vr(r + 2 * d), vr(r + 2 * d), vr(t0)))
                        T.append(I('v_add_f32', vr(r + 2 * d + 1), vr(r + 2 * d + 1), vr(t1)))
                        t0, t1 = (246, 247) if t0 == 244 else (244, 245)
                first = []
                if mb == 0:
                    first = [I('s_lshl_b32', sr(self.S_PO), sr(self.S_YC + k), '7'),
                             I('s_add_u32', sr(self.S_PO), sr(self.S_PO), sr(self.S_FPB)),
                             I('s_add_u32', sr(self.S_PO), sr(self.S_PO), str(pair * 4096))]
                self._pack_store(T, buf, pair, mb, None, first, ['', ' nt', ' sc1'][self.o.get('stflag', 2)])
        return T

    def addinc_quad(self, buf, p):
        u, mb = divmod(p, 4)
        pair, half = divmod(u, 2)
        q = self.INC2[pair * 4 + mb]
        r = buf + 16 * u + 4 * mb
        M = sr(self.S_NEG)
        T = []
        for d, (t0, t1) in enumerate(((244, 245), (246, 247))):
            src = vr(q + 2 * half + d)
            T.append(I('v_lshlrev_b32', vr(t0), '16', src)); T.append(I('v_and_b32', vr(t1), M, src))
            T.append(I('v_add_f32', vr(r + 2 * d), vr(r + 2 * d), vr(t0))); T.append(I('v_add_f32', vr(r + 2 * d + 1), vr(r + 2 * d + 1), vr(t1)))
        return T

    def task_final(self, buf, k):
        T = []
        for pair in range(2):
            for mb in range(4):
                first = []
                if mb == 0:
                    first = [I('s_lshl_b32', sr(self.S_PO), sr(self.S_YC + k), '7'), I('s_add_u32', sr(self.S_PO), sr(self.S_PO), sr(self.S_FPB)),
                             I('s_add_u32', sr(self.S_PO), sr(self.S_PO), str(pair * 4096))]
                self._pack_store(T, buf, pair, mb, None, first, ['', ' nt', ' sc1'][self.o.get('stflag', 2)])
        return T

    def items_incoming(self, k):
        T = []
        for pair in range(2):
            for mb in range(4):
                if mb == 0:
                    T.append(I('s_add_u32', sr(self.S_PO2), sr(self.S_MBP), str((k - 2) * 32768 + pair * 4096)))
                T.append(I('buffer_load_dwordx4', vr((self.INC if k == 2 else self.INC2)[pair * 4 + mb], 4), vr(self.PV), sr(self.SRD_P, 4), sr(self.S_PO2),
                           mods=(f'offen offset:{1024 * mb}' if mb else 'offen') + ' sc1'))
        return T

    def task_half(self, buf):
        T = []
        for mb in range(4):
            first = [I('s_mov_b32', sr(self.S_PO), sr(self.S_HPB))] if mb == 0 else []
            self._pack_store(T, buf, 0, mb, None, first, ['', ' nt', ' sc1'][self.o.get('stflag', 2)])
        return T

    def emit_signal(self, k):
        P = self.P
        P.wait_vm_tag(('mb', k))
        P.e('v_mov_b32', 'v9', '1')
        P.e('v_mov_b32', 'v10', str(16 * k))
        P.e('s_mov_b64', 'exec', '1')
        P.e('buffer_store_dword', 'v9', 'v10', sr(self.SRD_P, 4), sr(self.S_FOFF), mods='offen sc1')
        P.e('s_mov_b64', 'exec', '-1')

    def poll_issue(self, k):
        return [I('v_mov_b32', 'v11', str(16 * (k - 2))),
                I('buffer_load_dwordx4', vr(self.V_POLL, 4), 'v11', sr(self.SRD_P, 4), sr(self.S_FSH), mods='offen sc1')]

    def emit_poll_check(self, lab):
        P = self.P
        T2 = sr(self.S_T2)
        V = self.V_POLL
        P.e('v_and_b32', vr(V), vr(V), vr(V + 1)); P.e('v_and_b32', vr(V + 2), vr(V + 2), vr(V + 3)); P.e('v_and_b32', vr(V), vr(V), vr(V + 2))
        P.e('v_readfirstlane_b32', T2, vr(V))
        P.e('s_cmp_eq_u32', T2, '1')
        P.raw(f"  s_cbranch_scc1 {lab}_ok")
        P.label(f"{lab}_spin")
        P.raw("  s_sleep 1")
        P.raw(f"  buffer_load_dwordx4 v[{V}:{V + 3}], v11, s[{self.SRD_P}:{self.SRD_P + 3}], {sr(self.S_FSH)} offen sc1")
        P.raw("  s_waitcnt vmcnt(0)")
        P.raw(f"  v_and_b32 v{V}, v{V}, v{V + 1}")
        P.raw(f"  v_and_b32 v{V + 2}, v{V + 2}, v{V + 3}")
        P.raw(f"  v_and_b32 v{V}, v{V}, v{V + 2}")
        P.raw("  s_nop 1")
        P.raw(f"  v_readfirstlane_b32 {T2}, v{V}")
        P.raw("  s_nop 3")
        P.raw(f"  s_cmp_eq_u32 {T2}, 1")
        P.raw(f"  s_cbranch_scc0 {lab}_spin")
        P.label(f"{lab}_ok")

    def check_b(self, g):
        ins = g['inst']
        b = ins.ops[2]
        want = g['btag']
        got = self.P.regtag.get(regs_of(b)[0])
        assert got == want, (g['ks']['strip'], g['ks']['t'], b, want, got)

    def emit_setup(self, it):
        pre, ins = it
        if self.o.get('nodma', 0) and ins.tag[0] == 'st' and ins.tag[1] >= 2:
            return
        if self.cur_setup is not pre:
            self.P.emit(pre)
            self.cur_setup = pre

    def emit_dma(self, it):
        pre, ins = it
        if self.o.get('nodma', 0) and ins.tag[0] == 'st' and ins.tag[1] >= 2:
            return
        if self.cur_setup is not pre:
            self.P.emit(pre)
            self.cur_setup = pre
        self.P.emit(ins)

    XSLOT = 27 * 1024

    def xf_dma(self, r):
        items = []
        tag = ('st', r)
        for mm in range(2):
            pre = [I('s_add_u32', 'm0', sr(self.S_XL), str(HB + (r % 3) * 12288 + mm * 3072)),
                   I('s_add_u32', sr(self.S_SOFF2), sr(self.S_XF), str((mm * 18 + 3 * r) * 1024))]
            for k in range(3):
                items.append((pre, I('buffer_load_dwordx4', vr(self.PV), sr(self.SRD_XF, 4), sr(self.S_SOFF2),
                                     mods=(f'offen offset:{1024 * k} lds' if k else 'offen lds'), tag=tag)))
        pre = [I('s_add_u32', 'm0', sr(self.S_XH), str(HB + 73728 + (r % 3) * 3072)),
               I('s_add_u32', sr(self.S_SOFF2), sr(self.S_XF + 1), str(3 * r * 1024))]
        items.append((pre, I('buffer_load_dwordx4', vr(self.PV), sr(self.SRD_XF, 4), sr(self.S_SOFF2), mods='offen lds', tag=tag)))
        return items

    def xf_reads(self, t):
        T = []
        r, tt = divmod(t, 3)
        for mb in range(4):
            T.append(I('ds_read_b128', self.xreg(t, mb), vr(self.XA), mods=f'offset:{(r % 3) * 12288 + (mb * 3 + tt) * 1024}', flag='bar', tag=('x', t, mb)))
        T.append(I('ds_read_b128', self.halo_x(t), vr(self.XA + 1), mods=f'offset:{(r % 3) * 3072 + tt * 1024}', flag='bar', tag=('x', t, 4)))
        return T

    def stage_dma(self, sid):
        a = self.dma_items(sid)
        if sid < 6:
            b = self.xf_dma(sid)
            out = []
            out = b[:3] + a[:3] + b[3:] + a[3:]
            return out
        return a

    def emit_all(self):
        P = self.P
        e = P.e
        o = self.o
        self.prologue()
        self.build()
        self.cur_setup = None
        pst = []

        def pstamp():
            if o.get('prof', 0) == 3:
                r = 72 + 2 * len(pst)
                P.raw(f"  s_memtime s[{r}:{r + 1}]")
                pst.append(r)
        pstamp()
        for it in self.stage_dma(0):
            self.emit_dma(it)
        pstamp()
        for it in self.stage_dma(1):
            self.emit_dma(it)
        pstamp()
        if o.get('touch', 1) == 2:
            T0, T1 = sr(self.S_T0), sr(self.S_T1)
            srd(P, self.SRD_WO, 's6', 's7', 576 * 1152)
            srd(P, self.SRD_WD, 's12', 's13', 4608 * 1152)
            e('s_mul_i32', sr(self.S_WOR), sr(self.S_S), str(36 * 1152))
            P.emit(self.task_touch())
        self.addr_first(e)
        pstamp()

        frags = []
        KS = []
        for st in self.strips:
            for ks in st['ks']:
                ks['strip'] = st['name']
                KS.append(ks)
                for u in range(len(ks['frags'])):
                    frags.append((ks, u))
        NQ = len(frags)
        NFR = self.NFR
        DIST = NFR - 1
        fr = lambda q: self.FR + 4 * (q % NFR)

        def frag_reads(q):
            ks, u = frags[q]
            areg, off, hd = ks['frags'][u]
            slot = self.slot[ks['stage']]
            if slot >= 3:
                areg = self.TD + (areg - self.TP)
                slot -= 3
            return [I('ds_read_b64_tr_b16', vr(fr(q) + 2 * h, 2), vr(areg), mods=f'offset:{slot * SLOT + off + h * hd}', flag='bar') for h in range(2)]

        gaps = []
        qi = 0
        for ks in KS:
            for u in range(len(ks['frags'])):
                mfs = ks['mf'][u]
                for mi, (accr, breg) in enumerate(mfs):
                    first = ks['t'] == 0
                    btag = ('h', ks['t'], mi) if ks['strip'][0] == 'P' else ('x', ks['t'], mi)
                    gaps.append(dict(q=qi, ks=ks, u=u, mi=mi, n=len(mfs), btag=btag,
                                     inst=I('v_mfma_f32_16x16x32_bf16', accr, vr(fr(qi), 4), breg, '0' if first else accr)))
                qi += 1
        NG = len(gaps)
        sf, sl, frag_first, ks_first = {}, {}, {}, {}
        for gi, g in enumerate(gaps):
            sf.setdefault(g['ks']['strip'], gi)
            sl[g['ks']['strip']] = gi
            frag_first.setdefault(g['q'], gi)
            ks_first.setdefault((g['ks']['strip'], g['ks']['t']), gi)
        fstage = [frags[q][0]['stage'] for q in range(NQ)]
        NST = len(self.stages)
        first_frag_of_stage = {}
        for q in range(NQ):
            first_frag_of_stage.setdefault(fstage[q], q)
        stage_of0 = lambda name, k: [st for st in self.strips if st['name'] == name][0]['ks'][k]['stage']
        read_pos, bar_pos = {}, {}
        LAG = o.get('barlag', 2)
        for q in range(NQ):
            s = fstage[q]
            p = q - DIST
            if s > 0:
                lastq_prev = first_frag_of_stage[s] - 1
                bp = read_pos[lastq_prev] + LAG
                bar_pos[s - 1] = bp
                p = max(p, bp)
            read_pos[q] = p
            assert p < q or q == 0, (q, p)
            assert p >= q - NFR + 1
        bars_at = {}
        for s, p in bar_pos.items():
            bars_at.setdefault(p, []).append(s)
        bar_gap = {s: frag_first[p] for s, p in bar_pos.items()}
        rq = []
        for q in range(NQ):
            if read_pos[q] < 0:
                continue
            for h, ins in enumerate(frag_reads(q)):
                rq.append((frag_first[read_pos[q]], frag_first[q] - o.get('minlead', 7), ins, frag_first[read_pos[q]] + 2 * h))

        self.hfree_bar = None
        dq = []
        b_hfree = bar_gap[stage_of0('P0', 9)]
        b_h6 = bar_gap[stage_of0('P0', 0)]
        prev_user = {}
        last_issue = 0
        for sid in range(NST):
            sl_ = self.slot[sid]
            pu = prev_user.get(sl_)
            prev_user[sl_] = sid
            if sid < 2:
                continue
            if pu is not None:
                lo = bar_gap[pu]
            elif sl_ == 5:
                lo = b_hfree
            elif sl_ >= 3:
                lo = b_h6
            else:
                lo = 0
            hi = bar_gap[sid - 1]
            items = self.stage_dma(sid)
            n = len(items)
            lo = max(lo, last_issue)
            nb = min(b for b in list(bar_gap.values()) + [NG] if b > lo)
            span = max(n, int((nb - lo - 2) * (o.get('dmaspan', 60) if sid >= 8 else 95) / 100))
            step = max(o.get('dmastep', 5) if sid >= 8 else 4, span // n) if sl_ < 3 or sid < self.first_deep else o.get('dmastep', 5)
            if sid >= self.first_deep:
                step = o.get('dmastep', 4)
            for k, it in enumerate(items):
                gi_ = lo + 1 + k * step
                assert gi_ < hi, (sid, gi_, hi)
                dq.append((gi_, it))
            last_issue = lo + 1 + (n - 1) * step
        dq.sort(key=lambda x: x[0])

        LAT = 10
        names0 = ['QKV', 'F0', 'F1', 'F2', 'F3', 'F4h']
        strip = lambda name: [st for st in self.strips if st['name'] == name][0]
        stage_of = lambda name, k: strip(name)['ks'][k]['stage']

        def next_bar(gi):
            return min(b for b in bar_gap.values() if b > gi)
        tasks = []

        def add(st_, en_, lst):
            if isinstance(lst, tuple):
                for l in lst:
                    tasks.append([st_, en_, l, 0])
            else:
                tasks.append([st_, en_, lst, 0])
        late_end = o.get('lateend', 60)
        add(2, late_end, self.task_late_setup())
        rq2 = []
        for t in range(3, 18):
            r = t // 3
            dl = ks_first[('QKV', t)] - 8
            for ins in self.xf_reads(t):
                rq2.append((bar_gap[r - 1] + 1, dl, ins))
        bq = bar_gap[stage_of('F0', 0)] if o.get('qkvbar', 1) == 0 else bar_gap[stage_of('F0', 3)]
        add(sf['F0'] + LAT, bq - 1, self.task_qkv_epi())
        add(bq + 1, sl['F0'], self.task_attn())
        add(sf['F1'] + LAT, sl['F1'], self.task_silu(self.ACC1, 0))
        add(sf['F2'] + LAT, sl['F2'], self.task_silu(self.ACC0, 1))
        add(sf['F3'] + LAT, sl['F3'], self.task_silu(self.ACC1, 2))
        add(sf['F4h'] + LAT, sl['F4h'], self.task_silu(self.ACC0, 3))
        b_f4h = bar_gap[stage_of('P0', 3)]
        add(sf['P0'] + LAT, b_f4h - 1, self.task_silu_h(self.ACC1))
        bF2 = next_bar(sl['F3'])
        bF3 = next_bar(sl['F4h'])
        for k in range(11):
            if k < 8:
                st_ = ks_first[('F4h', k + 1)] + 1
                if k in (4, 5):
                    st_ = max(st_, bF2 + 1)
            elif k < 10:
                st_ = max(bF3 + 1, ks_first[('F4h', k + 1)] + 1)
            else:
                st_ = b_f4h + 1
            dl = ks_first[('P0', k)] - 8
            if k < 6:
                dl = min(dl, bar_gap[stage_of('P0', 0)] - 10)
            assert st_ < dl, (k, st_, dl)
            for ins in self.task_hload(k):
                rq2.append((st_, dl, ins))
        rq2.sort(key=lambda x: x[1])
        if o.get('deep', 1):
            add(sf['P0'] + 2, sf['P0'] + 30, [I('v_add_u32', vr(self.TD + k), str(HB), vr(self.TP + k)) for k in range(6)])
        actions = {}
        prebar = {}
        if o.get('tlb', 0):
            ta = sf[names0[o.get('tlbat', 2)]] + 30
            add(ta, ta + 10, self.task_tlb())
        if o.get('touchgu', 0):
            ta = late_end + 1 + o.get('guoff', 0)
            add(ta, ta + 12, self.task_touch_gu())
        if o.get('touch', 1) == 1:
            ta = sf['F1'] + o.get('touchoff', 400)
            add(ta, ta + o.get('touchlen', 200), self.task_touch())
        add(sf['F4h'] + 2, sf['F4h'] + 6, self.task_p2setup())
        add(sf['P1'] + 40, sf['P1'] + 85, self.task_send(self.ACC0, 0))
        actions[sf['P4h'] + o.get('sig0', 50)] = lambda: self.emit_signal(0)
        inl = {}
        if o.get('k2pf', 0):
            actions[sf['P3'] + 140] = lambda: self.emit_k2_code_touch()
        add(sf['P4h'] + LAT, sf['P4h'] + 80, self.task_send(self.ACC1, 1))
        actions[sf['P2'] + o.get('sig1', 130)] = lambda: self.emit_signal(1)
        add(sf['P2'] + LAT, sf['P2'] + 60, self.task_half(self.ACC0))
        for k, nm, pa, kb in ((2, 'P2', 20, 6), (3, 'P3', 20, o.get('kb3', 3))):
            add(sf[nm] + pa, sf[nm] + pa + 2, self.poll_issue(k))
            sb = stage_of(nm, kb)
            prebar[sb] = (lambda kk=k: self.emit_poll_check(f"K1_poll{kk}"))
            add(bar_gap[sb] + 1, bar_gap[sb] + 30, self.items_incoming(k))
        add(sf['P3'] + o.get('keepat', 50), sl['P3'], self.task_keep(self.ACC1, 2))

        if o.get('notask', 0):
            tasks = []; actions = {}; prebar = {}; inl = {}
        PROF = o.get('prof', 0)
        names = ['QKV', 'F0', 'F1', 'F2', 'F3', 'F4h', 'P0', 'P1', 'P4h', 'P2', 'P3']
        pfrom = names[o.get('pfrom', 0)]
        stamps = list(pst)

        def stamp():
            if PROF:
                r = 72 + 2 * len(stamps)
                P.raw(f"  s_memtime s[{r}:{r + 1}]")
                stamps.append(r)

        P.wait_lds_flagged()
        P.wait_vm_tag(('st', 0))
        if PROF == 3:
            stamp()
        P.barrier()
        if PROF == 3:
            stamp()
        P.emit(self.xf_reads(0))
        for q in range(NQ):
            if read_pos[q] < 0:
                P.emit(frag_reads(q))
        P.emit(self.xf_reads(1))
        P.emit(self.xf_reads(2))
        stamp()

        def icost(x):
            if isinstance(x, list):
                if x[0].op.startswith('v_dot'):
                    return 100
                return sum(y.cost for y in x)
            return x.cost

        def kind(x):
            return x[-1].kind if isinstance(x, list) else x.kind
        SLACK = o.get('slack', 5)
        LEAD = o.get('lead', 4)
        ri = 0
        di = 0
        last_ds_gap = -10
        for gi, g in enumerate(gaps):
            if PROF == 1 and gi in sf.values() and gi > 0:
                stamp()
            if g['mi'] == 0:
                p = g['q']
                if PROF in (2, 3) and len(stamps) < 12 and gi >= sf[pfrom] and bars_at.get(p):
                    stamp()
                for s in bars_at.get(p, []):
                    p4 = PROF == 4 and gi >= sf[pfrom] and len(stamps) < 11
                    if s in prebar:
                        prebar[s]()
                    if p4: stamp()
                    if not o.get('nolgkm', 0):
                        P.wait_lds_flagged()
                    if p4: stamp()
                    P.wait_vm_tag(('st', s + 1))
                    if p4: stamp()
                    if not o.get('nobar', 0):
                        P.barrier()
                    if p4: stamp()
            self.check_b(g)
            if not o.get('nomfma', 0):
                P.emit(g['inst'])
            cap = 8
            ds = False
            while ri < len(rq) and rq[ri][3] <= gi:
                urgent = rq[ri][1] <= gi
                if ds and not urgent:
                    break
                P.emit(rq[ri][2]); ri += 1
                cap -= 4; ds = True
            while True:
                el = [x for x in rq2 if x[0] <= gi]
                if not el:
                    break
                x = el[0]
                isds = kind(x[2]) in ('ldsr',) or isinstance(x[2], list)
                urgent = x[1] - 2 * len([y for y in el if y[1] == x[1]]) <= gi
                if urgent or (isds and not ds and cap >= 4) or (not isds and cap >= 4):
                    P.emit(x[2]); rq2.remove(x); cap -= 4
                    if isds:
                        ds = True
                    if not urgent:
                        break
                else:
                    break
            if di < len(dq) and dq[di][0] <= gi and (cap == 8 or dq[di][0] <= gi - 3):
                self.emit_dma(dq[di][1]); di += 1; cap = 0
                if di < len(dq) and o.get('hoist', 1):
                    self.emit_setup(dq[di][1])
            if gi in inl:
                P.emit(inl[gi]); cap -= 8
            progress = True
            while progress:
                progress = False
                for t_ in tasks:
                    st_, en_, lst, idx = t_
                    if gi < st_ or idx >= len(lst):
                        continue
                    force = gi >= en_
                    target = len(lst) if force else len(lst) * (gi - st_ + 1) / (en_ - st_ + 1)
                    x = lst[idx]
                    c = icost(x); k = kind(x)
                    behind = idx < target - SLACK
                    if not force and idx >= target + LEAD:
                        continue
                    if k in ('ldsr', 'ldsw'):
                        fit = (not ds) and cap >= c
                    elif c >= 100:
                        fit = cap == 8 and idx < target
                    else:
                        fit = cap >= c
                    if fit or force or (behind and cap > 0):
                        P.emit(x); cap -= c; t_[3] = idx + 1
                        if k in ('ldsr', 'ldsw'):
                            ds = True
                        progress = True
            if gi in actions:
                actions[gi]()
        assert ri == len(rq) and di == len(dq) and not rq2, (ri, len(rq), di, len(dq), len(rq2))
        for t_ in tasks:
            assert t_[3] == len(t_[2])
        while PROF >= 2 and len(stamps) < 12:
            stamp()
        stamp()
        if not o.get('notask', 0):
            P.emit(self.task_keep(self.ACC0, 3))
        if PROF:
            P.wait_vm(0)
            stamp()
            P.raw("  s_memrealtime s[100:101]")
            P.raw("  s_waitcnt lgkmcnt(0)")
            e('s_add_u32', 's4', 's14', str(64 << 20)); e('s_addc_u32', 's5', 's15', '0')
            srd(P, 8, 's4', 's5', 1 << 20)
            e('s_lshl_b32', 's6', 's2', '2'); e('s_add_u32', 's6', 's6', sr(self.S_W)); e('s_lshl_b32', 's6', 's6', '7')
            e('v_mov_b32', 'v4', '0')
            allst = [46] + stamps + [100, 98]
            for k, r in enumerate(allst):
                e('v_mov_b32', 'v5', sr(r))
                e('buffer_store_dword', 'v5', 'v4', 's[8:11]', 's6', mods=f'offen offset:{4 * k}')
        tl_end(P, self.o, 1)
        hx_slot(P, self.o, 2, 'max', False)
        P.label("K1_end")
        P.raw("  s_endpgm")


def gen_k1(opts):
    k = K1(opts)
    name = "k1_main_kernel"
    kernel_begin(k.P, name)
    k.emit_all()
    print("K1 stats", k.P.stats, file=sys.stderr)
    return k.P.text(), descriptor(name, 512, 256, 102), (name, 256, 256, LDS_TOTAL)


def main():
    out = sys.argv[1]
    opts = {}
    for a in sys.argv[2:]:
        kk, v = a.split('='); opts[kk] = int(v)
    parts = [gen_k0(opts), gen_k1(opts), gen_k2(opts)]
    txt = header_comments([p[2] for p in parts])
    for p in parts:
        txt += p[0]
    txt += '.section .rodata,"a"\n'
    for p in parts:
        txt += p[1]
    open(out, 'w').write(txt)


if __name__ == "__main__":
    main()
```

```python
import sys, math
from asmlib import *

KN = "parallel_sum__sliding_local_dilated__swiglu_ffn__prompt"

XF_OFF = 0
XF_SIZE = 128 * 18 * 1024
PQ_OFF = 5 << 19
PQ_SIZE = 16 * 147456
P_OFF = 6 << 20
P_TILE = 144 * 1024
FP_OFF = 0
HP_OFF = 8 * 16 * 131072
MB_OFF = HP_OFF + 256 * 16384
FL_OFF = MB_OFF + 256 * 65536
P_SIZE = FL_OFF + 256 * 128

SLOT = 24576
RING = 0
HB = 3 * SLOT
SB = HB + 16384
SPITCH = 272
XB = HB + 4 * 16384
XPITCH = 144
LDS_TOTAL = XB + 128 * XPITCH

LOG2E = 1.4426950408889634


def f2h(x):
    import struct
    return "0x%08x" % struct.unpack('<I', struct.pack('<f', x))[0]


def header_comments(launches):
    L = []
    L.append(";   0 A_x, 8 A_wqkv, 16 A_wo, 24 B_x, 32 B_w_gate, 40 B_w_up, 48 B_w_down, 56 d_out, 64 d_debug, 72 d_ws")
    L.append("; Generated by a hand-written python generator (work/gen.py).")
    for (k, g, b, lds) in launches:
        L.append(f"; @launch kernel={k} grid=({g},1,1) block=({b},1,1) lds={lds}")
    L.append('.amdgcn_target "amdgcn-amd-amdhsa--gfx950"')
    L.append(".text")
    return "\n".join(L) + "\n"


def kernel_begin(P, name):
    P.raw(f".globl {name}")
    P.raw(".p2align 8")
    P.raw(f".type {name},@function")
    P.raw(f"{name}:")


def descriptor(name, vgpr, accum, sgpr=102):
    return "\n".join([
        ".p2align 6", f".amdhsa_kernel {name}",
        f"  .amdhsa_next_free_vgpr {vgpr}", f"  .amdhsa_next_free_sgpr {sgpr}", f"  .amdhsa_accum_offset {accum}",
        "  .amdhsa_group_segment_fixed_size 0", "  .amdhsa_kernarg_size 80", "  .amdhsa_user_sgpr_count 2",
        "  .amdhsa_user_sgpr_kernarg_segment_ptr 1", "  .amdhsa_system_sgpr_workgroup_id_x 1", ".end_amdhsa_kernel"]) + "\n"


def tl_start(P, opts):
    if opts.get('tl', 0):
        P.raw("  s_memrealtime s[96:97]")


def tl_end(P, opts, kidx, wsreg_lo=None):
    if not opts.get('tl', 0):
        return
    P.raw("  s_waitcnt vmcnt(0)")
    P.raw("  s_memrealtime s[98:99]")
    P.raw("  s_load_dwordx2 s[94:95], s[0:1], 72")
    P.raw("  s_waitcnt lgkmcnt(0)")
    P.raw(f"  s_add_u32 s94, s94, {(80 << 20) + kidx * 65536}")
    P.raw("  s_addc_u32 s95, s95, 0")
    P.raw("  s_mov_b32 s88, s94")
    P.raw("  s_and_b32 s89, s95, 0xffff")
    P.raw("  s_mov_b32 s90, 65536")
    P.raw("  s_mov_b32 s91, 0x20000")
    P.raw("  s_lshl_b32 s92, s2, 3")
    P.raw("  v_mov_b32 v2, s96")
    P.raw("  v_mov_b32 v3, s98")
    P.raw("  v_mov_b32 v4, 0")
    P.raw("  v_cmp_eq_u32 vcc, 0, v0")
    P.raw("  s_and_saveexec_b64 s[86:87], vcc")
    P.raw("  buffer_store_dwordx2 v[2:3], v4, s[88:91], s92 offen")
    P.raw("  s_mov_b64 exec, s[86:87]")


def hx_slot(P, opts, slot, op, only_wg0, final=False):
    if not opts.get('hx', 0):
        return
    lab = f"HX_{slot}_{op}_{len(P.lines)}"
    P.raw("  s_waitcnt vmcnt(0) lgkmcnt(0)")
    P.raw("  s_memrealtime s[86:87]")
    P.raw("  s_load_dwordx2 s[84:85], s[0:1], 72")
    P.raw("  s_waitcnt lgkmcnt(0)")
    P.raw(f"  s_add_u32 s84, s84, {96 << 20}")
    P.raw("  s_addc_u32 s85, s85, 0")
    P.raw("  s_mov_b32 s80, s84"); P.raw("  s_and_b32 s81, s85, 0xffff"); P.raw("  s_mov_b32 s82, 4096"); P.raw("  s_mov_b32 s83, 0x20000")
    if only_wg0:
        P.raw("  s_cmp_lg_u32 s2, 0"); P.raw(f"  s_cbranch_scc1 {lab}")
    else:
        P.raw("  s_and_b32 s77, s2, 7"); P.raw("  s_cmp_lg_u32 s77, 5"); P.raw(f"  s_cbranch_scc1 {lab}")
    P.raw("  v_mov_b32 v250, s86"); P.raw(f"  v_mov_b32 v251, {slot * 4}")
    P.raw("  v_cmp_eq_u32 vcc, 0, v0"); P.raw("  s_and_saveexec_b64 s[78:79], vcc")
    if op == 'st':
        P.raw("  buffer_store_dword v250, v251, s[80:83], 0 offen sc1")
    else:
        P.raw("  buffer_atomic_umax v250, v251, s[80:83], 0 offen")
    P.raw("  s_waitcnt vmcnt(0)")
    P.raw("  s_mov_b64 exec, s[78:79]")
    P.raw(f"{lab}:")


def srd(P, d, lo, hi, size):
    P.e('s_mov_b32', sr(d), lo)
    P.e('s_and_b32', sr(d + 1), hi, '0xffff')
    P.e('s_mov_b32', sr(d + 2), str(size))
    P.e('s_mov_b32', sr(d + 3), '0x20000')


def gen_k0(opts):
    P = Prog()
    name = "k0_ln_kernel"
    kernel_begin(P, name)
    NPK = 288
    NCP = 8 if opts.get('codepf', 1) else 0
    NTW = 96 if opts.get('k0touch', 0) else 0
    P.e('s_cmp_ge_u32', 's2', str(128 + NPK + NCP + NTW))
    P.raw("  s_cbranch_scc1 K0_end")
    tl_start(P, opts)
    hx_slot(P, opts, 0, 'st', True)
    if opts.get('hx', 0):
        P.raw("  s_cmp_lg_u32 s2, 0"); P.raw("  s_cbranch_scc1 HX_z")
        P.raw("  v_mov_b32 v250, 0"); P.raw("  v_mov_b32 v251, 8"); P.raw("  buffer_store_dword v250, v251, s[80:83], 0 offen sc1")
        P.raw("  v_mov_b32 v251, 16"); P.raw("  buffer_store_dword v250, v251, s[80:83], 0 offen sc1"); P.raw("  v_mov_b32 v251, 20"); P.raw("  buffer_store_dword v250, v251, s[80:83], 0 offen sc1")
        P.raw("HX_z:")
    if NTW:
        P.e('s_cmp_ge_u32', 's2', str(128 + NPK + NCP))
        P.raw("  s_cbranch_scc1 K0_touch")
    if NCP:
        P.e('s_cmp_ge_u32', 's2', str(128 + NPK))
        P.raw("  s_cbranch_scc1 K0_code")
    P.e('s_cmp_ge_u32', 's2', '128')
    P.raw("  s_cbranch_scc1 K0_pack")
    P.e('s_load_dwordx2', 's[4:5]', 's[0:1]', '0')
    P.e('s_load_dwordx2', 's[6:7]', 's[0:1]', '72')
    P.e('v_and_b32', 'v1', '63', 'v0')
    P.e('v_lshrrev_b32', 'v2', '6', 'v0')
    P.e('v_and_b32', 'v3', '15', 'v1')
    P.e('v_lshrrev_b32', 'v4', '4', 'v1')
    P.e('v_readfirstlane_b32', 's20', 'v2')
    P.raw("  s_waitcnt lgkmcnt(0)")
    srd(P, 8, 's4', 's5', 2048 * 1152)
    srd(P, 12, 's6', 's7', XF_OFF + XF_SIZE)
    P.e('s_lshl_b32', 's21', 's2', '4')
    P.e('v_add_u32', 'v5', 's21', 'v3')
    P.e('s_movk_i32', 's22', '1152')
    P.e('v_mul_lo_u32', 'v5', 'v5', 's22')
    P.e('v_lshlrev_b32', 'v6', '4', 'v4')
    P.e('v_add_u32', 'v5', 'v5', 'v6')
    P.e('s_mul_i32', 's23', 's20', '576')
    X = 16
    for t in range(9):
        P.e('buffer_load_dwordx4', vr(X + 4 * t, 4), 'v5', 's[8:11]', 's23', mods=f'offen offset:{64 * t}')
    P.e('s_add_u32', 's28', 's6', str(P_OFF + FL_OFF)); P.e('s_addc_u32', 's29', 's7', '0')
    srd(P, 32, 's28', 's29', 256 * 128)
    P.e('v_mov_b32', 'v60', '0'); P.e('v_mov_b32', 'v61', '0'); P.e('v_mov_b32', 'v62', '0'); P.e('v_mov_b32', 'v63', '0')
    P.e('v_lshlrev_b32', 'v59', '4', 'v0')
    P.e('s_lshl_b32', 's30', 's2', '8')
    P.e('v_cmp_gt_u32', 'vcc', '16', 'v0')
    P.e('s_and_saveexec_b64', 's[36:37]', 'vcc')
    P.raw("  s_cbranch_execz K0_nz")
    P.raw("  buffer_store_dwordx4 v[60:63], v59, s[32:35], s30 offen")
    P.label("K0_nz")
    P.e('s_mov_b64', 'exec', 's[36:37]')
    P.e('v_mov_b32', 'v7', '0x3f803f80')
    P.e('v_mov_b32', 'v8', '0'); P.e('v_mov_b32', 'v9', '0'); P.e('v_mov_b32', 'v10', '0'); P.e('v_mov_b32', 'v11', '0')
    for j in range(36):
        P.e('v_dot2c_f32_bf16', 'v8' if j % 2 == 0 else 'v10', vr(X + j), 'v7')
        P.e('v_dot2c_f32_bf16', 'v9' if j % 2 == 0 else 'v11', vr(X + j), vr(X + j))
    P.e('v_add_f32', 'v8', 'v8', 'v10')
    P.e('v_add_f32', 'v9', 'v9', 'v11')
    for sw in ('v_permlane32_swap_b32', 'v_permlane16_swap_b32'):
        P.e('v_mov_b32', 'v10', 'v8'); P.e('v_mov_b32', 'v11', 'v9')
        P.e('v_mov_b32', 'v12', 'v8'); P.e('v_mov_b32', 'v13', 'v9')
        P.e(sw, 'v10', 'v12'); P.e(sw, 'v11', 'v13')
        P.e('v_add_f32', 'v8', 'v10', 'v12'); P.e('v_add_f32', 'v9', 'v11', 'v13')
    P.e('v_lshlrev_b32', 'v10', '3', 'v0')
    P.e('ds_write_b64', 'v10', 'v[8:9]')
    P.e('v_xor_b32', 'v11', '512', 'v10')
    P.wait_lgkm(0)
    P.barrier()
    P.e('ds_read_b64', 'v[12:13]', 'v11')
    P.e('v_add_f32', 'v8', 'v8', 'v12')
    P.e('v_add_f32', 'v9', 'v9', 'v13')
    P.e('v_mul_f32', 'v8', f2h(1.0 / 576), 'v8')
    P.e('v_mul_f32', 'v9', f2h(1.0 / 576), 'v9')
    P.e('v_fma_f32', 'v9', '-v8', 'v8', 'v9')
    P.e('v_max_f32', 'v9', '0', 'v9')
    P.e('v_add_f32', 'v9', f2h(1e-5), 'v9')
    P.e('v_rsq_f32', 'v9', 'v9')
    if opts.get('presc', 0):
        P.e('v_mul_f32', 'v9', f2h(LOG2E), 'v9')
    P.e('v_mul_f32', 'v8', 'v8', 'v9')
    P.e('v_sub_f32', 'v8', '0', 'v8')
    P.e('s_mov_b32', 's24', '0xffff0000')
    for j in range(36):
        a, b = 10 + 2 * (j % 2), 11 + 2 * (j % 2)
        P.e('v_lshlrev_b32', vr(a), '16', vr(X + j))
        P.e('v_and_b32', vr(b), 's24', vr(X + j))
        P.e('v_fma_f32', vr(a), vr(a), 'v9', 'v8')
        P.e('v_fma_f32', vr(b), vr(b), 'v9', 'v8')
        P.e('v_cvt_pk_bf16_f32', vr(X + j), vr(a), vr(b))
    P.e('v_lshlrev_b32', 'v6', '4', 'v1')
    P.e('s_mul_i32', 's25', 's2', str(18 * 1024))
    P.e('s_mul_i32', 's26', 's20', str(9 * 1024))
    P.e('s_add_u32', 's25', 's25', 's26')
    for t in range(9):
        if t % 4 == 0 and t:
            P.e('s_add_u32', 's25', 's25', '4096')
        P.e('buffer_store_dwordx4', vr(X + 4 * t, 4), 'v6', 's[12:15]', 's25', mods=f'offen offset:{1024 * (t % 4)}')
    tl_end(P, opts, 0)
    hx_slot(P, opts, 5, 'max', False)
    P.raw("  s_endpgm")
    P.label("K0_pack")
    P.vm_q = []; P.lds_q = []
    e = P.e
    e('s_load_dwordx2', 's[4:5]', 's[0:1]', '8')
    e('s_load_dwordx2', 's[6:7]', 's[0:1]', '72')
    e('v_and_b32', 'v1', '63', 'v0'); e('v_lshrrev_b32', 'v2', '6', 'v0')
    e('v_readfirstlane_b32', 's20', 'v2')
    e('s_sub_u32', 's21', 's2', '128'); e('s_lshl_b32', 's21', 's21', '1'); e('s_add_u32', 's21', 's21', 's20')
    P.raw("  s_waitcnt lgkmcnt(0)")
    srd(P, 12, 's4', 's5', 576 * 3456)
    e('s_add_u32', 's6', 's6', str(PQ_OFF)); e('s_addc_u32', 's7', 's7', '0')
    srd(P, 16, 's6', 's7', PQ_SIZE)
    e('v_and_b32', 'v3', '15', 'v1')
    e('v_lshrrev_b32', 'v4', '4', 'v1')
    e('v_lshlrev_b32', 'v9', '4', 'v1')
    for k in range(4):
        e('s_lshl_b32', 's22', 's21', '2'); e('s_add_u32', 's22', 's22', str(k))
        e('s_mul_hi_u32', 's23', 's22', str((2 ** 32 + 143) // 144))
        e('s_mul_i32', 's24', 's23', '144'); e('s_sub_u32', 's24', 's22', 's24')
        e('s_mul_hi_u32', 's25', 's24', str((2 ** 32 + 5) // 6))
        e('s_mul_i32', 's26', 's25', '6'); e('s_sub_u32', 's26', 's24', 's26')
        e('s_lshr_b32', 's27', 's25', '2')
        e('s_and_b32', 's28', 's25', '3')
        e('s_mul_i32', 's29', 's27', '96'); e('s_lshl_b32', 's30', 's26', '4'); e('s_add_u32', 's29', 's29', 's30')
        e('s_lshl_b32', 's30', 's28', '2'); e('s_add_u32', 's29', 's29', 's30')
        e('v_add_u32', 'v5', 's29', 'v4')
        e('s_lshr_b32', 's30', 's28', '1'); e('s_lshl_b32', 's30', 's30', '2')
        e('v_or_b32', 'v6', 's30', 'v4'); e('v_lshrrev_b32', 'v7', '1', 'v3'); e('v_xor_b32', 'v6', 'v6', 'v7')
        e('v_lshlrev_b32', 'v6', '1', 'v6'); e('v_and_b32', 'v7', '1', 'v3'); e('v_or_b32', 'v6', 'v6', 'v7')
        e('v_mul_u32_u24', 'v7', '13', 'v6'); e('v_lshrrev_b32', 'v7', '6', 'v7'); e('v_min_u32', 'v7', '2', 'v7')
        e('v_mul_u32_u24', 'v8', '5', 'v7'); e('v_sub_u32', 'v8', 'v6', 'v8'); e('v_lshlrev_b32', 'v8', '4', 'v8')
        e('v_add_u32', 'v7', '1', 'v7'); e('v_cmp_eq_u32', 'vcc', '3', 'v7'); e('v_mov_b32', 'v10', '0')
        e('v_cndmask_b32', 'v7', 'v7', 'v10', 'vcc')
        e('v_mul_u32_u24', 'v7', '1152', 'v7'); e('v_add_u32', 'v8', 'v8', 'v7')
        e('s_mul_i32', 's30', 's23', '72'); e('v_add_u32', 'v8', 's30', 'v8')
        e('v_mul_u32_u24', 'v5', '3456', 'v5'); e('v_add_u32', 'v5', 'v5', 'v8')
        e('buffer_load_dwordx4', vr(16 + 4 * k, 4), 'v5', 's[12:15]', '0', mods='offen')
    e('s_lshl_b32', 's22', 's21', '12')
    for k in range(4):
        e('buffer_store_dwordx4', vr(16 + 4 * k, 4), 'v9', 's[16:19]', 's22', mods=f'offen offset:{1024 * k}')
    if NCP:
        P.raw("  s_endpgm")
        P.label("K0_code")
        P.raw("  s_getpc_b64 s[4:5]")
        P.raw("K0_pc:")
        P.raw("  s_add_u32 s4, s4, k1_main_kernel-K0_pc")
        P.raw("  s_addc_u32 s5, s5, 0")
        P.raw("  s_mov_b32 s8, s4")
        P.raw("  s_and_b32 s9, s5, 0xffff")
        P.raw("  s_mov_b32 s10, K2_end-k1_main_kernel")
        P.raw("  s_mov_b32 s11, 0x20000")
        P.raw("  v_lshlrev_b32 v1, 4, v0")
        P.raw("  s_mov_b32 s12, 0")
        P.raw("K0_cl:")
        P.raw("  buffer_load_dwordx4 v[4:7], v1, s[8:11], s12 offen")
        P.raw("  s_add_u32 s12, s12, 2048")
        P.raw("  s_cmp_lt_u32 s12, s10")
        P.raw("  s_cbranch_scc1 K0_cl")
    if NTW:
        P.raw("  s_endpgm")
        P.label("K0_touch")
        P.vm_q = []; P.lds_q = []
        e('s_load_dwordx2', 's[4:5]', 's[0:1]', '48')
        e('s_load_dwordx2', 's[6:7]', 's[0:1]', '16')
        e('s_sub_u32', 's21', 's2', str(128 + NPK + NCP))
        e('v_lshlrev_b32', 'v1', '7', 'v0')
        P.raw("  s_waitcnt lgkmcnt(0)")
        e('s_cmp_ge_u32', 's21', '81')
        e('s_cselect_b32', 's8', 's6', 's4'); e('s_cselect_b32', 's9', 's7', 's5')
        e('s_mov_b32', 's12', str(576 * 1152)); e('s_mov_b32', 's13', str(4608 * 1152))
        e('s_cselect_b32', 's10', 's12', 's13')
        e('s_cselect_b32', 's22', '81', '0')
        e('s_and_b32', 's9', 's9', '0xffff'); e('s_mov_b32', 's11', '0x20000')
        e('s_sub_u32', 's21', 's21', 's22'); e('s_lshl_b32', 's21', 's21', '16')
        for k in range(4):
            e('buffer_load_dword', 'v4', 'v1', 's[8:11]', 's21', mods='offen')
            e('s_add_u32', 's21', 's21', '16384')
    P.label("K0_end")
    P.raw("  s_endpgm")
    return P.text(), descriptor(name, 256 if opts.get('hx', 0) else 64, 256 if opts.get('hx', 0) else 64, 102), (name, 128 + NPK + NCP + NTW, 128, 1024)


def gen_k2(opts):
    P = Prog()
    name = "k2_reduce_kernel"
    kernel_begin(P, name)
    K2W = opts.get('k2w', 4)
    NWG = 2304 // K2W
    P.e('s_cmp_ge_u32', 's2', str(NWG))
    P.raw("  s_cbranch_scc1 K2_end")
    tl_start(P, opts)
    hx_slot(P, opts, 3, 'st', True)
    P.e('s_load_dwordx2', 's[4:5]', 's[0:1]', '0')
    P.e('s_load_dwordx2', 's[6:7]', 's[0:1]', '72')
    P.e('s_load_dwordx2', 's[16:17]', 's[0:1]', '56')
    P.e('v_and_b32', 'v1', '63', 'v0')
    P.e('v_lshrrev_b32', 'v2', '6', 'v0')
    P.e('v_and_b32', 'v3', '15', 'v1')
    P.e('v_lshrrev_b32', 'v4', '4', 'v1')
    P.e('v_readfirstlane_b32', 's20', 'v2')
    P.e('v_lshlrev_b32', 'v5', '4', 'v1')
    P.raw("  s_waitcnt lgkmcnt(0)")
    srd(P, 8, 's4', 's5', 2048 * 1152)
    P.e('s_add_u32', 's6', 's6', str(P_OFF)); P.e('s_addc_u32', 's7', 's7', '0')
    srd(P, 12, 's6', 's7', P_SIZE)
    srd(P, 24, 's16', 's17', 2048 * 1152)
    P.e('s_mul_i32', 's21', 's2', str(K2W)); P.e('s_add_u32', 's21', 's21', 's20')
    P.e('s_mul_hi_u32', 's22', 's21', str((2 ** 32 + 143) // 144))
    P.e('s_mul_i32', 's23', 's22', '144'); P.e('s_sub_u32', 's23', 's21', 's23')
    D = 16
    lf = ['', ' nt', ' sc1'][opts.get('ldflag', 0)]
    P.e('s_cmp_ge_u32', 's23', '128')
    P.raw("  s_cbranch_scc1 K2_half")
    for half in (0, 1):
        if half:
            P.label("K2_half")
            P.vm_q = []; P.lds_q = []
        n = 16 if half else 8
        if not half:
            P.e('s_lshl_b32', 's28', 's22', '17'); P.e('s_lshl_b32', 's29', 's23', '10'); P.e('s_add_u32', 's28', 's28', 's29')
            stride = 16 * 131072
        else:
            P.e('s_lshl_b32', 's28', 's22', '14'); P.e('s_sub_u32', 's23', 's23', '128'); P.e('s_lshl_b32', 's29', 's23', '10')
            P.e('s_add_u32', 's28', 's28', 's29'); P.e('s_add_u32', 's28', 's28', str(HP_OFF))
            stride = 16 * 16384
        for s in range(n):
            P.e('buffer_load_dwordx4', vr(D + 4 * s, 4), 'v5', 's[12:15]', 's28', mods='offen' + lf)
            if s < n - 1:
                P.e('s_add_u32', 's28', 's28', str(stride))
        P.e('s_and_b32', 's29', 's23', '3')
        if not half:
            P.e('s_lshr_b32', 's31', 's23', '3'); P.e('s_and_b32', 's31', 's31', '3')
            P.e('s_lshr_b32', 's34', 's31', '1')
            P.e('s_lshr_b32', 's35', 's23', '5'); P.e('s_lshl_b32', 's35', 's35', '7')
            P.e('s_lshl_b32', 's36', 's34', '6'); P.e('s_add_u32', 's35', 's35', 's36')
            P.e('s_lshr_b32', 's36', 's23', '2'); P.e('s_and_b32', 's36', 's36', '1'); P.e('s_lshl_b32', 's36', 's36', '5')
            P.e('s_add_u32', 's35', 's35', 's36')
        else:
            P.e('s_lshr_b32', 's31', 's23', '2')
            P.e('s_lshr_b32', 's34', 's31', '1')
            P.e('s_lshl_b32', 's35', 's34', '5'); P.e('s_add_u32', 's35', 's35', '512')
        P.e('s_and_b32', 's33', 's31', '1')
        P.e('s_lshl_b32', 's37', 's22', '7'); P.e('s_lshl_b32', 's38', 's33', '6'); P.e('s_add_u32', 's37', 's37', 's38')
        P.e('s_lshl_b32', 's38', 's29', '4'); P.e('s_add_u32', 's37', 's37', 's38')
        P.e('v_add_u32', 'v6', 's37', 'v3')
        P.e('v_mul_u32_u24', 'v6', '1152', 'v6')
        P.e('s_lshl_b32', 's40', 's35', '1')
        P.e('v_add_u32', 'v6', 's40', 'v6')
        P.e('v_lshlrev_b32', 'v7', '3', 'v4')
        P.e('v_add_u32', 'v7', 'v6', 'v7')
        P.e('buffer_load_dwordx2', 'v[8:9]', 'v7', 's[8:11]', '0', mods='offen')
        P.e('buffer_load_dwordx2', 'v[10:11]', 'v7', 's[8:11]', '0', mods='offen offset:32')
        P.e('v_and_b32', 'v12', '1', 'v4'); P.e('v_lshlrev_b32', 'v12', '5', 'v12')
        P.e('v_lshrrev_b32', 'v13', '1', 'v4'); P.e('v_lshlrev_b32', 'v13', '4', 'v13')
        P.e('v_add3_u32', 'v6', 'v6', 'v12', 'v13')
        P.e('s_mov_b32', 's41', '0xffff0000')
        ACC = 80
        srcs = [D + 4 * s for s in range(n)]
        for si, base in enumerate(srcs):
            for j in range(4):
                d = vr(base + j)
                if si == 0:
                    P.e('v_lshlrev_b32', vr(ACC + 2 * j), '16', d)
                    P.e('v_and_b32', vr(ACC + 2 * j + 1), 's41', d)
                else:
                    t0, t1 = 88 + 2 * (j % 2), 89 + 2 * (j % 2)
                    P.e('v_lshlrev_b32', vr(t0), '16', d)
                    P.e('v_and_b32', vr(t1), 's41', d)
                    P.e('v_add_f32', vr(ACC + 2 * j), vr(ACC + 2 * j), vr(t0))
                    P.e('v_add_f32', vr(ACC + 2 * j + 1), vr(ACC + 2 * j + 1), vr(t1))
        P.e('s_mov_b32', 's42', f2h(1.0 / (LOG2E * LOG2E) if opts.get('presc', 0) else 1.0))
        for j in range(4):
            d = vr(8 + j)
            t0, t1 = 88 + 2 * (j % 2), 89 + 2 * (j % 2)
            P.e('v_lshlrev_b32', vr(t0), '16', d)
            P.e('v_and_b32', vr(t1), 's41', d)
            P.e('v_fma_f32', vr(ACC + 2 * j), vr(ACC + 2 * j), 's42', vr(t0))
            P.e('v_fma_f32', vr(ACC + 2 * j + 1), vr(ACC + 2 * j + 1), 's42', vr(t1))
        for j in range(4):
            P.e('v_cvt_pk_bf16_f32', vr(92 + j), vr(ACC + 2 * j), vr(ACC + 2 * j + 1))
        P.e('v_permlane16_swap_b32', 'v92', 'v94')
        P.e('v_permlane16_swap_b32', 'v93', 'v95')
        P.e('buffer_store_dwordx4', 'v[92:95]', 'v6', 's[24:27]', '0', mods='offen')
        tl_end(P, opts, 2)
        if opts.get('hx', 0):
            P.raw("  s_waitcnt vmcnt(0) lgkmcnt(0)")
            P.raw("  s_memrealtime s[86:87]")
            P.raw("  s_load_dwordx2 s[84:85], s[0:1], 64")
            P.raw("  s_load_dwordx2 s[76:77], s[0:1], 72")
            P.raw("  s_waitcnt lgkmcnt(0)")
            pass
            P.raw("  s_mov_b32 s80, s84"); P.raw("  s_and_b32 s81, s85, 0xffff"); P.raw("  s_mov_b32 s82, 256"); P.raw("  s_mov_b32 s83, 0x20000")
            P.raw(f"  s_and_b32 s70, s2, 15"); P.raw("  s_cmp_lg_u32 s70, 5"); P.raw(f"  s_cbranch_scc1 HXK2_{half}")
            P.raw("  v_mov_b32 v90, s86"); P.raw("  v_mov_b32 v91, 0")
            P.raw("  v_cmp_eq_u32 vcc, 0, v0"); P.raw("  s_and_saveexec_b64 s[78:79], vcc")
            P.raw("  buffer_atomic_umax v90, v91, s[80:83], 0 offen")
            P.raw("  s_mov_b64 exec, s[78:79]")
            P.raw(f"  s_add_u32 s76, s76, {96 << 20}"); P.raw("  s_addc_u32 s77, s77, 0")
            P.raw("  s_mov_b32 s72, s76"); P.raw("  s_and_b32 s73, s77, 0xffff"); P.raw("  s_mov_b32 s74, 4096"); P.raw("  s_mov_b32 s75, 0x20000")
            P.raw("  v_lshlrev_b32 v91, 2, v1")
            P.raw("  v_cmp_gt_u32 vcc, 6, v1"); P.raw("  s_and_saveexec_b64 s[78:79], vcc")
            P.raw("  buffer_load_dword v90, v91, s[72:75], 0 offen sc1"); P.raw("  s_waitcnt vmcnt(0)")
            P.raw("  buffer_store_dword v90, v91, s[80:83], 0 offen offset:4")
            P.raw("  s_waitcnt vmcnt(0)")
            P.raw("  s_mov_b64 exec, s[78:79]")
            P.raw(f"HXK2_{half}:")
        if not half:
            P.raw("  s_endpgm")
    P.label("K2_end")
    P.raw("  s_endpgm")
    return P.text(), descriptor(name, 256 if opts.get('hx', 0) else 96, 256 if opts.get('hx', 0) else 96, 102), (name, NWG, 64 * K2W, 0)


class K1:
    V_LANE, V_C16, V_G, V_T0, V_T1, V_T2, V_T3, V_T4 = 1, 2, 3, 4, 5, 6, 7, 8
    ACC0, ACC1 = 16, 80
    FR = 144
    NFR = 6
    XV = 168
    TQ = 200
    TG = 204
    TH = 208
    TP = 210
    TPH = 214
    DQ = 216
    DG = 219
    DH = 222
    DP = 225
    DPH = 228
    HW = 231
    HWX = 233
    HR = 234
    XR = 236
    SW = 237
    AB = 241
    OW = 242
    PV = 243
    MG = 244
    XA = 245
    TD = 168
    HAL = 248
    HALX = 8

    S_W, S_S, S_I = 20, 21, 22
    S_RG2, S_CH = 23, 24
    S_LDSW = 25
    S_XF = 26
    S_FB = 88
    S_YC = 28
    S_FPB, S_MBO, S_MBP, S_HPB, S_FSH, S_FOFF = 17, 18, 19, 44, 26, 27
    SRD_DBG = 48
    S_TCH = 33
    INC = [176, 180, 184, 188, 192, 196, 248, 252]
    INC2 = [200, 204, 216, 220, 232, 236, 8, 12]
    V_POLL = 4
    S_T0, S_T1, S_T2, S_T3 = 34, 35, 36, 37
    S_SOFF = 38
    S_NLOG2E = 39
    S_AC = 40
    S_PERM0, S_PERM1 = 41, 42
    S_NEG = 43
    S_QC = 44
    S_PO = 45
    S_PO2 = 40
    SRD_XF, SRD_QKV, SRD_GU, SRD_WD, SRD_WO, SRD_P = 48, 52, 56, 60, 64, 68
    S_FB2 = 4
    S_FBR = 9
    S_WOR = 16
    S_XL, S_XH, S_SOFF2 = 17, 18, 19

    def __init__(self, opts):
        self.P = Prog()
        self.o = opts

    def xreg(self, t, mb):
        j = 4 * t + mb
        return ar(4 * j, 4) if j < 64 else vr(self.XV + 4 * (j - 64), 4)

    def hreg(self, k, mb):
        return ar(16 * k + 4 * mb, 4)

    def halo_x(self, t):
        return vr(self.ACC1 + 4 * t, 4) if t < 16 else vr(self.HALX + 4 * (t - 16), 4)

    def prologue(self):
        P = self.P
        e = P.e
        e('s_cmp_ge_u32', 's2', '256')
        P.raw("  s_cbranch_scc1 K1_end")
        tl_start(P, self.o)
        hx_slot(P, self.o, 1, 'st', True)
        if self.o.get('prof', 0):
            P.raw("  s_memtime s[46:47]")
            P.raw("  s_memrealtime s[98:99]")
        e('s_load_dwordx2', 's[14:15]', 's[0:1]', '72')
        e('s_load_dwordx2', 's[6:7]', 's[0:1]', '16')
        e('s_load_dwordx4', 's[8:11]', 's[0:1]', '32')
        e('s_load_dwordx2', 's[12:13]', 's[0:1]', '48')
        L, C16, G = vr(self.V_LANE), vr(self.V_C16), vr(self.V_G)
        e('v_and_b32', L, '63', 'v0')
        e('v_lshrrev_b32', 'v4', '6', 'v0')
        e('v_and_b32', C16, '15', L)
        e('v_lshrrev_b32', G, '4', L)
        e('v_readfirstlane_b32', sr(self.S_W), 'v4')
        e('v_lshlrev_b32', vr(self.PV), '4', L)
        e('s_and_b32', sr(self.S_S), 's2', '3'); e('s_lshl_b32', sr(self.S_S), sr(self.S_S), '2')
        e('s_bfe_u32', sr(self.S_T0), 's2', '0x20003'); e('s_add_u32', sr(self.S_S), sr(self.S_S), sr(self.S_T0))
        e('s_bfe_u32', sr(self.S_I), 's2', '0x10002'); e('s_lshl_b32', sr(self.S_I), sr(self.S_I), '3')
        e('s_lshr_b32', sr(self.S_T0), 's2', '5'); e('s_add_u32', sr(self.S_I), sr(self.S_I), sr(self.S_T0))
        e('s_and_b32', sr(self.S_RG2), sr(self.S_W), '1'); e('s_lshr_b32', sr(self.S_CH), sr(self.S_W), '1')
        e('s_mul_i32', sr(self.S_LDSW), sr(self.S_W), '6144')
        e('s_lshl_b32', sr(self.S_T0), sr(self.S_I), '3'); e('s_lshl_b32', sr(self.S_T1), sr(self.S_W), '1')
        e('s_add_u32', sr(self.S_T0), sr(self.S_T0), sr(self.S_T1))
        e('s_mul_i32', sr(self.S_XF), sr(self.S_T0), '18432')
        e('s_lshr_b32', sr(self.S_T0), sr(self.S_W), '1'); e('s_mul_i32', sr(self.S_XL), sr(self.S_T0), '36864')
        e('s_and_b32', sr(self.S_T0), sr(self.S_W), '1'); e('s_mul_i32', sr(self.S_T0), sr(self.S_T0), '6144')
        e('s_add_u32', sr(self.S_XL), sr(self.S_XL), sr(self.S_T0))
        e('s_min_u32', sr(self.S_T1), sr(self.S_W), '2'); e('s_lshl_b32', sr(self.S_XH), sr(self.S_T1), '10')
        e('s_lshl_b32', sr(self.S_T0), sr(self.S_I), '3'); e('s_sub_u32', sr(self.S_T0), sr(self.S_T0), '1')
        e('s_mul_i32', sr(self.S_T0), sr(self.S_T0), '18432'); e('s_add_u32', sr(self.S_T0), sr(self.S_T0), sr(self.S_XH))
        e('s_cmp_eq_u32', sr(self.S_I), '0'); e('s_cselect_b32', sr(self.S_XF + 1), '0x7f000000', sr(self.S_T0))
        e('s_mul_i32', sr(self.S_T2), sr(self.S_S), '147456'); e('s_add_u32', sr(self.S_T2), sr(self.S_T2), str(PQ_OFF))
        P.raw("  s_waitcnt lgkmcnt(0)")
        e('s_add_u32', sr(self.S_T0), 's14', str(XF_OFF)); e('s_addc_u32', sr(self.S_T1), 's15', '0')
        srd(P, self.SRD_XF, sr(self.S_T0), sr(self.S_T1), XF_SIZE)
        e('s_add_u32', sr(self.S_T0), 's14', sr(self.S_T2)); e('s_addc_u32', sr(self.S_T1), 's15', '0')
        srd(P, self.SRD_QKV, sr(self.S_T0), sr(self.S_T1), 147456)

    def scalars_late(self, e, srd_):
        srd_(self.SRD_WO, 's6', 's7', 576 * 1152)
        e('s_cmp_ge_u32', sr(self.S_W), '2')
        e('s_cselect_b32', sr(self.S_T0), 's10', 's8'); e('s_cselect_b32', sr(self.S_T1), 's11', 's9')
        srd_(self.SRD_GU, sr(self.S_T0), sr(self.S_T1), 576 * 9216)
        srd_(self.SRD_WD, 's12', 's13', 4608 * 1152)
        e('s_add_u32', sr(self.S_T0), 's14', str(P_OFF)); e('s_addc_u32', sr(self.S_T1), 's15', '0')
        srd_(self.SRD_P, sr(self.S_T0), sr(self.S_T1), P_SIZE)
        e('s_mul_i32', sr(self.S_T0), sr(self.S_S), '288')
        e('s_and_b32', sr(self.S_T1), sr(self.S_S), '1')
        e('s_lshl_b32', sr(self.S_T2), sr(self.S_T1), '5'); e('s_add_u32', sr(self.S_T2), sr(self.S_T2), sr(self.S_T0))
        for j in range(4):
            e('s_add_u32', sr(self.S_T3), sr(self.S_I), str(j)); e('s_and_b32', sr(self.S_T3), sr(self.S_T3), '3')
            e('s_lshl_b32', sr(self.S_T3), sr(self.S_T3), '6'); e('s_add_u32', sr(self.S_FB + j), sr(self.S_T2), sr(self.S_T3))
        e('s_cmp_eq_u32', sr(self.S_T1), '1'); e('s_cselect_b32', sr(self.S_T3), '0', '256')
        e('s_add_u32', sr(self.S_FB + 4), sr(self.S_T0), sr(self.S_T3))
        for j in range(5):
            e('s_lshl_b32', sr(self.S_FB2 + j), sr(self.S_FB + j), '1')
            e('s_mul_i32', sr(self.S_FBR + j), sr(self.S_FB + j), '1152')
        e('s_mul_i32', sr(self.S_WOR), sr(self.S_S), str(36 * 1152))
        e('s_and_b32', sr(self.S_T0), sr(self.S_S), '1'); e('s_lshl_b32', sr(self.S_T0), sr(self.S_T0), '1')
        for k in range(4):
            e('s_add_u32', sr(self.S_T1), sr(self.S_T0), str(k)); e('s_and_b32', sr(self.S_T1), sr(self.S_T1), '3')
            e('s_lshl_b32', sr(self.S_YC + k), sr(self.S_T1), '8')
        e('s_mov_b32', sr(self.S_NLOG2E), f2h(LOG2E))
        e('s_mov_b32', sr(self.S_AC), f2h(1.0 / (LOG2E * math.sqrt(18.0)) if self.o.get('presc', 0) else LOG2E / math.sqrt(18.0)))
        e('s_mov_b32', sr(self.S_PERM0), '0x05040100'); e('s_mov_b32', sr(self.S_PERM1), '0x07060302')
        e('s_mov_b32', sr(self.S_NEG), f2h(-1e30))

    TA, TB, TC, TDm = 'v4', 'v5', 'v6', 'v7'
    TR, TCC8, TG1, TG2 = 'v247', 'v244', 'v242', 'v241'

    def addr_first(self, e):
        L, C16, G = vr(self.V_LANE), vr(self.V_C16), vr(self.V_G)
        a, b, c = self.TA, self.TB, self.TC
        r, cc8, g1, g2 = self.TR, self.TCC8, self.TG1, self.TG2
        W, RG2 = sr(self.S_W), sr(self.S_RG2)
        T0, T1, T2, T3 = sr(self.S_T0), sr(self.S_T1), sr(self.S_T2), sr(self.S_T3)
        e('v_lshrrev_b32', r, '2', C16)
        e('v_and_b32', cc8, '3', C16); e('v_lshlrev_b32', cc8, '3', cc8)
        e('v_and_b32', g1, '1', G)
        e('v_lshrrev_b32', g2, '1', G)
        e('v_mul_u32_u24', a, '12288', g1)
        e('v_lshl_add_u32', a, g2, '10', a)
        e('v_lshl_add_u32', a, r, '8', a)
        e('v_add_u32', a, a, cc8)
        e('v_lshl_or_b32', b, g1, '2', r)
        e('s_mov_b32', T0, '0x10525210'); e('s_mov_b32', T1, '0x63747463')
        e('s_lshl_b32', T2, W, '4')
        e('s_lshr_b64', sr(self.S_T0, 2), sr(self.S_T0, 2), T2)
        e('s_mov_b32', sr(self.S_QC), T0)
        for u in range(4):
            e('s_bfe_u32', T2, T0, hex((4 << 16) | (4 * u)))
            e('v_xor_b32', c, T2, b); e('v_lshl_add_u32', vr(self.TQ + u), c, '5', a)
        e('s_mul_i32', T0, RG2, '36864'); e('s_add_u32', T0, T0, str(HB))
        e('v_add_u32', vr(self.XA), T0, vr(self.PV))
        e('v_add_u32', vr(self.XA + 1), str(HB + 73728), vr(self.PV))

    def addr_late(self, e):
        L, C16, G = vr(self.V_LANE), vr(self.V_C16), vr(self.V_G)
        a, b, c, d = self.TA, self.TB, self.TC, self.TDm
        r, cc8, g1, g2 = self.TR, self.TCC8, self.TG1, self.TG2
        W, CH, RG2 = sr(self.S_W), sr(self.S_CH), sr(self.S_RG2)
        T0, T1, T2, T3 = sr(self.S_T0), sr(self.S_T1), sr(self.S_T2), sr(self.S_T3)
        e('v_lshrrev_b32', b, '3', L)
        e('v_bfe_u32', a, b, '1', '1')
        e('s_and_b32', T0, W, '1'); e('s_lshl_b32', T1, T0, '1')
        e('v_or_b32', a, T1, a)
        e('v_bfe_u32', c, L, '1', '2')
        e('v_xor_b32', a, a, c); e('v_lshlrev_b32', a, '1', a)
        e('v_and_b32', c, '1', L); e('v_or_b32', a, a, c)
        e('s_lshl_b32', T1, T0, '3')
        e('v_add_u32', c, T1, b)
        e('v_mul_u32_u24', c, '9216', c)
        e('v_lshl_add_u32', vr(self.DG), a, '4', c)
        for j in (1, 2):
            e('v_add_u32', vr(self.DG + j), str(j * (16 * 9216 - 1024)), vr(self.DG))
        e('s_lshl_b32', T1, W, '3')
        e('v_add_u32', c, T1, b)
        e('v_mul_u32_u24', c, '1152', c)
        e('v_lshl_add_u32', vr(self.DPH), a, '4', c)
        for j in (1, 2):
            e('v_add_u32', vr(self.DPH + j), str(j * (32 * 1152 - 1024)), vr(self.DPH))
        e('v_lshrrev_b32', b, '2', L)
        e('v_lshrrev_b32', a, '3', b); e('v_lshlrev_b32', a, '1', a)
        e('v_and_b32', c, '3', L); e('v_xor_b32', a, a, c)
        e('s_lshl_b32', T1, T0, '4')
        e('v_add_u32', c, T1, b)
        e('v_mul_u32_u24', c, '9216', c)
        e('v_lshl_add_u32', vr(self.DH), a, '4', c)
        for j in (1, 2):
            e('v_add_u32', vr(self.DH + j), str(j * (32 * 9216 - 1024)), vr(self.DH))
        e('s_lshr_b32', T0, W, '1'); e('s_lshl_b32', T0, T0, '2')
        e('v_or_b32', a, T0, G)
        e('v_lshrrev_b32', b, '1', C16)
        e('v_xor_b32', a, a, b)
        e('v_lshlrev_b32', a, '1', a)
        e('v_and_b32', b, '1', C16)
        e('v_or_b32', a, a, b)
        e('s_lshl_b32', T1, W, '2')
        e('v_add_u32', b, T1, G)
        e('v_mul_u32_u24', c, '1152', b)
        e('v_lshl_add_u32', vr(self.DP), a, '4', c)
        for j in (1, 2):
            e('v_add_u32', vr(self.DP + j), str(j * (16 * 1152 - 1024)), vr(self.DP))
        e('v_mul_u32_u24', a, '6144', g1)
        e('v_lshl_add_u32', a, g2, '10', a)
        e('v_lshl_add_u32', a, r, '7', a)
        e('v_add_u32', a, a, cc8)
        e('v_lshrrev_b32', b, '1', r); e('v_lshl_or_b32', b, g1, '1', b)
        for bb in range(2):
            e('s_lshl_b32', T2, CH, '1'); e('s_add_u32', T2, T2, str(bb))
            e('v_xor_b32', c, T2, b); e('v_lshl_add_u32', vr(self.TG + bb), c, '5', a)
            e('v_add_u32', vr(self.TG + 2 + bb), '12288', vr(self.TG + bb))
        e('v_mul_u32_u24', a, '6144', G)
        e('v_lshl_add_u32', a, r, '7', a)
        e('v_add_u32', a, a, cc8)
        for bb in range(2):
            e('s_lshl_b32', T2, CH, '1'); e('s_add_u32', T2, T2, str(bb))
            e('v_xor_b32', c, T2, b); e('v_lshl_add_u32', vr(self.TPH + bb), c, '5', a)
        e('v_mul_u32_u24', a, '6144', g2)
        e('v_lshl_add_u32', c, g1, '3', r); e('v_lshl_add_u32', a, c, '6', a)
        e('v_add_u32', a, a, cc8)
        e('v_xor_b32', c, CH, g1); e('v_lshl_add_u32', vr(self.TH), c, '5', a)
        e('v_add_u32', vr(self.TH + 1), '12288', vr(self.TH))
        e('v_mul_u32_u24', a, '12288', g1)
        e('v_lshl_add_u32', a, g2, '10', a)
        e('v_lshl_add_u32', a, r, '8', a)
        e('v_add_u32', a, a, cc8)
        e('v_lshl_or_b32', b, g1, '2', r)
        for u in range(4):
            e('s_lshl_b32', T2, CH, '2'); e('s_add_u32', T2, T2, str(u))
            e('v_xor_b32', c, T2, b); e('v_lshl_add_u32', vr(self.TP + u), c, '5', a)
        e('s_lshl_b32', T3, RG2, '6'); e('s_add_u32', T3, T3, '16')
        e('v_add_u32', c, T3, C16); e('v_mul_u32_u24', c, str(SPITCH), c)
        e('v_lshl_add_u32', c, G, '3', c)
        for u in range(4):
            e('s_bfe_u32', T2, sr(self.S_QC), hex((4 << 16) | (4 * u)))
            e('s_lshl_b32', T2, T2, '5'); e('s_add_u32', T2, T2, str(SB))
            e('v_add_u32', vr(self.SW + u), T2, c)
        e('s_lshl_b32', T2, RG2, '6'); e('v_add_u32', a, T2, C16)
        e('s_lshl_b32', T3, CH, '2'); e('v_add_u32', b, T3, g2)
        e('v_and_b32', c, '7', C16); e('v_xor_b32', b, b, c)
        e('v_lshlrev_b32', b, '4', b); e('v_lshl_add_u32', b, g1, '3', b)
        e('v_lshl_add_u32', b, a, '7', b)
        e('v_add_u32', vr(self.HW), str(HB), b)
        e('v_xor_b32', vr(self.HW + 1), '32', vr(self.HW))
        e('v_xor_b32', b, G, c); e('v_lshlrev_b32', b, '4', b); e('v_lshl_add_u32', b, a, '7', b)
        e('v_add_u32', vr(self.HR), str(HB), b)
        e('v_xor_b32', vr(self.HR + 1), '64', vr(self.HR))
        e('v_mul_u32_u24', b, str(XPITCH), a)
        e('v_add_u32', b, str(XB), b)
        e('v_lshl_add_u32', vr(self.XR), G, '4', b)
        e('s_lshl_b32', T3, CH, '5')
        e('v_lshl_add_u32', c, G, '3', b); e('v_add_u32', vr(self.HWX), T3, c)
        e('v_and_b32', a, '31', L); e('v_lshrrev_b32', b, '5', L)
        e('s_lshl_b32', T2, W, '5')
        e('v_add_u32', a, T2, a)
        e('s_lshl_b32', T3, sr(self.S_I), '7'); e('v_add_u32', vr(self.MG), T3, a)
        e('v_add_u32', c, '2', a); e('v_mul_u32_u24', c, str(SPITCH), c)
        e('v_lshl_add_u32', c, b, '5', c); e('v_add_u32', vr(self.AB), str(SB), c)
        e('v_mul_u32_u24', c, str(XPITCH), a); e('v_lshl_add_u32', c, b, '5', c)
        e('v_add_u32', vr(self.OW), str(XB + 64), c)

    def task_late_setup(self):
        T = []
        e = lambda op, *a, **k: T.append(I(op, *a, **k))

        def srd_(d, lo, hi, size):
            e('s_mov_b32', sr(d), lo); e('s_and_b32', sr(d + 1), hi, '0xffff'); e('s_mov_b32', sr(d + 2), str(size)); e('s_mov_b32', sr(d + 3), '0x20000')
        self.scalars_late(e, srd_)
        S = list(T)
        T.clear()
        self.addr_late(e)
        return [S] + T

    def build(self):
        self.stages = []
        self.ksteps = []
        strips = []

        def add_stage(dml):
            self.stages.append(dml)
            return len(self.stages) - 1

        def strip_generic(name, nk, ks_per_stage, nfrag, dma_fn, tr_fn, mf_fn):
            st = dict(name=name, ks=[])
            for t in range(nk):
                tl = t % ks_per_stage
                if tl == 0:
                    n_in = min(ks_per_stage, nk - t)
                    dml = []
                    for tt in range(n_in):
                        dml += dma_fn(t + tt, tt)
                    sid = add_stage(dml)
                frs = [tr_fn(t, tl, u) for u in range(nfrag)]
                st['ks'].append(dict(t=t, stage=sid, frags=frs, mf=[mf_fn(t, u) for u in range(nfrag)], last_in_stage=(tl == ks_per_stage - 1 or t == nk - 1)))
            strips.append(st)
            return st

        A0, A1 = self.ACC0, self.ACC1
        acc = lambda buf, u, mb: vr(buf + 16 * u + 4 * mb, 4)

        def dq(t, tt):
            r = t // 3
            return [(self.SRD_QKV, ('pq', 0), (r * 24 + 2 * tt + e) * 1024, self.PV, 1024, 2 * tt + e) for e in range(2)]

        def trq(t, tl, u):
            return (self.TQ + u, tl * 2048, 6144)

        def mfq(t, u):
            L = [(acc(A0, u, mb), self.xreg(t, mb)) for mb in range(4)]
            if u < 2:
                L.append((vr(self.HAL + 4 * u, 4), self.halo_x(t)))
            return L
        strip_generic('QKV', 18, 3, 4, dq, trq, mfq)

        def ffn(j, buf):
            def dg(t, tt):
                return [(self.SRD_GU, ('fb2', j), (32 * t + 16 * e) * 9216, self.DG, 16 * 9216, 2 * tt + e) for e in range(2)]

            def trg(t, tl, u):
                return (self.TG + u, tl * 2048, 512)

            def mfg(t, u):
                return [(acc(buf, u, mb), self.xreg(t, mb)) for mb in range(4)]
            return strip_generic(f'F{j}', 18, 3, 4, dg, trg, mfg)
        ffn(0, A1); ffn(1, A0); ffn(2, A1); ffn(3, A0)

        def dh(t, tt):
            return [(self.SRD_GU, ('fb2', 4), (32 * t) * 9216, self.DH, 32 * 9216, tt)]

        def trh(t, tl, u):
            return (self.TH + u, tl * 1024, 256)

        def mfh(t, u):
            return [(acc(A1, u, mb), self.xreg(t, mb)) for mb in range(4)]
        strip_generic('F4h', 18, 6, 2, dh, trh, mfh)

        self.kmap = [('F', 0, 0), ('F', 0, 1), ('F', 1, 0), ('F', 1, 1), ('F', 2, 0), ('F', 2, 1), ('O', 0, 0), ('O', 0, 1), ('F', 3, 0), ('F', 3, 1), ('X', 4, 0)]

        def p2rows(k):
            kind, j, tt = self.kmap[k]
            if kind == 'O':
                return self.SRD_WO, ('wo', 0), 32 * tt
            return self.SRD_WD, ('fbr', j), 32 * tt

        def p2full(Y, buf):
            def dp(t, tt):
                s_, b_, r0 = p2rows(t)
                return [(s_, b_ + ('y', Y), (r0 + 16 * e) * 1152, self.DP, 16 * 1152, 2 * tt + e) for e in range(2)]

            def trp(t, tl, u):
                return (self.TP + u, tl * 2048, 6144)

            def mfp(t, u):
                return [(acc(buf, u, mb), self.hreg(t, mb)) for mb in range(4)]
            return strip_generic(f'P{Y}', 11, 3, 4, dp, trp, mfp)
        def dph(t, tt):
            s_, b_, r0 = p2rows(t)
            return [(s_, b_, r0 * 1152 + 1024, self.DPH, 32 * 1152, tt)]

        def trph(t, tl, u):
            return (self.TPH + u, tl * 1024, 512)

        def mfph(t, u):
            return [(acc(A0, u, mb), self.hreg(t, mb)) for mb in range(4)]
        p2full(0, A0); p2full(1, A1)
        strip_generic('P4h', 11, 6, 2, dph, trph, mfph)
        p2full(2, A1); p2full(3, A0)
        self.strips = strips
        x0 = [st for st in strips if st['name'] == 'P0'][0]['ks'][9]['stage']
        first_deep = x0
        self.first_deep = first_deep
        self.slot = {}
        nst = len(self.stages)
        for sid in range(nst):
            if sid < first_deep or not self.o.get('deep', 1):
                self.slot[sid] = sid % 3
        if self.o.get('deep', 1):
            order = [3, 4, (x0 - 3) % 3, (x0 - 2) % 3, 5, (x0 - 1) % 3]
            for k, sid in enumerate(range(first_deep, nst)):
                self.slot[sid] = order[k % 6]

    def slot_base(self, sid):
        sl = self.slot[sid]
        return sl * SLOT if sl < 3 else HB + (sl - 3) * SLOT

    def dma_items(self, sid):
        sbase = self.slot_base(sid)
        items = []
        prev = None
        for (srd_, base, goff, vbase, qdelta, q) in self.stages[sid]:
            share = False
            lin = base is not None and base[0] == 'pq'
            if prev is not None:
                psrd, pbase, pgoff, pq, pj = prev
                j = pj + 1
                if psrd == srd_ and pbase == base and j <= (3 if lin else 2) and q == pq + 1 and goff == pgoff + qdelta:
                    share = True
            pre = []
            if not share:
                j = 0
                pre.append(I('s_add_u32', 'm0', sr(self.S_LDSW), str(sbase + q * 1024)))
                so = sr(self.S_SOFF)
                if lin:
                    pre.append(I('s_add_u32', so, sr(self.S_LDSW), str(goff)))
                elif base[0] == 'fb2':
                    pre.append(I('s_add_u32', so, sr(self.S_FB2 + base[1]), str(goff)))
                elif base[0] == 'fbr':
                    pre.append(I('s_add_u32', so, sr(self.S_FBR + base[1]), str(goff)))
                elif base[0] == 'wo':
                    pre.append(I('s_add_u32', so, sr(self.S_WOR), str(goff)))
                if base[-2] == 'y':
                    pre.append(I('s_add_u32', so, so, sr(self.S_YC + base[-1])))
            if pre:
                cur = pre
            items.append((cur, I('buffer_load_dwordx4', vr(vbase if lin else vbase + j), sr(srd_, 4), sr(self.S_SOFF),
                                 mods=f'offen offset:{1024 * j} lds' if j else 'offen lds', tag=('st', sid))))
            prev = (srd_, base, goff, q, j)
        return items

    def task_qkv_epi(self):
        T = []
        A0 = self.ACC0
        T.append(I('v_mov_b32', 'v4', '0')); T.append(I('v_mov_b32', 'v5', '0'))
        T.append(I('v_and_b32', 'v6', '127', 'v0')); T.append(I('v_mul_u32_u24', 'v6', str(XPITCH), 'v6'))
        T.append(I('v_add_u32', 'v6', str(XB + 136), 'v6'))
        T.append(I('ds_write_b64', 'v6', 'v[4:5]', flag='bar'))
        for u in range(4):
            for mb in range(4):
                a = A0 + 16 * u + 4 * mb
                T.append(I('v_cvt_pk_bf16_f32', vr(a), vr(a), vr(a + 1)))
                T.append(I('v_cvt_pk_bf16_f32', vr(a + 1), vr(a + 2), vr(a + 3)))
                T.append(I('ds_write_b64', vr(self.SW + u), vr(a, 2), mods=f'offset:{mb * 16 * SPITCH}', flag='bar'))
        for u in range(2):
            a = self.HAL + 4 * u
            T.append(I('v_cvt_pk_bf16_f32', vr(a), vr(a), vr(a + 1)))
            T.append(I('v_cvt_pk_bf16_f32', vr(a + 1), vr(a + 2), vr(a + 3)))
            T.append(I('s_lshl_b32', sr(self.S_T2), sr(self.S_RG2), '6'))
            T.append(I('s_add_u32', sr(self.S_T2), sr(self.S_T2), '16'))
            T.append(I('s_mul_i32', sr(self.S_T2), sr(self.S_T2), str(SPITCH)))
            T.append(I('v_subrev_u32', vr(a + 2), sr(self.S_T2), vr(self.SW + u)))
            T.append(I('ds_write_b64', vr(a + 2), vr(a, 2), flag='bar'))
        return T

    def task_attn(self):
        T = []
        B = self.ACC0
        Q = B
        KA = [B + 12, B + 24]
        S = B + 36
        O = B + 44
        KB = [O, O + 10]
        TP = [4, 5, 6, 7, 8, 9, 10, 11, 12, 13, 14, 15, 248, 249, 250, 251, 252, 253, 254, 255]
        AB = vr(self.AB)

        def rd(dst, off):
            if dst % 2 == 0 and dst % 4 == 0:
                return [I('ds_read_b128', vr(dst, 4), AB, mods=f'offset:{off}'),
                        I('ds_read_b128', vr(dst + 4, 4), AB, mods=f'offset:{off + 16}'),
                        I('ds_read_b64', vr(dst + 8, 2), AB, mods=f'offset:{off + 32}')]
            return [I('ds_read_b128', vr(dst, 4), AB, mods=f'offset:{off}'),
                    I('ds_read_b128', vr(dst + 4, 4), AB, mods=f'offset:{off + 16}'),
                    I('ds_read_b64', vr(dst + 8, 2), AB, mods=f'offset:{off + 32}')]
        rowoff = lambda w: (14 - 2 * w) * SPITCH
        T += rd(Q, rowoff(0) + 160)
        T += rd(KA[0], rowoff(0)); T += rd(KA[1], rowoff(1))
        T += rd(KB[0], rowoff(2)); T += rd(KB[1], rowoff(3))
        T.append(I('v_mov_b32', vr(S), '0'))
        T.append([I('v_cmp_gt_u32', 'vcc', '32', vr(self.V_LANE)),
                  I('v_cndmask_b32', vr(Q + 9), vr(Q + 9), vr(S), 'vcc'),
                  I('v_cndmask_b32', vr(Q + 0), vr(S), vr(Q + 0), 'vcc')])
        for w in range(0, 8, 2):
            bufs = KA if (w // 2) % 2 == 0 else KB
            burst = []
            for ww, kb in ((w, bufs[0]), (w + 1, bufs[1])):
                burst.append(I('v_dot2_f32_bf16', vr(S + ww), vr(Q), vr(kb), '0'))
            for j in range(1, 10):
                for ww, kb in ((w, bufs[0]), (w + 1, bufs[1])):
                    burst.append(I('v_dot2_f32_bf16', vr(S + ww), vr(Q + j), vr(kb + j), vr(S + ww)))
            T.append(burst)
            if w + 4 < 8:
                T += rd(bufs[0], rowoff(w + 4)); T += rd(bufs[1], rowoff(w + 5))
            elif w == 4:
                T += rd(KA[0], rowoff(0) + 80); T += rd(KA[1], rowoff(1) + 80)
        NEG = vr(Q + 10)
        T.append(I('v_mov_b32', NEG, sr(self.S_NEG)))
        for w in range(1, 8):
            T.append([I('v_cmp_le_u32', 'vcc', str(2 * w), vr(self.MG)), I('s_nop', '1'),
                      I('v_cndmask_b32', vr(S + w), NEG, vr(S + w), 'vcc')])
        MX = vr(Q + 11)
        T.append(I('v_max3_f32', MX, vr(S), vr(S + 1), vr(S + 2)))
        T.append(I('v_max3_f32', MX, MX, vr(S + 3), vr(S + 4)))
        T.append(I('v_max3_f32', MX, MX, vr(S + 5), vr(S + 6)))
        T.append(I('v_max_f32', MX, MX, vr(S + 7)))
        T.append(I('v_mul_f32', MX, sr(self.S_AC), MX))
        for w in range(8):
            T.append(I('v_fma_f32', vr(S + w), vr(S + w), sr(self.S_AC), '-' + MX))
        for w in range(8):
            T.append(I('v_exp_f32', vr(S + w), vr(S + w)))
        SUM = vr(Q + 10)
        T.append(I('v_add_f32', SUM, vr(S), vr(S + 1)))
        for w in range(2, 8):
            T.append(I('v_add_f32', SUM, SUM, vr(S + w)))
        T.append(I('v_rcp_f32', SUM, SUM))
        if self.o.get('presc', 0):
            T.append(I('v_mul_f32', SUM, sr(self.S_NLOG2E), SUM))
        for w in range(8):
            T.append(I('v_mul_f32', vr(S + w), vr(S + w), SUM))
        for pp in range(4):
            T.append(I('v_cvt_pk_bf16_f32', vr(Q + pp), vr(S + 2 * pp), vr(S + 2 * pp + 1)))
        K0_, K1_ = KA
        for pp in range(4):
            burst = []
            for j in range(10):
                a, b = TP[2 * j], TP[2 * j + 1]
                T.append(I('v_perm_b32', vr(a), vr(K1_ + j), vr(K0_ + j), sr(self.S_PERM0)))
                T.append(I('v_perm_b32', vr(b), vr(K1_ + j), vr(K0_ + j), sr(self.S_PERM1)))
                burst.append(I('v_dot2_f32_bf16', vr(O + 2 * j), vr(a), vr(Q + pp), '0' if pp == 0 else vr(O + 2 * j)))
                burst.append(I('v_dot2_f32_bf16', vr(O + 2 * j + 1), vr(b), vr(Q + pp), '0' if pp == 0 else vr(O + 2 * j + 1)))
            if pp < 3:
                T += rd(K0_, rowoff(2 * pp + 2) + 80)
                T += rd(K1_, rowoff(2 * pp + 3) + 80)
            T.append(burst)
        OP = K0_
        for j in range(10):
            T.append(I('v_cvt_pk_bf16_f32', vr(OP + j), vr(O + 2 * j), vr(O + 2 * j + 1)))
        OW = vr(self.OW)
        for j in range(1, 9, 2):
            T.append(I('ds_write2_b32', OW, vr(OP + j), vr(OP + j + 1), mods=f'offset0:{j} offset1:{j + 1}', flag='bar'))
        t0 = TP[0]
        T.append(I('v_add_u32', vr(t0), '36', OW))
        T.append([I('v_cmp_gt_u32', 'vcc', '32', vr(self.V_LANE)), I('s_nop', '1'),
                  I('v_cndmask_b32', vr(OP), vr(OP + 9), vr(OP), 'vcc'),
                  I('v_cndmask_b32', vr(t0), vr(t0), OW, 'vcc')])
        T.append(I('ds_write_b32', vr(t0), vr(OP), flag='bar'))
        return T

    def task_silu(self, buf, j):
        T = []
        NL = sr(self.S_NLOG2E)
        chains = []
        for bb in range(2):
            for mb in range(4):
                g = buf + 16 * bb + 4 * mb
                u = buf + 16 * (2 + bb) + 4 * mb
                c = []
                for r in range(4):
                    c.append(I('v_mul_f32', vr(u + r), vr(g + r), vr(u + r)))
                if not self.o.get('presc', 0):
                    for r in range(4):
                        c.append(I('v_mul_f32', vr(g + r), NL, vr(g + r)))
                for r in range(4):
                    c.append(I('v_exp_f32', vr(g + r), '-' + vr(g + r)))
                for r in range(4):
                    c.append(I('v_add_f32', vr(g + r), '1.0', vr(g + r)))
                for r in range(4):
                    c.append(I('v_rcp_f32', vr(g + r), vr(g + r)))
                for r in range(4):
                    c.append(I('v_mul_f32', vr(u + r), vr(g + r), vr(u + r)))
                c.append(I('v_cvt_pk_bf16_f32', vr(g), vr(u), vr(u + 1)))
                c.append(I('v_cvt_pk_bf16_f32', vr(g + 1), vr(u + 2), vr(u + 3)))
                if j < 4:
                    c.append(I('ds_write_b64', vr(self.HW + bb), vr(g, 2), mods=f'offset:{j * 16384 + mb * 2048}', flag='bar'))
                chains.append(c)
        Ta, Tb = [], []
        for k, c in enumerate(chains):
            (Ta if k % 2 == 0 else Tb).extend(c)
        return Ta, Tb

    def task_silu_h(self, buf):
        TT = ([], [])
        NL = sr(self.S_NLOG2E)
        for mb in range(4):
            T = TT[mb % 2]
            g = buf + 4 * mb
            u = buf + 16 + 4 * mb
            for r in range(4):
                T.append(I('v_mul_f32', vr(u + r), vr(g + r), vr(u + r)))
            if not self.o.get('presc', 0):
                for r in range(4):
                    T.append(I('v_mul_f32', vr(g + r), NL, vr(g + r)))
            for r in range(4):
                T.append(I('v_exp_f32', vr(g + r), '-' + vr(g + r)))
            for r in range(4):
                T.append(I('v_add_f32', vr(g + r), '1.0', vr(g + r)))
            for r in range(4):
                T.append(I('v_rcp_f32', vr(g + r), vr(g + r)))
            for r in range(4):
                T.append(I('v_mul_f32', vr(u + r), vr(g + r), vr(u + r)))
            T.append(I('v_cvt_pk_bf16_f32', vr(g), vr(u), vr(u + 1)))
            T.append(I('v_cvt_pk_bf16_f32', vr(g + 1), vr(u + 2), vr(u + 3)))
            T.append(I('ds_write_b64', vr(self.HWX), vr(g, 2), mods=f'offset:{mb * 16 * XPITCH}', flag='bar'))
        return TT

    def task_hload(self, k):
        kind, j, tt = self.kmap[k]
        T = []
        for mb in range(4):
            d = self.hreg(k, mb)
            if kind == 'F':
                T.append(I('ds_read_b128', d, vr(self.HR + tt), mods=f'offset:{j * 16384 + mb * 2048}', flag='bar', tag=('h', k, mb)))
            elif kind == 'X':
                T.append(I('ds_read_b128', d, vr(self.XR), mods=f'offset:{mb * 16 * XPITCH}', flag='bar', tag=('h', k, mb)))
            elif tt == 0:
                T.append(I('ds_read_b128', d, vr(self.XR), mods=f'offset:{mb * 16 * XPITCH + 64}', flag='bar', tag=('h', k, mb)))
        if kind == 'O' and tt == 1:
            for mb in range(4):
                for r in range(4):
                    T.append(I('v_accvgpr_write_b32', ar(16 * k + 4 * mb + r), '0'))
            grp = [I('s_mov_b64', 'exec', '0xffff')]
            for mb in range(4):
                grp.append(I('ds_read_b128', self.hreg(k, mb), vr(self.XR), mods=f'offset:{mb * 16 * XPITCH + 128}', flag='bar', tag=('h', k, mb)))
            grp.append(I('s_mov_b64', 'exec', '-1'))
            T.append(grp)
        return T

    def touch_ld(self, vaddr, srd_):
        x = I('buffer_load_dword', 'v7', vaddr, sr(srd_, 4), sr(self.S_TCH), mods='offen')
        x.writes = []
        return x

    def task_touch(self):
        T = []
        T0, T1 = sr(self.S_T0), sr(self.S_T1)

        def ld(srd_, k):
            x = I('buffer_load_dwordx4', 'v[4:7]', vr(self.PV), sr(srd_, 4), sr(self.S_TCH), mods=f'offen offset:{1024 * k}' if k else 'offen')
            x.writes = []
            return x
        S = [I('s_and_b32', T0, sr(self.S_I), '7'), I('s_mul_i32', T0, T0, '41472'), I('s_mul_i32', T1, sr(self.S_S), str(288 * 1152)),
             I('s_add_u32', T0, T0, T1), I('s_mul_i32', T1, sr(self.S_W), '10368'), I('s_add_u32', sr(self.S_TCH), T0, T1)]
        T.append(S)
        for j in range(11):
            if j and j % 4 == 0:
                T.append([I('s_add_u32', sr(self.S_TCH), sr(self.S_TCH), '4096')])
            T.append(ld(self.SRD_WD, j % 4))
        S = [I('s_and_b32', T0, sr(self.S_I), '7'), I('s_mul_i32', T0, T0, '5184'), I('s_add_u32', T0, T0, sr(self.S_WOR)),
             I('s_mul_i32', T1, sr(self.S_W), '1296'), I('s_add_u32', sr(self.S_TCH), T0, T1)]
        T.append(S)
        T.append(ld(self.SRD_WO, 0)); T.append(ld(self.SRD_WO, 1))
        return T

    def task_touch_gu(self):
        T = []
        T0, T1 = sr(self.S_T0), sr(self.S_T1)
        L = vr(self.V_LANE)
        T.append(I('v_mul_u32_u24', 'v6', '205', L)); T.append(I('v_lshrrev_b32', 'v6', '10', 'v6'))
        T.append(I('v_mul_u32_u24', 'v7', '5', 'v6')); T.append(I('v_sub_u32', 'v7', L, 'v7'))
        T.append(I('v_mul_u32_u24', 'v6', '9216', 'v6')); T.append(I('v_lshl_add_u32', 'v6', 'v7', '7', 'v6'))
        S = [I('s_and_b32', T0, sr(self.S_I), '7'), I('s_mul_i32', T0, T0, '72'), I('s_and_b32', T1, sr(self.S_W), '1'), I('s_mul_i32', T1, T1, '36'),
             I('s_add_u32', T0, T0, T1), I('s_mul_i32', T0, T0, '9216'), I('s_mul_i32', T1, sr(self.S_S), '576'), I('s_and_b32', T1, T1, '0xffffff80'),
             I('s_add_u32', sr(self.S_TCH), T0, T1)]
        T.append(S)
        for j in range(3):
            T.append(self.touch_ld('v6', self.SRD_GU))
            if j < 2:
                T.append([I('s_add_u32', sr(self.S_TCH), sr(self.S_TCH), str(12 * 9216))])
        return T

    def emit_k2_code_touch(self):
        P = self.P
        P.raw("  s_getpc_b64 s[48:49]")
        P.raw("K1_pc:")
        P.raw("  s_add_u32 s48, s48, k2_reduce_kernel-K1_pc")
        P.raw("  s_addc_u32 s49, s49, 0")
        P.raw("  s_and_b32 s49, s49, 0xffff")
        P.raw("  s_mov_b32 s50, K2_end-k2_reduce_kernel")
        P.raw("  s_mov_b32 s51, 0x20000")
        P.e('v_lshlrev_b32', 'v5', '6', vr(self.V_LANE))
        x = I('buffer_load_dword', 'v6', 'v5', 's[48:51]', '0', mods='offen'); x.writes = []
        P.emit(x)

    def task_tlb(self):
        T = []
        T0, T1 = sr(self.S_T0), sr(self.S_T1)
        S, II = sr(self.S_S), sr(self.S_I)
        S_ = [I('s_lshl_b32', T0, S, '4'), I('s_add_u32', T0, T0, II)]
        T.append(S_)
        T.append(I('v_mov_b32', 'v5', str(FL_OFF)))
        T.append([I('s_lshl_b32', T1, T0, '16'), I('s_add_u32', T1, T1, str(MB_OFF))])
        T.append(I('v_writelane_b32', 'v5', T1, '2'))
        T.append([I('s_xor_b32', T1, T1, str(16 << 16))])
        T.append(I('v_writelane_b32', 'v5', T1, '3'))
        T.append([I('s_lshl_b32', T1, T0, '14'), I('s_add_u32', T1, T1, str(HP_OFF))])
        T.append(I('v_writelane_b32', 'v5', T1, '1'))
        T.append([I('s_lshr_b32', T1, S, '1'), I('s_lshl_b32', T1, T1, '4'), I('s_add_u32', T1, T1, II), I('s_lshl_b32', T1, T1, '17')])
        T.append(I('v_writelane_b32', 'v5', T1, '0'))
        x = I('buffer_load_dword', 'v7', 'v5', sr(self.SRD_P, 4), '0', mods='offen'); x.writes = []
        T.append([I('s_mov_b64', 'exec', '0x1f'), x, I('s_mov_b64', 'exec', '-1')])
        return T

    def task_p2setup(self):
        T = []
        T0, T1 = sr(self.S_T0), sr(self.S_T1)
        S, II, W = sr(self.S_S), sr(self.S_I), sr(self.S_W)
        T += [I('s_lshl_b32', T0, S, '4'), I('s_add_u32', T0, T0, II)]
        T += [I('s_lshl_b32', T1, W, '13')]
        T += [I('s_lshl_b32', sr(self.S_MBO), T0, '16'), I('s_add_u32', sr(self.S_MBO), sr(self.S_MBO), T1),
              I('s_add_u32', sr(self.S_MBO), sr(self.S_MBO), str(MB_OFF))]
        T += [I('s_xor_b32', sr(self.S_MBP), sr(self.S_MBO), str(16 << 16))]
        T += [I('s_lshl_b32', sr(self.S_HPB), T0, '14'), I('s_lshl_b32', T1, W, '12'), I('s_add_u32', sr(self.S_HPB), sr(self.S_HPB), T1),
              I('s_add_u32', sr(self.S_HPB), sr(self.S_HPB), str(HP_OFF))]
        T += [I('s_lshr_b32', T0, S, '1'), I('s_lshl_b32', T0, T0, '4'), I('s_add_u32', T0, T0, II), I('s_lshl_b32', sr(self.S_FPB), T0, '17'),
              I('s_lshl_b32', T1, W, '13'), I('s_add_u32', sr(self.S_FPB), sr(self.S_FPB), T1)]
        T += [I('s_lshl_b32', sr(self.S_FOFF), 's2', '7'), I('s_add_u32', sr(self.S_FOFF), sr(self.S_FOFF), str(FL_OFF)),
              I('s_xor_b32', sr(self.S_FSH), sr(self.S_FOFF), str(8 << 7))]
        T += [I('s_lshl_b32', T1, W, '2'), I('s_add_u32', sr(self.S_FOFF), sr(self.S_FOFF), T1)]
        T += [I('s_mov_b32', sr(self.S_NEG), '0xffff0000')]
        return T

    def _pack_store(self, T, buf, pair, mb, soff_reg, first, flags, tag=None):
        a = buf + 16 * (2 * pair) + 4 * mb
        b = buf + 16 * (2 * pair + 1) + 4 * mb
        T.append(I('v_cvt_pk_bf16_f32', vr(a), vr(a), vr(a + 1)))
        T.append(I('v_cvt_pk_bf16_f32', vr(a + 1), vr(a + 2), vr(a + 3)))
        T.append(I('v_cvt_pk_bf16_f32', vr(a + 2), vr(b), vr(b + 1)))
        T.append(I('v_cvt_pk_bf16_f32', vr(a + 3), vr(b + 2), vr(b + 3)))
        T += first
        T.append(I('buffer_store_dwordx4', vr(a, 4), vr(self.PV), sr(self.SRD_P, 4), sr(self.S_PO),
                   mods=(f'offen offset:{1024 * mb}' if mb else 'offen') + flags, tag=tag))

    def task_send(self, buf, k):
        T = []
        for pair in range(2):
            for mb in range(4):
                first = [I('s_add_u32', sr(self.S_PO), sr(self.S_MBO), str(k * 32768 + pair * 4096))] if mb == 0 else []
                self._pack_store(T, buf, pair, mb, None, first, ' sc1', tag=('mb', k))
        return T

    def item_signal(self, k):
        return ('signal', k)

    def task_keep(self, buf, k):
        T = []
        M = sr(self.S_PERM0 + 2)
        for pair in range(2):
            for mb in range(4):
                a = buf + 16 * (2 * pair) + 4 * mb
                b = buf + 16 * (2 * pair + 1) + 4 * mb
                q = (self.INC if k == 2 else self.INC2)[pair * 4 + mb]
                t0, t1 = 244, 245
                for half, r in ((0, a), (1, b)):
                    for d in range(2):
                        src = vr(q + 2 * half + d)
                        T.append(I('v_lshlrev_b32', vr(t0), '16', src))
                        T.append(I('v_and_b32', vr(t1), M, src))
                        T.append(I('v_add_f32', vr(r + 2 * d), vr(r + 2 * d), vr(t0)))
                        T.append(I('v_add_f32', vr(r + 2 * d + 1), vr(r + 2 * d + 1), vr(t1)))
                        t0, t1 = (246, 247) if t0 == 244 else (244, 245)
                first = []
                if mb == 0:
                    first = [I('s_lshl_b32', sr(self.S_PO), sr(self.S_YC + k), '7'),
                             I('s_add_u32', sr(self.S_PO), sr(self.S_PO), sr(self.S_FPB)),
                             I('s_add_u32', sr(self.S_PO), sr(self.S_PO), str(pair * 4096))]
                self._pack_store(T, buf, pair, mb, None, first, ['', ' nt', ' sc1'][self.o.get('stflag', 2)])
        return T

    def addinc_quad(self, buf, p):
        u, mb = divmod(p, 4)
        pair, half = divmod(u, 2)
        q = self.INC2[pair * 4 + mb]
        r = buf + 16 * u + 4 * mb
        M = sr(self.S_NEG)
        T = []
        for d, (t0, t1) in enumerate(((244, 245), (246, 247))):
            src = vr(q + 2 * half + d)
            T.append(I('v_lshlrev_b32', vr(t0), '16', src)); T.append(I('v_and_b32', vr(t1), M, src))
            T.append(I('v_add_f32', vr(r + 2 * d), vr(r + 2 * d), vr(t0))); T.append(I('v_add_f32', vr(r + 2 * d + 1), vr(r + 2 * d + 1), vr(t1)))
        return T

    def task_final(self, buf, k):
        T = []
        for pair in range(2):
            for mb in range(4):
                first = []
                if mb == 0:
                    first = [I('s_lshl_b32', sr(self.S_PO), sr(self.S_YC + k), '7'), I('s_add_u32', sr(self.S_PO), sr(self.S_PO), sr(self.S_FPB)),
                             I('s_add_u32', sr(self.S_PO), sr(self.S_PO), str(pair * 4096))]
                self._pack_store(T, buf, pair, mb, None, first, ['', ' nt', ' sc1'][self.o.get('stflag', 2)])
        return T

    def items_incoming(self, k):
        T = []
        for pair in range(2):
            for mb in range(4):
                if mb == 0:
                    T.append(I('s_add_u32', sr(self.S_PO2), sr(self.S_MBP), str((k - 2) * 32768 + pair * 4096)))
                T.append(I('buffer_load_dwordx4', vr((self.INC if k == 2 else self.INC2)[pair * 4 + mb], 4), vr(self.PV), sr(self.SRD_P, 4), sr(self.S_PO2),
                           mods=(f'offen offset:{1024 * mb}' if mb else 'offen') + ' sc1'))
        return T

    def task_half(self, buf):
        T = []
        for mb in range(4):
            first = [I('s_mov_b32', sr(self.S_PO), sr(self.S_HPB))] if mb == 0 else []
            self._pack_store(T, buf, 0, mb, None, first, ['', ' nt', ' sc1'][self.o.get('stflag', 2)])
        return T

    def emit_signal(self, k):
        P = self.P
        P.wait_vm_tag(('mb', k))
        P.e('v_mov_b32', 'v9', '1')
        P.e('v_mov_b32', 'v10', str(16 * k))
        P.e('s_mov_b64', 'exec', '1')
        P.e('buffer_store_dword', 'v9', 'v10', sr(self.SRD_P, 4), sr(self.S_FOFF), mods='offen sc1')
        P.e('s_mov_b64', 'exec', '-1')

    def poll_issue(self, k):
        return [I('v_mov_b32', 'v11', str(16 * (k - 2))),
                I('buffer_load_dwordx4', vr(self.V_POLL, 4), 'v11', sr(self.SRD_P, 4), sr(self.S_FSH), mods='offen sc1')]

    def emit_poll_check(self, lab):
        P = self.P
        T2 = sr(self.S_T2)
        V = self.V_POLL
        P.e('v_and_b32', vr(V), vr(V), vr(V + 1)); P.e('v_and_b32', vr(V + 2), vr(V + 2), vr(V + 3)); P.e('v_and_b32', vr(V), vr(V), vr(V + 2))
        P.e('v_readfirstlane_b32', T2, vr(V))
        P.e('s_cmp_eq_u32', T2, '1')
        P.raw(f"  s_cbranch_scc1 {lab}_ok")
        P.label(f"{lab}_spin")
        P.raw("  s_sleep 1")
        P.raw(f"  buffer_load_dwordx4 v[{V}:{V + 3}], v11, s[{self.SRD_P}:{self.SRD_P + 3}], {sr(self.S_FSH)} offen sc1")
        P.raw("  s_waitcnt vmcnt(0)")
        P.raw(f"  v_and_b32 v{V}, v{V}, v{V + 1}")
        P.raw(f"  v_and_b32 v{V + 2}, v{V + 2}, v{V + 3}")
        P.raw(f"  v_and_b32 v{V}, v{V}, v{V + 2}")
        P.raw("  s_nop 1")
        P.raw(f"  v_readfirstlane_b32 {T2}, v{V}")
        P.raw("  s_nop 3")
        P.raw(f"  s_cmp_eq_u32 {T2}, 1")
        P.raw(f"  s_cbranch_scc0 {lab}_spin")
        P.label(f"{lab}_ok")

    def check_b(self, g):
        ins = g['inst']
        b = ins.ops[2]
        want = g['btag']
        got = self.P.regtag.get(regs_of(b)[0])
        assert got == want, (g['ks']['strip'], g['ks']['t'], b, want, got)

    def emit_setup(self, it):
        pre, ins = it
        if self.o.get('nodma', 0) and ins.tag[0] == 'st' and ins.tag[1] >= 2:
            return
        if self.cur_setup is not pre:
            self.P.emit(pre)
            self.cur_setup = pre

    def emit_dma(self, it):
        pre, ins = it
        if self.o.get('nodma', 0) and ins.tag[0] == 'st' and ins.tag[1] >= 2:
            return
        if self.cur_setup is not pre:
            self.P.emit(pre)
            self.cur_setup = pre
        self.P.emit(ins)

    XSLOT = 27 * 1024

    def xf_dma(self, r):
        items = []
        tag = ('st', r)
        for mm in range(2):
            pre = [I('s_add_u32', 'm0', sr(self.S_XL), str(HB + (r % 3) * 12288 + mm * 3072)),
                   I('s_add_u32', sr(self.S_SOFF2), sr(self.S_XF), str((mm * 18 + 3 * r) * 1024))]
            for k in range(3):
                items.append((pre, I('buffer_load_dwordx4', vr(self.PV), sr(self.SRD_XF, 4), sr(self.S_SOFF2),
                                     mods=(f'offen offset:{1024 * k} lds' if k else 'offen lds'), tag=tag)))
        pre = [I('s_add_u32', 'm0', sr(self.S_XH), str(HB + 73728 + (r % 3) * 3072)),
               I('s_add_u32', sr(self.S_SOFF2), sr(self.S_XF + 1), str(3 * r * 1024))]
        items.append((pre, I('buffer_load_dwordx4', vr(self.PV), sr(self.SRD_XF, 4), sr(self.S_SOFF2), mods='offen lds', tag=tag)))
        return items

    def xf_reads(self, t):
        T = []
        r, tt = divmod(t, 3)
        for mb in range(4):
            T.append(I('ds_read_b128', self.xreg(t, mb), vr(self.XA), mods=f'offset:{(r % 3) * 12288 + (mb * 3 + tt) * 1024}', flag='bar', tag=('x', t, mb)))
        T.append(I('ds_read_b128', self.halo_x(t), vr(self.XA + 1), mods=f'offset:{(r % 3) * 3072 + tt * 1024}', flag='bar', tag=('x', t, 4)))
        return T

    def stage_dma(self, sid):
        a = self.dma_items(sid)
        if sid < 6:
            b = self.xf_dma(sid)
            out = []
            out = b[:3] + a[:3] + b[3:] + a[3:]
            return out
        return a

    def emit_all(self):
        P = self.P
        e = P.e
        o = self.o
        self.prologue()
        self.build()
        self.cur_setup = None
        pst = []

        def pstamp():
            if o.get('prof', 0) == 3:
                r = 72 + 2 * len(pst)
                P.raw(f"  s_memtime s[{r}:{r + 1}]")
                pst.append(r)
        pstamp()
        for it in self.stage_dma(0):
            self.emit_dma(it)
        pstamp()
        for it in self.stage_dma(1):
            self.emit_dma(it)
        pstamp()
        if o.get('touch', 1) == 2:
            T0, T1 = sr(self.S_T0), sr(self.S_T1)
            srd(P, self.SRD_WO, 's6', 's7', 576 * 1152)
            srd(P, self.SRD_WD, 's12', 's13', 4608 * 1152)
            e('s_mul_i32', sr(self.S_WOR), sr(self.S_S), str(36 * 1152))
            P.emit(self.task_touch())
        self.addr_first(e)
        pstamp()

        frags = []
        KS = []
        for st in self.strips:
            for ks in st['ks']:
                ks['strip'] = st['name']
                KS.append(ks)
                for u in range(len(ks['frags'])):
                    frags.append((ks, u))
        NQ = len(frags)
        NFR = self.NFR
        DIST = NFR - 1
        fr = lambda q: self.FR + 4 * (q % NFR)

        def frag_reads(q):
            ks, u = frags[q]
            areg, off, hd = ks['frags'][u]
            slot = self.slot[ks['stage']]
            if slot >= 3:
                areg = self.TD + (areg - self.TP)
                slot -= 3
            return [I('ds_read_b64_tr_b16', vr(fr(q) + 2 * h, 2), vr(areg), mods=f'offset:{slot * SLOT + off + h * hd}', flag='bar') for h in range(2)]

        gaps = []
        qi = 0
        for ks in KS:
            for u in range(len(ks['frags'])):
                mfs = ks['mf'][u]
                for mi, (accr, breg) in enumerate(mfs):
                    first = ks['t'] == 0
                    btag = ('h', ks['t'], mi) if ks['strip'][0] == 'P' else ('x', ks['t'], mi)
                    gaps.append(dict(q=qi, ks=ks, u=u, mi=mi, n=len(mfs), btag=btag,
                                     inst=I('v_mfma_f32_16x16x32_bf16', accr, vr(fr(qi), 4), breg, '0' if first else accr)))
                qi += 1
        NG = len(gaps)
        sf, sl, frag_first, ks_first = {}, {}, {}, {}
        for gi, g in enumerate(gaps):
            sf.setdefault(g['ks']['strip'], gi)
            sl[g['ks']['strip']] = gi
            frag_first.setdefault(g['q'], gi)
            ks_first.setdefault((g['ks']['strip'], g['ks']['t']), gi)
        fstage = [frags[q][0]['stage'] for q in range(NQ)]
        NST = len(self.stages)
        first_frag_of_stage = {}
        for q in range(NQ):
            first_frag_of_stage.setdefault(fstage[q], q)
        stage_of0 = lambda name, k: [st for st in self.strips if st['name'] == name][0]['ks'][k]['stage']
        read_pos, bar_pos = {}, {}
        LAG = o.get('barlag', 2)
        for q in range(NQ):
            s = fstage[q]
            p = q - DIST
            if s > 0:
                lastq_prev = first_frag_of_stage[s] - 1
                bp = read_pos[lastq_prev] + LAG
                bar_pos[s - 1] = bp
                p = max(p, bp)
            read_pos[q] = p
            assert p < q or q == 0, (q, p)
            assert p >= q - NFR + 1
        bars_at = {}
        for s, p in bar_pos.items():
            bars_at.setdefault(p, []).append(s)
        bar_gap = {s: frag_first[p] for s, p in bar_pos.items()}
        rq = []
        for q in range(NQ):
            if read_pos[q] < 0:
                continue
            for h, ins in enumerate(frag_reads(q)):
                rq.append((frag_first[read_pos[q]], frag_first[q] - o.get('minlead', 7), ins, frag_first[read_pos[q]] + 2 * h))

        self.hfree_bar = None
        dq = []
        b_hfree = bar_gap[stage_of0('P0', 9)]
        b_h6 = bar_gap[stage_of0('P0', 0)]
        prev_user = {}
        last_issue = 0
        for sid in range(NST):
            sl_ = self.slot[sid]
            pu = prev_user.get(sl_)
            prev_user[sl_] = sid
            if sid < 2:
                continue
            if pu is not None:
                lo = bar_gap[pu]
            elif sl_ == 5:
                lo = b_hfree
            elif sl_ >= 3:
                lo = b_h6
            else:
                lo = 0
            hi = bar_gap[sid - 1]
            items = self.stage_dma(sid)
            n = len(items)
            lo = max(lo, last_issue)
            nb = min(b for b in list(bar_gap.values()) + [NG] if b > lo)
            span = max(n, int((nb - lo - 2) * (o.get('dmaspan', 60) if sid >= 8 else 95) / 100))
            step = max(o.get('dmastep', 5) if sid >= 8 else 4, span // n) if sl_ < 3 or sid < self.first_deep else o.get('dmastep', 5)
            if sid >= self.first_deep:
                step = o.get('dmastep', 4)
            for k, it in enumerate(items):
                gi_ = lo + 1 + k * step
                assert gi_ < hi, (sid, gi_, hi)
                dq.append((gi_, it))
            last_issue = lo + 1 + (n - 1) * step
        dq.sort(key=lambda x: x[0])

        LAT = 10
        names0 = ['QKV', 'F0', 'F1', 'F2', 'F3', 'F4h']
        strip = lambda name: [st for st in self.strips if st['name'] == name][0]
        stage_of = lambda name, k: strip(name)['ks'][k]['stage']

        def next_bar(gi):
            return min(b for b in bar_gap.values() if b > gi)
        tasks = []

        def add(st_, en_, lst):
            if isinstance(lst, tuple):
                for l in lst:
                    tasks.append([st_, en_, l, 0])
            else:
                tasks.append([st_, en_, lst, 0])
        late_end = o.get('lateend', 60)
        add(2, late_end, self.task_late_setup())
        rq2 = []
        for t in range(3, 18):
            r = t // 3
            dl = ks_first[('QKV', t)] - 8
            for ins in self.xf_reads(t):
                rq2.append((bar_gap[r - 1] + 1, dl, ins))
        bq = bar_gap[stage_of('F0', 0)] if o.get('qkvbar', 1) == 0 else bar_gap[stage_of('F0', 3)]
        add(sf['F0'] + LAT, bq - 1, self.task_qkv_epi())
        add(bq + 1, sl['F0'], self.task_attn())
        add(sf['F1'] + LAT, sl['F1'], self.task_silu(self.ACC1, 0))
        add(sf['F2'] + LAT, sl['F2'], self.task_silu(self.ACC0, 1))
        add(sf['F3'] + LAT, sl['F3'], self.task_silu(self.ACC1, 2))
        add(sf['F4h'] + LAT, sl['F4h'], self.task_silu(self.ACC0, 3))
        b_f4h = bar_gap[stage_of('P0', 3)]
        add(sf['P0'] + LAT, b_f4h - 1, self.task_silu_h(self.ACC1))
        bF2 = next_bar(sl['F3'])
        bF3 = next_bar(sl['F4h'])
        for k in range(11):
            if k < 8:
                st_ = ks_first[('F4h', k + 1)] + 1
                if k in (4, 5):
                    st_ = max(st_, bF2 + 1)
            elif k < 10:
                st_ = max(bF3 + 1, ks_first[('F4h', k + 1)] + 1)
            else:
                st_ = b_f4h + 1
            dl = ks_first[('P0', k)] - 8
            if k < 6:
                dl = min(dl, bar_gap[stage_of('P0', 0)] - 10)
            assert st_ < dl, (k, st_, dl)
            for ins in self.task_hload(k):
                rq2.append((st_, dl, ins))
        rq2.sort(key=lambda x: x[1])
        if o.get('deep', 1):
            add(sf['P0'] + 2, sf['P0'] + 30, [I('v_add_u32', vr(self.TD + k), str(HB), vr(self.TP + k)) for k in range(6)])
        actions = {}
        prebar = {}
        if o.get('tlb', 0):
            ta = sf[names0[o.get('tlbat', 2)]] + 30
            add(ta, ta + 10, self.task_tlb())
        if o.get('touchgu', 0):
            ta = late_end + 1 + o.get('guoff', 0)
            add(ta, ta + 12, self.task_touch_gu())
        if o.get('touch', 1) == 1:
            ta = sf['F1'] + o.get('touchoff', 400)
            add(ta, ta + o.get('touchlen', 200), self.task_touch())
        add(sf['F4h'] + 2, sf['F4h'] + 6, self.task_p2setup())
        add(sf['P1'] + 40, sf['P1'] + 85, self.task_send(self.ACC0, 0))
        actions[sf['P4h'] + o.get('sig0', 50)] = lambda: self.emit_signal(0)
        inl = {}
        if o.get('k2pf', 0):
            actions[sf['P3'] + 140] = lambda: self.emit_k2_code_touch()
        add(sf['P4h'] + LAT, sf['P4h'] + 80, self.task_send(self.ACC1, 1))
        actions[sf['P2'] + o.get('sig1', 130)] = lambda: self.emit_signal(1)
        add(sf['P2'] + LAT, sf['P2'] + 60, self.task_half(self.ACC0))
        for k, nm, pa, kb in ((2, 'P2', 20, 6), (3, 'P3', 20, o.get('kb3', 3))):
            add(sf[nm] + pa, sf[nm] + pa + 2, self.poll_issue(k))
            sb = stage_of(nm, kb)
            prebar[sb] = (lambda kk=k: self.emit_poll_check(f"K1_poll{kk}"))
            add(bar_gap[sb] + 1, bar_gap[sb] + 30, self.items_incoming(k))
        add(sf['P3'] + o.get('keepat', 50), sl['P3'], self.task_keep(self.ACC1, 2))

        if o.get('notask', 0):
            tasks = []; actions = {}; prebar = {}; inl = {}
        PROF = o.get('prof', 0)
        names = ['QKV', 'F0', 'F1', 'F2', 'F3', 'F4h', 'P0', 'P1', 'P4h', 'P2', 'P3']
        pfrom = names[o.get('pfrom', 0)]
        stamps = list(pst)

        def stamp():
            if PROF:
                r = 72 + 2 * len(stamps)
                P.raw(f"  s_memtime s[{r}:{r + 1}]")
                stamps.append(r)

        P.wait_lds_flagged()
        P.wait_vm_tag(('st', 0))
        if PROF == 3:
            stamp()
        P.barrier()
        if PROF == 3:
            stamp()
        P.emit(self.xf_reads(0))
        for q in range(NQ):
            if read_pos[q] < 0:
                P.emit(frag_reads(q))
        P.emit(self.xf_reads(1))
        P.emit(self.xf_reads(2))
        stamp()

        def icost(x):
            if isinstance(x, list):
                if x[0].op.startswith('v_dot'):
                    return 100
                return sum(y.cost for y in x)
            return x.cost

        def kind(x):
            return x[-1].kind if isinstance(x, list) else x.kind
        SLACK = o.get('slack', 5)
        LEAD = o.get('lead', 4)
        ri = 0
        di = 0
        last_ds_gap = -10
        for gi, g in enumerate(gaps):
            if PROF == 1 and gi in sf.values() and gi > 0:
                stamp()
            if g['mi'] == 0:
                p = g['q']
                if PROF in (2, 3) and len(stamps) < 12 and gi >= sf[pfrom] and bars_at.get(p):
                    stamp()
                for s in bars_at.get(p, []):
                    p4 = PROF == 4 and gi >= sf[pfrom] and len(stamps) < 11
                    if s in prebar:
                        prebar[s]()
                    if p4: stamp()
                    if not o.get('nolgkm', 0):
                        P.wait_lds_flagged()
                    if p4: stamp()
                    P.wait_vm_tag(('st', s + 1))
                    if p4: stamp()
                    if not o.get('nobar', 0):
                        P.barrier()
                    if p4: stamp()
            self.check_b(g)
            if not o.get('nomfma', 0):
                P.emit(g['inst'])
            cap = 8
            ds = False
            while ri < len(rq) and rq[ri][3] <= gi:
                urgent = rq[ri][1] <= gi
                if ds and not urgent:
                    break
                P.emit(rq[ri][2]); ri += 1
                cap -= 4; ds = True
            while True:
                el = [x for x in rq2 if x[0] <= gi]
                if not el:
                    break
                x = el[0]
                isds = kind(x[2]) in ('ldsr',) or isinstance(x[2], list)
                urgent = x[1] - 2 * len([y for y in el if y[1] == x[1]]) <= gi
                if urgent or (isds and not ds and cap >= 4) or (not isds and cap >= 4):
                    P.emit(x[2]); rq2.remove(x); cap -= 4
                    if isds:
                        ds = True
                    if not urgent:
                        break
                else:
                    break
            if di < len(dq) and dq[di][0] <= gi and (cap == 8 or dq[di][0] <= gi - 3):
                self.emit_dma(dq[di][1]); di += 1; cap = 0
                if di < len(dq) and o.get('hoist', 1):
                    self.emit_setup(dq[di][1])
            if gi in inl:
                P.emit(inl[gi]); cap -= 8
            progress = True
            while progress:
                progress = False
                for t_ in tasks:
                    st_, en_, lst, idx = t_
                    if gi < st_ or idx >= len(lst):
                        continue
                    force = gi >= en_
                    target = len(lst) if force else len(lst) * (gi - st_ + 1) / (en_ - st_ + 1)
                    x = lst[idx]
                    c = icost(x); k = kind(x)
                    behind = idx < target - SLACK
                    if not force and idx >= target + LEAD:
                        continue
                    if k in ('ldsr', 'ldsw'):
                        fit = (not ds) and cap >= c
                    elif c >= 100:
                        fit = cap == 8 and idx < target
                    else:
                        fit = cap >= c
                    if fit or force or (behind and cap > 0):
                        P.emit(x); cap -= c; t_[3] = idx + 1
                        if k in ('ldsr', 'ldsw'):
                            ds = True
                        progress = True
            if gi in actions:
                actions[gi]()
        assert ri == len(rq) and di == len(dq) and not rq2, (ri, len(rq), di, len(dq), len(rq2))
        for t_ in tasks:
            assert t_[3] == len(t_[2])
        while PROF >= 2 and len(stamps) < 12:
            stamp()
        stamp()
        if not o.get('notask', 0):
            P.emit(self.task_keep(self.ACC0, 3))
        if PROF:
            P.wait_vm(0)
            stamp()
            P.raw("  s_memrealtime s[100:101]")
            P.raw("  s_waitcnt lgkmcnt(0)")
            e('s_add_u32', 's4', 's14', str(64 << 20)); e('s_addc_u32', 's5', 's15', '0')
            srd(P, 8, 's4', 's5', 1 << 20)
            e('s_lshl_b32', 's6', 's2', '2'); e('s_add_u32', 's6', 's6', sr(self.S_W)); e('s_lshl_b32', 's6', 's6', '7')
            e('v_mov_b32', 'v4', '0')
            allst = [46] + stamps + [100, 98]
            for k, r in enumerate(allst):
                e('v_mov_b32', 'v5', sr(r))
                e('buffer_store_dword', 'v5', 'v4', 's[8:11]', 's6', mods=f'offen offset:{4 * k}')
        tl_end(P, self.o, 1)
        hx_slot(P, self.o, 2, 'max', False)
        P.label("K1_end")
        P.raw("  s_endpgm")


def gen_k1(opts):
    k = K1(opts)
    name = "k1_main_kernel"
    kernel_begin(k.P, name)
    k.emit_all()
    print("K1 stats", k.P.stats, file=sys.stderr)
    return k.P.text(), descriptor(name, 512, 256, 102), (name, 256, 256, LDS_TOTAL)


def main():
    out = sys.argv[1]
    opts = {}
    for a in sys.argv[2:]:
        kk, v = a.split('='); opts[kk] = int(v)
    parts = [gen_k0(opts), gen_k1(opts), gen_k2(opts)]
    txt = header_comments([p[2] for p in parts])
    for p in parts:
        txt += p[0]
    txt += '.section .rodata,"a"\n'
    for p in parts:
        txt += p[1]
    open(out, 'w').write(txt)


if __name__ == "__main__":
    main()
```
